```python
import torch

def _softmax(x, axis=-1):
    return torch.softmax(x, dim=axis)
def _gelu(x):
    return torch.nn.functional.gelu(x, approximate="tanh")
def _silu(x):
    return torch.nn.functional.silu(x)
def _sigmoid(x):
    return torch.sigmoid(x)
def _layernorm(x, axis=-1, eps=1e-5):
    m = x.mean(dim=axis, keepdim=True)
    v = x.var(dim=axis, keepdim=True, unbiased=False)
    return (x - m) / torch.sqrt(v + eps)
def _scatter_add(tgt, idx, src, axis=0):
    return tgt.clone().index_add_(axis, idx, src)
def _segment_sum(src, seg, n):
    out = torch.zeros((n,) + src.shape[1:], dtype=src.dtype)
    return out.index_add_(0, seg, src)
def _pad(x, pw):
    flat = tuple(v for pair in reversed(pw) for v in pair)
    return torch.nn.functional.pad(x, flat)

kernel_name = 'recurrent_scan__spectral_fnet__swiglu_ffn__prompt'

def setup_inputs():

    _w = (lambda a: (lambda t: t.to(torch.bfloat16) if t.is_floating_point() else t)(torch.as_tensor(a)))
    def _A_setup():
        B, S, D = 1, 2048, 576
        ns = torch.arange(S)[:, None] * torch.arange(S)[None, :]
        nd = torch.arange(D)[:, None] * torch.arange(D)[None, :]
        Ws_re = torch.cos(-2.0 * torch.pi * ns / S).to(float)
        Ws_im = torch.sin(-2.0 * torch.pi * ns / S).to(float)
        Wd_re = torch.cos(-2.0 * torch.pi * nd / D).to(float)
        Wd_im = torch.sin(-2.0 * torch.pi * nd / D).to(float)
        return {
            "x": _w((lambda *s: torch.randn(*s, dtype=torch.bfloat16) * 0.05)(B, S, D)),
            "dft_seq_re": _w(Ws_re),
            "dft_seq_im": _w(Ws_im),
            "dft_hid_re": _w(Wd_re),
            "dft_hid_im": _w(Wd_im),
        }
    _A_in = _A_setup()

    def _B_setup():
        B, S, D, F = 1, 2048, 576, 4608
        return {
            "x": _w((lambda *s: torch.randn(*s, dtype=torch.bfloat16) * 0.05)(B, S, D)),
            "w_gate": _w((lambda *s: torch.randn(*s, dtype=torch.bfloat16) * 0.05)(D, F)),
            "w_up": _w((lambda *s: torch.randn(*s, dtype=torch.bfloat16) * 0.05)(D, F)),
            "w_down": _w((lambda *s: torch.randn(*s, dtype=torch.bfloat16) * 0.05)(F, D)),
        }
    _B_in = _B_setup()

    return {
        "A_x": _A_in["x"],
        "A_dft_seq_re": _A_in["dft_seq_re"],
        "A_dft_seq_im": _A_in["dft_seq_im"],
        "A_dft_hid_re": _A_in["dft_hid_re"],
        "A_dft_hid_im": _A_in["dft_hid_im"],
        "B_x": _B_in["x"],
        "B_w_gate": _B_in["w_gate"],
        "B_w_up": _B_in["w_up"],
        "B_w_down": _B_in["w_down"],
    }

def reference(A_x, A_dft_seq_re, A_dft_seq_im, A_dft_hid_re, A_dft_hid_im, B_x, B_w_gate, B_w_up, B_w_down):
    def _A_ref(x, dft_seq_re, dft_seq_im, dft_hid_re, dft_hid_im):
        a = torch.einsum("bsd,ed->bse", x, dft_hid_re)
        b = torch.einsum("bsd,ed->bse", x, dft_hid_im)
        y = torch.einsum("ts,bse->bte", dft_seq_re, a) - torch.einsum("ts,bse->bte", dft_seq_im, b)
        return y

    def _B_ref(x, w_gate, w_up, w_down):
        g = _silu(x @ w_gate)
        u = x @ w_up
        return (g * u) @ w_down

    x = A_x
    xn = _layernorm(x, axis=-1)
    s = _A_ref(xn, A_dft_seq_re, A_dft_seq_im, A_dft_hid_re, A_dft_hid_im)
    g = _silu(_B_ref(xn, B_w_gate, B_w_up, B_w_down))
    return x + s * g
```

```python
import re
RE_RANGE = re.compile(r'^-?\|?([vas])\[(\d+):(\d+)\]\|?$')
RE_ONE = re.compile(r'^-?\|?([vas])(\d+)\|?$')
TRANS = ('v_exp_f32', 'v_log_f32', 'v_rcp_f32', 'v_rsq_f32', 'v_sqrt_f32', 'v_sin_f32', 'v_cos_f32')

def regs_of(tok):
    tok = tok.strip()
    m = RE_RANGE.match(tok)
    if m: return [(m.group(1), i) for i in range(int(m.group(2)), int(m.group(3)) + 1)]
    m = RE_ONE.match(tok)
    if m: return [(m.group(1), int(m.group(2)))]
    if tok == 'vcc': return [('s', 'vcc')]
    if tok == 'vcc_lo': return [('s', 'vcc')]
    if tok == 'exec': return [('s', 'exec')]
    if tok == 'm0': return [('s', 'm0')]
    return []

class Ins:
    __slots__ = ('text', 'op', 'dst', 'src', 'kind', 'passes', 'pseudo', 'arg', 'wait', 'nop', 'wide', 'cmt')
    def __init__(self, text, pseudo=None, arg=None):
        self.text = text; self.pseudo = pseudo; self.arg = arg
        self.wait = None
        self.nop = 0
        self.dst = set(); self.src = set(); self.kind = None; self.passes = 0; self.wide = False
        if pseudo: self.op = pseudo; return
        t = text.split(';')[0].strip()
        parts = t.split(None, 1)
        op = parts[0]; self.op = op
        rest = parts[1] if len(parts) > 1 else ''
        extra = []
        mm = re.search(r'\s(quad_perm|row_|wave_|op_sel|neg_lo|neg_hi|dst_sel|src0_sel|src1_sel)', rest)
        if mm:
            extra = rest[mm.start():].split(); rest = rest[:mm.start()]
        ops = [o.strip() for o in rest.split(',')] if rest else []
        mods = []
        if ops:
            l = ops[-1].split()
            ops[-1] = l[0]; mods = l[1:]
        mods = mods + extra
        R = [regs_of(o) for o in ops]
        def S(lst):
            s = set()
            for r in lst: s.update(r)
            return s
        if op.startswith('v_mfma'):
            self.kind = 'mfma'; self.dst = S(R[:1]); self.src = S(R[1:])
            self.passes = 8 if '32x32x16' in op else (4 if '16x16x32' in op else 16)
            self.arg = (S(R[1:3]), S(R[3:4]))
        elif op.startswith('ds_read'):
            self.kind = 'dsr'; self.dst = S(R[:1]); self.src = S(R[1:])
        elif op.startswith('ds_write'):
            self.kind = 'dsw'; self.src = S(R)
        elif op.startswith('ds_'):
            self.kind = 'dsr'; self.dst = S(R[:1]); self.src = S(R[1:])
        elif op.startswith('buffer_load') or op.startswith('global_load'):
            if 'lds' in mods:
                self.kind = 'vmdma'; self.src = S(R) | {('s', 'm0')}
            else:
                self.kind = 'vmld'; self.dst = S(R[:1]); self.src = S(R[1:])
        elif op.startswith('buffer_store') or op.startswith('global_store'):
            self.kind = 'vmst'; self.src = S(R)
            self.wide = ('dwordx4' in op or 'dwordx3' in op); self.arg = S(R[:1]) if op.startswith('buffer') else S(R[1:2])
        elif op.startswith('buffer_atomic') or op.startswith('global_atomic'):
            self.kind = 'vmst'; self.src = S(R)
            if 'glc' in mods or 'sc0' in mods: self.kind = 'vmld'; self.dst = S(R[:1])
        elif op.startswith('s_load') or op.startswith('s_buffer_load') or op in ('s_memtime', 's_memrealtime'):
            self.kind = 'smem'; self.dst = S(R[:1]); self.src = S(R[1:])
        elif op.startswith('v_'):
            self.kind = 'valu'
            if op.startswith('v_cmp'):
                self.dst = S(R[:1]); self.src = S(R[1:])
                if op.startswith('v_cmpx'): self.dst.add(('s', 'exec'))
            elif op.endswith('_co_u32') or op.startswith('v_addc') or op.startswith('v_subb'):
                self.dst = S(R[:2]); self.src = S(R[2:])
            elif op.startswith('v_permlane32_swap') or op.startswith('v_permlane16_swap') or op.startswith('v_swap'):
                self.dst = S(R[:2]); self.src = S(R[:2])
            else:
                self.dst = S(R[:1]); self.src = S(R[1:])
                if op.startswith('v_fmac') or op.startswith('v_mac') or op.startswith('v_dot2c') or op.startswith('v_writelane') or 'd16_hi' in op or any(m.startswith('dst_unused:UNUSED_PRESERVE') for m in mods):
                    self.src |= self.dst
            if any(m.startswith('quad_perm') or m.startswith('row_') or m.startswith('wave_') or m.startswith('row_bcast') for m in mods): self.arg = 'dpp'
        elif op.startswith('s_'):
            self.kind = 'salu'
            if op.startswith('s_cmp') or op.startswith('s_cbranch') or op in ('s_branch', 's_barrier', 's_waitcnt', 's_nop', 's_endpgm', 's_setprio', 's_sleep', 's_bitcmp1_b32', 's_bitcmp0_b32'):
                self.src = S(R)
            else:
                self.dst = S(R[:1]); self.src = S(R[1:])
                if 'saveexec' in op: self.dst.add(('s', 'exec')); self.src.add(('s', 'exec'))
        else:
            raise ValueError('cannot parse: ' + text)

class Seg:
    def __init__(self, name):
        self.name = name; self.ins = []
    def e(self, s, *a):
        if a: s = s % a
        for l in s.split('\n'):
            l = l.strip()
            if l: self.ins.append(Ins(l))
    def lab(self, name): self.ins.append(Ins(name + ':', pseudo='label'))
    def c(self, s): self.ins.append(Ins('; ' + s, pseudo='comment'))
    def mark(self, name): self.ins.append(Ins('', pseudo='mark', arg=name))
    def waitmark(self, name, back=0):
        self.ins.append(Ins('', pseudo='waitmark', arg=(name, back)))
    def waitvm(self, n): self.ins.append(Ins('', pseudo='waitabs', arg=(n, None)))
    def waitlg(self, n): self.ins.append(Ins('', pseudo='waitabs', arg=(None, n)))
    def waitall(self): self.ins.append(Ins('', pseudo='waitabs', arg=(0, 0)))
    def raw(self, s): self.ins.append(Ins(s, pseudo='raw'))

class Sim:
    def __init__(self):
        self.vm = []
        self.lg = []
        self.marks = {}
        self.vmissued = 0
        self.hist = []
        self.problems = []
    def need_wait(self, ins):
        vm = None; lg = None
        touched = ins.src | ins.dst
        for i, (d, _) in enumerate(self.vm):
            if d & touched: vm = len(self.vm) - 1 - i
        for i, (d, sm) in enumerate(self.lg):
            if d & touched:
                c = len(self.lg) - 1 - i
                if sm or any(x[1] for x in self.lg): c = 0
                lg = c
        return vm, lg
    def apply_wait(self, vm, lg):
        if vm is not None:
            while len(self.vm) > vm: self.vm.pop(0)
        if lg is not None:
            while len(self.lg) > lg: self.lg.pop(0)
    def hazard(self, ins):
        need = 0
        H = self.hist
        n = len(H)
        for back in range(1, min(n, 21) + 1):
            p = H[n - back]
            if p is None: continue
            dist = back - 1
            req = 0
            pk = p.kind; k = ins.kind
            vd = {r for r in p.dst if r[0] in 'va'}
            sd = {r for r in p.dst if r[0] == 's'}
            if pk == 'valu':
                if k == 'mfma' and vd & ins.src: req = max(req, 2)
                if k == 'mfma' and ('s', 'exec') in sd: req = max(req, 4)
                if k in ('vmld', 'vmst', 'vmdma') and sd & ins.src: req = max(req, 5)
                if k == 'valu' and sd & ins.src:
                    req = max(req, 4 if ins.op.startswith('v_readlane') or ins.op.startswith('v_writelane') else 2)
                if k == 'valu' and (ins.op.startswith('v_readfirstlane') or ins.op.startswith('v_readlane')) and vd & ins.src: req = max(req, 1)
                if k == 'valu' and ins.arg == 'dpp' and vd & ins.src: req = max(req, 2)
                if k == 'valu' and ins.arg == 'dpp' and ('s', 'exec') in sd: req = max(req, 5)
                if k == 'valu' and ins.op.startswith('v_permlane') and vd & ins.src: req = max(req, 2)
                if k == 'valu' and p.op in TRANS and ins.op not in TRANS and vd & ins.src: req = max(req, 1)
                if k == 'valu' and p.op in TRANS and vd & (ins.src | ins.dst): req = max(req, 1)
                if k == 'salu' and ins.op.startswith('s_cbranch_vcc') and ('s', 'vcc') in sd: req = max(req, 5)
                if k == 'salu' and ins.op.startswith('s_cbranch_exec') and ('s', 'exec') in sd: req = max(req, 5)
                if k == 'salu' and sd & ins.src: req = max(req, 1)
            if pk == 'salu':
                if ('s', 'm0') in sd and k == 'vmdma': req = max(req, 1)
            if pk == 'mfma':
                w = {4: 8, 8: 12, 16: 20}[p.passes]
                if k == 'mfma':
                    ab, c = ins.arg
                    if p.dst & ab: req = max(req, w)
                    if p.dst & c and p.dst != c: req = max(req, w - 2)
                    if p.dst & ins.dst and p.dst != ins.dst: req = max(req, w)
                elif k in ('valu', 'dsr', 'dsw', 'vmld', 'vmst', 'vmdma'):
                    if p.dst & (ins.src | ins.dst): req = max(req, w)
                    if k == 'valu' and p.arg[1] & ins.dst: req = max(req, {4: 3, 8: 7, 16: 15}[p.passes])
                    if k in ('dsr', 'vmld') and p.arg[1] & ins.dst: req = max(req, {4: 3, 8: 7, 16: 15}[p.passes])
            if pk == 'vmst' and p.wide:
                if p.arg & ins.dst: req = max(req, 2 if k == 'valu' else 1)
            if req > dist: need = max(need, req - dist)
        return need
    def push(self, ins):
        self.hist.append(ins)
        if len(self.hist) > 32: self.hist.pop(0)
    def step(self, ins, collect):
        ps = ins.pseudo
        if ps in ('label', 'comment', 'raw'): return
        if ps == 'mark':
            self.marks.setdefault(ins.arg, []).append(self.vmissued); return
        if ps in ('waitmark', 'waitabs'):
            if ps == 'waitmark':
                name, back = ins.arg
                m = self.marks.get(name, [])
                if len(m) > back:
                    vm = self.vmissued - m[-1 - back]; lg = None
                else:
                    vm = None; lg = None
                if vm is not None and vm > len(self.vm): vm = len(self.vm)
            else:
                vm, lg = ins.arg
            if collect:
                ins.wait = merge(ins.wait, (vm, lg))
            else:
                if vm is not None and (ins.wait is None or ins.wait[0] is None or ins.wait[0] > vm):
                    if len(self.vm) > vm: self.problems.append(('waitmark', ins.arg))
            if ins.wait and (ins.wait[0] is not None or ins.wait[1] is not None):
                self.apply_wait(*ins.wait); self.push(None)
            return
        vm, lg = self.need_wait(ins)
        if collect:
            if vm is not None or lg is not None: ins.wait = merge(ins.wait, (vm, lg))
        if ins.wait:
            self.apply_wait(*ins.wait); self.push(None)
        if not collect:
            vm, lg = self.need_wait(ins)
            if vm is not None or lg is not None: self.problems.append(('wait', ins.text, vm, lg))
        if collect:
            for _ in range(ins.nop): self.push(None)
            h = self.hazard(ins)
            if h > 0:
                ins.nop += h
                for _ in range(h): self.push(None)
        else:
            for _ in range(ins.nop): self.push(None)
            h = self.hazard(ins)
            if h > 0: self.problems.append(('hazard', ins.text, h))
        k = ins.kind
        if k in ('vmld',): self.vm.append((set(ins.dst), 0)); self.vmissued += 1
        elif k in ('vmst', 'vmdma'): self.vm.append((set(), 0)); self.vmissued += 1
        elif k == 'dsr': self.lg.append((set(ins.dst), False))
        elif k == 'dsw': self.lg.append((set(), False))
        elif k == 'smem': self.lg.append((set(ins.dst), True))
        if ins.op == 's_waitcnt':
            t = ins.text
            m = re.search(r'vmcnt\((\d+)\)', t); v = int(m.group(1)) if m else None
            m = re.search(r'lgkmcnt\((\d+)\)', t); l = int(m.group(1)) if m else None
            self.apply_wait(v, l)
        if ins.op == 's_nop':
            for _ in range(int(ins.text.split()[1])): self.push(None)
        while len(self.vm) > 63: self.vm.pop(0)
        self.push(ins)

def merge(a, b):
    if a is None: return b
    def m(x, y):
        if x is None: return y
        if y is None: return x
        return min(x, y)
    return (m(a[0], b[0]), m(a[1], b[1]))

def resolve(paths):
    for it in range(6):
        before = snapshot(paths)
        for p in paths:
            s = Sim()
            for seg in p:
                for ins in seg.ins: s.step(ins, True)
        if snapshot(paths) == before: break
    allp = []
    for p in paths:
        s = Sim()
        for seg in p:
            for ins in seg.ins: s.step(ins, False)
        allp += s.problems
    return allp

def snapshot(paths):
    out = []
    seen = set()
    for p in paths:
        for seg in p:
            if id(seg) in seen: continue
            seen.add(id(seg))
            out.append(tuple((i.wait, i.nop) for i in seg.ins))
    return out

def render(seg, stats=None):
    L = []
    for ins in seg.ins:
        ps = ins.pseudo
        if ps == 'mark': continue
        w = ins.wait
        if w and (w[0] is not None or w[1] is not None):
            parts = []
            if w[0] is not None: parts.append('vmcnt(%d)' % min(w[0], 63))
            if w[1] is not None: parts.append('lgkmcnt(%d)' % min(w[1], 15))
            L.append('s_waitcnt ' + ' '.join(parts))
        if ps in ('waitmark', 'waitabs'): continue
        n = ins.nop
        if n and stats is not None: stats.append((seg.name, n, ins.text))
        while n > 0:
            q = min(n, 16); L.append('s_nop %d' % (q - 1)); n -= q
        L.append(ins.text)
    return L
```

```python
from emit import *
XN   = 0x0
XEE  = 0x240000
XOO  = 0x300000
PART = 0x400000
SLOTB = 2359296
T64B = 73728
WS_BYTES = 0x4000000
SLOT = 12288; NS = 6
HB = 73728
HX = HB + 81920
LDS_BYTES = HX + 1024
PF = 3
NF = 8
CNEG = 33

def wt(ins, o):
    if ins.startswith("v_exp") or ins.startswith("v_rcp"): return o['wtrans']
    if ins.startswith("s_"): return o['wsalu']
    return 1.0

def spread(gaps, queue, o, start=0, end=None):
    if not queue: return
    G = len(gaps) if end is None else end
    idx = list(range(start, G))
    load = {g: sum(wt(i, o) for i in gaps[g] if isinstance(i, str)) for g in idx}
    tot = sum(load.values()) + sum(wt(i, o) for i in queue)
    p = 0; cum = load[idx[0]]
    for ins in queue:
        w = wt(ins, o)
        while p < len(idx) - 1 and cum + w * 0.5 > tot * (p + 1) / len(idx):
            p += 1; cum += load[idx[p]]
        gaps[idx[p]].append(ins); cum += w

def emit_gaps(s, mf, gaps):
    for m, g in zip(mf, gaps):
        for pre in m[:-1]: put(s, pre)
        s.e(m[-1])
        for x in g: put(s, x)

def put(s, x):
    if isinstance(x, str): s.e(x)
    elif x[0] == 'mark': s.mark(x[1])
    elif x[0] == 'waitmark': s.waitmark(x[1], x[2])
    elif x[0] == 'waitlg': s.waitlg(x[1])
    elif x[0] == 'c': s.c(x[1])
    else: raise ValueError(x)

def xreg(i):
    return ("a[%d:%d]" % (4 * i, 4 * i + 3)) if i < 64 else ("v[%d:%d]" % (224 + 4 * (i - 64), 227 + 4 * (i - 64)))

def areg(n): r = 80 + 4 * (n % NF); return r

def rd1(n, half):
    st = n // 6; kp = n % 6
    r = areg(n) + 2 * half
    off = (st % NS) * SLOT + kp * 2048 + half * 512; base = 5
    if off >= 65536: off -= 65536; base = 6
    return "ds_read_b64_tr_b16 v[%d:%d], v%d offset:%d" % (r, r + 1, base, off)

def rd2(n, half, n0):
    q = n - n0; st = q // 6; kp = q % 6
    r = areg(n) + 2 * half
    off = (st % NS) * SLOT + kp * 2048 + half * 1024; base = 8
    if off >= 65536: off -= 65536; base = 9
    return "ds_read_b64_tr_b16 v[%d:%d], v%d offset:%d" % (r, r + 1, base, off)

def dma1(mat, kc, slot):
    sr = 12 if mat == 0 else 16
    su = ["s_add_u32 m0, s29, %d" % (slot * SLOT), "s_add_u32 s31, s30, %d" % (kc * 96 * 9216)]
    ld = ["buffer_load_dwordx4 v%d, s[%d:%d], s31 offen offset:%d lds" % (2 + j, sr, sr + 3, 1024 * j) for j in range(3)]
    return su, ld

def dma2(st, K):
    out = []
    for j in range(3):
        R = 96 * st + 32 * j; sg = R // K; row0 = R % K
        su = ["s_add_u32 m0, s34, %d" % ((st % NS) * SLOT + j * 4096), "s_add_u32 s31, s35, %d" % (sg * 128 + row0 * 1152)]
        out.append((su, "buffer_load_dwordx4 v10, s[20:23], s31 offen lds"))
    return out

def epi1():
    L = []
    for p0 in range(0, 32, 4):
        for j in range(4): L.append("v_mul_f32 v%d, s%d, v%d" % (112 + p0 + j, CNEG, 16 + p0 + j))
        for j in range(4): L.append("v_exp_f32 v%d, v%d" % (144 + p0 + j, 112 + p0 + j))
        for j in range(4): L.append("v_fma_f32 v%d, v%d, s%d, s%d" % (144 + p0 + j, 144 + p0 + j, CNEG, CNEG))
    return L

def epi2():
    L = []
    for p0 in range(0, 32, 4):
        for j in range(4): L.append("v_rcp_f32 v%d, v%d" % (144 + p0 + j, 144 + p0 + j))
        for j in range(4): L.append("v_mul_f32 v%d, v%d, v%d" % (112 + p0 + j, 112 + p0 + j, 48 + p0 + j))
        for j in range(4): L.append("v_mul_f32 v%d, v%d, v%d" % (112 + p0 + j, 112 + p0 + j, 144 + p0 + j))
        for j in range(0, 4, 2): L.append("v_cvt_pk_bf16_f32 v%d, v%d, v%d" % (176 + (p0 + j) // 2, 112 + p0 + j, 112 + p0 + j + 1))
        if p0 % 8 == 4:
            n = p0 // 16; J = (p0 // 8) % 2
            L.append("ds_write_b128 v7, v[%d:%d] offset:%d" % (176 + n * 8 + 4 * J, 179 + n * 8 + 4 * J, n * 20480 + J * 1024))
    return L

class P1:
    def __init__(self, o): self.n = 0; self.o = o
    def phase(self, s, mat, epi, dmaf, extra_first=None, nextrd=None, last_barrier=True, first_c0=True, post=None):
        o = self.o
        acc = 16 if mat == 0 else 48
        per = (len(epi) + 5) // 6
        epi = list(epi)
        for i in range(6):
            gaps = [[] for _ in range(12)]
            mf = []
            for kp in range(6):
                n = self.n + kp
                f = nextrd if nextrd else rd1
                nn = n + PF
                if nextrd and (i * 6 + kp + PF) < 36: f = rd1
                gaps[2 * kp].append(f(nn, 0)); gaps[2 * kp + 1].append(f(nn, 1))
                kap = i * 6 + kp
                for t in range(2):
                    A = areg(n); D = acc + 16 * t
                    C = "0" if kap == 0 else "v[%d:%d]" % (D, D + 15)
                    mf.append(["v_mfma_f32_32x32x16_bf16 v[%d:%d], v[%d:%d], %s, %s" % (D, D + 15, A, A + 3, xreg(kap * 2 + t), C)])
            for g, ins in dmaf(i): gaps[g].append(ins)
            if i == 0:
                mine = epi[:per - o['first_less']]; epi = epi[len(mine):]
                spread(gaps, mine, o, start=o['epi_start'])
            else:
                rem = 6 - i
                cnt = (len(epi) + rem - 1) // rem
                mine = epi[:cnt]; epi = epi[cnt:]
                spread(gaps, mine, o)
            if post and i in post:
                for g, ins in post[i]: gaps[g].append(ins)
            emit_gaps(s, mf, gaps)
            self.n += 6
            if i < 5 or last_barrier:
                s.waitmark("dma", 3); s.e("s_barrier")
        assert not epi

def dma_gaps1(mat, kc, slot):
    su, ld = dma1(mat, kc, slot)
    return [(0, su[0]), (1, su[1]), (3, ld[0]), (6, ld[1]), (9, ld[2]), (9, ('mark', 'dma'))]

def dma_gaps2(st, K):
    L = []
    for j, (su, ld) in enumerate(dma2(st, K)):
        g = [1, 5, 9][j]
        L += [(g - 1, su[0]), (g - 1, su[1]), (g, ld)]
    L.append((9, ('mark', 'dma')))
    return L

def phase2(s, o, n0, K, dft):
    nk = K // 16; Q = 9 * nk; nst = Q // 6
    def st_out(seg):
        acc = 16 if seg % 2 == 0 else 48
        L = ["s_add_u32 s37, s36, %d" % (seg * 8192)]
        for n in range(2):
            for J in range(2):
                for q in range(4):
                    r = acc + 16 * n + 8 * J + 2 * q
                    L.append("v_cvt_pk_bf16_f32 v%d, v%d, v%d" % (176 + n * 8 + 4 * J + q, r, r + 1))
                L.append("buffer_store_dwordx4 v[%d:%d], v11, s[8:11], s37 offen offset:%d" % (176 + n * 8 + 4 * J, 179 + n * 8 + 4 * J, n * 2048 + J * 1024))
        if dft:
            x = 208 + seg % 2
            L += ["v_mov_b32 v210, v%d" % x, "s_add_u32 s39, s38, %d" % (seg * 8192), "s_nop 0",
                  "v_permlane32_swap_b32 v%d, v210" % x, "v_add_f32 v210, v%d, v210" % x, "v_cvt_pk_bf16_f32 v210, v210, v210",
                  "buffer_store_short v210, v12, s[8:11], s39 offen"]
        return L
    def hx(kap, j):
        return (112 + 4 * kap + j) if kap < 16 else (192 + 4 * (kap - 16) + j)
    pend = []
    for st in range(nst):
        gaps = [[] for _ in range(12)]
        mf = []
        newseg = None
        for kp in range(6):
            q = st * 6 + kp; seg = q // nk; kap = q % nk
            n = n0 + q
            if q + PF < Q:
                gaps[2 * kp].append(rd2(n + PF, 0, n0)); gaps[2 * kp + 1].append(rd2(n + PF, 1, n0))
            acc = 16 if seg % 2 == 0 else 48
            for t in range(2):
                A = areg(n); D = acc + 16 * t
                C = "0" if kap == 0 else "v[%d:%d]" % (D, D + 15)
                j = kap * 2 + t
                mf.append(["v_mfma_f32_32x32x16_bf16 v[%d:%d], v[%d:%d], a[%d:%d], %s" % (D, D + 15, A, A + 3, 4 * j, 4 * j + 3, C)])
            if dft:
                x = 208 + seg % 2; A = areg(n)
                for jj in range(4):
                    c = "0" if (kap == 0 and jj == 0) else "v%d" % x
                    gaps[2 * kp + (jj // 2)].append("v_dot2_f32_bf16 v%d, v%d, v%d, %s" % (x, A + jj, hx(kap, jj), c))
            if kap == 0 and seg > 0:
                newseg = (kp, seg - 1)
        if st + 5 < nst:
            for g, ins in dma_gaps2(st + 5, K): gaps[g].append(ins)
        if newseg is not None:
            kp, sg = newseg
            assert not pend
            pend = st_out(sg)
            start = 2 * kp + o['p2_epi_delay']
        else:
            start = 0
        if pend:
            if start < 12:
                room = (12 - start) * o['p2_epi_rate']
                mine = pend[:room]; pend = pend[room:]
                spread(gaps, mine, o, start=start)
        emit_gaps(s, mf, gaps)
        if st + 2 <= nst - 1:
            last_issued = min(st + 5, nst - 1)
            s.waitmark("dma", last_issued - (st + 2)); s.e("s_barrier")
    assert not pend
    for ins in st_out(8): s.e(ins)

def gen_k2(Kern, srd, opts):
    o = dict(wtrans=2.0, wsalu=0.3, epi_start=4, first_less=4, p2_epi_delay=5, p2_epi_rate=2)
    for k, v in opts.items():
        if k in o: o[k] = type(o[k])(v)
    K = Kern("main_kernel", (256, 1, 1), (256, 1, 1), LDS_BYTES, vgpr=512, accum=256)
    a = K.seg("head")
    a.e("s_cmp_ge_u32 s2, 256"); a.e("s_cbranch_scc1 K2_end")
    a.e("s_load_dwordx2 s[4:5], s[0:1], 88")
    a.e("s_load_dwordx4 s[40:43], s[0:1], 48")
    a.e("s_load_dwordx2 s[44:45], s[0:1], 64")
    a.e("s_load_dwordx4 s[48:51], s[0:1], 8")
    a.e("s_load_dwordx4 s[52:55], s[0:1], 24")
    a.e("v_lshrrev_b32 v1, 6, v0"); a.e("v_and_b32 v0, 63, v0"); a.e("v_readfirstlane_b32 s24, v1")
    a.e("s_and_b32 s3, s2, 7"); a.e("s_lshr_b32 s28, s2, 3"); a.e("s_lshr_b32 s27, s28, 4"); a.e("s_lshl_b32 s3, s3, 1")
    a.e("s_add_u32 s27, s27, s3"); a.e("s_and_b32 s28, s28, 15")
    a.e("s_lshr_b32 s25, s24, 1"); a.e("s_and_b32 s26, s24, 1")
    a.e("s_mov_b32 s%d, 0xbfb8aa3b" % CNEG)
    a.e("v_lshrrev_b32 v13, 4, v0"); a.e("v_bfe_u32 v14, v0, 2, 2"); a.e("v_and_b32 v15, 3, v0")
    a.e("v_lshlrev_b32 v11, 4, v0")
    a.e("v_lshrrev_b32 v1, 1, v13"); a.e("v_lshlrev_b32 v1, 2, v1"); a.e("v_add_u32 v1, v1, v14"); a.e("v_lshlrev_b32 v8, 7, v1")
    a.e("v_and_b32 v1, 1, v13"); a.e("v_lshlrev_b32 v1, 1, v1"); a.e("s_lshl_b32 s3, s26, 2"); a.e("v_add_u32 v1, s3, v1")
    a.e("v_bfe_u32 v9, v14, 1, 1"); a.e("v_lshlrev_b32 v9, 2, v9")
    a.e("v_and_b32 v12, 1, v15"); a.e("v_add_u32 v12, v1, v12"); a.e("v_xor_b32 v12, v12, v9"); a.e("v_lshlrev_b32 v12, 4, v12"); a.e("v_add_u32 v8, v8, v12")
    a.e("v_lshrrev_b32 v12, 1, v15"); a.e("v_lshlrev_b32 v12, 3, v12"); a.e("v_add_u32 v8, v8, v12")
    a.e("v_lshrrev_b32 v12, 1, v15"); a.e("v_add_u32 v12, v1, v12"); a.e("v_xor_b32 v12, v12, v9"); a.e("v_lshlrev_b32 v12, 4, v12")
    a.e("v_lshrrev_b32 v5, 1, v13"); a.e("v_lshlrev_b32 v5, 3, v5"); a.e("v_add_u32 v5, v5, v14"); a.e("v_lshlrev_b32 v5, 7, v5"); a.e("v_add_u32 v5, v5, v12")
    a.e("v_and_b32 v12, 1, v15"); a.e("v_lshlrev_b32 v12, 3, v12"); a.e("v_add_u32 v5, v5, v12")
    a.e("v_add_u32 v6, 0x10000, v5"); a.e("v_add_u32 v9, 0x10000, v8")
    a.e("v_lshrrev_b32 v13, 3, v0"); a.e("v_and_b32 v14, 7, v0"); a.e("v_bfe_u32 v15, v13, 1, 1"); a.e("v_lshlrev_b32 v15, 2, v15")
    a.e("v_xor_b32 v14, v14, v15"); a.e("v_lshlrev_b32 v14, 4, v14")
    a.e("s_movk_i32 s3, 1152"); a.e("v_mul_lo_u32 v10, v13, s3"); a.e("v_add_u32 v10, v10, v14")
    a.e("s_movk_i32 s3, 9216"); a.e("v_mul_lo_u32 v2, v13, s3"); a.e("v_add_u32 v2, v2, v14")
    a.e("v_add_u32 v3, %d, v2" % (8 * 9216 - 1024)); a.e("v_add_u32 v4, %d, v2" % (16 * 9216 - 2048))
    a.e("s_lshl_b32 s34, s24, 10")
    a.e("s_mul_i32 s36, s27, %d" % SLOTB); a.e("s_lshl_b32 s3, s28, 1"); a.e("s_add_u32 s3, s3, s25"); a.e("s_mul_i32 s3, s3, %d" % T64B)
    a.e("s_add_u32 s36, s36, s3"); a.e("s_lshl_b32 s46, s26, 12"); a.e("s_add_u32 s36, s36, s46"); a.e("s_add_u32 s36, s36, %d" % PART)
    a.waitlg(0)
    srd(a, 8, 4, WS_BYTES)
    a.e("s_cmp_eq_u32 s27, 15"); a.e("s_cbranch_scc1 K2_dft")
    f = K.seg("ffn_pro")
    srd(f, 12, 40, 576 * 9216); srd(f, 16, 42, 576 * 9216); srd(f, 20, 44, 4608 * 1152)
    f.e("s_mul_i32 s46, s27, 5"); f.e("s_lshl_b32 s47, s27, 2"); f.e("s_add_u32 s47, s47, 12")
    f.e("s_cmp_lt_u32 s27, 12"); f.e("s_cselect_b32 s46, s46, s47"); f.e("s_cselect_b32 s32, 4, 3")
    f.e("s_mul_i32 s30, s24, %d" % (24 * 9216)); f.e("s_lshl_b32 s47, s46, 7"); f.e("s_add_u32 s30, s30, s47")
    f.e("s_mul_i32 s29, s24, 3072")
    f.e("s_lshl_b32 s47, s46, 6"); f.e("s_lshl_b32 s56, s24, 3"); f.e("s_add_u32 s47, s47, s56"); f.e("s_mul_i32 s35, s47, 1152")
    for st in range(5):
        su, ld = dma1(0, st, st)
        for x in su + ld: f.e(x)
        f.mark("dma")
    f.e("s_lshl_b32 s3, s28, 1"); f.e("s_add_u32 s3, s3, s25"); f.e("s_mul_i32 s3, s3, %d" % T64B)
    if XN: f.e("s_add_u32 s3, s3, %d" % XN)
    for i in range(72):
        if i % 4 == 0 and i > 0: f.e("s_add_u32 s3, s3, 4096")
        f.e("buffer_load_dwordx4 %s, v11, s[8:11], s3 offen offset:%d" % (xreg(i), (i % 4) * 1024))
    f.e("s_mul_i32 s3, s25, 40960"); f.e("s_lshl_b32 s46, s26, 11"); f.e("s_add_u32 s3, s3, s46"); f.e("s_add_u32 s3, s3, %d" % HB)
    f.e("v_add_u32 v7, s3, v11")
    f.waitmark("dma", 3); f.e("s_barrier")
    for n in range(PF):
        f.e(rd1(n, 0)); f.e(rd1(n, 1))
    p1 = P1(o)
    def d_g0(i):
        return dma_gaps1(0, 5, 5) if i == 0 else dma_gaps1(1, i - 1, i - 1)
    p1.phase(f, 0, [], d_g0)
    lp = K.seg("ffn_loop"); lp.lab("K2_loop")
    def d_up(i):
        if i == 0: return dma_gaps1(1, 5, 5) + [(10, "s_add_u32 s30, s30, 128")]
        return dma_gaps1(0, i - 1, i - 1)
    def d_gate(i):
        return dma_gaps1(0, 5, 5) if i == 0 else dma_gaps1(1, i - 1, i - 1)
    p1.phase(lp, 1, epi1(), d_up)
    p1.phase(lp, 0, epi2() + ["v_add_u32 v7, 4096, v7"], d_gate)
    lp.e("s_sub_u32 s32, s32, 1"); lp.e("s_cmp_lg_u32 s32, 0"); lp.e("s_cbranch_scc1 K2_loop")
    nloop = p1.n
    br = K.seg("ffn_br")
    br.e("s_cmp_ge_u32 s27, 12"); br.e("s_cbranch_scc1 K2_ffn4")
    tails = {}
    for Kd, lab in ((320, None), (256, "K2_ffn4")):
        t = K.seg("ffn_tail%d" % Kd)
        if lab: t.lab(lab)
        p = P1(o); p.n = nloop
        n0 = nloop + 36
        def d_last(i, Kd=Kd):
            return dma_gaps1(1, 5, 5) if i == 0 else dma_gaps2(i - 1, Kd)
        p.phase(t, 1, epi1(), d_last, nextrd=lambda n, h, n0=n0: rd2(n, h, n0), last_barrier=False)
        t.e("s_nop 7")
        for x in epi2(): t.e(x)
        t.waitmark("dma", 3); t.waitlg(0); t.e("s_barrier")
        t.e("s_mul_i32 s3, s25, 40960"); t.e("s_add_u32 s3, s3, %d" % HB); t.e("v_add_u32 v1, s3, v11")
        for kap in range(Kd // 16):
            for n in range(2):
                j = kap * 2 + n
                t.e("ds_read_b128 a[%d:%d], v1 offset:%d" % (4 * j, 4 * j + 3, (n * 20 + kap) * 1024))
        phase2(t, o, n0, Kd, False)
        t.e("s_endpgm")
        tails[Kd] = t
    d = K.seg("dft"); d.lab("K2_dft")
    gen_dft(d, o, srd)
    e = K.seg("end"); e.lab("K2_end"); e.e("s_endpgm")
    K.paths = [[a, f] + [lp] * 4 + [br, tails[320]], [a, f] + [lp] * 3 + [br, tails[256]], [a, d]]
    return K

def gen_dft(d, o, srd):
    d.e("s_cmp_ge_u32 s28, 8"); d.e("s_cselect_b32 s46, s50, s48"); d.e("s_cselect_b32 s47, s51, s49")
    d.e("s_cselect_b32 s56, s54, s52"); d.e("s_cselect_b32 s57, s55, s53")
    d.e("s_mov_b32 s58, %d" % XEE); d.e("s_cselect_b32 s58, %d, s58" % XOO); d.e("s_cselect_b32 s59, 1536, 0"); d.e("s_cselect_b32 s60, 0, 0xbf803f80")
    srd(d, 12, 46, 2048 * 4096); srd(d, 20, 56, 576 * 1152)
    d.e("s_and_b32 s3, s28, 7"); d.e("s_lshl_b32 s3, s3, 6"); d.e("s_add_u32 s59, s59, s3"); d.e("s_lshl_b32 s59, s59, 1")
    d.e("s_mul_i32 s61, s24, %d" % (16 * 640)); d.e("s_add_u32 s61, s61, s58")
    d.e("s_lshl_b32 s62, s24, 16"); d.e("s_add_u32 s62, s62, s59")
    d.e("v_lshrrev_b32 v13, 3, v0"); d.e("v_and_b32 v14, 7, v0"); d.e("v_bfe_u32 v15, v13, 1, 2"); d.e("v_lshlrev_b32 v15, 1, v15")
    d.e("v_xor_b32 v14, v14, v15"); d.e("v_lshlrev_b32 v14, 4, v14")
    d.e("s_movk_i32 s3, 1280"); d.e("v_mul_lo_u32 v2, v13, s3"); d.e("v_add_u32 v2, v2, v14")
    d.e("v_lshlrev_b32 v3, 13, v13"); d.e("v_add_u32 v3, v3, v14")
    NSD = 33; SL = 24576
    def stage_rows(st):
        return (st % 2, st // 2)
    def dmad(st):
        par, ks = stage_rows(st); slot = st % 6
        L = []
        r0 = 64 * ks + par
        L.append(("s", "s_add_u32 s31, s61, %d" % (r0 * 640)))
        for b in range(5):
            L.append(("s", "s_add_u32 m0, s34, %d" % (slot * SL + b * 4096 - 128 * b)))
            L.append(("l", "buffer_load_dwordx4 v2, s[8:11], s31 offen offset:%d lds" % (128 * b)))
        L.append(("s", "s_add_u32 s63, s62, %d" % (r0 * 4096)))
        L.append(("s", "s_add_u32 m0, s34, %d" % (slot * SL + 5 * 4096)))
        L.append(("l", "buffer_load_dwordx4 v3, s[12:15], s63 offen lds"))
        return L
    for st in range(5):
        for _, x in dmad(st): d.e(x)
        d.mark("dma")
    d.e("v_lshrrev_b32 v13, 2, v0"); d.e("v_and_b32 v15, 3, v0"); d.e("v_bfe_u32 v14, v13, 1, 2"); d.e("v_lshlrev_b32 v14, 1, v14")
    d.e("v_lshlrev_b32 v13, 7, v13"); d.e("v_and_b32 v1, 1, v15"); d.e("v_lshlrev_b32 v1, 3, v1"); d.e("v_add_u32 v13, v13, v1")
    d.e("v_lshrrev_b32 v15, 1, v15")
    for u in range(4):
        d.e("v_add_u32 v1, %d, v15" % (2 * u)); d.e("v_xor_b32 v1, v1, v14"); d.e("v_lshlrev_b32 v1, 4, v1"); d.e("v_add_u32 v1, v1, v13")
        d.e("v_add_u32 v%d, %d, v1" % (196 + u, 5 * 4096))
    for i in range(5):
        d.e("s_mul_i32 s3, s24, 5"); d.e("s_add_u32 s3, s3, %d" % i)
        d.e("s_and_b32 s46, s3, 3"); d.e("s_lshl_b32 s46, s46, 1"); d.e("s_lshr_b32 s47, s3, 2"); d.e("s_lshl_b32 s47, s47, 12")
        d.e("v_add_u32 v1, s46, v15"); d.e("v_xor_b32 v1, v1, v14"); d.e("v_lshlrev_b32 v1, 4, v1"); d.e("v_add_u32 v1, v1, v13")
        d.e("v_add_u32 v%d, s47, v1" % (200 + i))
    for q in range(9): d.e("v_add_u32 v%d, %d, v%d" % (205 + q, 3 * SL, 196 + q))
    for q in range(4): d.e("v_mov_b32 v%d, s60" % (216 + q))
    def frag(st, q):
        return (st % 2) * 36 + 4 * q
    def rdd(st, q, half):
        slot = st % 6; base = 196 + q
        if slot >= 3: base += 9; slot -= 3
        r = frag(st, q) + 2 * half
        return "ds_read_b64_tr_b16 a[%d:%d], v%d offset:%d" % (r, r + 1, base, slot * SL + half * 2048)
    d.waitmark("dma", 3); d.e("s_barrier")
    order = [4, 0, 1, 2, 3, 5, 6, 7, 8]
    for q in order: d.e(rdd(0, q, 0)); d.e(rdd(0, q, 1))
    for st in range(NSD):
        par, ks = stage_rows(st)
        mf = []
        for i in range(5):
            A = frag(st, 4 + i)
            for u in range(4):
                B = frag(st, u); D = 16 + par * 80 + (i * 4 + u) * 4
                C = "0" if ks == 0 else "v[%d:%d]" % (D, D + 3)
                mf.append(["v_mfma_f32_16x16x32_bf16 v[%d:%d], a[%d:%d], a[%d:%d], %s" % (D, D + 3, A, A + 3, B, B + 3, C)])
            if par == 0:
                D = 176 + 4 * i; C = "0" if ks == 0 else "v[%d:%d]" % (D, D + 3)
                mf.append(["v_mfma_f32_16x16x32_bf16 v[%d:%d], a[%d:%d], v[216:219], %s" % (D, D + 3, A, A + 3, C)])
        G = len(mf)
        gaps = [[] for _ in range(G)]
        fill = []
        if st + 1 < NSD:
            for q in order: fill += [rdd(st + 1, q, 0), rdd(st + 1, q, 1)]
        dm = dmad(st + 5) if st + 5 < NSD else []
        for g, x in enumerate(fill): gaps[g].append(x)
        if dm:
            pos = [2, 5, 8, 11, 14, 17]; li = 0; pendS = []
            for kind, x in dm:
                if kind == "s": pendS.append(x)
                else:
                    g = pos[li]; li += 1
                    for y in pendS: gaps[g - 1].append(y)
                    pendS = []
                    gaps[g].append(x)
            gaps[17].append(('mark', 'dma'))
        emit_gaps(d, mf, gaps)
        if st + 2 <= NSD - 1:
            last_issued = min(st + 5, NSD - 1)
            d.waitmark("dma", last_issued - (st + 2)); d.e("s_barrier")
    d.e("s_barrier")
    d.e("s_mul_i32 s35, s24, %d" % (8 * 1152))
    for st in range(5):
        for su, ld in dma2(st, 320):
            for x in su: d.e(x)
            d.e(ld)
        d.mark("dma")
    d.e("v_lshrrev_b32 v13, 4, v0"); d.e("v_and_b32 v14, 15, v0"); d.e("v_and_b32 v15, 1, v13"); d.e("v_lshlrev_b32 v15, 5, v15"); d.e("v_add_u32 v14, v14, v15")
    d.e("v_lshlrev_b32 v14, 4, v14"); d.e("v_lshrrev_b32 v13, 1, v13"); d.e("v_lshlrev_b32 v1, 3, v13"); d.e("v_add_u32 v14, v14, v1")
    d.e("s_mul_i32 s3, s24, 5120"); d.e("s_add_u32 s3, s3, %d" % HB); d.e("v_add_u32 v7, s3, v14")
    d.e("v_add_u32 v6, 40960, v7")
    d.e("v_lshlrev_b32 v15, 4, v0"); d.e("v_lshrrev_b32 v15, 8, v15"); d.e("v_and_b32 v15, 1, v15"); d.e("v_lshlrev_b32 v15, 4, v15"); d.e("v_add_u32 v15, v15, v1")
    d.e("s_mul_i32 s3, s24, 160"); d.e("s_add_u32 s3, s3, %d" % HX); d.e("v_add_u32 v5, s3, v15")
    k = 0
    for i in range(5):
        for u in range(4):
            E = 16 + (i * 4 + u) * 4; O = E + 80
            t = 220 + 8 * (k % 4); k += 1
            for j in range(4):
                d.e("v_add_f32 v%d, v%d, v%d" % (t + j, E + j, O + j)); d.e("v_sub_f32 v%d, v%d, v%d" % (t + 4 + j, E + j, O + j))
            d.e("v_cvt_pk_bf16_f32 v%d, v%d, v%d" % (t, t, t + 1)); d.e("v_cvt_pk_bf16_f32 v%d, v%d, v%d" % (t + 1, t + 2, t + 3))
            d.e("v_cvt_pk_bf16_f32 v%d, v%d, v%d" % (t + 4, t + 4, t + 5)); d.e("v_cvt_pk_bf16_f32 v%d, v%d, v%d" % (t + 5, t + 6, t + 7))
            off = i * 1024 + (u >> 1) * 20480 + (u & 1) * 256
            d.e("ds_write_b64 v7, v[%d:%d] offset:%d" % (t, t + 1, off)); d.e("ds_write_b64 v6, v[%d:%d] offset:%d" % (t + 4, t + 5, off))
        X = 176 + 4 * i
        d.e("v_cvt_pk_bf16_f32 v%d, v%d, v%d" % (X, X, X + 1)); d.e("v_cvt_pk_bf16_f32 v%d, v%d, v%d" % (X + 1, X + 2, X + 3))
        d.e("ds_write_b64 v5, v[%d:%d] offset:%d" % (X, X + 1, i * 32))
    d.e("v_and_b32 v13, 31, v0"); d.e("v_lshrrev_b32 v14, 4, v13"); d.e("v_lshlrev_b32 v12, 10, v14")
    d.e("v_bfe_u32 v14, v13, 2, 1"); d.e("v_lshlrev_b32 v14, 9, v14"); d.e("v_add_u32 v12, v12, v14")
    d.e("v_bfe_u32 v14, v13, 3, 1"); d.e("v_lshlrev_b32 v14, 3, v14"); d.e("v_add_u32 v12, v12, v14")
    d.e("v_and_b32 v14, 3, v13"); d.e("v_lshlrev_b32 v14, 1, v14"); d.e("v_add_u32 v12, v12, v14")
    d.e("s_add_u32 s38, s28, 32"); d.e("s_mul_i32 s38, s38, %d" % T64B); d.e("s_lshl_b32 s3, s26, 12"); d.e("s_add_u32 s38, s38, s3")
    d.e("s_add_u32 s38, s38, %d" % (PART + 15 * SLOTB))
    d.waitmark("dma", 3); d.waitlg(0); d.e("s_barrier")
    d.e("s_mul_i32 s3, s25, 40960"); d.e("s_add_u32 s3, s3, %d" % HB); d.e("v_add_u32 v1, s3, v11")
    d.e("v_lshrrev_b32 v13, 5, v0"); d.e("v_lshlrev_b32 v13, 4, v13"); d.e("v_add_u32 v13, %d, v13" % HX)
    n0 = 0
    for n in range(PF):
        d.e(rd2(n, 0, n0)); d.e(rd2(n, 1, n0))
    for kap in range(20):
        for n in range(2):
            j = kap * 2 + n
            d.e("ds_read_b128 a[%d:%d], v1 offset:%d" % (4 * j, 4 * j + 3, (n * 20 + kap) * 1024))
        r = (112 + 4 * kap) if kap < 16 else (192 + 4 * (kap - 16))
        d.e("ds_read_b128 v[%d:%d], v13 offset:%d" % (r, r + 3, kap * 32))
    phase2(d, o, n0, 320, True)
    d.e("s_endpgm")
```

```python
import sys, argparse
from emit import *
NAME = "recurrent_scan__spectral_fnet__swiglu_ffn__prompt"
XN   = 0x0
XEE  = 0x240000
XOO  = 0x300000
PART = 0x400000
SLOTB = 2359296
T64B = 73728
WS_BYTES = 0x4000000

class Kern:
    def __init__(self, label, grid, block, lds, vgpr, accum=None, sgpr=102):
        self.label = label; self.grid = grid; self.block = block; self.lds = lds
        self.vgpr = vgpr; self.accum = accum if accum else min(256, (vgpr + 3) // 4 * 4); self.sgpr = sgpr
        self.order = []
        self.paths = []
    def seg(self, name):
        s = Seg(name); self.order.append(s); return s
    def build(self, verbose=True):
        probs = resolve(self.paths)
        if probs:
            for p in probs[:20]: print("PROBLEM", self.label, p, file=sys.stderr)
            raise SystemExit("unresolved hazards")
        stats = []
        L = []
        for s in self.order: L += render(s, stats)
        if verbose:
            tot = sum(x[1] for x in stats)
            print("%s: %d lines, auto nops %d at %d places" % (self.label, len(L), tot, len(stats)), file=sys.stderr)
            if verbose > 1:
                for x in stats: print("   nop", x, file=sys.stderr)
        out = [".globl %s" % self.label, ".p2align 8", ".type %s,@function" % self.label, "%s:" % self.label]
        for l in L:
            out.append(l if l.endswith(':') else l)
        return "\n".join(out) + "\n"
    def desc(self):
        return (".amdhsa_kernel %s\n  .amdhsa_next_free_vgpr %d\n  .amdhsa_next_free_sgpr %d\n  .amdhsa_accum_offset %d\n"
                "  .amdhsa_group_segment_fixed_size 0\n  .amdhsa_kernarg_size 96\n  .amdhsa_user_sgpr_count 2\n"
                "  .amdhsa_user_sgpr_kernarg_segment_ptr 1\n  .amdhsa_system_sgpr_workgroup_id_x 1\n.end_amdhsa_kernel\n") % (
                self.label, self.vgpr, self.sgpr, self.accum)

def srd(k, d, lo, nbytes):
    k.e("s_mov_b32 s%d, s%d" % (d, lo)); k.e("s_mov_b32 s%d, s%d" % (d + 1, lo + 1))
    k.e("s_mov_b32 s%d, 0x%x" % (d + 2, nbytes)); k.e("s_mov_b32 s%d, 0x00020000" % (d + 3))

def gen_k1():
    K = Kern("prep_kernel", (528, 1, 1), (256, 1, 1), 4 * 2304 + 1280, vgpr=96)
    a = K.seg("k1_head")
    a.e("s_cmp_ge_u32 s2, 528"); a.e("s_cbranch_scc1 K1_end")
    a.e("s_load_dwordx2 s[4:5], s[0:1], 0"); a.e("s_load_dwordx2 s[6:7], s[0:1], 88")
    a.e("v_lshrrev_b32 v1, 6, v0"); a.e("v_and_b32 v0, 63, v0"); a.e("v_readfirstlane_b32 s20, v1")
    a.e("v_and_b32 v2, 31, v0")
    a.e("v_lshrrev_b32 v3, 5, v0")
    a.waitlg(0)
    srd(a, 8, 4, 2359296); srd(a, 12, 6, WS_BYTES)
    a.e("s_cmp_ge_u32 s2, 256"); a.e("s_cbranch_scc1 K1_typeB_rows")
    a.e("s_lshl_b32 s21, s2, 3"); a.e("s_lshl_b32 s22, s20, 1"); a.e("s_add_u32 s21, s21, s22"); a.e("s_add_u32 s22, s21, 1")
    a.e("s_branch K1_rows_done")
    b = K.seg("k1_brows"); b.lab("K1_typeB_rows")
    b.e("s_sub_u32 s23, s2, 256"); b.e("s_lshl_b32 s23, s23, 2"); b.e("s_add_u32 s23, s23, s20")
    b.e("s_cmp_gt_u32 s23, 1024"); b.e("s_cbranch_scc1 K1_zero")
    b.e("s_mov_b32 s21, s23"); b.e("s_sub_u32 s22, 2048, s23"); b.e("s_and_b32 s22, s22, 2047")
    c = K.seg("k1_ln"); c.lab("K1_rows_done")
    c.e("v_mov_b32 v4, s21"); c.e("v_mov_b32 v5, s22"); c.e("v_cmp_eq_u32 vcc, 1, v3"); c.e("v_cndmask_b32 v4, v4, v5, vcc")
    c.e("s_movk_i32 s24, 1152"); c.e("v_mul_lo_u32 v5, v4, s24"); c.e("v_lshlrev_b32 v6, 4, v2"); c.e("v_add_u32 v5, v5, v6")
    c.e("v_cmp_gt_u32 s[26:27], 8, v2")
    c.e("v_add_u32 v7, 1024, v5"); c.e("v_mov_b32 v8, 0x7fffffff"); c.e("v_cndmask_b32 v7, v8, v7, s[26:27]")
    c.e("buffer_load_dwordx4 v[8:11], v5, s[8:11], 0 offen")
    c.e("buffer_load_dwordx4 v[12:15], v5, s[8:11], 0 offen offset:512")
    c.e("buffer_load_dwordx4 v[16:19], v7, s[8:11], 0 offen")
    for i in range(60, 80): c.e("v_mov_b32 v%d, 0" % i)
    for q in range(12):
        c.e("v_lshlrev_b32 v%d, 16, v%d" % (20 + 2 * q, 8 + q)); c.e("v_and_b32 v%d, 0xffff0000, v%d" % (21 + 2 * q, 8 + q))
    c.e("v_add_f32 v44, v20, v21"); c.e("v_add_f32 v45, v22, v23"); c.e("v_add_f32 v46, v24, v25"); c.e("v_add_f32 v47, v26, v27")
    for q in range(8, 24, 4):
        for r in range(4): c.e("v_add_f32 v%d, v%d, v%d" % (44 + r, 44 + r, 20 + q + r))
    c.e("v_add_f32 v44, v44, v45"); c.e("v_add_f32 v46, v46, v47"); c.e("v_add_f32 v44, v44, v46")
    def reduce32(r, t):
        c.e("v_add_f32_dpp v%d, v%d, v%d quad_perm:[1,0,3,2] row_mask:0xf bank_mask:0xf" % (r, r, r))
        c.e("v_add_f32_dpp v%d, v%d, v%d quad_perm:[2,3,0,1] row_mask:0xf bank_mask:0xf" % (r, r, r))
        c.e("v_add_f32_dpp v%d, v%d, v%d row_half_mirror row_mask:0xf bank_mask:0xf" % (r, r, r))
        c.e("v_add_f32_dpp v%d, v%d, v%d row_mirror row_mask:0xf bank_mask:0xf" % (r, r, r))
        c.e("v_mov_b32 v%d, v%d" % (t, r))
        c.e("v_permlane16_swap_b32 v%d, v%d" % (r, t))
        c.e("v_add_f32 v%d, v%d, v%d" % (r, r, t))
    reduce32(44, 45)
    c.e("s_mov_b32 s25, 0x3ae38e39")
    c.e("v_mul_f32 v44, s25, v44")
    c.e("v_mov_b32 v46, 0"); c.e("v_mov_b32 v47, 0")
    for q in range(16):
        c.e("v_sub_f32 v%d, v%d, v44" % (48 + (q % 4), 20 + q)); c.e("v_fmac_f32 v%d, v%d, v%d" % (46 + (q % 2), 48 + (q % 4), 48 + (q % 4)))
    c.e("s_mov_b64 exec, s[26:27]")
    for q in range(16, 24):
        c.e("v_sub_f32 v%d, v%d, v44" % (48 + (q % 4), 20 + q)); c.e("v_fmac_f32 v%d, v%d, v%d" % (46 + (q % 2), 48 + (q % 4), 48 + (q % 4)))
    c.e("s_mov_b64 exec, -1")
    c.e("v_add_f32 v46, v46, v47")
    reduce32(46, 47)
    c.e("v_mul_f32 v46, s25, v46")
    c.e("v_cvt_pk_bf16_f32 v46, v46, v44")
    c.e("v_and_b32 v44, 0xffff0000, v46")
    c.e("v_lshlrev_b32 v46, 16, v46")
    c.e("v_add_f32 v46, 0x3727c5ac, v46")
    c.e("v_cvt_pk_bf16_f32 v46, v46, v46"); c.e("v_lshlrev_b32 v46, 16, v46")
    c.e("v_sqrt_f32 v46, v46")
    c.e("v_cvt_pk_bf16_f32 v46, v46, v46"); c.e("v_lshlrev_b32 v46, 16, v46")
    c.e("v_rcp_f32 v46, v46")
    for q in range(24): c.e("v_sub_f32 v%d, v%d, v44" % (20 + q, 20 + q))
    for q in range(12): c.e("v_cvt_pk_bf16_f32 v%d, v%d, v%d" % (8 + q, 20 + 2 * q, 21 + 2 * q))
    for q in range(12):
        c.e("v_lshlrev_b32 v%d, 16, v%d" % (20 + 2 * q, 8 + q)); c.e("v_and_b32 v%d, 0xffff0000, v%d" % (21 + 2 * q, 8 + q))
    for q in range(24): c.e("v_mul_f32 v%d, v%d, v46" % (20 + q, 20 + q))
    for q in range(12): c.e("v_cvt_pk_bf16_f32 v%d, v%d, v%d" % (8 + q, 20 + 2 * q, 21 + 2 * q))
    c.e("s_cmp_ge_u32 s2, 256"); c.e("s_cbranch_scc1 K1_typeB")
    d = K.seg("k1_storeA")
    d.e("v_lshrrev_b32 v20, 6, v4"); d.e("s_mov_b32 s24, %d" % T64B); d.e("v_mul_lo_u32 v20, v20, s24")
    d.e("v_lshrrev_b32 v21, 1, v2"); d.e("v_lshlrev_b32 v21, 11, v21"); d.e("v_add_u32 v20, v20, v21")
    d.e("v_bfe_u32 v21, v4, 5, 1"); d.e("v_lshlrev_b32 v21, 10, v21"); d.e("v_add_u32 v20, v20, v21")
    d.e("v_and_b32 v21, 1, v2"); d.e("v_lshlrev_b32 v21, 9, v21"); d.e("v_add_u32 v20, v20, v21")
    d.e("v_and_b32 v21, 31, v4"); d.e("v_lshlrev_b32 v21, 4, v21"); d.e("v_add_u32 v20, v20, v21")
    d.e("s_mov_b32 s28, %d" % (XN + 32768)); d.e("s_mov_b32 s29, %d" % (XN + 65536)); d.e("s_mov_b32 s30, %d" % XN)
    d.e("buffer_store_dwordx4 v[8:11], v20, s[12:15], s30 offen")
    d.e("buffer_store_dwordx4 v[12:15], v20, s[12:15], s28 offen")
    d.e("s_mov_b64 exec, s[26:27]")
    d.e("buffer_store_dwordx4 v[16:19], v20, s[12:15], s29 offen")
    d.e("s_endpgm")
    f = K.seg("k1_typeB"); f.lab("K1_typeB")
    f.e("s_mul_i32 s28, s20, 2304")
    f.e("s_movk_i32 s24, 1152"); f.e("v_mul_lo_u32 v20, v3, s24"); f.e("v_lshlrev_b32 v21, 4, v2"); f.e("v_add_u32 v20, v20, v21"); f.e("v_add_u32 v20, s28, v20")
    f.e("ds_write_b128 v20, v[8:11]"); f.e("ds_write_b128 v20, v[12:15] offset:512")
    f.e("s_mov_b64 exec, s[26:27]"); f.e("ds_write_b128 v20, v[16:19] offset:1024"); f.e("s_mov_b64 exec, -1")
    f.e("v_lshlrev_b32 v21, 1, v0"); f.e("v_add_u32 v22, s28, v21")
    f.e("v_sub_u32 v23, 640, v21"); f.e("v_add_u32 v23, s28, v23")
    f.waitlg(0)
    for i in range(5):
        f.e("ds_read_u16_d16_hi v%d, v22 offset:%d" % (60 + i, 128 * i))
        f.e("ds_read_u16_d16_hi v%d, v22 offset:%d" % (65 + i, 1152 + 128 * i))
        f.e("ds_read_u16_d16_hi v%d, v23 offset:%d" % (70 + i, 512 - 128 * i))
        f.e("ds_read_u16_d16_hi v%d, v23 offset:%d" % (75 + i, 1152 + 512 - 128 * i))
    f.e("s_and_b32 s29, s23, 1023"); f.e("s_cmp_lg_u32 s29, 0"); f.e("s_cselect_b32 s29, 1.0, 0")
    f.e("v_cmp_ne_u32 s[30:31], 0, v0")
    f.e("v_cmp_gt_u32 s[32:33], 32, v0")
    f.e("v_cmp_ge_u32 s[34:35], 32, v0")
    f.e("s_mul_i32 s36, s23, 640"); f.e("s_add_u32 s37, s36, %d" % XOO); f.e("s_add_u32 s36, s36, %d" % XEE)
    for i in range(5):
        A, B, A2, B2 = 60 + i, 65 + i, 70 + i, 75 + i
        t0, t1, o0, o1 = 20 + 4 * i + 4, 21 + 4 * i + 4, 22 + 4 * i + 4, 23 + 4 * i + 4
        f.e("v_fma_f32 v%d, v%d, s29, v%d" % (t0, B, A))
        f.e("v_fma_f32 v%d, v%d, s29, v%d" % (t1, B2, A2))
        f.e("v_sub_f32 v%d, v%d, v%d" % (o0, A, B)); f.e("v_sub_f32 v%d, v%d, v%d" % (o1, A2, B2))
        if i == 0:
            f.e("v_cndmask_b32 v%d, 0, v%d, s[30:31]" % (t1, t1))
        if i == 4:
            f.e("v_cndmask_b32 v%d, 0, v%d, s[32:33]" % (t1, t1))
        f.e("v_add_f32 v%d, v%d, v%d" % (t0, t0, t1)); f.e("v_sub_f32 v%d, v%d, v%d" % (o0, o0, o1))
        if i == 0:
            f.e("v_cndmask_b32 v%d, 0, v%d, s[30:31]" % (o0, o0))
        if i == 4:
            f.e("v_cndmask_b32 v%d, 0, v%d, s[34:35]" % (t0, t0)); f.e("v_cndmask_b32 v%d, 0, v%d, s[32:33]" % (o0, o0))
        f.e("v_cvt_pk_bf16_f32 v%d, v%d, v%d" % (t0, t0, o0))
        f.e("buffer_store_short v%d, v21, s[12:15], s36 offen offset:%d" % (t0, 128 * i))
        f.e("buffer_store_short_d16_hi v%d, v21, s[12:15], s37 offen offset:%d" % (t0, 128 * i))
    f.e("s_endpgm")
    z = K.seg("k1_zero"); z.lab("K1_zero")
    z.e("v_mov_b32 v20, 0"); z.e("v_lshlrev_b32 v21, 1, v0")
    z.e("s_mul_i32 s36, s23, 640"); z.e("s_add_u32 s37, s36, %d" % XOO); z.e("s_add_u32 s36, s36, %d" % XEE)
    for i in range(5):
        z.e("buffer_store_short v20, v21, s[12:15], s36 offen offset:%d" % (128 * i))
        z.e("buffer_store_short v20, v21, s[12:15], s37 offen offset:%d" % (128 * i))
    z.lab("K1_end"); z.e("s_endpgm")
    K.paths = [[a, c, d], [a, b, c, f], [a, b, z]]
    return K

def gen_k3():
    K = Kern("final_kernel", (576, 1, 1), (256, 1, 1), 0, vgpr=128)
    a = K.seg("k3")
    a.e("s_cmp_ge_u32 s2, 576"); a.e("s_cbranch_scc1 K3_end")
    a.e("s_load_dwordx2 s[4:5], s[0:1], 0"); a.e("s_load_dwordx2 s[6:7], s[0:1], 88"); a.e("s_load_dwordx2 s[16:17], s[0:1], 72")
    a.e("v_lshrrev_b32 v1, 6, v0"); a.e("v_and_b32 v0, 63, v0"); a.e("v_readfirstlane_b32 s20, v1")
    a.e("s_lshl_b32 s21, s2, 2"); a.e("s_add_u32 s21, s21, s20")
    a.e("s_mul_i32 s22, s21, 7282"); a.e("s_lshr_b32 s22, s22, 16")
    a.e("s_mul_i32 s23, s22, 9"); a.e("s_sub_u32 s23, s21, s23")
    a.e("v_lshrrev_b32 v2, 3, v0"); a.e("v_and_b32 v3, 7, v0")
    a.e("s_lshl_b32 s24, s22, 3"); a.e("v_add_u32 v2, s24, v2")
    a.e("v_lshrrev_b32 v4, 2, v3"); a.e("v_lshlrev_b32 v4, 12, v4")
    a.e("v_bfe_u32 v5, v3, 1, 1"); a.e("v_lshlrev_b32 v5, 10, v5"); a.e("v_add_u32 v4, v4, v5")
    a.e("v_and_b32 v5, 1, v3"); a.e("v_lshlrev_b32 v5, 9, v5"); a.e("v_add_u32 v4, v4, v5")
    a.e("s_lshl_b32 s25, s23, 13"); a.e("v_add_u32 v4, s25, v4")
    a.e("s_mov_b32 s26, %d" % T64B)
    def fragaddr(dst, T64, tok, tmp):
        a.e("v_mul_lo_u32 v%d, v%d, s26" % (dst, T64))
        a.e("v_bfe_u32 v%d, v%d, 5, 1" % (tmp, tok)); a.e("v_lshlrev_b32 v%d, 11, v%d" % (tmp, tmp)); a.e("v_add_u32 v%d, v%d, v%d" % (dst, dst, tmp))
        a.e("v_and_b32 v%d, 31, v%d" % (tmp, tok)); a.e("v_lshlrev_b32 v%d, 4, v%d" % (tmp, tmp)); a.e("v_add_u32 v%d, v%d, v%d" % (dst, dst, tmp))
        a.e("v_add_u32 v%d, v%d, v4" % (dst, dst))
    a.e("v_lshrrev_b32 v6, 6, v2")
    fragaddr(5, 6, 2, 7)
    a.waitlg(0)
    srd(a, 8, 4, 2359296); srd(a, 12, 6, WS_BYTES); srd(a, 28, 16, 2359296)
    for i in range(15):
        a.e("s_mov_b32 s%d, %d" % (40 + i, PART + i * SLOTB))
    for i in range(15):
        a.e("buffer_load_dwordx4 v[%d:%d], v5, s[12:15], s%d offen" % (32 + 4 * i, 35 + 4 * i, 40 + i))
    a.e("s_movk_i32 s27, 1152"); a.e("v_mul_lo_u32 v8, v2, s27"); a.e("v_lshlrev_b32 v9, 4, v3"); a.e("v_add_u32 v8, v8, v9"); a.e("s_lshl_b32 s27, s23, 7"); a.e("v_add_u32 v8, s27, v8")
    a.e("v_sub_u32 v9, 2048, v2"); a.e("v_cmp_ge_u32 vcc, 1024, v2"); a.e("v_cndmask_b32 v9, v9, v2, vcc")
    a.e("v_mov_b32 v10, -1.0"); a.e("v_mov_b32 v11, 1.0"); a.e("v_cndmask_b32 v10, v10, v11, vcc")
    a.e("v_sub_u32 v11, 1024, v9"); a.e("v_cmp_gt_u32 vcc, 512, v9")
    a.e("v_cndmask_b32 v12, v11, v9, vcc")
    a.e("v_cndmask_b32 v13, 1, 0, vcc")
    a.e("v_lshrrev_b32 v14, 6, v12"); a.e("v_lshlrev_b32 v14, 1, v14"); a.e("v_add_u32 v14, v14, v13")
    a.e("v_and_b32 v12, 63, v12")
    a.e("v_cmp_eq_u32 vcc, 512, v9"); a.e("v_cndmask_b32 v14, v14, 32, vcc"); a.e("v_cndmask_b32 v12, v12, 0, vcc")
    fragaddr(15, 14, 12, 7)
    a.e("v_sub_u32 v11, 512, v9"); a.e("v_subrev_u32 v12, 512, v9"); a.e("v_cmp_ge_u32 vcc, 512, v9")
    a.e("v_cndmask_b32 v12, v12, v11, vcc"); a.e("v_cndmask_b32 v13, 1, 0, vcc")
    a.e("v_mov_b32 v11, -1.0"); a.e("v_cndmask_b32 v11, v11, 1.0, vcc"); a.e("v_mul_f32 v10, v10, v11")
    a.e("v_lshrrev_b32 v14, 6, v12"); a.e("v_lshlrev_b32 v14, 1, v14"); a.e("v_add_u32 v14, v14, v13"); a.e("v_add_u32 v14, 16, v14")
    a.e("v_and_b32 v12, 63, v12")
    a.e("v_and_b32 v11, 1023, v9"); a.e("v_cmp_eq_u32 vcc, 0, v11"); a.e("v_cndmask_b32 v14, v14, 40, vcc"); a.e("v_cndmask_b32 v12, v12, 0, vcc")
    fragaddr(16, 14, 12, 7)
    a.e("s_mov_b32 s55, %d" % (PART + 15 * SLOTB))
    a.e("buffer_load_dwordx4 v[92:95], v15, s[12:15], s55 offen")
    a.e("buffer_load_dwordx4 v[96:99], v16, s[12:15], s55 offen")
    a.e("buffer_load_dwordx4 v[100:103], v8, s[8:11], 0 offen")
    a.e("s_mov_b32 s56, 0x00003f80"); a.e("s_mov_b32 s57, 0x3f800000")
    for q in range(4):
        a.e("v_lshlrev_b32 v%d, 16, v%d" % (20 + 2 * q, 32 + q)); a.e("v_and_b32 v%d, 0xffff0000, v%d" % (21 + 2 * q, 32 + q))
    for i in range(1, 15):
        for q in range(4):
            a.e("v_dot2_f32_bf16 v%d, v%d, s56, v%d" % (20 + 2 * q, 32 + 4 * i + q, 20 + 2 * q))
            a.e("v_dot2_f32_bf16 v%d, v%d, s57, v%d" % (21 + 2 * q, 32 + 4 * i + q, 21 + 2 * q))
    for q in range(4): a.e("v_cvt_pk_bf16_f32 v%d, v%d, v%d" % (32 + q, 20 + 2 * q, 21 + 2 * q))
    for q in range(4):
        a.e("v_lshlrev_b32 v%d, 16, v%d" % (20 + 2 * q, 32 + q)); a.e("v_and_b32 v%d, 0xffff0000, v%d" % (21 + 2 * q, 32 + q))
    a.e("s_mov_b32 s58, 0xbfb8aa3b")
    for q in range(8): a.e("v_mul_f32 v%d, s58, v%d" % (40 + q, 20 + q))
    for q in range(8): a.e("v_exp_f32 v%d, v%d" % (40 + q, 40 + q))
    for q in range(8): a.e("v_add_f32 v%d, 1.0, v%d" % (40 + q, 40 + q))
    for q in range(8): a.e("v_rcp_f32 v%d, v%d" % (40 + q, 40 + q))
    for q in range(8): a.e("v_mul_f32 v%d, v%d, v%d" % (20 + q, 20 + q, 40 + q))
    for q in range(4): a.e("v_cvt_pk_bf16_f32 v%d, v%d, v%d" % (32 + q, 20 + 2 * q, 21 + 2 * q))
    for q in range(4):
        a.e("v_lshlrev_b32 v%d, 16, v%d" % (20 + 2 * q, 32 + q)); a.e("v_and_b32 v%d, 0xffff0000, v%d" % (21 + 2 * q, 32 + q))
    for q in range(4):
        a.e("v_lshlrev_b32 v%d, 16, v%d" % (40 + 2 * q, 92 + q)); a.e("v_and_b32 v%d, 0xffff0000, v%d" % (41 + 2 * q, 92 + q))
        a.e("v_lshlrev_b32 v%d, 16, v%d" % (48 + 2 * q, 96 + q)); a.e("v_and_b32 v%d, 0xffff0000, v%d" % (49 + 2 * q, 96 + q))
    for q in range(8): a.e("v_fma_f32 v%d, v%d, v10, v%d" % (40 + q, 48 + q, 40 + q))
    for q in range(4): a.e("v_cvt_pk_bf16_f32 v%d, v%d, v%d" % (36 + q, 40 + 2 * q, 41 + 2 * q))
    for q in range(4):
        a.e("v_lshlrev_b32 v%d, 16, v%d" % (40 + 2 * q, 36 + q)); a.e("v_and_b32 v%d, 0xffff0000, v%d" % (41 + 2 * q, 36 + q))
    for q in range(8): a.e("v_mul_f32 v%d, v%d, v%d" % (40 + q, 40 + q, 20 + q))
    for q in range(4): a.e("v_cvt_pk_bf16_f32 v%d, v%d, v%d" % (36 + q, 40 + 2 * q, 41 + 2 * q))
    for q in range(4):
        a.e("v_lshlrev_b32 v%d, 16, v%d" % (40 + 2 * q, 36 + q)); a.e("v_and_b32 v%d, 0xffff0000, v%d" % (41 + 2 * q, 36 + q))
        a.e("v_lshlrev_b32 v%d, 16, v%d" % (48 + 2 * q, 100 + q)); a.e("v_and_b32 v%d, 0xffff0000, v%d" % (49 + 2 * q, 100 + q))
    for q in range(8): a.e("v_add_f32 v%d, v%d, v%d" % (40 + q, 40 + q, 48 + q))
    for q in range(4): a.e("v_cvt_pk_bf16_f32 v%d, v%d, v%d" % (36 + q, 40 + 2 * q, 41 + 2 * q))
    a.e("buffer_store_dwordx4 v[36:39], v8, s[28:31], 0 offen")
    a.lab("K3_end"); a.e("s_endpgm")
    K.paths = [[a]]
    return K

def write_file(path, kernels, launches=None):
    s = ("; Kernarg layout (96 bytes, ptrs only, base s[0:1]):\n"
         ";   0 A_x (2048x576 bf16)  8 dft_seq_re (2048x2048)  16 dft_seq_im  24 dft_hid_re (576x576)  32 dft_hid_im\n"
         ";   40 B_x (unused)  48 w_gate (576x4608)  56 w_up  64 w_down (4608x576)  72 d_out  80 d_debug  88 d_ws\n")
    for k in (launches or kernels):
        s += "; @launch kernel=%s grid=(%d,%d,%d) block=(%d,%d,%d) lds=%d\n" % ((k.label,) + k.grid + k.block + (k.lds,))
    s += '.amdgcn_target "amdgcn-amd-amdhsa--gfx950"\n.text\n'
    for k in kernels: s += k.text_out
    s += '.section .rodata,"a"\n'
    for k in kernels: s += ".p2align 6\n" + k.desc()
    open(path, "w").write(s)
    print("wrote", path, len(s), "bytes", file=sys.stderr)

if __name__ == "__main__":
    ap = argparse.ArgumentParser()
    ap.add_argument("out"); ap.add_argument("-v", type=int, default=1); ap.add_argument("--only", default="123")
    ap.add_argument("--opt", default="")
    args = ap.parse_args()
    opts = dict(x.split("=") for x in args.opt.split(",") if x)
    ks = []
    if "1" in args.only: ks.append(gen_k1())
    if "2" in args.only:
        import gen2
        ks.append(gen2.gen_k2(Kern, srd, opts))
    if "3" in args.only: ks.append(gen_k3())
    for k in ks: k.text_out = k.build(args.v)
    write_file(args.out, ks)
```

```python
from emit import *
XN   = 0x0
XEE  = 0x240000
XOO  = 0x300000
PART = 0x400000
SLOTB = 2359296
T64B = 73728
WS_BYTES = 0x4000000
SLOT = 12288; NS = 6
HB = 73728
HX = HB + 81920
LDS_BYTES = HX + 1024
PF = 3
NF = 8
CNEG = 33
def stamp(seg, i): pass
def prof_store(*a): pass

def wt(ins, o):
    if ins.startswith("v_exp") or ins.startswith("v_rcp"): return o['wtrans']
    if ins.startswith("s_"): return o['wsalu']
    return 1.0

def spread(gaps, queue, o, start=0, end=None):
    if not queue: return
    G = len(gaps) if end is None else end
    idx = list(range(start, G))
    load = {g: sum(wt(i, o) for i in gaps[g] if isinstance(i, str)) for g in idx}
    tot = sum(load.values()) + sum(wt(i, o) for i in queue)
    p = 0; cum = load[idx[0]]
    for ins in queue:
        w = wt(ins, o)
        while p < len(idx) - 1 and cum + w * 0.5 > tot * (p + 1) / len(idx):
            p += 1; cum += load[idx[p]]
        gaps[idx[p]].append(ins); cum += w

def emit_gaps(s, mf, gaps):
    for m, g in zip(mf, gaps):
        for pre in m[:-1]: put(s, pre)
        s.e(m[-1])
        for x in g: put(s, x)

def put(s, x):
    if isinstance(x, str): s.e(x)
    elif x[0] == 'mark': s.mark(x[1])
    elif x[0] == 'waitmark': s.waitmark(x[1], x[2])
    elif x[0] == 'waitlg': s.waitlg(x[1])
    elif x[0] == 'c': s.c(x[1])
    else: raise ValueError(x)

def xreg(i):
    return ("a[%d:%d]" % (4 * i, 4 * i + 3)) if i < 64 else ("v[%d:%d]" % (224 + 4 * (i - 64), 227 + 4 * (i - 64)))

def areg(n): r = 80 + 4 * (n % NF); return r

def rd1(n, half):
    st = n // 6; kp = n % 6
    r = areg(n) + 2 * half
    off = (st % NS) * SLOT + kp * 2048 + half * 512; base = 5
    if off >= 65536: off -= 65536; base = 6
    return "ds_read_b64_tr_b16 v[%d:%d], v%d offset:%d" % (r, r + 1, base, off)

def rd2(n, half, n0):
    q = n - n0; st = q // 6; kp = q % 6
    r = areg(n) + 2 * half
    off = (st % NS) * SLOT + kp * 2048 + half * 1024; base = 8
    if off >= 65536: off -= 65536; base = 9
    return "ds_read_b64_tr_b16 v[%d:%d], v%d offset:%d" % (r, r + 1, base, off)

def dma1(mat, kc, slot):
    sr = 12 if mat == 0 else 16
    su = ["s_add_u32 m0, s29, %d" % (slot * SLOT), "s_add_u32 s31, s30, %d" % (kc * 96 * 9216)]
    ld = ["buffer_load_dwordx4 v%d, s[%d:%d], s31 offen offset:%d lds" % (2 + j, sr, sr + 3, 1024 * j) for j in range(3)]
    return su, ld

def dma2(st, K):
    out = []
    for j in range(3):
        R = 96 * st + 32 * j; sg = R // K; row0 = R % K
        su = ["s_add_u32 m0, s34, %d" % ((st % NS) * SLOT + j * 4096), "s_add_u32 s31, s35, %d" % (sg * 128 + row0 * 1152)]
        out.append((su, "buffer_load_dwordx4 v10, s[20:23], s31 offen lds"))
    return out

def epi1():
    L = []
    for p0 in range(0, 32, 4):
        for j in range(4): L.append("v_mul_f32 v%d, s%d, v%d" % (112 + p0 + j, CNEG, 16 + p0 + j))
        for j in range(4): L.append("v_exp_f32 v%d, v%d" % (144 + p0 + j, 112 + p0 + j))
        for j in range(4): L.append("v_fma_f32 v%d, v%d, s%d, s%d" % (144 + p0 + j, 144 + p0 + j, CNEG, CNEG))
    return L

def epi2():
    L = []
    for p0 in range(0, 32, 4):
        for j in range(4): L.append("v_rcp_f32 v%d, v%d" % (144 + p0 + j, 144 + p0 + j))
        for j in range(4): L.append("v_mul_f32 v%d, v%d, v%d" % (112 + p0 + j, 112 + p0 + j, 48 + p0 + j))
        for j in range(4): L.append("v_mul_f32 v%d, v%d, v%d" % (112 + p0 + j, 112 + p0 + j, 144 + p0 + j))
        for j in range(0, 4, 2): L.append("v_cvt_pk_bf16_f32 v%d, v%d, v%d" % (176 + (p0 + j) // 2, 112 + p0 + j, 112 + p0 + j + 1))
        if p0 % 8 == 4:
            n = p0 // 16; J = (p0 // 8) % 2
            L.append("ds_write_b128 v7, v[%d:%d] offset:%d" % (176 + n * 8 + 4 * J, 179 + n * 8 + 4 * J, n * 20480 + J * 1024))
    return L

class P1:
    def __init__(self, o): self.n = 0; self.o = o
    def phase(self, s, mat, epi, dmaf, extra_first=None, nextrd=None, last_barrier=True, first_c0=True, post=None):
        o = self.o
        acc = 16 if mat == 0 else 48
        per = (len(epi) + 5) // 6
        epi = list(epi)
        for i in range(6):
            gaps = [[] for _ in range(12)]
            mf = []
            for kp in range(6):
                n = self.n + kp
                f = nextrd if nextrd else rd1
                nn = n + PF
                if nextrd and (i * 6 + kp + PF) < 36: f = rd1
                gaps[2 * kp].append(f(nn, 0)); gaps[2 * kp + 1].append(f(nn, 1))
                kap = i * 6 + kp
                for t in range(2):
                    A = areg(n); D = acc + 16 * t
                    C = "0" if kap == 0 else "v[%d:%d]" % (D, D + 15)
                    mf.append(["v_mfma_f32_32x32x16_bf16 v[%d:%d], v[%d:%d], %s, %s" % (D, D + 15, A, A + 3, xreg(kap * 2 + t), C)])
            for g, ins in dmaf(i): gaps[g].append(ins)
            if i == 0:
                mine = epi[:per - o['first_less']]; epi = epi[len(mine):]
                spread(gaps, mine, o, start=o['epi_start'])
            else:
                rem = 6 - i
                cnt = (len(epi) + rem - 1) // rem
                mine = epi[:cnt]; epi = epi[cnt:]
                spread(gaps, mine, o)
            if post and i in post:
                for g, ins in post[i]: gaps[g].append(ins)
            if s.name == "ffn_loop":
                def keep(x):
                    if not isinstance(x, str): return True
                    if o['nords'] and x.startswith("ds_read"): return False
                    if o['noepi'] and (x.startswith("v_") or x.startswith("ds_write")) : return False
                    if o['nodma'] and x.startswith("buffer_load"): return False
                    return True
                gaps = [[x for x in g if keep(x)] for g in gaps]
            emit_gaps(s, mf, gaps)
            self.n += 6
            if i < 5 or last_barrier:
                s.waitmark("dma", 3); s.e("s_barrier")
        assert not epi

def dma_gaps1(mat, kc, slot):
    su, ld = dma1(mat, kc, slot)
    return [(0, su[0]), (1, su[1]), (3, ld[0]), (6, ld[1]), (9, ld[2]), (9, ('mark', 'dma'))]

def dma_gaps2(st, K):
    L = []
    for j, (su, ld) in enumerate(dma2(st, K)):
        g = [1, 5, 9][j]
        L += [(g - 1, su[0]), (g - 1, su[1]), (g, ld)]
    L.append((9, ('mark', 'dma')))
    return L

def phase2(s, o, n0, K, dft):
    nk = K // 16; Q = 9 * nk; nst = Q // 6
    def st_out(seg):
        acc = 16 if seg % 2 == 0 else 48
        L = ["s_add_u32 s37, s36, %d" % (seg * 8192)]
        for n in range(2):
            for J in range(2):
                for q in range(4):
                    r = acc + 16 * n + 8 * J + 2 * q
                    L.append("v_cvt_pk_bf16_f32 v%d, v%d, v%d" % (176 + n * 8 + 4 * J + q, r, r + 1))
                if not (o['nostore'] and seg < 8):
                    L.append("buffer_store_dwordx4 v[%d:%d], v11, s[8:11], s37 offen offset:%d %s" % (176 + n * 8 + 4 * J, 179 + n * 8 + 4 * J, n * 2048 + J * 1024, o['stf'].replace('+', ' ')))
        if dft:
            x = 208 + seg % 2
            L += ["v_mov_b32 v210, v%d" % x, "s_add_u32 s39, s38, %d" % (seg * 8192), "s_nop 0",
                  "v_permlane32_swap_b32 v%d, v210" % x, "v_add_f32 v210, v%d, v210" % x, "v_cvt_pk_bf16_f32 v210, v210, v210",
                  "buffer_store_short v210, v12, s[8:11], s39 offen"]
        return L
    def hx(kap, j):
        return (112 + 4 * kap + j) if kap < 16 else (192 + 4 * (kap - 16) + j)
    pend = []
    for st in range(nst):
        gaps = [[] for _ in range(12)]
        mf = []
        newseg = None
        for kp in range(6):
            q = st * 6 + kp; seg = q // nk; kap = q % nk
            n = n0 + q
            if q + PF < Q:
                gaps[2 * kp].append(rd2(n + PF, 0, n0)); gaps[2 * kp + 1].append(rd2(n + PF, 1, n0))
            acc = 16 if seg % 2 == 0 else 48
            for t in range(2):
                A = areg(n); D = acc + 16 * t
                C = "0" if kap == 0 else "v[%d:%d]" % (D, D + 15)
                j = kap * 2 + t
                mf.append(["v_mfma_f32_32x32x16_bf16 v[%d:%d], v[%d:%d], a[%d:%d], %s" % (D, D + 15, A, A + 3, 4 * j, 4 * j + 3, C)])
            if dft:
                x = 208 + seg % 2; A = areg(n)
                for jj in range(4):
                    c = "0" if (kap == 0 and jj == 0) else "v%d" % x
                    gaps[2 * kp + (jj // 2)].append("v_dot2_f32_bf16 v%d, v%d, v%d, %s" % (x, A + jj, hx(kap, jj), c))
            if kap == 0 and seg > 0:
                newseg = (kp, seg - 1)
        if st + 5 < nst:
            for g, ins in dma_gaps2(st + 5, K): gaps[g].append(ins)
        if newseg is not None:
            kp, sg = newseg
            assert not pend
            pend = st_out(sg)
            start = 2 * kp + o['p2_epi_delay']
        else:
            start = 0
        if pend:
            if start < 12:
                room = (12 - start) * o['p2_epi_rate']
                mine = pend[:room]; pend = pend[room:]
                spread(gaps, mine, o, start=start)
        emit_gaps(s, mf, gaps)
        if st + 2 <= nst - 1:
            last_issued = min(st + 5, nst - 1)
            s.waitmark("dma", last_issued - (st + 2)); s.e("s_barrier")
    assert not pend
    for ins in st_out(8): s.e(ins)

def gen_k2(Kern, srd, opts):
    o = dict(prof=0, nostore=0, stf='', nords=0, noepi=0, nodma=0, wtrans=2.0, wsalu=0.3, epi_start=4, first_less=4, p2_epi_delay=5, p2_epi_rate=2)
    for k, v in opts.items():
        if k in o: o[k] = type(o[k])(v)
    K = Kern("main_kernel", (256, 1, 1), (256, 1, 1), LDS_BYTES, vgpr=512, accum=256)
    a = K.seg("head")
    a.e("s_cmp_ge_u32 s2, 256"); a.e("s_cbranch_scc1 K2_end")
    stamp(a, 0)
    a.e("s_load_dwordx2 s[4:5], s[0:1], 88")
    a.e("s_load_dwordx4 s[40:43], s[0:1], 48")
    a.e("s_load_dwordx2 s[44:45], s[0:1], 64")
    a.e("s_load_dwordx4 s[48:51], s[0:1], 8")
    a.e("s_load_dwordx4 s[52:55], s[0:1], 24")
    a.e("v_lshrrev_b32 v1, 6, v0"); a.e("v_and_b32 v0, 63, v0"); a.e("v_readfirstlane_b32 s24, v1")
    a.e("s_and_b32 s3, s2, 7"); a.e("s_lshr_b32 s28, s2, 3"); a.e("s_lshr_b32 s27, s28, 4"); a.e("s_lshl_b32 s3, s3, 1")
    a.e("s_add_u32 s27, s27, s3"); a.e("s_and_b32 s28, s28, 15")
    a.e("s_lshr_b32 s25, s24, 1"); a.e("s_and_b32 s26, s24, 1")
    a.e("s_mov_b32 s%d, 0xbfb8aa3b" % CNEG)
    a.e("v_lshrrev_b32 v13, 4, v0"); a.e("v_bfe_u32 v14, v0, 2, 2"); a.e("v_and_b32 v15, 3, v0")
    a.e("v_lshlrev_b32 v11, 4, v0")
    a.e("v_lshrrev_b32 v1, 1, v13"); a.e("v_lshlrev_b32 v1, 2, v1"); a.e("v_add_u32 v1, v1, v14"); a.e("v_lshlrev_b32 v8, 7, v1")
    a.e("v_and_b32 v1, 1, v13"); a.e("v_lshlrev_b32 v1, 1, v1"); a.e("s_lshl_b32 s3, s26, 2"); a.e("v_add_u32 v1, s3, v1")
    a.e("v_bfe_u32 v9, v14, 1, 1"); a.e("v_lshlrev_b32 v9, 2, v9")
    a.e("v_and_b32 v12, 1, v15"); a.e("v_add_u32 v12, v1, v12"); a.e("v_xor_b32 v12, v12, v9"); a.e("v_lshlrev_b32 v12, 4, v12"); a.e("v_add_u32 v8, v8, v12")
    a.e("v_lshrrev_b32 v12, 1, v15"); a.e("v_lshlrev_b32 v12, 3, v12"); a.e("v_add_u32 v8, v8, v12")
    a.e("v_lshrrev_b32 v12, 1, v15"); a.e("v_add_u32 v12, v1, v12"); a.e("v_xor_b32 v12, v12, v9"); a.e("v_lshlrev_b32 v12, 4, v12")
    a.e("v_lshrrev_b32 v5, 1, v13"); a.e("v_lshlrev_b32 v5, 3, v5"); a.e("v_add_u32 v5, v5, v14"); a.e("v_lshlrev_b32 v5, 7, v5"); a.e("v_add_u32 v5, v5, v12")
    a.e("v_and_b32 v12, 1, v15"); a.e("v_lshlrev_b32 v12, 3, v12"); a.e("v_add_u32 v5, v5, v12")
    a.e("v_add_u32 v6, 0x10000, v5"); a.e("v_add_u32 v9, 0x10000, v8")
    a.e("v_lshrrev_b32 v13, 3, v0"); a.e("v_and_b32 v14, 7, v0"); a.e("v_bfe_u32 v15, v13, 1, 1"); a.e("v_lshlrev_b32 v15, 2, v15")
    a.e("v_xor_b32 v14, v14, v15"); a.e("v_lshlrev_b32 v14, 4, v14")
    a.e("s_movk_i32 s3, 1152"); a.e("v_mul_lo_u32 v10, v13, s3"); a.e("v_add_u32 v10, v10, v14")
    a.e("s_movk_i32 s3, 9216"); a.e("v_mul_lo_u32 v2, v13, s3"); a.e("v_add_u32 v2, v2, v14")
    a.e("v_add_u32 v3, %d, v2" % (8 * 9216 - 1024)); a.e("v_add_u32 v4, %d, v2" % (16 * 9216 - 2048))
    a.e("s_lshl_b32 s34, s24, 10")
    a.e("s_mul_i32 s36, s27, %d" % SLOTB); a.e("s_lshl_b32 s3, s28, 1"); a.e("s_add_u32 s3, s3, s25"); a.e("s_mul_i32 s3, s3, %d" % T64B)
    a.e("s_add_u32 s36, s36, s3"); a.e("s_lshl_b32 s46, s26, 12"); a.e("s_add_u32 s36, s36, s46"); a.e("s_add_u32 s36, s36, %d" % PART)
    a.waitlg(0)
    srd(a, 8, 4, WS_BYTES)
    a.e("s_cmp_eq_u32 s27, 15"); a.e("s_cbranch_scc1 K2_dft")
    f = K.seg("ffn_pro")
    srd(f, 12, 40, 576 * 9216); srd(f, 16, 42, 576 * 9216); srd(f, 20, 44, 4608 * 1152)
    f.e("s_mul_i32 s46, s27, 5"); f.e("s_lshl_b32 s47, s27, 2"); f.e("s_add_u32 s47, s47, 12")
    f.e("s_cmp_lt_u32 s27, 12"); f.e("s_cselect_b32 s46, s46, s47"); f.e("s_cselect_b32 s32, 4, 3")
    f.e("s_mul_i32 s30, s24, %d" % (24 * 9216)); f.e("s_lshl_b32 s47, s46, 7"); f.e("s_add_u32 s30, s30, s47")
    f.e("s_mul_i32 s29, s24, 3072")
    f.e("s_lshl_b32 s47, s46, 6"); f.e("s_lshl_b32 s56, s24, 3"); f.e("s_add_u32 s47, s47, s56"); f.e("s_mul_i32 s35, s47, 1152")
    for st in range(5):
        su, ld = dma1(0, st, st)
        for x in su + ld: f.e(x)
        f.mark("dma")
    f.e("s_lshl_b32 s3, s28, 1"); f.e("s_add_u32 s3, s3, s25"); f.e("s_mul_i32 s3, s3, %d" % T64B)
    if XN: f.e("s_add_u32 s3, s3, %d" % XN)
    for i in range(72):
        if i % 4 == 0 and i > 0: f.e("s_add_u32 s3, s3, 4096")
        f.e("buffer_load_dwordx4 %s, v11, s[8:11], s3 offen offset:%d" % (xreg(i), (i % 4) * 1024))
    f.e("s_mul_i32 s3, s25, 40960"); f.e("s_lshl_b32 s46, s26, 11"); f.e("s_add_u32 s3, s3, s46"); f.e("s_add_u32 s3, s3, %d" % HB)
    f.e("v_add_u32 v7, s3, v11")
    f.waitmark("dma", 3); f.e("s_barrier")
    stamp(f, 1)
    for n in range(PF):
        f.e(rd1(n, 0)); f.e(rd1(n, 1))
    p1 = P1(o)
    def d_g0(i):
        return dma_gaps1(0, 5, 5) if i == 0 else dma_gaps1(1, i - 1, i - 1)
    p1.phase(f, 0, [], d_g0)
    stamp(f, 2)
    lp = K.seg("ffn_loop"); lp.lab("K2_loop")
    def d_up(i):
        if i == 0: return dma_gaps1(1, 5, 5) + [(10, "s_add_u32 s30, s30, 128")]
        return dma_gaps1(0, i - 1, i - 1)
    def d_gate(i):
        return dma_gaps1(0, 5, 5) if i == 0 else dma_gaps1(1, i - 1, i - 1)
    p1.phase(lp, 1, epi1(), d_up)
    p1.phase(lp, 0, epi2() + ["v_add_u32 v7, 4096, v7"], d_gate)
    lp.e("s_sub_u32 s32, s32, 1"); lp.e("s_cmp_lg_u32 s32, 0"); lp.e("s_cbranch_scc1 K2_loop")
    nloop = p1.n
    br = K.seg("ffn_br")
    stamp(br, 3)
    br.e("s_cmp_ge_u32 s27, 12"); br.e("s_cbranch_scc1 K2_ffn4")
    tails = {}
    for Kd, lab in ((320, None), (256, "K2_ffn4")):
        t = K.seg("ffn_tail%d" % Kd)
        if lab: t.lab(lab)
        p = P1(o); p.n = nloop
        n0 = nloop + 36
        def d_last(i, Kd=Kd):
            return dma_gaps1(1, 5, 5) if i == 0 else dma_gaps2(i - 1, Kd)
        p.phase(t, 1, epi1(), d_last, nextrd=lambda n, h, n0=n0: rd2(n, h, n0), last_barrier=False)
        stamp(t, 4)
        t.e("s_nop 7")
        for x in epi2(): t.e(x)
        t.waitmark("dma", 3); t.waitlg(0); t.e("s_barrier")
        t.e("s_mul_i32 s3, s25, 40960"); t.e("s_add_u32 s3, s3, %d" % HB); t.e("v_add_u32 v1, s3, v11")
        for kap in range(Kd // 16):
            for n in range(2):
                j = kap * 2 + n
                t.e("ds_read_b128 a[%d:%d], v1 offset:%d" % (4 * j, 4 * j + 3, (n * 20 + kap) * 1024))
        stamp(t, 5)
        phase2(t, o, n0, Kd, False)
        stamp(t, 6)
        if o['prof']: t.waitall()
        stamp(t, 7); prof_store(t, 1, 8, 8, 24, 12, 60)
        t.e("s_endpgm")
        tails[Kd] = t
    d = K.seg("dft"); d.lab("K2_dft")
    gen_dft(d, o, srd)
    e = K.seg("end"); e.lab("K2_end"); e.e("s_endpgm")
    K.paths = [[a, f] + [lp] * 4 + [br, tails[320]], [a, f] + [lp] * 3 + [br, tails[256]], [a, d]]
    return K

def gen_dft(d, o, srd):
    d.e("s_cmp_ge_u32 s28, 8"); d.e("s_cselect_b32 s46, s50, s48"); d.e("s_cselect_b32 s47, s51, s49")
    d.e("s_cselect_b32 s56, s54, s52"); d.e("s_cselect_b32 s57, s55, s53")
    d.e("s_mov_b32 s58, %d" % XEE); d.e("s_cselect_b32 s58, %d, s58" % XOO); d.e("s_cselect_b32 s59, 1536, 0"); d.e("s_cselect_b32 s60, 0, 0xbf803f80")
    srd(d, 12, 46, 2048 * 4096); srd(d, 20, 56, 576 * 1152)
    d.e("s_and_b32 s3, s28, 7"); d.e("s_lshl_b32 s3, s3, 6"); d.e("s_add_u32 s59, s59, s3"); d.e("s_lshl_b32 s59, s59, 1")
    d.e("s_mul_i32 s61, s24, %d" % (16 * 640)); d.e("s_add_u32 s61, s61, s58")
    d.e("s_lshl_b32 s62, s24, 16"); d.e("s_add_u32 s62, s62, s59")
    d.e("v_lshrrev_b32 v13, 3, v0"); d.e("v_and_b32 v14, 7, v0"); d.e("v_bfe_u32 v15, v13, 1, 2"); d.e("v_lshlrev_b32 v15, 1, v15")
    d.e("v_xor_b32 v14, v14, v15"); d.e("v_lshlrev_b32 v14, 4, v14")
    d.e("s_movk_i32 s3, 1280"); d.e("v_mul_lo_u32 v2, v13, s3"); d.e("v_add_u32 v2, v2, v14")
    d.e("v_lshlrev_b32 v3, 13, v13"); d.e("v_add_u32 v3, v3, v14")
    NSD = 33; SL = 24576
    def stage_rows(st):
        return (st % 2, st // 2)
    def dmad(st):
        par, ks = stage_rows(st); slot = st % 6
        L = []
        r0 = 64 * ks + par
        L.append(("s", "s_add_u32 s31, s61, %d" % (r0 * 640)))
        for b in range(5):
            L.append(("s", "s_add_u32 m0, s34, %d" % (slot * SL + b * 4096 - 128 * b)))
            L.append(("l", "buffer_load_dwordx4 v2, s[8:11], s31 offen offset:%d lds" % (128 * b)))
        L.append(("s", "s_add_u32 s63, s62, %d" % (r0 * 4096)))
        L.append(("s", "s_add_u32 m0, s34, %d" % (slot * SL + 5 * 4096)))
        L.append(("l", "buffer_load_dwordx4 v3, s[12:15], s63 offen lds"))
        return L
    for st in range(5):
        for _, x in dmad(st): d.e(x)
        d.mark("dma")
    d.e("v_lshrrev_b32 v13, 2, v0"); d.e("v_and_b32 v15, 3, v0"); d.e("v_bfe_u32 v14, v13, 1, 2"); d.e("v_lshlrev_b32 v14, 1, v14")
    d.e("v_lshlrev_b32 v13, 7, v13"); d.e("v_and_b32 v1, 1, v15"); d.e("v_lshlrev_b32 v1, 3, v1"); d.e("v_add_u32 v13, v13, v1")
    d.e("v_lshrrev_b32 v15, 1, v15")
    for u in range(4):
        d.e("v_add_u32 v1, %d, v15" % (2 * u)); d.e("v_xor_b32 v1, v1, v14"); d.e("v_lshlrev_b32 v1, 4, v1"); d.e("v_add_u32 v1, v1, v13")
        d.e("v_add_u32 v%d, %d, v1" % (196 + u, 5 * 4096))
    for i in range(5):
        d.e("s_mul_i32 s3, s24, 5"); d.e("s_add_u32 s3, s3, %d" % i)
        d.e("s_and_b32 s46, s3, 3"); d.e("s_lshl_b32 s46, s46, 1"); d.e("s_lshr_b32 s47, s3, 2"); d.e("s_lshl_b32 s47, s47, 12")
        d.e("v_add_u32 v1, s46, v15"); d.e("v_xor_b32 v1, v1, v14"); d.e("v_lshlrev_b32 v1, 4, v1"); d.e("v_add_u32 v1, v1, v13")
        d.e("v_add_u32 v%d, s47, v1" % (200 + i))
    for q in range(9): d.e("v_add_u32 v%d, %d, v%d" % (205 + q, 3 * SL, 196 + q))
    for q in range(4): d.e("v_mov_b32 v%d, s60" % (216 + q))
    def frag(st, q):
        return (st % 2) * 36 + 4 * q
    def rdd(st, q, half):
        slot = st % 6; base = 196 + q
        if slot >= 3: base += 9; slot -= 3
        r = frag(st, q) + 2 * half
        return "ds_read_b64_tr_b16 a[%d:%d], v%d offset:%d" % (r, r + 1, base, slot * SL + half * 2048)
    d.waitmark("dma", 3); d.e("s_barrier")
    stamp(d, 1); stamp(d, 2)
    order = [4, 0, 1, 2, 3, 5, 6, 7, 8]
    for q in order: d.e(rdd(0, q, 0)); d.e(rdd(0, q, 1))
    for st in range(NSD):
        par, ks = stage_rows(st)
        mf = []
        for i in range(5):
            A = frag(st, 4 + i)
            for u in range(4):
                B = frag(st, u); D = 16 + par * 80 + (i * 4 + u) * 4
                C = "0" if ks == 0 else "v[%d:%d]" % (D, D + 3)
                mf.append(["v_mfma_f32_16x16x32_bf16 v[%d:%d], a[%d:%d], a[%d:%d], %s" % (D, D + 3, A, A + 3, B, B + 3, C)])
            if par == 0:
                D = 176 + 4 * i; C = "0" if ks == 0 else "v[%d:%d]" % (D, D + 3)
                mf.append(["v_mfma_f32_16x16x32_bf16 v[%d:%d], a[%d:%d], v[216:219], %s" % (D, D + 3, A, A + 3, C)])
        G = len(mf)
        gaps = [[] for _ in range(G)]
        fill = []
        if st + 1 < NSD:
            for q in order: fill += [rdd(st + 1, q, 0), rdd(st + 1, q, 1)]
        dm = dmad(st + 5) if st + 5 < NSD else []
        for g, x in enumerate(fill): gaps[g].append(x)
        if dm:
            pos = [2, 5, 8, 11, 14, 17]; li = 0; pendS = []
            for kind, x in dm:
                if kind == "s": pendS.append(x)
                else:
                    g = pos[li]; li += 1
                    for y in pendS: gaps[g - 1].append(y)
                    pendS = []
                    gaps[g].append(x)
            gaps[17].append(('mark', 'dma'))
        emit_gaps(d, mf, gaps)
        if st + 2 <= NSD - 1:
            last_issued = min(st + 5, NSD - 1)
            d.waitmark("dma", last_issued - (st + 2)); d.e("s_barrier")
    d.e("s_barrier")
    stamp(d, 3)
    d.e("s_mul_i32 s35, s24, %d" % (8 * 1152))
    for st in range(5):
        for su, ld in dma2(st, 320):
            for x in su: d.e(x)
            d.e(ld)
        d.mark("dma")
    d.e("v_lshrrev_b32 v13, 4, v0"); d.e("v_and_b32 v14, 15, v0"); d.e("v_and_b32 v15, 1, v13"); d.e("v_lshlrev_b32 v15, 5, v15"); d.e("v_add_u32 v14, v14, v15")
    d.e("v_lshlrev_b32 v14, 4, v14"); d.e("v_lshrrev_b32 v13, 1, v13"); d.e("v_lshlrev_b32 v1, 3, v13"); d.e("v_add_u32 v14, v14, v1")
    d.e("s_mul_i32 s3, s24, 5120"); d.e("s_add_u32 s3, s3, %d" % HB); d.e("v_add_u32 v7, s3, v14")
    d.e("v_add_u32 v6, 40960, v7")
    d.e("v_lshlrev_b32 v15, 4, v0"); d.e("v_lshrrev_b32 v15, 8, v15"); d.e("v_and_b32 v15, 1, v15"); d.e("v_lshlrev_b32 v15, 4, v15"); d.e("v_add_u32 v15, v15, v1")
    d.e("s_mul_i32 s3, s24, 160"); d.e("s_add_u32 s3, s3, %d" % HX); d.e("v_add_u32 v5, s3, v15")
    k = 0
    for i in range(5):
        for u in range(4):
            E = 16 + (i * 4 + u) * 4; O = E + 80
            t = 220 + 8 * (k % 4); k += 1
            for j in range(4):
                d.e("v_add_f32 v%d, v%d, v%d" % (t + j, E + j, O + j)); d.e("v_sub_f32 v%d, v%d, v%d" % (t + 4 + j, E + j, O + j))
            d.e("v_cvt_pk_bf16_f32 v%d, v%d, v%d" % (t, t, t + 1)); d.e("v_cvt_pk_bf16_f32 v%d, v%d, v%d" % (t + 1, t + 2, t + 3))
            d.e("v_cvt_pk_bf16_f32 v%d, v%d, v%d" % (t + 4, t + 4, t + 5)); d.e("v_cvt_pk_bf16_f32 v%d, v%d, v%d" % (t + 5, t + 6, t + 7))
            off = i * 1024 + (u >> 1) * 20480 + (u & 1) * 256
            d.e("ds_write_b64 v7, v[%d:%d] offset:%d" % (t, t + 1, off)); d.e("ds_write_b64 v6, v[%d:%d] offset:%d" % (t + 4, t + 5, off))
        X = 176 + 4 * i
        d.e("v_cvt_pk_bf16_f32 v%d, v%d, v%d" % (X, X, X + 1)); d.e("v_cvt_pk_bf16_f32 v%d, v%d, v%d" % (X + 1, X + 2, X + 3))
        d.e("ds_write_b64 v5, v[%d:%d] offset:%d" % (X, X + 1, i * 32))
    d.e("v_and_b32 v13, 31, v0"); d.e("v_lshrrev_b32 v14, 4, v13"); d.e("v_lshlrev_b32 v12, 10, v14")
    d.e("v_bfe_u32 v14, v13, 2, 1"); d.e("v_lshlrev_b32 v14, 9, v14"); d.e("v_add_u32 v12, v12, v14")
    d.e("v_bfe_u32 v14, v13, 3, 1"); d.e("v_lshlrev_b32 v14, 3, v14"); d.e("v_add_u32 v12, v12, v14")
    d.e("v_and_b32 v14, 3, v13"); d.e("v_lshlrev_b32 v14, 1, v14"); d.e("v_add_u32 v12, v12, v14")
    d.e("s_add_u32 s38, s28, 32"); d.e("s_mul_i32 s38, s38, %d" % T64B); d.e("s_lshl_b32 s3, s26, 12"); d.e("s_add_u32 s38, s38, s3")
    d.e("s_add_u32 s38, s38, %d" % (PART + 15 * SLOTB))
    d.waitmark("dma", 3); d.waitlg(0); d.e("s_barrier")
    stamp(d, 4)
    d.e("s_mul_i32 s3, s25, 40960"); d.e("s_add_u32 s3, s3, %d" % HB); d.e("v_add_u32 v1, s3, v11")
    d.e("v_lshrrev_b32 v13, 5, v0"); d.e("v_lshlrev_b32 v13, 4, v13"); d.e("v_add_u32 v13, %d, v13" % HX)
    n0 = 0
    for n in range(PF):
        d.e(rd2(n, 0, n0)); d.e(rd2(n, 1, n0))
    for kap in range(20):
        for n in range(2):
            j = kap * 2 + n
            d.e("ds_read_b128 a[%d:%d], v1 offset:%d" % (4 * j, 4 * j + 3, (n * 20 + kap) * 1024))
        r = (112 + 4 * kap) if kap < 16 else (192 + 4 * (kap - 16))
        d.e("ds_read_b128 v[%d:%d], v13 offset:%d" % (r, r + 3, kap * 32))
    stamp(d, 5)
    phase2(d, o, n0, 320, True)
    stamp(d, 6)
    if o['prof']: d.waitall()
    stamp(d, 7); prof_store(d, 1, 8, 8, 24, 14, 60)
    d.e("s_endpgm")
```

```python
import sys, argparse
from emit import *
NAME = "recurrent_scan__spectral_fnet__swiglu_ffn__prompt"
XN   = 0x0
XEE  = 0x240000
XOO  = 0x300000
PART = 0x400000
SLOTB = 2359296
T64B = 73728
WS_BYTES = 0x4000000

class Kern:
    def __init__(self, label, grid, block, lds, vgpr, accum=None, sgpr=102):
        self.label = label; self.grid = grid; self.block = block; self.lds = lds
        self.vgpr = vgpr; self.accum = accum if accum else min(256, (vgpr + 3) // 4 * 4); self.sgpr = sgpr
        self.order = []
        self.paths = []
    def seg(self, name):
        s = Seg(name); self.order.append(s); return s
    def build(self, verbose=True):
        probs = resolve(self.paths)
        if probs:
            for p in probs[:20]: print("PROBLEM", self.label, p, file=sys.stderr)
            raise SystemExit("unresolved hazards")
        stats = []
        L = []
        for s in self.order: L += render(s, stats)
        if verbose:
            tot = sum(x[1] for x in stats)
            print("%s: %d lines, auto nops %d at %d places" % (self.label, len(L), tot, len(stats)), file=sys.stderr)
            if verbose > 1:
                for x in stats: print("   nop", x, file=sys.stderr)
        out = [".globl %s" % self.label, ".p2align 8", ".type %s,@function" % self.label, "%s:" % self.label]
        for l in L:
            out.append(l if l.endswith(':') else l)
        return "\n".join(out) + "\n"
    def desc(self):
        return (".amdhsa_kernel %s\n  .amdhsa_next_free_vgpr %d\n  .amdhsa_next_free_sgpr %d\n  .amdhsa_accum_offset %d\n"
                "  .amdhsa_group_segment_fixed_size 0\n  .amdhsa_kernarg_size 96\n  .amdhsa_user_sgpr_count 2\n"
                "  .amdhsa_user_sgpr_kernarg_segment_ptr 1\n  .amdhsa_system_sgpr_workgroup_id_x 1\n.end_amdhsa_kernel\n") % (
                self.label, self.vgpr, self.sgpr, self.accum)

PROF = 0x3800000
PROFON = [False]
def stamp(seg, i):
    if PROFON[0] == 3:
        seg.e("s_memrealtime s[%d:%d]" % (64 + 2 * i, 65 + 2 * i)); seg.e("s_memtime s[%d:%d]" % (80 + 2 * i, 81 + 2 * i))
    elif PROFON[0]: seg.e("%s s[%d:%d]" % ("s_memtime" if PROFON[0] == 2 else "s_memrealtime", 64 + 2 * i, 65 + 2 * i))
def prof_store(seg, kidx, n, wsrd, wave_s, va, tmp_s):
    if not PROFON[0]: return
    seg.waitall()
    seg.e("s_lshl_b32 s%d, s2, 2" % tmp_s); seg.e("s_add_u32 s%d, s%d, s%d" % (tmp_s, tmp_s, wave_s)); seg.e("s_lshl_b32 s%d, s%d, 7" % (tmp_s, tmp_s))
    seg.e("s_add_u32 s%d, s%d, %d" % (tmp_s, tmp_s, PROF + kidx * 0x80000))
    seg.e("s_mov_b64 exec, 1"); seg.e("v_mov_b32 v%d, 0" % (va + 2))
    for i in (list(range(n)) + (list(range(8, 8 + n)) if PROFON[0] == 3 else [])):
        seg.e("v_mov_b32 v%d, s%d" % (va, 64 + 2 * i)); seg.e("v_mov_b32 v%d, s%d" % (va + 1, 65 + 2 * i))
        seg.e("buffer_store_dwordx2 v[%d:%d], v%d, s[%d:%d], s%d offen offset:%d" % (va, va + 1, va + 2, wsrd, wsrd + 3, tmp_s, 8 * i))

def srd(k, d, lo, nbytes):
    k.e("s_mov_b32 s%d, s%d" % (d, lo)); k.e("s_mov_b32 s%d, s%d" % (d + 1, lo + 1))
    k.e("s_mov_b32 s%d, 0x%x" % (d + 2, nbytes)); k.e("s_mov_b32 s%d, 0x00020000" % (d + 3))

def gen_k1():
    K = Kern("prep_kernel", (528, 1, 1), (256, 1, 1), 4 * 2304 + 1280, vgpr=96)
    a = K.seg("k1_head")
    a.e("s_cmp_ge_u32 s2, 528"); a.e("s_cbranch_scc1 K1_end")
    stamp(a, 0)
    a.e("s_load_dwordx2 s[4:5], s[0:1], 0"); a.e("s_load_dwordx2 s[6:7], s[0:1], 88")
    a.e("v_lshrrev_b32 v1, 6, v0"); a.e("v_and_b32 v0, 63, v0"); a.e("v_readfirstlane_b32 s20, v1")
    a.e("v_and_b32 v2, 31, v0")
    a.e("v_lshrrev_b32 v3, 5, v0")
    a.waitlg(0)
    srd(a, 8, 4, 2359296); srd(a, 12, 6, WS_BYTES)
    a.e("s_cmp_ge_u32 s2, 256"); a.e("s_cbranch_scc1 K1_typeB_rows")
    a.e("s_lshl_b32 s21, s2, 3"); a.e("s_lshl_b32 s22, s20, 1"); a.e("s_add_u32 s21, s21, s22"); a.e("s_add_u32 s22, s21, 1")
    a.e("s_branch K1_rows_done")
    b = K.seg("k1_brows"); b.lab("K1_typeB_rows")
    b.e("s_sub_u32 s23, s2, 256"); b.e("s_lshl_b32 s23, s23, 2"); b.e("s_add_u32 s23, s23, s20")
    b.e("s_cmp_gt_u32 s23, 1024"); b.e("s_cbranch_scc1 K1_zero")
    b.e("s_mov_b32 s21, s23"); b.e("s_sub_u32 s22, 2048, s23"); b.e("s_and_b32 s22, s22, 2047")
    c = K.seg("k1_ln"); c.lab("K1_rows_done")
    c.e("v_mov_b32 v4, s21"); c.e("v_mov_b32 v5, s22"); c.e("v_cmp_eq_u32 vcc, 1, v3"); c.e("v_cndmask_b32 v4, v4, v5, vcc")
    c.e("s_movk_i32 s24, 1152"); c.e("v_mul_lo_u32 v5, v4, s24"); c.e("v_lshlrev_b32 v6, 4, v2"); c.e("v_add_u32 v5, v5, v6")
    c.e("v_cmp_gt_u32 s[26:27], 8, v2")
    c.e("v_add_u32 v7, 1024, v5"); c.e("v_mov_b32 v8, 0x7fffffff"); c.e("v_cndmask_b32 v7, v8, v7, s[26:27]")
    c.e("buffer_load_dwordx4 v[8:11], v5, s[8:11], 0 offen")
    c.e("buffer_load_dwordx4 v[12:15], v5, s[8:11], 0 offen offset:512")
    c.e("buffer_load_dwordx4 v[16:19], v7, s[8:11], 0 offen")
    for i in range(60, 80): c.e("v_mov_b32 v%d, 0" % i)
    for q in range(12):
        c.e("v_lshlrev_b32 v%d, 16, v%d" % (20 + 2 * q, 8 + q)); c.e("v_and_b32 v%d, 0xffff0000, v%d" % (21 + 2 * q, 8 + q))
    c.e("v_add_f32 v44, v20, v21"); c.e("v_add_f32 v45, v22, v23"); c.e("v_add_f32 v46, v24, v25"); c.e("v_add_f32 v47, v26, v27")
    for q in range(8, 24, 4):
        for r in range(4): c.e("v_add_f32 v%d, v%d, v%d" % (44 + r, 44 + r, 20 + q + r))
    c.e("v_add_f32 v44, v44, v45"); c.e("v_add_f32 v46, v46, v47"); c.e("v_add_f32 v44, v44, v46")
    def reduce32(r, t):
        c.e("v_add_f32_dpp v%d, v%d, v%d quad_perm:[1,0,3,2] row_mask:0xf bank_mask:0xf" % (r, r, r))
        c.e("v_add_f32_dpp v%d, v%d, v%d quad_perm:[2,3,0,1] row_mask:0xf bank_mask:0xf" % (r, r, r))
        c.e("v_add_f32_dpp v%d, v%d, v%d row_half_mirror row_mask:0xf bank_mask:0xf" % (r, r, r))
        c.e("v_add_f32_dpp v%d, v%d, v%d row_mirror row_mask:0xf bank_mask:0xf" % (r, r, r))
        c.e("v_mov_b32 v%d, v%d" % (t, r))
        c.e("v_permlane16_swap_b32 v%d, v%d" % (r, t))
        c.e("v_add_f32 v%d, v%d, v%d" % (r, r, t))
    reduce32(44, 45)
    c.e("s_mov_b32 s25, 0x3ae38e39")
    c.e("v_mul_f32 v44, s25, v44")
    c.e("v_mov_b32 v46, 0"); c.e("v_mov_b32 v47, 0")
    for q in range(16):
        c.e("v_sub_f32 v%d, v%d, v44" % (48 + (q % 4), 20 + q)); c.e("v_fmac_f32 v%d, v%d, v%d" % (46 + (q % 2), 48 + (q % 4), 48 + (q % 4)))
    c.e("s_mov_b64 exec, s[26:27]")
    for q in range(16, 24):
        c.e("v_sub_f32 v%d, v%d, v44" % (48 + (q % 4), 20 + q)); c.e("v_fmac_f32 v%d, v%d, v%d" % (46 + (q % 2), 48 + (q % 4), 48 + (q % 4)))
    c.e("s_mov_b64 exec, -1")
    c.e("v_add_f32 v46, v46, v47")
    reduce32(46, 47)
    c.e("v_mul_f32 v46, s25, v46")
    c.e("v_cvt_pk_bf16_f32 v46, v46, v44")
    c.e("v_and_b32 v44, 0xffff0000, v46")
    c.e("v_lshlrev_b32 v46, 16, v46")
    c.e("v_add_f32 v46, 0x3727c5ac, v46")
    c.e("v_cvt_pk_bf16_f32 v46, v46, v46"); c.e("v_lshlrev_b32 v46, 16, v46")
    c.e("v_sqrt_f32 v46, v46")
    c.e("v_cvt_pk_bf16_f32 v46, v46, v46"); c.e("v_lshlrev_b32 v46, 16, v46")
    c.e("v_rcp_f32 v46, v46")
    for q in range(24): c.e("v_sub_f32 v%d, v%d, v44" % (20 + q, 20 + q))
    for q in range(12): c.e("v_cvt_pk_bf16_f32 v%d, v%d, v%d" % (8 + q, 20 + 2 * q, 21 + 2 * q))
    for q in range(12):
        c.e("v_lshlrev_b32 v%d, 16, v%d" % (20 + 2 * q, 8 + q)); c.e("v_and_b32 v%d, 0xffff0000, v%d" % (21 + 2 * q, 8 + q))
    for q in range(24): c.e("v_mul_f32 v%d, v%d, v46" % (20 + q, 20 + q))
    for q in range(12): c.e("v_cvt_pk_bf16_f32 v%d, v%d, v%d" % (8 + q, 20 + 2 * q, 21 + 2 * q))
    c.e("s_cmp_ge_u32 s2, 256"); c.e("s_cbranch_scc1 K1_typeB")
    d = K.seg("k1_storeA")
    d.e("v_lshrrev_b32 v20, 6, v4"); d.e("s_mov_b32 s24, %d" % T64B); d.e("v_mul_lo_u32 v20, v20, s24")
    d.e("v_lshrrev_b32 v21, 1, v2"); d.e("v_lshlrev_b32 v21, 11, v21"); d.e("v_add_u32 v20, v20, v21")
    d.e("v_bfe_u32 v21, v4, 5, 1"); d.e("v_lshlrev_b32 v21, 10, v21"); d.e("v_add_u32 v20, v20, v21")
    d.e("v_and_b32 v21, 1, v2"); d.e("v_lshlrev_b32 v21, 9, v21"); d.e("v_add_u32 v20, v20, v21")
    d.e("v_and_b32 v21, 31, v4"); d.e("v_lshlrev_b32 v21, 4, v21"); d.e("v_add_u32 v20, v20, v21")
    d.e("s_mov_b32 s28, %d" % (XN + 32768)); d.e("s_mov_b32 s29, %d" % (XN + 65536)); d.e("s_mov_b32 s30, %d" % XN)
    d.e("buffer_store_dwordx4 v[8:11], v20, s[12:15], s30 offen")
    d.e("buffer_store_dwordx4 v[12:15], v20, s[12:15], s28 offen")
    d.e("s_mov_b64 exec, s[26:27]")
    d.e("buffer_store_dwordx4 v[16:19], v20, s[12:15], s29 offen")
    if PROFON[0]: d.waitall()
    stamp(d, 1); prof_store(d, 0, 2, 12, 20, 44, 40)
    d.e("s_endpgm")
    f = K.seg("k1_typeB"); f.lab("K1_typeB")
    f.e("s_mul_i32 s28, s20, 2304")
    f.e("s_movk_i32 s24, 1152"); f.e("v_mul_lo_u32 v20, v3, s24"); f.e("v_lshlrev_b32 v21, 4, v2"); f.e("v_add_u32 v20, v20, v21"); f.e("v_add_u32 v20, s28, v20")
    f.e("ds_write_b128 v20, v[8:11]"); f.e("ds_write_b128 v20, v[12:15] offset:512")
    f.e("s_mov_b64 exec, s[26:27]"); f.e("ds_write_b128 v20, v[16:19] offset:1024"); f.e("s_mov_b64 exec, -1")
    f.e("v_lshlrev_b32 v21, 1, v0"); f.e("v_add_u32 v22, s28, v21")
    f.e("v_sub_u32 v23, 640, v21"); f.e("v_add_u32 v23, s28, v23")
    f.waitlg(0)
    for i in range(5):
        f.e("ds_read_u16_d16_hi v%d, v22 offset:%d" % (60 + i, 128 * i))
        f.e("ds_read_u16_d16_hi v%d, v22 offset:%d" % (65 + i, 1152 + 128 * i))
        f.e("ds_read_u16_d16_hi v%d, v23 offset:%d" % (70 + i, 512 - 128 * i))
        f.e("ds_read_u16_d16_hi v%d, v23 offset:%d" % (75 + i, 1152 + 512 - 128 * i))
    f.e("s_and_b32 s29, s23, 1023"); f.e("s_cmp_lg_u32 s29, 0"); f.e("s_cselect_b32 s29, 1.0, 0")
    f.e("v_cmp_ne_u32 s[30:31], 0, v0")
    f.e("v_cmp_gt_u32 s[32:33], 32, v0")
    f.e("v_cmp_ge_u32 s[34:35], 32, v0")
    f.e("s_mul_i32 s36, s23, 640"); f.e("s_add_u32 s37, s36, %d" % XOO); f.e("s_add_u32 s36, s36, %d" % XEE)
    for i in range(5):
        A, B, A2, B2 = 60 + i, 65 + i, 70 + i, 75 + i
        t0, t1, o0, o1 = 20 + 4 * i + 4, 21 + 4 * i + 4, 22 + 4 * i + 4, 23 + 4 * i + 4
        f.e("v_fma_f32 v%d, v%d, s29, v%d" % (t0, B, A))
        f.e("v_fma_f32 v%d, v%d, s29, v%d" % (t1, B2, A2))
        f.e("v_sub_f32 v%d, v%d, v%d" % (o0, A, B)); f.e("v_sub_f32 v%d, v%d, v%d" % (o1, A2, B2))
        if i == 0:
            f.e("v_cndmask_b32 v%d, 0, v%d, s[30:31]" % (t1, t1))
        if i == 4:
            f.e("v_cndmask_b32 v%d, 0, v%d, s[32:33]" % (t1, t1))
        f.e("v_add_f32 v%d, v%d, v%d" % (t0, t0, t1)); f.e("v_sub_f32 v%d, v%d, v%d" % (o0, o0, o1))
        if i == 0:
            f.e("v_cndmask_b32 v%d, 0, v%d, s[30:31]" % (o0, o0))
        if i == 4:
            f.e("v_cndmask_b32 v%d, 0, v%d, s[34:35]" % (t0, t0)); f.e("v_cndmask_b32 v%d, 0, v%d, s[32:33]" % (o0, o0))
        f.e("v_cvt_pk_bf16_f32 v%d, v%d, v%d" % (t0, t0, o0))
        f.e("buffer_store_short v%d, v21, s[12:15], s36 offen offset:%d" % (t0, 128 * i))
        f.e("buffer_store_short_d16_hi v%d, v21, s[12:15], s37 offen offset:%d" % (t0, 128 * i))
    if PROFON[0]: f.waitall()
    stamp(f, 1); prof_store(f, 0, 2, 12, 20, 44, 40)
    f.e("s_endpgm")
    z = K.seg("k1_zero"); z.lab("K1_zero")
    z.e("v_mov_b32 v20, 0"); z.e("v_lshlrev_b32 v21, 1, v0")
    z.e("s_mul_i32 s36, s23, 640"); z.e("s_add_u32 s37, s36, %d" % XOO); z.e("s_add_u32 s36, s36, %d" % XEE)
    for i in range(5):
        z.e("buffer_store_short v20, v21, s[12:15], s36 offen offset:%d" % (128 * i))
        z.e("buffer_store_short v20, v21, s[12:15], s37 offen offset:%d" % (128 * i))
    z.lab("K1_end"); z.e("s_endpgm")
    K.paths = [[a, c, d], [a, b, c, f], [a, b, z]]
    return K

def gen_k3():
    K = Kern("final_kernel", (576, 1, 1), (256, 1, 1), 0, vgpr=128)
    a = K.seg("k3")
    a.e("s_cmp_ge_u32 s2, 576"); a.e("s_cbranch_scc1 K3_end")
    stamp(a, 0)
    a.e("s_load_dwordx2 s[4:5], s[0:1], 0"); a.e("s_load_dwordx2 s[6:7], s[0:1], 88"); a.e("s_load_dwordx2 s[16:17], s[0:1], 72")
    a.e("v_lshrrev_b32 v1, 6, v0"); a.e("v_and_b32 v0, 63, v0"); a.e("v_readfirstlane_b32 s20, v1")
    a.e("s_lshl_b32 s21, s2, 2"); a.e("s_add_u32 s21, s21, s20")
    a.e("s_mul_i32 s22, s21, 7282"); a.e("s_lshr_b32 s22, s22, 16")
    a.e("s_mul_i32 s23, s22, 9"); a.e("s_sub_u32 s23, s21, s23")
    a.e("v_lshrrev_b32 v2, 3, v0"); a.e("v_and_b32 v3, 7, v0")
    a.e("s_lshl_b32 s24, s22, 3"); a.e("v_add_u32 v2, s24, v2")
    a.e("v_lshrrev_b32 v4, 2, v3"); a.e("v_lshlrev_b32 v4, 12, v4")
    a.e("v_bfe_u32 v5, v3, 1, 1"); a.e("v_lshlrev_b32 v5, 10, v5"); a.e("v_add_u32 v4, v4, v5")
    a.e("v_and_b32 v5, 1, v3"); a.e("v_lshlrev_b32 v5, 9, v5"); a.e("v_add_u32 v4, v4, v5")
    a.e("s_lshl_b32 s25, s23, 13"); a.e("v_add_u32 v4, s25, v4")
    a.e("s_mov_b32 s26, %d" % T64B)
    def fragaddr(dst, T64, tok, tmp):
        a.e("v_mul_lo_u32 v%d, v%d, s26" % (dst, T64))
        a.e("v_bfe_u32 v%d, v%d, 5, 1" % (tmp, tok)); a.e("v_lshlrev_b32 v%d, 11, v%d" % (tmp, tmp)); a.e("v_add_u32 v%d, v%d, v%d" % (dst, dst, tmp))
        a.e("v_and_b32 v%d, 31, v%d" % (tmp, tok)); a.e("v_lshlrev_b32 v%d, 4, v%d" % (tmp, tmp)); a.e("v_add_u32 v%d, v%d, v%d" % (dst, dst, tmp))
        a.e("v_add_u32 v%d, v%d, v4" % (dst, dst))
    a.e("v_lshrrev_b32 v6, 6, v2")
    fragaddr(5, 6, 2, 7)
    a.waitlg(0)
    srd(a, 8, 4, 2359296); srd(a, 12, 6, WS_BYTES); srd(a, 28, 16, 2359296)
    for i in range(15):
        a.e("s_mov_b32 s%d, %d" % (40 + i, PART + i * SLOTB))
    for i in range(15):
        a.e("buffer_load_dwordx4 v[%d:%d], v5, s[12:15], s%d offen" % (32 + 4 * i, 35 + 4 * i, 40 + i))
    a.e("s_movk_i32 s27, 1152"); a.e("v_mul_lo_u32 v8, v2, s27"); a.e("v_lshlrev_b32 v9, 4, v3"); a.e("v_add_u32 v8, v8, v9"); a.e("s_lshl_b32 s27, s23, 7"); a.e("v_add_u32 v8, s27, v8")
    a.e("v_sub_u32 v9, 2048, v2"); a.e("v_cmp_ge_u32 vcc, 1024, v2"); a.e("v_cndmask_b32 v9, v9, v2, vcc")
    a.e("v_mov_b32 v10, -1.0"); a.e("v_mov_b32 v11, 1.0"); a.e("v_cndmask_b32 v10, v10, v11, vcc")
    a.e("v_sub_u32 v11, 1024, v9"); a.e("v_cmp_gt_u32 vcc, 512, v9")
    a.e("v_cndmask_b32 v12, v11, v9, vcc")
    a.e("v_cndmask_b32 v13, 1, 0, vcc")
    a.e("v_lshrrev_b32 v14, 6, v12"); a.e("v_lshlrev_b32 v14, 1, v14"); a.e("v_add_u32 v14, v14, v13")
    a.e("v_and_b32 v12, 63, v12")
    a.e("v_cmp_eq_u32 vcc, 512, v9"); a.e("v_cndmask_b32 v14, v14, 32, vcc"); a.e("v_cndmask_b32 v12, v12, 0, vcc")
    fragaddr(15, 14, 12, 7)
    a.e("v_sub_u32 v11, 512, v9"); a.e("v_subrev_u32 v12, 512, v9"); a.e("v_cmp_ge_u32 vcc, 512, v9")
    a.e("v_cndmask_b32 v12, v12, v11, vcc"); a.e("v_cndmask_b32 v13, 1, 0, vcc")
    a.e("v_mov_b32 v11, -1.0"); a.e("v_cndmask_b32 v11, v11, 1.0, vcc"); a.e("v_mul_f32 v10, v10, v11")
    a.e("v_lshrrev_b32 v14, 6, v12"); a.e("v_lshlrev_b32 v14, 1, v14"); a.e("v_add_u32 v14, v14, v13"); a.e("v_add_u32 v14, 16, v14")
    a.e("v_and_b32 v12, 63, v12")
    a.e("v_and_b32 v11, 1023, v9"); a.e("v_cmp_eq_u32 vcc, 0, v11"); a.e("v_cndmask_b32 v14, v14, 40, vcc"); a.e("v_cndmask_b32 v12, v12, 0, vcc")
    fragaddr(16, 14, 12, 7)
    a.e("s_mov_b32 s55, %d" % (PART + 15 * SLOTB))
    a.e("buffer_load_dwordx4 v[92:95], v15, s[12:15], s55 offen")
    a.e("buffer_load_dwordx4 v[96:99], v16, s[12:15], s55 offen")
    a.e("buffer_load_dwordx4 v[100:103], v8, s[8:11], 0 offen")
    a.e("s_mov_b32 s56, 0x00003f80"); a.e("s_mov_b32 s57, 0x3f800000")
    for q in range(4):
        a.e("v_lshlrev_b32 v%d, 16, v%d" % (20 + 2 * q, 32 + q)); a.e("v_and_b32 v%d, 0xffff0000, v%d" % (21 + 2 * q, 32 + q))
    for i in range(1, 15):
        for q in range(4):
            a.e("v_dot2_f32_bf16 v%d, v%d, s56, v%d" % (20 + 2 * q, 32 + 4 * i + q, 20 + 2 * q))
            a.e("v_dot2_f32_bf16 v%d, v%d, s57, v%d" % (21 + 2 * q, 32 + 4 * i + q, 21 + 2 * q))
    for q in range(4): a.e("v_cvt_pk_bf16_f32 v%d, v%d, v%d" % (32 + q, 20 + 2 * q, 21 + 2 * q))
    for q in range(4):
        a.e("v_lshlrev_b32 v%d, 16, v%d" % (20 + 2 * q, 32 + q)); a.e("v_and_b32 v%d, 0xffff0000, v%d" % (21 + 2 * q, 32 + q))
    a.e("s_mov_b32 s58, 0xbfb8aa3b")
    for q in range(8): a.e("v_mul_f32 v%d, s58, v%d" % (40 + q, 20 + q))
    for q in range(8): a.e("v_exp_f32 v%d, v%d" % (40 + q, 40 + q))
    for q in range(8): a.e("v_add_f32 v%d, 1.0, v%d" % (40 + q, 40 + q))
    for q in range(8): a.e("v_rcp_f32 v%d, v%d" % (40 + q, 40 + q))
    for q in range(8): a.e("v_mul_f32 v%d, v%d, v%d" % (20 + q, 20 + q, 40 + q))
    for q in range(4): a.e("v_cvt_pk_bf16_f32 v%d, v%d, v%d" % (32 + q, 20 + 2 * q, 21 + 2 * q))
    for q in range(4):
        a.e("v_lshlrev_b32 v%d, 16, v%d" % (20 + 2 * q, 32 + q)); a.e("v_and_b32 v%d, 0xffff0000, v%d" % (21 + 2 * q, 32 + q))
    for q in range(4):
        a.e("v_lshlrev_b32 v%d, 16, v%d" % (40 + 2 * q, 92 + q)); a.e("v_and_b32 v%d, 0xffff0000, v%d" % (41 + 2 * q, 92 + q))
        a.e("v_lshlrev_b32 v%d, 16, v%d" % (48 + 2 * q, 96 + q)); a.e("v_and_b32 v%d, 0xffff0000, v%d" % (49 + 2 * q, 96 + q))
    for q in range(8): a.e("v_fma_f32 v%d, v%d, v10, v%d" % (40 + q, 48 + q, 40 + q))
    for q in range(4): a.e("v_cvt_pk_bf16_f32 v%d, v%d, v%d" % (36 + q, 40 + 2 * q, 41 + 2 * q))
    for q in range(4):
        a.e("v_lshlrev_b32 v%d, 16, v%d" % (40 + 2 * q, 36 + q)); a.e("v_and_b32 v%d, 0xffff0000, v%d" % (41 + 2 * q, 36 + q))
    for q in range(8): a.e("v_mul_f32 v%d, v%d, v%d" % (40 + q, 40 + q, 20 + q))
    for q in range(4): a.e("v_cvt_pk_bf16_f32 v%d, v%d, v%d" % (36 + q, 40 + 2 * q, 41 + 2 * q))
    for q in range(4):
        a.e("v_lshlrev_b32 v%d, 16, v%d" % (40 + 2 * q, 36 + q)); a.e("v_and_b32 v%d, 0xffff0000, v%d" % (41 + 2 * q, 36 + q))
        a.e("v_lshlrev_b32 v%d, 16, v%d" % (48 + 2 * q, 100 + q)); a.e("v_and_b32 v%d, 0xffff0000, v%d" % (49 + 2 * q, 100 + q))
    for q in range(8): a.e("v_add_f32 v%d, v%d, v%d" % (40 + q, 40 + q, 48 + q))
    for q in range(4): a.e("v_cvt_pk_bf16_f32 v%d, v%d, v%d" % (36 + q, 40 + 2 * q, 41 + 2 * q))
    a.e("buffer_store_dwordx4 v[36:39], v8, s[28:31], 0 offen")
    if PROFON[0]: a.waitall()
    stamp(a, 1); prof_store(a, 2, 2, 12, 20, 44, 60)
    a.lab("K3_end"); a.e("s_endpgm")
    K.paths = [[a]]
    return K

def write_file(path, kernels, launches=None):
    s = ("; Kernarg layout (96 bytes, ptrs only, base s[0:1]):\n"
         ";   0 A_x (2048x576 bf16)  8 dft_seq_re (2048x2048)  16 dft_seq_im  24 dft_hid_re (576x576)  32 dft_hid_im\n"
         ";   40 B_x (unused)  48 w_gate (576x4608)  56 w_up  64 w_down (4608x576)  72 d_out  80 d_debug  88 d_ws\n")
    for k in (launches or kernels):
        s += "; @launch kernel=%s grid=(%d,%d,%d) block=(%d,%d,%d) lds=%d\n" % ((k.label,) + k.grid + k.block + (k.lds,))
    s += '.amdgcn_target "amdgcn-amd-amdhsa--gfx950"\n.text\n'
    for k in kernels: s += k.text_out
    s += '.section .rodata,"a"\n'
    for k in kernels: s += ".p2align 6\n" + k.desc()
    open(path, "w").write(s)
    print("wrote", path, len(s), "bytes", file=sys.stderr)

if __name__ == "__main__":
    ap = argparse.ArgumentParser()
    ap.add_argument("out"); ap.add_argument("-v", type=int, default=1); ap.add_argument("--only", default="123")
    ap.add_argument("--opt", default="")
    args = ap.parse_args()
    opts = dict(x.split("=") for x in args.opt.split(",") if x)
    import gen2
    if opts.get("wsb"):
        b = int(opts["wsb"], 0)
        XN += b; XEE += b; XOO += b; PART += b; WS_BYTES = 0x10000000
        gen2.XN += b; gen2.XEE += b; gen2.XOO += b; gen2.PART += b; gen2.WS_BYTES = WS_BYTES
    if opts.get("prof"): PROFON[0] = int(opts["prof"])
    ks = []
    if "1" in args.only: ks.append(gen_k1())
    if "2" in args.only:
        import gen2
        gen2.stamp = stamp; gen2.prof_store = prof_store
        ks.append(gen2.gen_k2(Kern, srd, opts))
    if "3" in args.only: ks.append(gen_k3())
    for k in ks: k.text_out = k.build(args.v)
    write_file(args.out, ks)
```

```python
import re
RE_RANGE = re.compile(r'^-?\|?([vas])\[(\d+):(\d+)\]\|?$')
RE_ONE = re.compile(r'^-?\|?([vas])(\d+)\|?$')
TRANS = ('v_exp_f32', 'v_log_f32', 'v_rcp_f32', 'v_rsq_f32', 'v_sqrt_f32', 'v_sin_f32', 'v_cos_f32')

def regs_of(tok):
    tok = tok.strip()
    m = RE_RANGE.match(tok)
    if m: return [(m.group(1), i) for i in range(int(m.group(2)), int(m.group(3)) + 1)]
    m = RE_ONE.match(tok)
    if m: return [(m.group(1), int(m.group(2)))]
    if tok == 'vcc': return [('s', 'vcc')]
    if tok == 'vcc_lo': return [('s', 'vcc')]
    if tok == 'exec': return [('s', 'exec')]
    if tok == 'm0': return [('s', 'm0')]
    return []

class Ins:
    __slots__ = ('text', 'op', 'dst', 'src', 'kind', 'passes', 'pseudo', 'arg', 'wait', 'nop', 'wide', 'cmt')
    def __init__(self, text, pseudo=None, arg=None):
        self.text = text; self.pseudo = pseudo; self.arg = arg
        self.wait = None
        self.nop = 0
        self.dst = set(); self.src = set(); self.kind = None; self.passes = 0; self.wide = False
        if pseudo: self.op = pseudo; return
        t = text.split(';')[0].strip()
        parts = t.split(None, 1)
        op = parts[0]; self.op = op
        rest = parts[1] if len(parts) > 1 else ''
        extra = []
        mm = re.search(r'\s(quad_perm|row_|wave_|op_sel|neg_lo|neg_hi|dst_sel|src0_sel|src1_sel)', rest)
        if mm:
            extra = rest[mm.start():].split(); rest = rest[:mm.start()]
        ops = [o.strip() for o in rest.split(',')] if rest else []
        mods = []
        if ops:
            l = ops[-1].split()
            ops[-1] = l[0]; mods = l[1:]
        mods = mods + extra
        R = [regs_of(o) for o in ops]
        def S(lst):
            s = set()
            for r in lst: s.update(r)
            return s
        if op.startswith('v_mfma'):
            self.kind = 'mfma'; self.dst = S(R[:1]); self.src = S(R[1:])
            self.passes = 8 if '32x32x16' in op else (4 if '16x16x32' in op else (2 if '4x4x4' in op else 16))
            self.arg = (S(R[1:3]), S(R[3:4]))
        elif op.startswith('ds_read'):
            self.kind = 'dsr'; self.dst = S(R[:1]); self.src = S(R[1:])
        elif op.startswith('ds_write'):
            self.kind = 'dsw'; self.src = S(R)
        elif op.startswith('ds_'):
            self.kind = 'dsr'; self.dst = S(R[:1]); self.src = S(R[1:])
        elif op.startswith('buffer_load') or op.startswith('global_load'):
            if 'lds' in mods:
                self.kind = 'vmdma'; self.src = S(R) | {('s', 'm0')}
            else:
                self.kind = 'vmld'; self.dst = S(R[:1]); self.src = S(R[1:])
                if text.rstrip().endswith('; pf'): self.dst = set()
        elif op.startswith('buffer_store') or op.startswith('global_store'):
            self.kind = 'vmst'; self.src = S(R)
            self.wide = ('dwordx4' in op or 'dwordx3' in op); self.arg = S(R[:1]) if op.startswith('buffer') else S(R[1:2])
        elif op.startswith('buffer_atomic') or op.startswith('global_atomic'):
            self.kind = 'vmst'; self.src = S(R)
            if 'glc' in mods or 'sc0' in mods: self.kind = 'vmld'; self.dst = S(R[:1])
        elif op.startswith('s_load') or op.startswith('s_buffer_load') or op in ('s_memtime', 's_memrealtime'):
            self.kind = 'smem'; self.dst = S(R[:1]); self.src = S(R[1:])
        elif op.startswith('v_'):
            self.kind = 'valu'
            if op.startswith('v_cmp'):
                self.dst = S(R[:1]); self.src = S(R[1:])
                if op.startswith('v_cmpx'): self.dst.add(('s', 'exec'))
            elif op.endswith('_co_u32') or op.startswith('v_addc') or op.startswith('v_subb'):
                self.dst = S(R[:2]); self.src = S(R[2:])
            elif op.startswith('v_permlane32_swap') or op.startswith('v_permlane16_swap') or op.startswith('v_swap'):
                self.dst = S(R[:2]); self.src = S(R[:2])
            else:
                self.dst = S(R[:1]); self.src = S(R[1:])
                if op.startswith('v_fmac') or op.startswith('v_mac') or op.startswith('v_dot2c') or op.startswith('v_writelane') or 'd16_hi' in op or any(m.startswith('dst_unused:UNUSED_PRESERVE') for m in mods):
                    self.src |= self.dst
            if any(m.startswith('quad_perm') or m.startswith('row_') or m.startswith('wave_') or m.startswith('row_bcast') for m in mods): self.arg = 'dpp'
        elif op.startswith('s_'):
            self.kind = 'salu'
            if op.startswith('s_cmp') or op.startswith('s_cbranch') or op in ('s_branch', 's_barrier', 's_waitcnt', 's_nop', 's_endpgm', 's_setprio', 's_sleep', 's_bitcmp1_b32', 's_bitcmp0_b32'):
                self.src = S(R)
            else:
                self.dst = S(R[:1]); self.src = S(R[1:])
                if 'saveexec' in op: self.dst.add(('s', 'exec')); self.src.add(('s', 'exec'))
        else:
            raise ValueError('cannot parse: ' + text)

class Seg:
    def __init__(self, name):
        self.name = name; self.ins = []
    def e(self, s, *a):
        if a: s = s % a
        for l in s.split('\n'):
            l = l.strip()
            if l: self.ins.append(Ins(l))
    def lab(self, name): self.ins.append(Ins(name + ':', pseudo='label'))
    def c(self, s): self.ins.append(Ins('; ' + s, pseudo='comment'))
    def mark(self, name): self.ins.append(Ins('', pseudo='mark', arg=name))
    def waitmark(self, name, back=0):
        self.ins.append(Ins('', pseudo='waitmark', arg=(name, back)))
    def waitvm(self, n): self.ins.append(Ins('', pseudo='waitabs', arg=(n, None)))
    def waitlg(self, n): self.ins.append(Ins('', pseudo='waitabs', arg=(None, n)))
    def waitall(self): self.ins.append(Ins('', pseudo='waitabs', arg=(0, 0)))
    def raw(self, s): self.ins.append(Ins(s, pseudo='raw'))

class Sim:
    def __init__(self):
        self.vm = []
        self.lg = []
        self.marks = {}
        self.vmissued = 0
        self.hist = []
        self.problems = []
    def need_wait(self, ins):
        vm = None; lg = None
        touched = ins.src | ins.dst
        for i, (d, _) in enumerate(self.vm):
            if d & touched: vm = len(self.vm) - 1 - i
        for i, (d, sm) in enumerate(self.lg):
            if d & touched:
                c = len(self.lg) - 1 - i
                if sm or any(x[1] for x in self.lg): c = 0
                lg = c
        return vm, lg
    def apply_wait(self, vm, lg):
        if vm is not None:
            while len(self.vm) > vm: self.vm.pop(0)
        if lg is not None:
            while len(self.lg) > lg: self.lg.pop(0)
    def hazard(self, ins):
        need = 0
        H = self.hist
        n = len(H)
        for back in range(1, min(n, 21) + 1):
            p = H[n - back]
            if p is None: continue
            dist = back - 1
            req = 0
            pk = p.kind; k = ins.kind
            vd = {r for r in p.dst if r[0] in 'va'}
            sd = {r for r in p.dst if r[0] == 's'}
            if pk == 'valu':
                if k == 'mfma' and vd & ins.src: req = max(req, 2)
                if k == 'mfma' and ('s', 'exec') in sd: req = max(req, 4)
                if k in ('vmld', 'vmst', 'vmdma') and sd & ins.src: req = max(req, 5)
                if k == 'valu' and sd & ins.src:
                    req = max(req, 4 if ins.op.startswith('v_readlane') or ins.op.startswith('v_writelane') else 2)
                if k == 'valu' and (ins.op.startswith('v_readfirstlane') or ins.op.startswith('v_readlane')) and vd & ins.src: req = max(req, 1)
                if k == 'valu' and ins.arg == 'dpp' and vd & ins.src: req = max(req, 2)
                if k == 'valu' and ins.arg == 'dpp' and ('s', 'exec') in sd: req = max(req, 5)
                if k == 'valu' and ins.op.startswith('v_permlane') and vd & ins.src: req = max(req, 2)
                if k == 'valu' and p.op in TRANS and ins.op not in TRANS and vd & ins.src: req = max(req, 1)
                if k == 'valu' and p.op in TRANS and vd & (ins.src | ins.dst): req = max(req, 1)
                if k == 'salu' and ins.op.startswith('s_cbranch_vcc') and ('s', 'vcc') in sd: req = max(req, 5)
                if k == 'salu' and ins.op.startswith('s_cbranch_exec') and ('s', 'exec') in sd: req = max(req, 5)
                if k == 'salu' and sd & ins.src: req = max(req, 1)
                if p.op.startswith('v_dot') and vd & (ins.src | ins.dst) and not (ins.op == p.op and len(ins.src) and False):
                    if not (ins.op == p.op and vd == ins.dst): req = max(req, 3)
            if pk == 'salu':
                if ('s', 'm0') in sd and k == 'vmdma': req = max(req, 1)
            if pk == 'mfma':
                w = {2: 5, 4: 8, 8: 12, 16: 20}[p.passes]
                if k == 'mfma':
                    ab, c = ins.arg
                    if p.dst & ab: req = max(req, w)
                    if p.dst & c and p.dst != c: req = max(req, w - 2 if p.passes > 2 else 4)
                    if p.dst & c and p.dst == c and p.passes == 2: req = max(req, 2)
                    if p.dst & c and p.dst == c and p.passes != ins.passes: req = max(req, w - 2 if p.passes > 2 else 4)
                    if p.dst & ins.dst and p.dst != ins.dst: req = max(req, w)
                elif k in ('valu', 'dsr', 'dsw', 'vmld', 'vmst', 'vmdma'):
                    if p.dst & (ins.src | ins.dst): req = max(req, w)
                    if k == 'valu' and p.arg[1] & ins.dst: req = max(req, {2: 1, 4: 3, 8: 7, 16: 15}[p.passes])
                    if k in ('dsr', 'vmld') and p.arg[1] & ins.dst: req = max(req, {2: 1, 4: 3, 8: 7, 16: 15}[p.passes])
            if pk == 'vmst' and p.wide:
                if p.arg & ins.dst: req = max(req, 2 if k == 'valu' else 1)
            if req > dist: need = max(need, req - dist)
        return need
    def push(self, ins):
        self.hist.append(ins)
        if len(self.hist) > 32: self.hist.pop(0)
    def step(self, ins, collect):
        ps = ins.pseudo
        if ps in ('label', 'comment', 'raw'): return
        if ps == 'mark':
            self.marks.setdefault(ins.arg, []).append(self.vmissued); return
        if ps in ('waitmark', 'waitabs'):
            if ps == 'waitmark':
                name, back = ins.arg
                m = self.marks.get(name, [])
                if len(m) > back:
                    vm = self.vmissued - m[-1 - back]; lg = None
                else:
                    vm = None; lg = None
                if vm is not None and vm > len(self.vm): vm = len(self.vm)
            else:
                vm, lg = ins.arg
            if collect:
                ins.wait = merge(ins.wait, (vm, lg))
            else:
                if vm is not None and (ins.wait is None or ins.wait[0] is None or ins.wait[0] > vm):
                    if len(self.vm) > vm: self.problems.append(('waitmark', ins.arg))
            if ins.wait and (ins.wait[0] is not None or ins.wait[1] is not None):
                self.apply_wait(*ins.wait); self.push(None)
            return
        vm, lg = self.need_wait(ins)
        if collect:
            if vm is not None or lg is not None: ins.wait = merge(ins.wait, (vm, lg))
        if ins.wait:
            self.apply_wait(*ins.wait); self.push(None)
        if not collect:
            vm, lg = self.need_wait(ins)
            if vm is not None or lg is not None: self.problems.append(('wait', ins.text, vm, lg))
        if collect:
            for _ in range(ins.nop): self.push(None)
            h = self.hazard(ins)
            if h > 0:
                ins.nop += h
                for _ in range(h): self.push(None)
        else:
            for _ in range(ins.nop): self.push(None)
            h = self.hazard(ins)
            if h > 0: self.problems.append(('hazard', ins.text, h))
        k = ins.kind
        if k in ('vmld',): self.vm.append((set(ins.dst), 0)); self.vmissued += 1
        elif k in ('vmst', 'vmdma'): self.vm.append((set(), 0)); self.vmissued += 1
        elif k == 'dsr': self.lg.append((set(ins.dst), False))
        elif k == 'dsw': self.lg.append((set(), False))
        elif k == 'smem': self.lg.append((set(ins.dst), True))
        if ins.op == 's_waitcnt':
            t = ins.text
            m = re.search(r'vmcnt\((\d+)\)', t); v = int(m.group(1)) if m else None
            m = re.search(r'lgkmcnt\((\d+)\)', t); l = int(m.group(1)) if m else None
            self.apply_wait(v, l)
        if ins.op == 's_nop':
            for _ in range(int(ins.text.split()[1])): self.push(None)
        while len(self.vm) > 63: self.vm.pop(0)
        self.push(ins)

def merge(a, b):
    if a is None: return b
    def m(x, y):
        if x is None: return y
        if y is None: return x
        return min(x, y)
    return (m(a[0], b[0]), m(a[1], b[1]))

def resolve(paths):
    for it in range(6):
        before = snapshot(paths)
        for p in paths:
            s = Sim()
            for seg in p:
                for ins in seg.ins: s.step(ins, True)
        if snapshot(paths) == before: break
    allp = []
    for p in paths:
        s = Sim()
        for seg in p:
            for ins in seg.ins: s.step(ins, False)
        allp += s.problems
    return allp

def snapshot(paths):
    out = []
    seen = set()
    for p in paths:
        for seg in p:
            if id(seg) in seen: continue
            seen.add(id(seg))
            out.append(tuple((i.wait, i.nop) for i in seg.ins))
    return out

def render(seg, stats=None):
    L = []
    for ins in seg.ins:
        ps = ins.pseudo
        if ps == 'mark': continue
        w = ins.wait
        if w and (w[0] is not None or w[1] is not None):
            parts = []
            if w[0] is not None: parts.append('vmcnt(%d)' % min(w[0], 63))
            if w[1] is not None: parts.append('lgkmcnt(%d)' % min(w[1], 15))
            L.append('s_waitcnt ' + ' '.join(parts))
        if ps in ('waitmark', 'waitabs'): continue
        n = ins.nop
        if n and stats is not None: stats.append((seg.name, n, ins.text))
        while n > 0:
            q = min(n, 16); L.append('s_nop %d' % (q - 1)); n -= q
        L.append(ins.text)
    return L
```

```python
from emit import *
XN   = 0x0
XEE  = 0x240000
XOO  = 0x300000
PART = 0x400000
SLOTB = 2359296
T64B = 73728
WS_BYTES = 0x4000000
SLOT = 12288; NS = 6
HB = 73728
HX = HB + 81920
LDS_BYTES = HX + 1024
PF = 3
NF = 8
CNEG = 33
NS2 = [6]
M16 = [0]
LA = [4]
def stamp(seg, i): pass
def prof_store(*a): pass

def wt(ins, o):
    if ins.startswith("v_exp") or ins.startswith("v_rcp"): return o['wtrans']
    if ins.startswith("s_"): return o['wsalu']
    return 1.0

def spread(gaps, queue, o, start=0, end=None):
    if not queue: return
    G = len(gaps) if end is None else end
    idx = list(range(start, G))
    load = {g: sum(wt(i, o) for i in gaps[g] if isinstance(i, str)) for g in idx}
    tot = sum(load.values()) + sum(wt(i, o) for i in queue)
    p = 0; cum = load[idx[0]]
    for ins in queue:
        w = wt(ins, o)
        while p < len(idx) - 1 and cum + w * 0.5 > tot * (p + 1) / len(idx):
            p += 1; cum += load[idx[p]]
        gaps[idx[p]].append(ins); cum += w

def emit_gaps(s, mf, gaps):
    for m, g in zip(mf, gaps):
        for pre in m[:-1]: put(s, pre)
        s.e(m[-1])
        for x in g: put(s, x)

def put(s, x):
    if isinstance(x, str): s.e(x)
    elif x[0] == 'mark': s.mark(x[1])
    elif x[0] == 'waitmark': s.waitmark(x[1], x[2])
    elif x[0] == 'waitlg': s.waitlg(x[1])
    elif x[0] == 'c': s.c(x[1])
    else: raise ValueError(x)

def xreg(i):
    return ("a[%d:%d]" % (4 * i, 4 * i + 3)) if i < 64 else ("v[%d:%d]" % (224 + 4 * (i - 64), 227 + 4 * (i - 64)))

def areg(n): r = 80 + 4 * (n % NF); return r

def rd1(n, half):
    if M16[0]:
        st = n // 6; q = n % 6; fh = q // 3; kkl = q % 3
        r = areg(n) + 2 * half
        off = (st % NS) * SLOT + kkl * 4096 + half * 512; base = 5 if fh == 0 else 13
        if off >= 65536: off -= 65536; base += 1
        return "ds_read_b64_tr_b16 v[%d:%d], v%d offset:%d" % (r, r + 1, base, off)
    st = n // 6; kp = n % 6
    r = areg(n) + 2 * half
    off = (st % NS) * SLOT + kp * 2048 + half * 512; base = 5
    if off >= 65536: off -= 65536; base = 6
    return "ds_read_b64_tr_b16 v[%d:%d], v%d offset:%d" % (r, r + 1, base, off)

def rd2(n, half, n0):
    if M16[0]:
        q = n - n0; st = q // 6; qq = q % 6; dh = qq // 3; bl = qq % 3
        r = areg(n) + 2 * half
        off = (st % NS2[0]) * SLOT + bl * 4096 + half * 2048; base = 8
        if off >= 131072: off -= 131072; base = 2
        elif off >= 65536: off -= 65536; base = 5
        return "ds_read_b64_tr_b16 v[%d:%d], v%d offset:%d" % (r, r + 1, base + dh, off)
    q = n - n0; st = q // 6; kp = q % 6
    r = areg(n) + 2 * half
    off = (st % NS2[0]) * SLOT + kp * 2048 + half * 1024; base = 8
    if off >= 131072: off -= 131072; base = 5
    elif off >= 65536: off -= 65536; base = 9
    return "ds_read_b64_tr_b16 v[%d:%d], v%d offset:%d" % (r, r + 1, base, off)

def dma1(mat, kc, slot):
    sr = 12 if mat == 0 else 16
    su = ["s_add_u32 m0, s29, %d" % (slot * SLOT), "s_add_u32 s31, s30, %d" % (kc * 96 * 9216)]
    ld = ["buffer_load_dwordx4 v%d, s[%d:%d], s31 offen offset:%d lds" % (2 + j, sr, sr + 3, 1024 * j) for j in range(3)]
    return su, ld

def dma2(st, K):
    out = []
    for j in range(3):
        R = 96 * st + 32 * j; sg = R // K; row0 = R % K
        su = ["s_add_u32 m0, s34, %d" % ((st % NS2[0]) * SLOT + j * 4096), "s_add_u32 s31, s35, %d" % (sg * 128 + row0 * 1152)]
        out.append((su, "buffer_load_dwordx4 v10, s[20:23], s31 offen lds"))
    return out

def epi1():
    L = []
    for p0 in range(0, 32, 4):
        for j in range(4): L.append("v_mul_f32 v%d, s%d, v%d" % (112 + p0 + j, CNEG, 16 + p0 + j))
        for j in range(4): L.append("v_exp_f32 v%d, v%d" % (144 + p0 + j, 112 + p0 + j))
        for j in range(4): L.append("v_fma_f32 v%d, v%d, s%d, s%d" % (144 + p0 + j, 144 + p0 + j, CNEG, CNEG))
    return L

def epi2():
    L = []
    for p0 in range(0, 32, 4):
        for j in range(4): L.append("v_rcp_f32 v%d, v%d" % (144 + p0 + j, 144 + p0 + j))
        for j in range(4): L.append("v_mul_f32 v%d, v%d, v%d" % (112 + p0 + j, 112 + p0 + j, 48 + p0 + j))
        for j in range(4): L.append("v_mul_f32 v%d, v%d, v%d" % (112 + p0 + j, 112 + p0 + j, 144 + p0 + j))
        for j in range(0, 4, 2): L.append("v_cvt_pk_bf16_f32 v%d, v%d, v%d" % (176 + (p0 + j) // 2, 112 + p0 + j, 112 + p0 + j + 1))
        if p0 % 8 == 4 and M16[0]:
            tq = p0 // 8
            L.append("ds_write_b128 v7, v[%d:%d] offset:%d" % (176 + 4 * tq, 179 + 4 * tq, tq * 10240))
        elif p0 % 8 == 4:
            n = p0 // 16; J = (p0 // 8) % 2
            L.append("ds_write_b128 v7, v[%d:%d] offset:%d" % (176 + n * 8 + 4 * J, 179 + n * 8 + 4 * J, n * 20480 + J * 1024))
    return L

class P1:
    def __init__(self, o): self.n = 0; self.o = o
    def phase(self, s, mat, epi, dmaf, extra_first=None, nextrd=None, last_barrier=True, first_c0=True, post=None):
        o = self.o
        if M16[0]: return self.phase16(s, mat, epi, dmaf, nextrd, last_barrier, post)
        acc = 16 if mat == 0 else 48
        per = (len(epi) + 5) // 6
        epi = list(epi)
        for i in range(6):
            gaps = [[] for _ in range(12)]
            mf = []
            for kp in range(6):
                n = self.n + kp
                f = nextrd if nextrd else rd1
                nn = n + PF
                if nextrd and (i * 6 + kp + PF) < 36: f = rd1
                gaps[2 * kp].append(f(nn, 0)); gaps[2 * kp + 1].append(f(nn, 1))
                kap = i * 6 + kp
                for t in range(2):
                    A = areg(n); D = acc + 16 * t
                    C = "0" if kap == 0 else "v[%d:%d]" % (D, D + 15)
                    mf.append(["v_mfma_f32_32x32x16_bf16 v[%d:%d], v[%d:%d], %s, %s" % (D, D + 15, A, A + 3, xreg(kap * 2 + t), C)])
            for g, ins in dmaf(i): gaps[g].append(ins)
            if i == 0:
                mine = epi[:per - o['first_less']]; epi = epi[len(mine):]
                spread(gaps, mine, o, start=o['epi_start'])
            else:
                rem = 6 - i
                cnt = (len(epi) + rem - 1) // rem
                mine = epi[:cnt]; epi = epi[cnt:]
                spread(gaps, mine, o)
            if post and i in post:
                for g, ins in post[i]: gaps[g].append(ins)
            if s.name == "ffn_loop":
                def keep(x):
                    if not isinstance(x, str): return True
                    if o['nords'] and x.startswith("ds_read"): return False
                    if o['noepi'] and (x.startswith("v_") or x.startswith("ds_write")) : return False
                    if o['nodma'] and x.startswith("buffer_load"): return False
                    return True
                gaps = [[x for x in g if keep(x)] for g in gaps]
            emit_gaps(s, mf, gaps)
            self.n += 6
            if i < 5 or last_barrier:
                s.waitmark("dma", 3)
                if not (s.name == "ffn_loop" and (o['nobar'] == 1 or (o['nobar'] == 2 and i % 2 == 0))): s.e("s_barrier")
        assert not epi

def g24(g):
    return 2 * g + 1

def phase16(self, s, mat, epi, dmaf, nextrd, last_barrier, post):
    o = self.o
    acc = 16 if mat == 0 else 48
    per = (len(epi) + 5) // 6
    epi = list(epi)
    la = LA[0]
    for i in range(6):
        gaps = [[] for _ in range(24)]
        mf = []
        for fh in range(2):
            G0 = self.n + 3 * fh
            k = 0
            for j in range(3):
                nn = G0 + la + j
                f = rd1
                if nextrd and (i * 6 + 3 * fh + la + j) >= 36: f = nextrd
                for h in range(2):
                    gaps[12 * fh + o['rdpos'] + o['rdstep'] * k].append(f(nn, h)); k += 1
            for tq in range(4):
                for kkl in range(3):
                    A = areg(G0 + kkl); D = acc + 8 * tq + 4 * fh
                    C = "0" if (i == 0 and kkl == 0) else "v[%d:%d]" % (D, D + 3)
                    mf.append(["v_mfma_f32_16x16x32_bf16 v[%d:%d], v[%d:%d], %s, %s" % (D, D + 3, A, A + 3, xreg((3 * i + kkl) * 4 + tq), C)])
        for g, ins in dmaf(i): gaps[g24(g)].append(ins)
        if post and i in post:
            for g, ins in post[i]: gaps[g24(g)].append(ins)
        if i == 0:
            mine = epi[:max(per - o['first_less'], 0)]; epi = epi[len(mine):]
            spread(gaps, mine, o, start=o['epi_start'])
        else:
            rem = 6 - i
            cnt = (len(epi) + rem - 1) // rem
            mine = epi[:cnt]; epi = epi[cnt:]
            spread(gaps, mine, o)
        if s.name == "ffn_loop":
            def keep(x):
                if not isinstance(x, str): return True
                if o['nords'] and x.startswith("ds_read"): return False
                if o['noepi'] and (x.startswith("v_") or x.startswith("ds_write")) : return False
                if o['nodma'] and x.startswith("buffer_load"): return False
                return True
            gaps = [[x for x in g if keep(x)] for g in gaps]
        emit_gaps(s, mf, gaps)
        self.n += 6
        if i < 5 or last_barrier:
            s.waitmark("dma", 3)
            if not (s.name == "ffn_loop" and (o['nobar'] == 1 or (o['nobar'] == 2 and i % 2 == 0))): s.e("s_barrier")
    assert not epi
P1.phase16 = phase16

def pf_loads():
    return ["buffer_load_dwordx4 v[%d:%d], v%d, s[20:23], 0 offen offset:%d" % (196 + 4 * (j % 4), 199 + 4 * (j % 4), 192 + j // 4, (j % 4) * 1024) + " ; pf" for j in range(12)]

def pf_post(mode):
    L = pf_loads(); post = {}
    if mode == 1:
        for i in range(4): post[1 + i] = [(4, L[3 * i]), (7, L[3 * i + 1]), (10, L[3 * i + 2])]
    elif mode == 5:
        for i in range(4): post[1 + i] = [(4, L[3 * i]), (7, L[3 * i + 1]), (10, L[3 * i + 2])]
    elif mode == 3:
        ar = [192, 193, 194, 195, 212, 213, 214]
        L = ["buffer_load_dwordx4 v[%d:%d], v%d, s[20:23], 0 offen offset:%d ; pf" % (196 + 4 * (j % 4), 199 + 4 * (j % 4), ar[j // 4], (j % 4) * 1024) for j in range(27)]
        pos = [2, 4, 5, 7, 8, 10]
        for i in range(6):
            mine = L[5 * i: 5 * i + 5] if i < 5 else L[25:]
            post[i] = [(pos[k], x) for k, x in enumerate(mine)]
    elif mode == 2:
        for i in range(6): post[i] = [(4, L[2 * i]), (10, L[2 * i + 1])]
    return post

def dma_gaps1(mat, kc, slot):
    su, ld = dma1(mat, kc, slot)
    return [(0, su[0]), (1, su[1]), (3, ld[0]), (6, ld[1]), (9, ld[2]), (9, ('mark', 'dma'))]

def dma_gaps2(st, K, pos=(1, 5, 9)):
    L = []
    for j, (su, ld) in enumerate(dma2(st, K)):
        g = pos[j]
        L += [(g - 1, su[0]), (g - 1, su[1]), (g, ld)]
    L.append((pos[2], ('mark', 'dma'))); L.append((pos[2], ('mark', 'w2_%d' % st)))
    return L

def phase2_16(s, o, n0, K, dft):
    nk = K // 32; NB = 9 * nk; nst = NB // 3; Q = 6 * nst; la = LA[0]
    NT = 5 if dft else 4
    def accof(seg, tq, dh):
        if tq == 4: return 208 + 8 * (seg % 2) + 4 * dh
        return (16 if seg % 2 == 0 else 48) + 8 * tq + 4 * dh
    stf = o['stf'].replace('+', ' ')
    def st_out(seg):
        L = ["s_add_u32 s37, s36, %d" % (seg * 8192)]
        for tq in range(4):
            r = accof(seg, tq, 0)
            for q in range(4): L.append("v_cvt_pk_bf16_f32 v%d, v%d, v%d" % (176 + 4 * tq + q, r + 2 * q, r + 2 * q + 1))
            if not (o['nostore'] and seg < 8):
                L.append("buffer_store_dwordx4 v[%d:%d], v11, s[8:11], s37 offen offset:%d %s" % (176 + 4 * tq, 179 + 4 * tq, tq * 1024, stf))
        if dft:
            r = accof(seg, 4, 0)
            L.append("s_add_u32 s39, s38, %d" % (seg * 8192))
            for q in range(4): L.append("v_cvt_pk_bf16_f32 v%d, v%d, v%d" % (192 + q, r + 2 * q, r + 2 * q + 1))
            L.append("buffer_store_dwordx4 v[192:195], v11, s[8:11], s39 offen %s" % stf)
        return L
    s.e("v_add_u32 v5, 0x10000, v8"); s.e("v_add_u32 v6, 0x10000, v9")
    if NS2[0] > 6: s.e("v_add_u32 v2, 0x20000, v8"); s.e("v_add_u32 v3, 0x20000, v9")
    pend = []; GP = 6 * NT
    for st in range(nst):
        gaps = [[] for _ in range(GP)]
        mf = []
        done = None
        for dh in range(2):
            G0 = n0 + 6 * st + 3 * dh
            k = 0
            for j in range(3):
                nn = G0 + la + j
                for h in range(2):
                    if nn - n0 < Q: gaps[3 * NT * dh + o['rdpos'] + o['rdstep'] * k].append(rd2(nn, h, n0))
                    k += 1
            for tq in range(NT):
                for bl in range(3):
                    b = 3 * st + bl; seg = b // nk; kk = b % nk
                    A = areg(G0 + bl); D = accof(seg, tq, dh)
                    C = "0" if kk == 0 else "v[%d:%d]" % (D, D + 3)
                    B = ("a[%d:%d]" % (4 * (kk * 4 + tq), 4 * (kk * 4 + tq) + 3)) if tq < 4 else ("v[%d:%d]" % (112 + 4 * kk, 115 + 4 * kk))
                    mf.append(["v_mfma_f32_16x16x32_bf16 v[%d:%d], v[%d:%d], %s, %s" % (D, D + 3, A, A + 3, B, C)])
                    if kk == nk - 1: done = seg
        if NS2[0] == 6: iss = [st + 5]
        elif st == 0: iss = [5]
        elif st <= 6: iss = [2 * st + 4, 2 * st + 5]
        else: iss = [st + 11]
        iss = [x for x in iss if x < nst]
        if len(iss) == 2:
            L = dma_gaps2(iss[0], K, (1, 3, 5)) + dma_gaps2(iss[1], K, (7, 9, 11))
        elif iss: L = dma_gaps2(iss[0], K)
        else: L = []
        def gm(g): return min(GP - 1, (2 * g + 1) * GP // 24)
        for g, ins in L: gaps[gm(g)].append(ins)
        if pend:
            start = pend_start
            room = int((GP - start) * o['p2_rate16'])
            mine = pend[:room]; pend = pend[room:]
            spread(gaps, mine, o, start=start)
            pend_start = 0
        emit_gaps(s, mf, gaps)
        if done is not None and done < 8:
            assert not pend
            pend = st_out(done); pend_start = o['p2_delay16']
        if st + 2 <= nst - 1:
            s.waitmark("w2_%d" % (st + 2), 0); s.e("s_barrier")
    assert not pend
    for ins in st_out(8): s.e(ins)

def phase2(s, o, n0, K, dft):
    if M16[0]: return phase2_16(s, o, n0, K, dft)
    nk = K // 16; Q = 9 * nk; nst = Q // 6
    def st_out(seg):
        acc = 16 if seg % 2 == 0 else 48
        L = ["s_add_u32 s37, s36, %d" % (seg * 8192)]
        for n in range(2):
            for J in range(2):
                for q in range(4):
                    r = acc + 16 * n + 8 * J + 2 * q
                    L.append("v_cvt_pk_bf16_f32 v%d, v%d, v%d" % (176 + n * 8 + 4 * J + q, r, r + 1))
                if not (o['nostore'] and seg < 8):
                    L.append("buffer_store_dwordx4 v[%d:%d], v11, s[8:11], s37 offen offset:%d %s" % (176 + n * 8 + 4 * J, 179 + n * 8 + 4 * J, n * 2048 + J * 1024, o['stf'].replace('+', ' ')))
        if dft:
            x = 208 + 4 * (seg % 2)
            L += ["v_mov_b32 v%d, v%d" % (216 + i, x + i) for i in range(4)]
            L += ["s_add_u32 s39, s38, %d" % (seg * 8192)]
            L += ["v_permlane32_swap_b32 v%d, v%d" % (x + i, 216 + i) for i in range(4)]
            L += ["v_add_f32 v%d, v%d, v%d" % (216 + i, x + i, 216 + i) for i in range(4)]
            L += ["v_cvt_pk_bf16_f32 v216, v216, v217", "v_cvt_pk_bf16_f32 v217, v218, v219",
                  "buffer_store_dwordx2 v[216:217], v12, s[8:11], s39 offen"]
        return L
    def hx(kap, j):
        return (112 + 4 * kap + j) if kap < 16 else (192 + 4 * (kap - 16) + j)
    pend = []
    if NS2[0] > 6: s.e("v_add_u32 v5, 0x20000, v8")
    for st in range(nst):
        gaps = [[] for _ in range(12)]
        mf = []
        newseg = None
        for kp in range(6):
            q = st * 6 + kp; seg = q // nk; kap = q % nk
            n = n0 + q
            if q + PF < Q:
                gaps[2 * kp].append(rd2(n + PF, 0, n0)); gaps[2 * kp + 1].append(rd2(n + PF, 1, n0))
            acc = 16 if seg % 2 == 0 else 48
            for t in range(2):
                A = areg(n); D = acc + 16 * t
                C = "0" if kap == 0 else "v[%d:%d]" % (D, D + 15)
                j = kap * 2 + t
                mf.append(["v_mfma_f32_32x32x16_bf16 v[%d:%d], v[%d:%d], a[%d:%d], %s" % (D, D + 15, A, A + 3, 4 * j, 4 * j + 3, C)])
            if dft:
                x = 208 + 4 * (seg % 2); A = areg(n)
                for jj in range(2):
                    c = "0" if (kap == 0 and jj == 0) else "v[%d:%d]" % (x, x + 3)
                    gaps[2 * kp + jj].insert(0, "v_mfma_f32_4x4x4_16b_bf16 v[%d:%d], v[%d:%d], v[%d:%d], %s" % (x, x + 3, A + 2 * jj, A + 2 * jj + 1, hx(kap, 2 * jj), hx(kap, 2 * jj + 1), c))
            if kap == 0 and seg > 0:
                newseg = (kp, seg - 1)
        if NS2[0] == 6: iss = [st + 5]
        elif st == 0: iss = [5]
        elif st <= 6: iss = [2 * st + 4, 2 * st + 5]
        else: iss = [st + 11]
        iss = [x for x in iss if x < nst]
        if len(iss) == 2:
            L = dma_gaps2(iss[0], K, (1, 3, 5)) + dma_gaps2(iss[1], K, (7, 9, 11))
        elif iss: L = dma_gaps2(iss[0], K)
        else: L = []
        for g, ins in L: gaps[g].append(ins)
        if newseg is not None:
            kp, sg = newseg
            assert not pend
            pend = st_out(sg)
            start = 2 * kp + o['p2_epi_delay']
        else:
            start = 0
        if pend:
            if start < 12:
                room = (12 - start) * o['p2_epi_rate']
                mine = pend[:room]; pend = pend[room:]
                spread(gaps, mine, o, start=start)
        emit_gaps(s, mf, gaps)
        if st + 2 <= nst - 1:
            s.waitmark("w2_%d" % (st + 2), 0); s.e("s_barrier")
    assert not pend
    for ins in st_out(8): s.e(ins)

def gen_k2(Kern, srd, opts):
    o = dict(m16=0, la=4, rdpos=0, rdstep=2, p2_rate16=1.0, p2_delay16=2, pfw=0, pfc=0, ns2=6, map=0, prof=0, nostore=0, stf='', nords=0, noepi=0, nodma=0, nobar=0, wtrans=2.0, wsalu=0.3, epi_start=4, first_less=4, p2_epi_delay=5, p2_epi_rate=2)
    for k, v in opts.items():
        if k in o: o[k] = type(o[k])(v)
    NS2[0] = o['ns2']; M16[0] = o['m16']; LA[0] = o['la']
    NPRE = o['la'] if o['m16'] else PF
    K = Kern("main_kernel", (256, 1, 1), (256, 1, 1), LDS_BYTES, vgpr=512, accum=256)
    a = K.seg("head")
    a.e("s_cmp_ge_u32 s2, 256"); a.e("s_cbranch_scc1 K2_end")
    stamp(a, 0)
    a.e("s_load_dwordx2 s[4:5], s[0:1], 88")
    a.e("s_load_dwordx4 s[40:43], s[0:1], 48")
    a.e("s_load_dwordx2 s[44:45], s[0:1], 64")
    a.e("s_load_dwordx4 s[48:51], s[0:1], 8")
    a.e("s_load_dwordx4 s[52:55], s[0:1], 24")
    a.e("v_lshrrev_b32 v1, 6, v0"); a.e("v_and_b32 v0, 63, v0"); a.e("v_readfirstlane_b32 s24, v1")
    if o['map'] == 0:
        a.e("s_and_b32 s3, s2, 7"); a.e("s_lshr_b32 s28, s2, 3"); a.e("s_lshr_b32 s27, s28, 4"); a.e("s_lshl_b32 s3, s3, 1")
        a.e("s_add_u32 s27, s27, s3"); a.e("s_and_b32 s28, s28, 15")
    else:
        tb = {1: 3, 2: 2, 3: 3}[o['map']]
        a.e("s_and_b32 s3, s2, 7"); a.e("s_lshr_b32 s46, s2, 3")
        a.e("s_and_b32 s28, s3, %d" % ((16 >> tb) - 1)); a.e("s_lshl_b32 s28, s28, %d" % tb); a.e("s_and_b32 s47, s46, %d" % ((1 << tb) - 1)); a.e("s_add_u32 s28, s28, s47")
        a.e("s_lshr_b32 s27, s3, %d" % (4 - tb)); a.e("s_lshl_b32 s27, s27, %d" % (5 - tb)); a.e("s_lshr_b32 s47, s46, %d" % tb); a.e("s_add_u32 s27, s27, s47")
    if o['map'] == 3:
        a.e("s_lshr_b32 s46, s27, 2"); a.e("s_and_b32 s47, s27, 3"); a.e("s_mul_i32 s27, s46, 3"); a.e("s_add_u32 s27, s27, s47"); a.e("s_add_u32 s46, s46, 12")
        a.e("s_cmp_eq_u32 s47, 3"); a.e("s_cselect_b32 s27, s46, s27")
    a.e("s_lshr_b32 s25, s24, 1"); a.e("s_and_b32 s26, s24, 1")
    a.e("s_mov_b32 s%d, 0xbfb8aa3b" % CNEG)
    a.e("v_lshrrev_b32 v13, 4, v0"); a.e("v_bfe_u32 v14, v0, 2, 2"); a.e("v_and_b32 v15, 3, v0")
    a.e("v_lshlrev_b32 v11, 4, v0")
    if o['m16']:
        a.e("v_lshrrev_b32 v1, 1, v14"); a.e("v_lshlrev_b32 v1, 1, v1"); a.e("v_and_b32 v9, 1, v13"); a.e("v_lshlrev_b32 v9, 2, v9"); a.e("v_add_u32 v9, v9, v1")
        a.e("v_lshrrev_b32 v12, 1, v15"); a.e("s_lshl_b32 s3, s26, 2"); a.e("v_add_u32 v12, s3, v12"); a.e("v_xor_b32 v12, v12, v9"); a.e("v_lshlrev_b32 v12, 4, v12")
        a.e("v_and_b32 v1, 1, v15"); a.e("v_lshlrev_b32 v1, 3, v1"); a.e("v_add_u32 v12, v12, v1")
        a.e("v_lshlrev_b32 v8, 2, v13"); a.e("v_add_u32 v8, v8, v14"); a.e("v_lshlrev_b32 v8, 7, v8"); a.e("v_add_u32 v8, v8, v12"); a.e("v_xor_b32 v9, 32, v8")
        a.e("v_lshlrev_b32 v5, 3, v13"); a.e("v_add_u32 v5, v5, v14"); a.e("v_lshlrev_b32 v5, 7, v5"); a.e("v_add_u32 v5, v5, v12"); a.e("v_add_u32 v6, 0x10000, v5")
        a.e("v_lshrrev_b32 v13, 3, v0"); a.e("v_and_b32 v14, 7, v0")
        a.e("v_bfe_u32 v15, v13, 1, 2"); a.e("v_lshlrev_b32 v15, 1, v15"); a.e("v_xor_b32 v15, v14, v15"); a.e("v_lshlrev_b32 v15, 4, v15")
        a.e("s_movk_i32 s3, 1152"); a.e("v_mul_lo_u32 v10, v13, s3"); a.e("v_add_u32 v10, v10, v15")
        a.e("v_bfe_u32 v15, v13, 1, 1"); a.e("v_lshlrev_b32 v15, 1, v15"); a.e("v_xor_b32 v15, v14, v15"); a.e("v_lshlrev_b32 v15, 4, v15")
        a.e("s_and_b32 s3, s24, 1"); a.e("s_lshl_b32 s3, s3, 6"); a.e("v_xor_b32 v15, s3, v15")
        a.e("s_movk_i32 s3, 9216"); a.e("v_mul_lo_u32 v13, v13, s3")
        a.e("v_add_u32 v2, v13, v15"); a.e("v_add_u32 v4, %d, v2" % (16 * 9216 - 2048))
        a.e("v_xor_b32 v15, 64, v15"); a.e("v_add_u32 v3, v13, v15"); a.e("v_add_u32 v3, %d, v3" % (8 * 9216 - 1024))
        a.e("v_xor_b32 v13, 32, v5"); a.e("v_add_u32 v14, 0x10000, v13")
    else:
        a.e("v_lshrrev_b32 v1, 1, v13"); a.e("v_lshlrev_b32 v1, 2, v1"); a.e("v_add_u32 v1, v1, v14"); a.e("v_lshlrev_b32 v8, 7, v1")
        a.e("v_and_b32 v1, 1, v13"); a.e("v_lshlrev_b32 v1, 1, v1"); a.e("s_lshl_b32 s3, s26, 2"); a.e("v_add_u32 v1, s3, v1")
        a.e("v_bfe_u32 v9, v14, 1, 1"); a.e("v_lshlrev_b32 v9, 2, v9")
        a.e("v_and_b32 v12, 1, v15"); a.e("v_add_u32 v12, v1, v12"); a.e("v_xor_b32 v12, v12, v9"); a.e("v_lshlrev_b32 v12, 4, v12"); a.e("v_add_u32 v8, v8, v12")
        a.e("v_lshrrev_b32 v12, 1, v15"); a.e("v_lshlrev_b32 v12, 3, v12"); a.e("v_add_u32 v8, v8, v12")
        a.e("v_lshrrev_b32 v12, 1, v15"); a.e("v_add_u32 v12, v1, v12"); a.e("v_xor_b32 v12, v12, v9"); a.e("v_lshlrev_b32 v12, 4, v12")
        a.e("v_lshrrev_b32 v5, 1, v13"); a.e("v_lshlrev_b32 v5, 3, v5"); a.e("v_add_u32 v5, v5, v14"); a.e("v_lshlrev_b32 v5, 7, v5"); a.e("v_add_u32 v5, v5, v12")
        a.e("v_and_b32 v12, 1, v15"); a.e("v_lshlrev_b32 v12, 3, v12"); a.e("v_add_u32 v5, v5, v12")
        a.e("v_add_u32 v6, 0x10000, v5"); a.e("v_add_u32 v9, 0x10000, v8")
        a.e("v_lshrrev_b32 v13, 3, v0"); a.e("v_and_b32 v14, 7, v0"); a.e("v_bfe_u32 v15, v13, 1, 1"); a.e("v_lshlrev_b32 v15, 2, v15")
        a.e("v_xor_b32 v14, v14, v15"); a.e("v_lshlrev_b32 v14, 4, v14")
        a.e("s_movk_i32 s3, 1152"); a.e("v_mul_lo_u32 v10, v13, s3"); a.e("v_add_u32 v10, v10, v14")
        a.e("s_movk_i32 s3, 9216"); a.e("v_mul_lo_u32 v2, v13, s3"); a.e("v_add_u32 v2, v2, v14")
        a.e("v_add_u32 v3, %d, v2" % (8 * 9216 - 1024)); a.e("v_add_u32 v4, %d, v2" % (16 * 9216 - 2048))
    a.e("s_lshl_b32 s34, s24, 10")
    a.e("s_mul_i32 s36, s27, %d" % SLOTB); a.e("s_lshl_b32 s3, s28, 1"); a.e("s_add_u32 s3, s3, s25"); a.e("s_mul_i32 s3, s3, %d" % T64B)
    a.e("s_add_u32 s36, s36, s3"); a.e("s_lshl_b32 s46, s26, 12"); a.e("s_add_u32 s36, s36, s46"); a.e("s_add_u32 s36, s36, %d" % PART)
    a.waitlg(0)
    srd(a, 8, 4, WS_BYTES)
    a.e("s_cmp_eq_u32 s27, 15"); a.e("s_cbranch_scc1 K2_dft")
    f = K.seg("ffn_pro")
    srd(f, 12, 40, 576 * 9216); srd(f, 16, 42, 576 * 9216); srd(f, 20, 44, 4608 * 1152)
    f.e("s_mul_i32 s46, s27, 5"); f.e("s_lshl_b32 s47, s27, 2"); f.e("s_add_u32 s47, s47, 12")
    f.e("s_cmp_lt_u32 s27, 12"); f.e("s_cselect_b32 s46, s46, s47"); f.e("s_cselect_b32 s32, 4, 3")
    f.e("s_mul_i32 s30, s24, %d" % (24 * 9216)); f.e("s_lshl_b32 s47, s46, 7"); f.e("s_add_u32 s30, s30, s47")
    f.e("s_mul_i32 s29, s24, 3072")
    f.e("s_lshl_b32 s47, s46, 6"); f.e("s_lshl_b32 s56, s24, 3"); f.e("s_add_u32 s47, s47, s56"); f.e("s_mul_i32 s35, s47, 1152")
    for st in range(5):
        su, ld = dma1(0, st, st)
        for x in su + ld: f.e(x)
        f.mark("dma")
    f.e("s_lshl_b32 s3, s28, 1"); f.e("s_add_u32 s3, s3, s25"); f.e("s_mul_i32 s3, s3, %d" % T64B)
    if XN: f.e("s_add_u32 s3, s3, %d" % XN)
    for i in range(72):
        if i % 4 == 0 and i > 0: f.e("s_add_u32 s3, s3, 4096")
        f.e("buffer_load_dwordx4 %s, v11, s[8:11], s3 offen offset:%d" % (xreg(i), (i % 4) * 1024))
    if o['pfw']:
        f.e("s_and_b32 s56, s28, 7"); f.e("s_lshl_b32 s56, s56, 2"); f.e("s_add_u32 s56, s56, s24"); f.e("s_add_u32 s57, s32, 1")
        f.e("s_mul_i32 s57, s57, 2304"); f.e("s_mul_i32 s56, s56, s57"); f.e("s_mul_i32 s57, s46, 73728"); f.e("s_add_u32 s56, s56, s57")
        if o['pfw'] in (3, 10):
            f.e("s_sub_u32 s56, s27, 12"); f.e("s_lshl_b32 s56, s56, 4"); f.e("s_add_u32 s56, s56, s28"); f.e("s_lshl_b32 s56, s56, 2"); f.e("s_add_u32 s56, s56, s24")
            f.e("s_mul_i32 s56, s56, 27648"); f.e("s_cmp_lt_u32 s27, 12"); f.e("s_cselect_b32 s56, 0x7ff00000, s56")
        f.e("v_add_u32 v192, s56, v11"); f.e("v_add_u32 v193, 4096, v192"); f.e("v_add_u32 v194, 8192, v192")
        if o['pfw'] in (3, 10):
            for j in range(3, 7): f.e("v_add_u32 v%d, %d, v192" % (192 + j + (0 if j < 4 else 16), 4096 * j))
        if o['pfw'] == 4:
            for x in pf_loads(): f.e(x)
        if o['pfw'] == 5:
            f.e("buffer_load_dword v196, v192, s[20:23], 0 offen ; pf")
        if o['pfw'] == 8:
            f.e("v_lshlrev_b32 v195, 6, v0"); f.e("v_add_u32 v192, s56, v195"); f.e("v_add_u32 v193, 4096, v192"); f.e("v_add_u32 v194, 8192, v192")
            for j in range(3): f.e("buffer_load_dword v%d, v%d, s[20:23], 0 offen ; pf" % (196 + j, 192 + j))
        if o['pfw'] == 9:
            f.e("v_lshlrev_b32 v195, 7, v0"); f.e("v_add_u32 v192, s56, v195"); f.e("v_add_u32 v193, 8192, v192")
            for j in range(2): f.e("buffer_load_dword v%d, v%d, s[20:23], 0 offen ; pf" % (196 + j, 192 + j))
    f.e("s_mul_i32 s3, s25, 40960"); f.e("s_lshl_b32 s46, s26, %d" % (10 if o['m16'] else 11)); f.e("s_add_u32 s3, s3, s46"); f.e("s_add_u32 s3, s3, %d" % HB)
    f.e("v_add_u32 v7, s3, v11")
    f.waitmark("dma", 3); f.e("s_barrier")
    stamp(f, 1)
    for n in range(NPRE):
        f.e(rd1(n, 0)); f.e(rd1(n, 1))
    p1 = P1(o)
    def d_g0(i):
        return dma_gaps1(0, 5, 5) if i == 0 else dma_gaps1(1, i - 1, i - 1)
    post0 = None
    if o['pfw'] and o['pfw'] not in (4, 6, 7, 8, 9, 10):
        post0 = pf_post(o['pfw'])
    g0a = g0b = None
    if o['pfw'] == 10:
        f.e("s_cmp_ge_u32 s27, 12"); f.e("s_cbranch_scc1 K2_g0b")
        g0a = K.seg("g0a"); p1.phase(g0a, 0, [], d_g0); stamp(g0a, 2); g0a.e("s_branch K2_loop")
        g0b = K.seg("g0b"); g0b.lab("K2_g0b"); pb = P1(o); pb.phase(g0b, 0, [], d_g0, post=pf_post(3)); stamp(g0b, 2)
    else:
        p1.phase(f, 0, [], d_g0, post=post0)
        stamp(f, 2)
    lp = K.seg("ffn_loop"); lp.lab("K2_loop")
    def d_up(i):
        if i == 0: return dma_gaps1(1, 5, 5) + [(10, "s_add_u32 s30, s30, 128")]
        return dma_gaps1(0, i - 1, i - 1)
    def d_gate(i):
        return dma_gaps1(0, 5, 5) if i == 0 else dma_gaps1(1, i - 1, i - 1)
    postu = postg = None
    if o['pfw'] == 6:
        L = pf_loads()[:4]
        postu = {1 + j: [(4, L[j])] for j in range(4)}
        postu[5] = [(4, "v_add_u32 v192, 4096, v192")]
    if o['pfw'] == 7:
        L = pf_loads()[:4]
        postu = {1: [(4, L[0])], 4: [(4, L[1])]}
        postg = {1: [(4, L[2])], 4: [(4, L[3])], 5: [(4, "v_add_u32 v192, 4096, v192")]}
    p1.phase(lp, 1, epi1(), d_up, post=postu)
    p1.phase(lp, 0, epi2() + ["v_add_u32 v7, %d, v7" % (2048 if o['m16'] else 4096)], d_gate, post=postg)
    lp.e("s_sub_u32 s32, s32, 1"); lp.e("s_cmp_lg_u32 s32, 0"); lp.e("s_cbranch_scc1 K2_loop")
    nloop = p1.n
    br = K.seg("ffn_br")
    stamp(br, 3)
    br.e("s_cmp_ge_u32 s27, 12"); br.e("s_cbranch_scc1 K2_ffn4")
    tails = {}
    for Kd, lab in ((320, None), (256, "K2_ffn4")):
        t = K.seg("ffn_tail%d" % Kd)
        if lab: t.lab(lab)
        p = P1(o); p.n = nloop
        n0 = nloop + 36
        def d_last(i, Kd=Kd):
            return dma_gaps1(1, 5, 5) if i == 0 else dma_gaps2(i - 1, Kd)
        p.phase(t, 1, epi1(), d_last, nextrd=lambda n, h, n0=n0: rd2(n, h, n0), last_barrier=False)
        stamp(t, 4)
        t.e("s_nop 7")
        for x in epi2(): t.e(x)
        t.waitmark("dma", 3); t.waitlg(0); t.e("s_barrier")
        t.e("s_mul_i32 s3, s25, 40960"); t.e("s_add_u32 s3, s3, %d" % HB); t.e("v_add_u32 v1, s3, v11")
        if o['m16']:
            for kk, tq in sorted(((kk, tq) for kk in range(Kd // 32) for tq in range(4)), key=lambda z: (z[0] // 3, z[1], z[0])):
                    j = kk * 4 + tq
                    t.e("ds_read_b128 a[%d:%d], v1 offset:%d" % (4 * j, 4 * j + 3, (tq * 10 + kk) * 1024))
        else:
          for kap in range(Kd // 16):
            for n in range(2):
                j = kap * 2 + n
                t.e("ds_read_b128 a[%d:%d], v1 offset:%d" % (4 * j, 4 * j + 3, (n * 20 + kap) * 1024))
        stamp(t, 5)
        phase2(t, o, n0, Kd, False)
        stamp(t, 6)
        if o['prof']: t.waitall()
        stamp(t, 7); prof_store(t, 1, 8, 8, 24, 12, 60)
        t.e("s_endpgm")
        tails[Kd] = t
    d = K.seg("dft"); d.lab("K2_dft")
    gen_dft(d, o, srd)
    e = K.seg("end"); e.lab("K2_end"); e.e("s_endpgm")
    A_ = [g0a] if g0a else []; B_ = [g0b] if g0b else []
    K.paths = [[a, f] + A_ + [lp] * 4 + [br, tails[320]], [a, f] + B_ + [lp] * 3 + [br, tails[256]], [a, d]]
    return K

def gen_dft(d, o, srd):
    d.e("s_cmp_ge_u32 s28, 8"); d.e("s_cselect_b32 s46, s50, s48"); d.e("s_cselect_b32 s47, s51, s49")
    d.e("s_cselect_b32 s56, s54, s52"); d.e("s_cselect_b32 s57, s55, s53")
    d.e("s_mov_b32 s58, %d" % XEE); d.e("s_cselect_b32 s58, %d, s58" % XOO); d.e("s_cselect_b32 s59, 1536, 0"); d.e("s_cselect_b32 s60, 0, 0xbf803f80")
    srd(d, 12, 46, 2048 * 4096); srd(d, 20, 56, 576 * 1152)
    d.e("s_and_b32 s3, s28, 7"); d.e("s_lshl_b32 s3, s3, 6"); d.e("s_add_u32 s59, s59, s3"); d.e("s_lshl_b32 s59, s59, 1")
    d.e("s_mul_i32 s61, s24, %d" % (16 * 640)); d.e("s_add_u32 s61, s61, s58")
    d.e("s_lshl_b32 s62, s24, 16"); d.e("s_add_u32 s62, s62, s59")
    d.e("v_lshrrev_b32 v13, 3, v0"); d.e("v_and_b32 v14, 7, v0"); d.e("v_bfe_u32 v15, v13, 1, 2"); d.e("v_lshlrev_b32 v15, 1, v15")
    d.e("v_xor_b32 v14, v14, v15"); d.e("v_lshlrev_b32 v14, 4, v14")
    d.e("s_movk_i32 s3, 1280"); d.e("v_mul_lo_u32 v2, v13, s3"); d.e("v_add_u32 v2, v2, v14")
    d.e("v_lshlrev_b32 v3, 13, v13"); d.e("v_add_u32 v3, v3, v14")
    NSD = 33; SL = 24576
    def stage_rows(st):
        return (st % 2, st // 2)
    def dmad(st):
        par, ks = stage_rows(st); slot = st % 6
        L = []
        r0 = 64 * ks + par
        L.append(("s", "s_add_u32 s31, s61, %d" % (r0 * 640)))
        for b in range(5):
            L.append(("s", "s_add_u32 m0, s34, %d" % (slot * SL + b * 4096 - 128 * b)))
            L.append(("l", "buffer_load_dwordx4 v2, s[8:11], s31 offen offset:%d lds" % (128 * b)))
        L.append(("s", "s_add_u32 s63, s62, %d" % (r0 * 4096)))
        L.append(("s", "s_add_u32 m0, s34, %d" % (slot * SL + 5 * 4096)))
        L.append(("l", "buffer_load_dwordx4 v3, s[12:15], s63 offen lds"))
        return L
    for st in range(5):
        for _, x in dmad(st): d.e(x)
        d.mark("dma")
    if o['pfc'] == 1:
        d.e("v_lshrrev_b32 v13, 3, v0"); d.e("v_and_b32 v14, 7, v0"); d.e("v_lshlrev_b32 v14, 4, v14"); d.e("v_lshlrev_b32 v13, 12, v13"); d.e("v_add_u32 v192, v13, v14")
        d.e("s_mul_i32 s3, s24, %d" % (240 * 4096)); d.e("s_add_u32 s3, s3, s59"); d.e("s_add_u32 s3, s3, %d" % (128 * 4096)); d.e("v_add_u32 v192, s3, v192")
        for j in range(30):
            d.e("buffer_load_dwordx4 v[%d:%d], v192, s[12:15], 0 offen ; pf" % (224 + 4 * (j % 4), 227 + 4 * (j % 4)))
            if j < 29: d.e("v_add_u32 v192, 0x8000, v192")
    if o['pfc']:
        d.e("s_and_b32 s3, s28, 7"); d.e("s_lshl_b32 s3, s3, 2"); d.e("s_add_u32 s3, s3, s24"); d.e("s_mul_i32 s3, s3, 11520")
        d.e("v_add_u32 v192, s3, v11"); d.e("v_add_u32 v193, 4096, v192"); d.e("v_add_u32 v194, 8192, v192")
        for j in range(12):
            d.e("buffer_load_dwordx4 v[%d:%d], v%d, s[20:23], 0 offen offset:%d ; pf" % (224 + 4 * (j % 4), 227 + 4 * (j % 4), 192 + j // 4, (j % 4) * 1024))
    d.e("v_lshrrev_b32 v13, 2, v0"); d.e("v_and_b32 v15, 3, v0"); d.e("v_bfe_u32 v14, v13, 1, 2"); d.e("v_lshlrev_b32 v14, 1, v14")
    d.e("v_lshlrev_b32 v13, 7, v13"); d.e("v_and_b32 v1, 1, v15"); d.e("v_lshlrev_b32 v1, 3, v1"); d.e("v_add_u32 v13, v13, v1")
    d.e("v_lshrrev_b32 v15, 1, v15")
    for u in range(4):
        d.e("v_add_u32 v1, %d, v15" % (2 * u)); d.e("v_xor_b32 v1, v1, v14"); d.e("v_lshlrev_b32 v1, 4, v1"); d.e("v_add_u32 v1, v1, v13")
        d.e("v_add_u32 v%d, %d, v1" % (196 + u, 5 * 4096))
    for i in range(5):
        d.e("s_mul_i32 s3, s24, 5"); d.e("s_add_u32 s3, s3, %d" % i)
        d.e("s_and_b32 s46, s3, 3"); d.e("s_lshl_b32 s46, s46, 1"); d.e("s_lshr_b32 s47, s3, 2"); d.e("s_lshl_b32 s47, s47, 12")
        d.e("v_add_u32 v1, s46, v15"); d.e("v_xor_b32 v1, v1, v14"); d.e("v_lshlrev_b32 v1, 4, v1"); d.e("v_add_u32 v1, v1, v13")
        d.e("v_add_u32 v%d, s47, v1" % (200 + i))
    for q in range(9): d.e("v_add_u32 v%d, %d, v%d" % (205 + q, 3 * SL, 196 + q))
    for q in range(4): d.e("v_mov_b32 v%d, s60" % (216 + q))
    def frag(st, q):
        return (st % 2) * 36 + 4 * q
    def rdd(st, q, half):
        slot = st % 6; base = 196 + q
        if slot >= 3: base += 9; slot -= 3
        r = frag(st, q) + 2 * half
        return "ds_read_b64_tr_b16 a[%d:%d], v%d offset:%d" % (r, r + 1, base, slot * SL + half * 2048)
    d.waitmark("dma", 3); d.e("s_barrier")
    stamp(d, 1); stamp(d, 2)
    order = [4, 0, 1, 2, 3, 5, 6, 7, 8]
    for q in order: d.e(rdd(0, q, 0)); d.e(rdd(0, q, 1))
    for st in range(NSD):
        par, ks = stage_rows(st)
        mf = []
        for i in range(5):
            A = frag(st, 4 + i)
            for u in range(4):
                B = frag(st, u); D = 16 + par * 80 + (i * 4 + u) * 4
                C = "0" if ks == 0 else "v[%d:%d]" % (D, D + 3)
                mf.append(["v_mfma_f32_16x16x32_bf16 v[%d:%d], a[%d:%d], a[%d:%d], %s" % (D, D + 3, A, A + 3, B, B + 3, C)])
            if par == 0:
                D = 176 + 4 * i; C = "0" if ks == 0 else "v[%d:%d]" % (D, D + 3)
                mf.append(["v_mfma_f32_16x16x32_bf16 v[%d:%d], a[%d:%d], v[216:219], %s" % (D, D + 3, A, A + 3, C)])
        G = len(mf)
        gaps = [[] for _ in range(G)]
        fill = []
        if st + 1 < NSD:
            for q in order: fill += [rdd(st + 1, q, 0), rdd(st + 1, q, 1)]
        dm = dmad(st + 5) if st + 5 < NSD else []
        for g, x in enumerate(fill): gaps[g].append(x)
        if dm:
            pos = [2, 5, 8, 11, 14, 17]; li = 0; pendS = []
            for kind, x in dm:
                if kind == "s": pendS.append(x)
                else:
                    g = pos[li]; li += 1
                    for y in pendS: gaps[g - 1].append(y)
                    pendS = []
                    gaps[g].append(x)
            gaps[17].append(('mark', 'dma'))
        emit_gaps(d, mf, gaps)
        if st + 2 <= NSD - 1:
            last_issued = min(st + 5, NSD - 1)
            d.waitmark("dma", last_issued - (st + 2)); d.e("s_barrier")
    d.e("s_barrier")
    stamp(d, 3)
    d.e("s_mul_i32 s35, s24, %d" % (8 * 1152))
    for st in range(5):
        for su, ld in dma2(st, 320):
            for x in su: d.e(x)
            d.e(ld)
        d.mark("dma"); d.mark("w2_%d" % st)
    if o['m16']:
        d.e("s_and_b32 s46, s24, 1"); d.e("s_mul_i32 s3, s24, 5"); d.e("s_sub_u32 s3, s3, s46"); d.e("s_lshr_b32 s3, s3, 1")
        d.e("s_lshl_b32 s47, s46, 3")
        d.e("s_cmp_eq_u32 s46, 1"); d.e("s_cselect_b32 s56, 1024, 8"); d.e("s_cselect_b32 s57, 64, 8")
        d.e("s_lshl_b32 s58, s3, 10"); d.e("s_add_u32 s58, s58, %d" % HB)
        d.e("s_add_u32 s59, s58, s47"); d.e("v_add_u32 v7, s59, v11"); d.e("v_add_u32 v6, 40960, v7")
        d.e("s_add_u32 s59, s58, s56"); d.e("v_add_u32 v4, s59, v11"); d.e("v_add_u32 v3, 40960, v4")
        d.e("v_lshrrev_b32 v15, 4, v0"); d.e("v_lshlrev_b32 v15, 4, v15")
        d.e("s_lshl_b32 s58, s3, 6"); d.e("s_add_u32 s58, s58, %d" % HX)
        d.e("s_add_u32 s59, s58, s47"); d.e("v_add_u32 v5, s59, v15"); d.e("s_add_u32 s59, s58, s57"); d.e("v_add_u32 v2, s59, v15")
    else:
        d.e("v_lshrrev_b32 v13, 4, v0"); d.e("v_and_b32 v14, 15, v0"); d.e("v_and_b32 v15, 1, v13"); d.e("v_lshlrev_b32 v15, 5, v15"); d.e("v_add_u32 v14, v14, v15")
        d.e("v_lshlrev_b32 v14, 4, v14"); d.e("v_lshrrev_b32 v13, 1, v13"); d.e("v_lshlrev_b32 v1, 3, v13"); d.e("v_add_u32 v14, v14, v1")
        d.e("s_mul_i32 s3, s24, 5120"); d.e("s_add_u32 s3, s3, %d" % HB); d.e("v_add_u32 v7, s3, v14")
        d.e("v_add_u32 v6, 40960, v7")
        d.e("v_lshlrev_b32 v15, 4, v0"); d.e("v_lshrrev_b32 v15, 8, v15"); d.e("v_and_b32 v15, 1, v15"); d.e("v_lshlrev_b32 v15, 4, v15"); d.e("v_add_u32 v15, v15, v1")
        d.e("s_mul_i32 s3, s24, 160"); d.e("s_add_u32 s3, s3, %d" % HX); d.e("v_add_u32 v5, s3, v15")
    k = 0
    for i in range(5):
        for u in range(4):
            E = 16 + (i * 4 + u) * 4; O = E + 80
            t = 220 + 8 * (k % 4); k += 1
            for j in range(4):
                d.e("v_add_f32 v%d, v%d, v%d" % (t + j, E + j, O + j)); d.e("v_sub_f32 v%d, v%d, v%d" % (t + 4 + j, E + j, O + j))
            d.e("v_cvt_pk_bf16_f32 v%d, v%d, v%d" % (t, t, t + 1)); d.e("v_cvt_pk_bf16_f32 v%d, v%d, v%d" % (t + 1, t + 2, t + 3))
            d.e("v_cvt_pk_bf16_f32 v%d, v%d, v%d" % (t + 4, t + 4, t + 5)); d.e("v_cvt_pk_bf16_f32 v%d, v%d, v%d" % (t + 5, t + 6, t + 7))
            if o['m16']:
                off = (i // 2) * 1024 + u * 10240; ra, rb = (7, 6) if i % 2 == 0 else (4, 3)
                d.e("ds_write_b64 v%d, v[%d:%d] offset:%d" % (ra, t, t + 1, off)); d.e("ds_write_b64 v%d, v[%d:%d] offset:%d" % (rb, t + 4, t + 5, off))
                continue
            off = i * 1024 + (u >> 1) * 20480 + (u & 1) * 256
            d.e("ds_write_b64 v7, v[%d:%d] offset:%d" % (t, t + 1, off)); d.e("ds_write_b64 v6, v[%d:%d] offset:%d" % (t + 4, t + 5, off))
        X = 176 + 4 * i
        d.e("v_cvt_pk_bf16_f32 v%d, v%d, v%d" % (X, X, X + 1)); d.e("v_cvt_pk_bf16_f32 v%d, v%d, v%d" % (X + 1, X + 2, X + 3))
        if o['m16']: d.e("ds_write_b64 v%d, v[%d:%d] offset:%d" % (5 if i % 2 == 0 else 2, X, X + 1, (i // 2) * 64))
        else: d.e("ds_write_b64 v5, v[%d:%d] offset:%d" % (X, X + 1, i * 32))
    d.e("v_and_b32 v13, 31, v0"); d.e("v_lshrrev_b32 v14, 4, v13"); d.e("v_lshlrev_b32 v12, 10, v14")
    d.e("v_bfe_u32 v14, v13, 2, 1"); d.e("v_lshlrev_b32 v14, 9, v14"); d.e("v_add_u32 v12, v12, v14")
    d.e("v_bfe_u32 v14, v13, 3, 1"); d.e("v_lshlrev_b32 v14, 3, v14"); d.e("v_add_u32 v12, v12, v14")
    d.e("s_add_u32 s38, s28, 32"); d.e("s_mul_i32 s38, s38, %d" % T64B); d.e("s_lshl_b32 s3, s26, 12"); d.e("s_add_u32 s38, s38, s3")
    d.e("s_add_u32 s38, s38, %d" % (PART + 15 * SLOTB))
    d.waitmark("dma", 3); d.waitlg(0); d.e("s_barrier")
    stamp(d, 4)
    d.e("s_mul_i32 s3, s25, 40960"); d.e("s_add_u32 s3, s3, %d" % HB); d.e("v_add_u32 v1, s3, v11")
    d.e("v_lshrrev_b32 v13, %d, v0" % (4 if o['m16'] else 5)); d.e("v_lshlrev_b32 v13, 4, v13"); d.e("v_add_u32 v13, %d, v13" % HX)
    n0 = 0
    for n in range(LA[0] if o['m16'] else PF):
        d.e(rd2(n, 0, n0)); d.e(rd2(n, 1, n0))
    for kk, tq in (sorted(((kk, tq) for kk in range(10) for tq in range(5)), key=lambda z: (z[0] // 3, z[1], z[0])) if o['m16'] else []):
        j = kk * 4 + tq
        if tq < 4: d.e("ds_read_b128 a[%d:%d], v1 offset:%d" % (4 * j, 4 * j + 3, (tq * 10 + kk) * 1024))
        else: d.e("ds_read_b128 v[%d:%d], v13 offset:%d" % (112 + 4 * kk, 115 + 4 * kk, kk * 64))
    for kap in ([] if o['m16'] else range(20)):
        for n in range(2):
            j = kap * 2 + n
            d.e("ds_read_b128 a[%d:%d], v1 offset:%d" % (4 * j, 4 * j + 3, (n * 20 + kap) * 1024))
        r = (112 + 4 * kap) if kap < 16 else (192 + 4 * (kap - 16))
        d.e("ds_read_b128 v[%d:%d], v13 offset:%d" % (r, r + 3, kap * 32))
    stamp(d, 5)
    phase2(d, o, n0, 320, True)
    stamp(d, 6)
    if o['prof']: d.waitall()
    stamp(d, 7); prof_store(d, 1, 8, 8, 24, 14, 60)
    d.e("s_endpgm")
```

```python
import sys, argparse
from emit import *
NAME = "recurrent_scan__spectral_fnet__swiglu_ffn__prompt"
XN   = 0x0
XEE  = 0x240000
XOO  = 0x300000
PART = 0x400000
SLOTB = 2359296
T64B = 73728
WS_BYTES = 0x4000000

class Kern:
    def __init__(self, label, grid, block, lds, vgpr, accum=None, sgpr=102):
        self.label = label; self.grid = grid; self.block = block; self.lds = lds
        self.vgpr = vgpr; self.accum = accum if accum else min(256, (vgpr + 3) // 4 * 4); self.sgpr = sgpr
        self.order = []
        self.paths = []
    def seg(self, name):
        s = Seg(name); self.order.append(s); return s
    def build(self, verbose=True):
        probs = resolve(self.paths)
        if probs:
            for p in probs[:20]: print("PROBLEM", self.label, p, file=sys.stderr)
            raise SystemExit("unresolved hazards")
        stats = []
        L = []
        for s in self.order: L += render(s, stats)
        if verbose:
            tot = sum(x[1] for x in stats)
            print("%s: %d lines, auto nops %d at %d places" % (self.label, len(L), tot, len(stats)), file=sys.stderr)
            if verbose > 1:
                for x in stats: print("   nop", x, file=sys.stderr)
        out = [".globl %s" % self.label, ".p2align 8", ".type %s,@function" % self.label, "%s:" % self.label]
        for l in L:
            out.append(l if l.endswith(':') else l)
        return "\n".join(out) + "\n"
    def desc(self):
        return (".amdhsa_kernel %s\n  .amdhsa_next_free_vgpr %d\n  .amdhsa_next_free_sgpr %d\n  .amdhsa_accum_offset %d\n"
                "  .amdhsa_group_segment_fixed_size 0\n  .amdhsa_kernarg_size 96\n  .amdhsa_user_sgpr_count 2\n"
                "  .amdhsa_user_sgpr_kernarg_segment_ptr 1\n  .amdhsa_system_sgpr_workgroup_id_x 1\n.end_amdhsa_kernel\n") % (
                self.label, self.vgpr, self.sgpr, self.accum)

PROF = 0x3800000
PROFON = [False]
def stamp(seg, i):
    if PROFON[0] == 3:
        seg.e("s_memrealtime s[%d:%d]" % (64 + 2 * i, 65 + 2 * i)); seg.e("s_memtime s[%d:%d]" % (80 + 2 * i, 81 + 2 * i))
    elif PROFON[0]: seg.e("%s s[%d:%d]" % ("s_memtime" if PROFON[0] == 2 else "s_memrealtime", 64 + 2 * i, 65 + 2 * i))
def prof_store(seg, kidx, n, wsrd, wave_s, va, tmp_s):
    if not PROFON[0]: return
    seg.waitall()
    seg.e("s_lshl_b32 s%d, s2, 2" % tmp_s); seg.e("s_add_u32 s%d, s%d, s%d" % (tmp_s, tmp_s, wave_s)); seg.e("s_lshl_b32 s%d, s%d, 7" % (tmp_s, tmp_s))
    seg.e("s_add_u32 s%d, s%d, %d" % (tmp_s, tmp_s, PROF + kidx * 0x80000))
    seg.e("s_mov_b64 exec, 1"); seg.e("v_mov_b32 v%d, 0" % (va + 2))
    for i in (list(range(n)) + (list(range(8, 8 + n)) if PROFON[0] == 3 else [])):
        seg.e("v_mov_b32 v%d, s%d" % (va, 64 + 2 * i)); seg.e("v_mov_b32 v%d, s%d" % (va + 1, 65 + 2 * i))
        seg.e("buffer_store_dwordx2 v[%d:%d], v%d, s[%d:%d], s%d offen offset:%d" % (va, va + 1, va + 2, wsrd, wsrd + 3, tmp_s, 8 * i))

def srd(k, d, lo, nbytes):
    k.e("s_mov_b32 s%d, s%d" % (d, lo)); k.e("s_mov_b32 s%d, s%d" % (d + 1, lo + 1))
    k.e("s_mov_b32 s%d, 0x%x" % (d + 2, nbytes)); k.e("s_mov_b32 s%d, 0x00020000" % (d + 3))

def gen_k1(o=None):
    o = o or {}
    k1pf = int(o.get('k1pf', 0))
    K = Kern("prep_kernel", (528, 1, 1), (256, 1, 1), 4 * 2304 + 1280, vgpr=104)
    k1s = int(o.get('k1s', 0)); k1u = int(o.get('k1u', 0))
    a = K.seg("k1_head")
    a.e("s_cmp_ge_u32 s2, 528"); a.e("s_cbranch_scc1 K1_end")
    stamp(a, 0)
    a.e("s_load_dwordx2 s[4:5], s[0:1], 0"); a.e("s_load_dwordx2 s[6:7], s[0:1], 88")
    if k1pf:
        a.e("s_load_dwordx4 s[40:43], s[0:1], 8"); a.e("s_load_dwordx2 s[44:45], s[0:1], 48")
        a.e("s_load_dwordx2 s[60:61], s[0:1], 56")
    a.e("v_lshrrev_b32 v1, 6, v0"); a.e("v_and_b32 v0, 63, v0"); a.e("v_readfirstlane_b32 s20, v1")
    a.e("v_and_b32 v2, 31, v0")
    a.e("v_lshrrev_b32 v3, 5, v0")
    a.waitlg(0)
    srd(a, 8, 4, 2359296); srd(a, 12, 6, WS_BYTES)
    a.e("s_cmp_ge_u32 s2, 256"); a.e("s_cbranch_scc1 K1_typeB_rows")
    a.e("s_lshl_b32 s21, s2, 3"); a.e("s_lshl_b32 s22, s20, 1"); a.e("s_add_u32 s21, s21, s22"); a.e("s_add_u32 s22, s21, 1")
    a.e("s_branch K1_rows_done")
    b = K.seg("k1_brows"); b.lab("K1_typeB_rows")
    b.e("s_sub_u32 s23, s2, 256"); b.e("s_lshl_b32 s23, s23, 2"); b.e("s_add_u32 s23, s23, s20")
    b.e("s_cmp_gt_u32 s23, 1024"); b.e("s_cbranch_scc1 K1_zero")
    b.e("s_mov_b32 s21, s23"); b.e("s_sub_u32 s22, 2048, s23"); b.e("s_and_b32 s22, s22, 2047")
    c = K.seg("k1_ln"); c.lab("K1_rows_done")
    c.e("v_mov_b32 v4, s21"); c.e("v_mov_b32 v5, s22"); c.e("v_cmp_eq_u32 vcc, 1, v3"); c.e("v_cndmask_b32 v4, v4, v5, vcc")
    c.e("s_movk_i32 s24, 1152"); c.e("v_mul_lo_u32 v5, v4, s24"); c.e("v_lshlrev_b32 v6, 4, v2"); c.e("v_add_u32 v5, v5, v6")
    c.e("v_cmp_gt_u32 s[26:27], 8, v2")
    c.e("v_add_u32 v7, 1024, v5"); c.e("v_mov_b32 v8, 0x7fffffff"); c.e("v_cndmask_b32 v7, v8, v7, s[26:27]")
    c.e("buffer_load_dwordx4 v[8:11], v5, s[8:11], 0 offen")
    c.e("buffer_load_dwordx4 v[12:15], v5, s[8:11], 0 offen offset:512")
    c.e("buffer_load_dwordx4 v[16:19], v7, s[8:11], 0 offen")
    if k1pf:
        c.e("s_lshl_b32 s46, s2, 2"); c.e("s_add_u32 s46, s46, s20")
        c.e("s_sub_u32 s47, s46, 1088"); c.e("s_lshl_b32 s47, s47, 12"); c.e("s_add_u32 s47, s47, 3072"); c.e("s_lshl_b32 s48, s46, 12")
        c.e("s_cmp_lt_u32 s46, 1088"); c.e("s_cselect_b32 s47, s48, s47"); c.e("s_cselect_b32 s52, s40, s42"); c.e("s_cselect_b32 s53, s41, s43")
        c.e("s_mov_b32 s54, 0x%x" % (2048 * 4096)); c.e("s_mov_b32 s55, 0x00020000")
        c.e("v_lshlrev_b32 v84, 4, v0"); c.e("v_add_u32 v85, s47, v84")
        c.e("buffer_load_dwordx4 v[88:91], v85, s[52:55], 0 offen ; pf")
        if k1pf >= 2:
            c.e("s_mul_i32 s47, s46, 911"); c.e("s_lshr_b32 s47, s47, 16"); c.e("s_mul_i32 s48, s47, 72"); c.e("s_sub_u32 s48, s46, s48")
            c.e("s_mul_i32 s49, s47, 5"); c.e("s_lshl_b32 s50, s47, 2"); c.e("s_add_u32 s50, s50, 12"); c.e("s_cmp_lt_u32 s47, 12"); c.e("s_cselect_b32 s49, s49, s50")
            c.e("s_lshl_b32 s49, s49, 7"); c.e("s_mul_i32 s48, s48, %d" % (8 * 9216)); c.e("s_add_u32 s49, s49, s48")
            c.e("s_sub_u32 s50, s46, 119"); c.e("s_lshl_b32 s50, s50, 12"); c.e("s_add_u32 s50, s50, 3072")
            c.e("s_cmp_lt_u32 s46, 1207"); c.e("s_cselect_b32 s50, s50, 0x7ff00000")
            c.e("v_lshrrev_b32 v86, 3, v0"); c.e("v_and_b32 v87, 7, v0"); c.e("s_movk_i32 s48, 9216"); c.e("v_mul_lo_u32 v86, v86, s48"); c.e("v_lshlrev_b32 v87, 4, v87"); c.e("v_add_u32 v86, v86, v87")
            c.e("s_cmp_lt_u32 s46, 1080"); c.e("s_cselect_b32 s49, s49, s50"); c.e("s_cselect_b32 s56, s44, s42"); c.e("s_cselect_b32 s57, s45, s43")
            c.e("s_cselect_b32 s58, 0x%x, s54" % (576 * 9216)); c.e("s_mov_b32 s59, 0x00020000"); c.e("s_cselect_b64 vcc, -1, 0")
            c.e("v_cndmask_b32 v86, v84, v86, vcc"); c.e("v_add_u32 v86, s49, v86")
            c.e("buffer_load_dwordx4 v[92:95], v86, s[56:59], 0 offen ; pf")
        if k1s:
            G0 = int(o.get('k1sg', 0))
            c.e("s_sub_u32 s62, s46, %d" % G0)
            c.e("s_mul_i32 s47, s62, 3641"); c.e("s_lshr_b32 s47, s47, 16"); c.e("s_mul_i32 s48, s47, 18"); c.e("s_sub_u32 s48, s62, s48")
            c.e("s_and_b32 s49, s47, 1"); c.e("s_cmp_eq_u32 s49, 1"); c.e("s_cselect_b32 s72, s60, s44"); c.e("s_cselect_b32 s73, s61, s45")
            c.e("s_mov_b32 s74, 0x%x" % (576 * 9216)); c.e("s_mov_b32 s75, 0x00020000")
            c.e("s_lshr_b32 s49, s72, 7"); c.e("s_sub_u32 s49, 3, s49"); c.e("s_and_b32 s49, s49, 7")
            c.e("s_lshr_b32 s47, s47, 1"); c.e("s_lshl_b32 s47, s47, 3"); c.e("s_add_u32 s47, s47, s49"); c.e("s_lshl_b32 s47, s47, 7")
            c.e("s_mul_i32 s48, s48, %d" % (32 * 9216)); c.e("s_add_u32 s47, s47, s48")
            c.e("s_cmp_lt_u32 s62, 324"); c.e("s_cselect_b32 s47, s47, 0x7ff00000")
            c.e("v_lshrrev_b32 v96, 1, v0"); c.e("s_movk_i32 s48, 9216"); c.e("v_mul_lo_u32 v96, v96, s48"); c.e("v_and_b32 v97, 1, v0"); c.e("v_lshlrev_b32 v97, 6, v97")
            c.e("v_add_u32 v96, v96, v97"); c.e("v_add_u32 v96, s47, v96")
            c.e("buffer_load_dword v98, v96, s[72:75], 0 offen ; pf")
        if k1u:
            c.e("s_sub_u32 s62, s46, 1032")
            c.e("s_mul_i32 s47, s62, 911"); c.e("s_lshr_b32 s47, s47, 16"); c.e("s_mul_i32 s48, s47, 72"); c.e("s_sub_u32 s48, s62, s48")
            c.e("s_mul_i32 s49, s47, 5"); c.e("s_lshl_b32 s50, s47, 2"); c.e("s_add_u32 s50, s50, 12"); c.e("s_cmp_lt_u32 s47, 12"); c.e("s_cselect_b32 s49, s49, s50")
            c.e("s_lshl_b32 s49, s49, 7"); c.e("s_mul_i32 s48, s48, %d" % (8 * 9216)); c.e("s_add_u32 s49, s49, s48")
            c.e("s_cmp_lt_u32 s62, 1080"); c.e("s_cselect_b32 s49, s49, 0x7ff00000")
            c.e("s_mov_b32 s76, s60"); c.e("s_mov_b32 s77, s61"); c.e("s_mov_b32 s78, 0x%x" % (576 * 9216)); c.e("s_mov_b32 s79, 0x00020000")
            c.e("v_lshrrev_b32 v96, 3, v0"); c.e("v_and_b32 v97, 7, v0"); c.e("s_movk_i32 s48, 9216"); c.e("v_mul_lo_u32 v96, v96, s48"); c.e("v_lshlrev_b32 v97, 4, v97"); c.e("v_add_u32 v96, v96, v97")
            c.e("v_add_u32 v96, s49, v96")
            c.e("buffer_load_dwordx4 v[100:103], v96, s[76:79], 0 offen ; pf")
    for i in range(60, 80): c.e("v_mov_b32 v%d, 0" % i)
    for q in range(12):
        c.e("v_lshlrev_b32 v%d, 16, v%d" % (20 + 2 * q, 8 + q)); c.e("v_and_b32 v%d, 0xffff0000, v%d" % (21 + 2 * q, 8 + q))
    c.e("v_add_f32 v44, v20, v21"); c.e("v_add_f32 v45, v22, v23"); c.e("v_add_f32 v46, v24, v25"); c.e("v_add_f32 v47, v26, v27")
    for q in range(8, 24, 4):
        for r in range(4): c.e("v_add_f32 v%d, v%d, v%d" % (44 + r, 44 + r, 20 + q + r))
    c.e("v_add_f32 v44, v44, v45"); c.e("v_add_f32 v46, v46, v47"); c.e("v_add_f32 v44, v44, v46")
    def reduce32(r, t):
        c.e("v_add_f32_dpp v%d, v%d, v%d quad_perm:[1,0,3,2] row_mask:0xf bank_mask:0xf" % (r, r, r))
        c.e("v_add_f32_dpp v%d, v%d, v%d quad_perm:[2,3,0,1] row_mask:0xf bank_mask:0xf" % (r, r, r))
        c.e("v_add_f32_dpp v%d, v%d, v%d row_half_mirror row_mask:0xf bank_mask:0xf" % (r, r, r))
        c.e("v_add_f32_dpp v%d, v%d, v%d row_mirror row_mask:0xf bank_mask:0xf" % (r, r, r))
        c.e("v_mov_b32 v%d, v%d" % (t, r))
        c.e("v_permlane16_swap_b32 v%d, v%d" % (r, t))
        c.e("v_add_f32 v%d, v%d, v%d" % (r, r, t))
    reduce32(44, 45)
    c.e("s_mov_b32 s25, 0x3ae38e39")
    c.e("v_mul_f32 v44, s25, v44")
    c.e("v_mov_b32 v46, 0"); c.e("v_mov_b32 v47, 0")
    for q in range(16):
        c.e("v_sub_f32 v%d, v%d, v44" % (48 + (q % 4), 20 + q)); c.e("v_fmac_f32 v%d, v%d, v%d" % (46 + (q % 2), 48 + (q % 4), 48 + (q % 4)))
    c.e("s_mov_b64 exec, s[26:27]")
    for q in range(16, 24):
        c.e("v_sub_f32 v%d, v%d, v44" % (48 + (q % 4), 20 + q)); c.e("v_fmac_f32 v%d, v%d, v%d" % (46 + (q % 2), 48 + (q % 4), 48 + (q % 4)))
    c.e("s_mov_b64 exec, -1")
    c.e("v_add_f32 v46, v46, v47")
    reduce32(46, 47)
    c.e("v_mul_f32 v46, s25, v46")
    c.e("v_cvt_pk_bf16_f32 v46, v46, v44")
    c.e("v_and_b32 v44, 0xffff0000, v46")
    c.e("v_lshlrev_b32 v46, 16, v46")
    c.e("v_add_f32 v46, 0x3727c5ac, v46")
    c.e("v_cvt_pk_bf16_f32 v46, v46, v46"); c.e("v_lshlrev_b32 v46, 16, v46")
    c.e("v_sqrt_f32 v46, v46")
    c.e("v_cvt_pk_bf16_f32 v46, v46, v46"); c.e("v_lshlrev_b32 v46, 16, v46")
    c.e("v_rcp_f32 v46, v46")
    for q in range(24): c.e("v_sub_f32 v%d, v%d, v44" % (20 + q, 20 + q))
    for q in range(12): c.e("v_cvt_pk_bf16_f32 v%d, v%d, v%d" % (8 + q, 20 + 2 * q, 21 + 2 * q))
    for q in range(12):
        c.e("v_lshlrev_b32 v%d, 16, v%d" % (20 + 2 * q, 8 + q)); c.e("v_and_b32 v%d, 0xffff0000, v%d" % (21 + 2 * q, 8 + q))
    for q in range(24): c.e("v_mul_f32 v%d, v%d, v46" % (20 + q, 20 + q))
    for q in range(12): c.e("v_cvt_pk_bf16_f32 v%d, v%d, v%d" % (8 + q, 20 + 2 * q, 21 + 2 * q))
    c.e("s_cmp_ge_u32 s2, 256"); c.e("s_cbranch_scc1 K1_typeB")
    d = K.seg("k1_storeA")
    d.e("v_lshrrev_b32 v20, 6, v4"); d.e("s_mov_b32 s24, %d" % T64B); d.e("v_mul_lo_u32 v20, v20, s24")
    if int(o.get('m16', 0)):
        d.e("v_lshrrev_b32 v21, 2, v2"); d.e("v_lshlrev_b32 v21, 12, v21"); d.e("v_add_u32 v20, v20, v21")
        d.e("v_bfe_u32 v21, v4, 4, 2"); d.e("v_lshlrev_b32 v21, 10, v21"); d.e("v_add_u32 v20, v20, v21")
        d.e("v_and_b32 v21, 3, v2"); d.e("v_lshlrev_b32 v21, 8, v21"); d.e("v_add_u32 v20, v20, v21")
        d.e("v_and_b32 v21, 15, v4"); d.e("v_lshlrev_b32 v21, 4, v21"); d.e("v_add_u32 v20, v20, v21")
    else:
        d.e("v_lshrrev_b32 v21, 1, v2"); d.e("v_lshlrev_b32 v21, 11, v21"); d.e("v_add_u32 v20, v20, v21")
        d.e("v_bfe_u32 v21, v4, 5, 1"); d.e("v_lshlrev_b32 v21, 10, v21"); d.e("v_add_u32 v20, v20, v21")
        d.e("v_and_b32 v21, 1, v2"); d.e("v_lshlrev_b32 v21, 9, v21"); d.e("v_add_u32 v20, v20, v21")
        d.e("v_and_b32 v21, 31, v4"); d.e("v_lshlrev_b32 v21, 4, v21"); d.e("v_add_u32 v20, v20, v21")
    d.e("s_mov_b32 s28, %d" % (XN + 32768)); d.e("s_mov_b32 s29, %d" % (XN + 65536)); d.e("s_mov_b32 s30, %d" % XN)
    d.e("buffer_store_dwordx4 v[8:11], v20, s[12:15], s30 offen")
    d.e("buffer_store_dwordx4 v[12:15], v20, s[12:15], s28 offen")
    d.e("s_mov_b64 exec, s[26:27]")
    d.e("buffer_store_dwordx4 v[16:19], v20, s[12:15], s29 offen")
    if PROFON[0]: d.waitall()
    stamp(d, 1); prof_store(d, 0, 2, 12, 20, 44, 40)
    d.e("s_endpgm")
    f = K.seg("k1_typeB"); f.lab("K1_typeB")
    f.e("s_mul_i32 s28, s20, 2304")
    f.e("s_movk_i32 s24, 1152"); f.e("v_mul_lo_u32 v20, v3, s24"); f.e("v_lshlrev_b32 v21, 4, v2"); f.e("v_add_u32 v20, v20, v21"); f.e("v_add_u32 v20, s28, v20")
    f.e("ds_write_b128 v20, v[8:11]"); f.e("ds_write_b128 v20, v[12:15] offset:512")
    f.e("s_mov_b64 exec, s[26:27]"); f.e("ds_write_b128 v20, v[16:19] offset:1024"); f.e("s_mov_b64 exec, -1")
    f.e("v_lshlrev_b32 v21, 1, v0"); f.e("v_add_u32 v22, s28, v21")
    f.e("v_sub_u32 v23, 640, v21"); f.e("v_add_u32 v23, s28, v23")
    f.waitlg(0)
    for i in range(5):
        f.e("ds_read_u16_d16_hi v%d, v22 offset:%d" % (60 + i, 128 * i))
        f.e("ds_read_u16_d16_hi v%d, v22 offset:%d" % (65 + i, 1152 + 128 * i))
        f.e("ds_read_u16_d16_hi v%d, v23 offset:%d" % (70 + i, 512 - 128 * i))
        f.e("ds_read_u16_d16_hi v%d, v23 offset:%d" % (75 + i, 1152 + 512 - 128 * i))
    f.e("s_and_b32 s29, s23, 1023"); f.e("s_cmp_lg_u32 s29, 0"); f.e("s_cselect_b32 s29, 1.0, 0")
    f.e("v_cmp_ne_u32 s[30:31], 0, v0")
    f.e("v_cmp_gt_u32 s[32:33], 32, v0")
    f.e("v_cmp_ge_u32 s[34:35], 32, v0")
    f.e("s_mul_i32 s36, s23, 640"); f.e("s_add_u32 s37, s36, %d" % XOO); f.e("s_add_u32 s36, s36, %d" % XEE)
    for i in range(5):
        A, B, A2, B2 = 60 + i, 65 + i, 70 + i, 75 + i
        t0, t1, o0, o1 = 20 + 4 * i + 4, 21 + 4 * i + 4, 22 + 4 * i + 4, 23 + 4 * i + 4
        f.e("v_fma_f32 v%d, v%d, s29, v%d" % (t0, B, A))
        f.e("v_fma_f32 v%d, v%d, s29, v%d" % (t1, B2, A2))
        f.e("v_sub_f32 v%d, v%d, v%d" % (o0, A, B)); f.e("v_sub_f32 v%d, v%d, v%d" % (o1, A2, B2))
        if i == 0:
            f.e("v_cndmask_b32 v%d, 0, v%d, s[30:31]" % (t1, t1))
        if i == 4:
            f.e("v_cndmask_b32 v%d, 0, v%d, s[32:33]" % (t1, t1))
        f.e("v_add_f32 v%d, v%d, v%d" % (t0, t0, t1)); f.e("v_sub_f32 v%d, v%d, v%d" % (o0, o0, o1))
        if i == 0:
            f.e("v_cndmask_b32 v%d, 0, v%d, s[30:31]" % (o0, o0))
        if i == 4:
            f.e("v_cndmask_b32 v%d, 0, v%d, s[34:35]" % (t0, t0)); f.e("v_cndmask_b32 v%d, 0, v%d, s[32:33]" % (o0, o0))
        f.e("v_cvt_pk_bf16_f32 v%d, v%d, v%d" % (t0, t0, o0))
        f.e("buffer_store_short v%d, v21, s[12:15], s36 offen offset:%d" % (t0, 128 * i))
        f.e("buffer_store_short_d16_hi v%d, v21, s[12:15], s37 offen offset:%d" % (t0, 128 * i))
    if PROFON[0]: f.waitall()
    stamp(f, 1); prof_store(f, 0, 2, 12, 20, 44, 40)
    f.e("s_endpgm")
    z = K.seg("k1_zero"); z.lab("K1_zero")
    z.e("v_mov_b32 v20, 0"); z.e("v_lshlrev_b32 v21, 1, v0")
    z.e("s_mul_i32 s36, s23, 640"); z.e("s_add_u32 s37, s36, %d" % XOO); z.e("s_add_u32 s36, s36, %d" % XEE)
    for i in range(5):
        z.e("buffer_store_short v20, v21, s[12:15], s36 offen offset:%d" % (128 * i))
        z.e("buffer_store_short v20, v21, s[12:15], s37 offen offset:%d" % (128 * i))
    z.lab("K1_end"); z.e("s_endpgm")
    K.paths = [[a, c, d], [a, b, c, f], [a, b, z]]
    return K

def gen_k3(o=None):
    o = o or {}
    nodot = int(o.get('k3nodot', 0))
    K = Kern("final_kernel", (256, 1, 1), (576, 1, 1), 0, vgpr=128)
    a = K.seg("k3")
    a.e("s_cmp_ge_u32 s2, 256"); a.e("s_cbranch_scc1 K3_end")
    stamp(a, 0)
    a.e("s_load_dwordx2 s[6:7], s[0:1], 88"); a.e("s_load_dwordx2 s[4:5], s[0:1], 0"); a.e("s_load_dwordx2 s[16:17], s[0:1], 72")
    a.e("v_lshrrev_b32 v1, 6, v0"); a.e("v_and_b32 v0, 63, v0"); a.e("v_readfirstlane_b32 s20, v1")
    m16 = int(o.get('m16', 0))
    if m16:
        a.e("s_lshr_b32 s21, s2, 3"); a.e("s_bfe_u32 s22, s2, 0x20001"); a.e("s_and_b32 s23, s2, 1"); a.e("s_mul_i32 s23, s23, 9"); a.e("s_add_u32 s23, s23, s20")
        a.e("s_lshl_b32 s24, s23, 12")
        a.e("s_mul_i32 s26, s21, %d" % T64B); a.e("s_lshl_b32 s25, s22, 10"); a.e("s_add_u32 s26, s26, s25"); a.e("s_add_u32 s26, s26, s24"); a.e("s_add_u32 s26, s26, %d" % PART)
    else:
        a.e("s_lshr_b32 s21, s2, 3"); a.e("s_bfe_u32 s22, s2, 0x10002"); a.e("s_and_b32 s23, s2, 3"); a.e("s_mul_i32 s23, s23, 9"); a.e("s_add_u32 s23, s23, s20")
        a.e("s_lshr_b32 s24, s23, 1"); a.e("s_lshl_b32 s24, s24, 12"); a.e("s_and_b32 s25, s23, 1"); a.e("s_lshl_b32 s25, s25, 10"); a.e("s_add_u32 s24, s24, s25")
        a.e("s_mul_i32 s26, s21, %d" % T64B); a.e("s_lshl_b32 s25, s22, 11"); a.e("s_add_u32 s26, s26, s25"); a.e("s_add_u32 s26, s26, s24"); a.e("s_add_u32 s26, s26, %d" % PART)
    a.e("v_lshlrev_b32 v5, 4, v0")
    for i in range(15):
        a.e("s_add_u32 s%d, s26, %d" % (40 + i, i * SLOTB))
    a.waitlg(0)
    srd(a, 12, 6, WS_BYTES)
    for i in range(15):
        a.e("buffer_load_dwordx4 v[%d:%d], v5, s[12:15], s%d offen" % (32 + 4 * i, 35 + 4 * i, 40 + i))
    srd(a, 8, 4, 2359296); srd(a, 28, 16, 2359296)
    if m16:
        a.e("v_and_b32 v3, 15, v0"); a.e("v_lshrrev_b32 v4, 4, v0")
        a.e("s_lshl_b32 s25, s21, 6"); a.e("s_lshl_b32 s27, s22, 4"); a.e("s_add_u32 s25, s25, s27"); a.e("v_add_u32 v2, s25, v3")
        a.e("s_movk_i32 s27, 1152"); a.e("v_mul_lo_u32 v8, v2, s27"); a.e("v_lshlrev_b32 v9, 4, v4"); a.e("v_add_u32 v8, v8, v9"); a.e("s_lshl_b32 s27, s23, 6"); a.e("v_add_u32 v8, s27, v8")
        a.e("v_lshlrev_b32 v4, 8, v4"); a.e("v_add_u32 v4, s24, v4")
    else:
        a.e("v_and_b32 v3, 31, v0"); a.e("v_lshrrev_b32 v4, 5, v0")
        a.e("s_lshl_b32 s25, s21, 6"); a.e("s_lshl_b32 s27, s22, 5"); a.e("s_add_u32 s25, s25, s27"); a.e("v_add_u32 v2, s25, v3")
        a.e("s_movk_i32 s27, 1152"); a.e("v_mul_lo_u32 v8, v2, s27"); a.e("v_lshlrev_b32 v9, 4, v4"); a.e("v_add_u32 v8, v8, v9"); a.e("s_lshl_b32 s27, s23, 5"); a.e("v_add_u32 v8, s27, v8")
        a.e("v_lshlrev_b32 v4, 9, v4"); a.e("v_add_u32 v4, s24, v4")
    a.e("s_mov_b32 s26, %d" % T64B)
    def fragaddr(dst, T64, tok, tmp):
        a.e("v_mul_lo_u32 v%d, v%d, s26" % (dst, T64))
        if m16:
            a.e("v_bfe_u32 v%d, v%d, 4, 2" % (tmp, tok)); a.e("v_lshlrev_b32 v%d, 10, v%d" % (tmp, tmp)); a.e("v_add_u32 v%d, v%d, v%d" % (dst, dst, tmp))
            a.e("v_and_b32 v%d, 15, v%d" % (tmp, tok)); a.e("v_lshlrev_b32 v%d, 4, v%d" % (tmp, tmp)); a.e("v_add_u32 v%d, v%d, v%d" % (dst, dst, tmp))
        else:
            a.e("v_bfe_u32 v%d, v%d, 5, 1" % (tmp, tok)); a.e("v_lshlrev_b32 v%d, 11, v%d" % (tmp, tmp)); a.e("v_add_u32 v%d, v%d, v%d" % (dst, dst, tmp))
            a.e("v_and_b32 v%d, 31, v%d" % (tmp, tok)); a.e("v_lshlrev_b32 v%d, 4, v%d" % (tmp, tmp)); a.e("v_add_u32 v%d, v%d, v%d" % (dst, dst, tmp))
        a.e("v_add_u32 v%d, v%d, v4" % (dst, dst))
    a.e("v_sub_u32 v9, 2048, v2"); a.e("v_cmp_ge_u32 vcc, 1024, v2"); a.e("v_cndmask_b32 v9, v9, v2, vcc")
    a.e("v_mov_b32 v10, -1.0"); a.e("v_mov_b32 v11, 1.0"); a.e("v_cndmask_b32 v10, v10, v11, vcc")
    a.e("v_sub_u32 v11, 1024, v9"); a.e("v_cmp_gt_u32 vcc, 512, v9")
    a.e("v_cndmask_b32 v12, v11, v9, vcc")
    a.e("v_cndmask_b32 v13, 1, 0, vcc")
    a.e("v_lshrrev_b32 v14, 6, v12"); a.e("v_lshlrev_b32 v14, 1, v14"); a.e("v_add_u32 v14, v14, v13")
    a.e("v_and_b32 v12, 63, v12")
    a.e("v_cmp_eq_u32 vcc, 512, v9"); a.e("v_cndmask_b32 v14, v14, 32, vcc"); a.e("v_cndmask_b32 v12, v12, 0, vcc")
    fragaddr(15, 14, 12, 7)
    a.e("s_mov_b32 s55, %d" % (PART + 15 * SLOTB))
    a.e("buffer_load_dwordx4 v[92:95], v15, s[12:15], s55 offen")
    a.e("v_sub_u32 v11, 512, v9"); a.e("v_subrev_u32 v12, 512, v9"); a.e("v_cmp_ge_u32 vcc, 512, v9")
    a.e("v_cndmask_b32 v12, v12, v11, vcc"); a.e("v_cndmask_b32 v13, 1, 0, vcc")
    a.e("v_mov_b32 v11, -1.0"); a.e("v_cndmask_b32 v11, v11, 1.0, vcc"); a.e("v_mul_f32 v10, v10, v11")
    a.e("v_lshrrev_b32 v14, 6, v12"); a.e("v_lshlrev_b32 v14, 1, v14"); a.e("v_add_u32 v14, v14, v13"); a.e("v_add_u32 v14, 16, v14")
    a.e("v_and_b32 v12, 63, v12")
    a.e("v_and_b32 v11, 1023, v9"); a.e("v_cmp_eq_u32 vcc, 0, v11"); a.e("v_cndmask_b32 v14, v14, 40, vcc"); a.e("v_cndmask_b32 v12, v12, 0, vcc")
    fragaddr(16, 14, 12, 7)
    a.e("buffer_load_dwordx4 v[96:99], v16, s[12:15], s55 offen")
    a.e("buffer_load_dwordx4 v[100:103], v8, s[8:11], 0 offen")
    a.e("s_mov_b32 s56, 0x00003f80"); a.e("s_mov_b32 s57, 0x3f800000")
    for q in range(4):
        a.e("v_lshlrev_b32 v%d, 16, v%d" % (20 + 2 * q, 32 + q)); a.e("v_and_b32 v%d, 0xffff0000, v%d" % (21 + 2 * q, 32 + q))
    for i in range(1, 15):
        if nodot:
            for q in range(4):
                a.e("v_lshlrev_b32 v%d, 16, v%d" % (104 + 2 * q, 32 + 4 * i + q)); a.e("v_and_b32 v%d, 0xffff0000, v%d" % (105 + 2 * q, 32 + 4 * i + q))
            for q in range(8): a.e("v_add_f32 v%d, v%d, v%d" % (20 + q, 20 + q, 104 + q))
        else:
            for q in range(4):
                a.e("v_dot2_f32_bf16 v%d, v%d, s56, v%d" % (20 + 2 * q, 32 + 4 * i + q, 20 + 2 * q))
                a.e("v_dot2_f32_bf16 v%d, v%d, s57, v%d" % (21 + 2 * q, 32 + 4 * i + q, 21 + 2 * q))
    for q in range(4): a.e("v_cvt_pk_bf16_f32 v%d, v%d, v%d" % (32 + q, 20 + 2 * q, 21 + 2 * q))
    for q in range(4):
        a.e("v_lshlrev_b32 v%d, 16, v%d" % (20 + 2 * q, 32 + q)); a.e("v_and_b32 v%d, 0xffff0000, v%d" % (21 + 2 * q, 32 + q))
    a.e("s_mov_b32 s58, 0xbfb8aa3b")
    for q in range(8): a.e("v_mul_f32 v%d, s58, v%d" % (40 + q, 20 + q))
    for q in range(8): a.e("v_exp_f32 v%d, v%d" % (40 + q, 40 + q))
    for q in range(8): a.e("v_add_f32 v%d, 1.0, v%d" % (40 + q, 40 + q))
    for q in range(8): a.e("v_rcp_f32 v%d, v%d" % (40 + q, 40 + q))
    for q in range(8): a.e("v_mul_f32 v%d, v%d, v%d" % (20 + q, 20 + q, 40 + q))
    for q in range(4): a.e("v_cvt_pk_bf16_f32 v%d, v%d, v%d" % (32 + q, 20 + 2 * q, 21 + 2 * q))
    for q in range(4):
        a.e("v_lshlrev_b32 v%d, 16, v%d" % (20 + 2 * q, 32 + q)); a.e("v_and_b32 v%d, 0xffff0000, v%d" % (21 + 2 * q, 32 + q))
    for q in range(4):
        a.e("v_lshlrev_b32 v%d, 16, v%d" % (40 + 2 * q, 92 + q)); a.e("v_and_b32 v%d, 0xffff0000, v%d" % (41 + 2 * q, 92 + q))
        a.e("v_lshlrev_b32 v%d, 16, v%d" % (48 + 2 * q, 96 + q)); a.e("v_and_b32 v%d, 0xffff0000, v%d" % (49 + 2 * q, 96 + q))
    for q in range(8): a.e("v_fma_f32 v%d, v%d, v10, v%d" % (40 + q, 48 + q, 40 + q))
    for q in range(4): a.e("v_cvt_pk_bf16_f32 v%d, v%d, v%d" % (36 + q, 40 + 2 * q, 41 + 2 * q))
    for q in range(4):
        a.e("v_lshlrev_b32 v%d, 16, v%d" % (40 + 2 * q, 36 + q)); a.e("v_and_b32 v%d, 0xffff0000, v%d" % (41 + 2 * q, 36 + q))
    for q in range(8): a.e("v_mul_f32 v%d, v%d, v%d" % (40 + q, 40 + q, 20 + q))
    for q in range(4): a.e("v_cvt_pk_bf16_f32 v%d, v%d, v%d" % (36 + q, 40 + 2 * q, 41 + 2 * q))
    if m16:
        a.e("v_permlane32_swap_b32 v36, v38"); a.e("v_permlane32_swap_b32 v37, v39")
        a.e("v_permlane16_swap_b32 v36, v38"); a.e("v_permlane16_swap_b32 v37, v39")
    for q in range(4):
        a.e("v_lshlrev_b32 v%d, 16, v%d" % (40 + 2 * q, 36 + q)); a.e("v_and_b32 v%d, 0xffff0000, v%d" % (41 + 2 * q, 36 + q))
        a.e("v_lshlrev_b32 v%d, 16, v%d" % (48 + 2 * q, 100 + q)); a.e("v_and_b32 v%d, 0xffff0000, v%d" % (49 + 2 * q, 100 + q))
    for q in range(8): a.e("v_add_f32 v%d, v%d, v%d" % (40 + q, 40 + q, 48 + q))
    for q in range(4): a.e("v_cvt_pk_bf16_f32 v%d, v%d, v%d" % (36 + q, 40 + 2 * q, 41 + 2 * q))
    a.e("buffer_store_dwordx4 v[36:39], v8, s[28:31], 0 offen")
    if PROFON[0]: a.waitall()
    stamp(a, 1)
    if PROFON[0]:
        a.e("s_cmp_ge_u32 s20, 4"); a.e("s_cbranch_scc1 K3_end")
    prof_store(a, 2, 2, 12, 20, 44, 60)
    a.lab("K3_end"); a.e("s_endpgm")
    K.paths = [[a]]
    return K

OPTS = ['']
def write_file(path, kernels, launches=None):
    s = ("; Kernarg layout (96 bytes, ptrs only, base s[0:1]):\n"
         ";   0 A_x (2048x576 bf16)  8 dft_seq_re (2048x2048)  16 dft_seq_im  24 dft_hid_re (576x576)  32 dft_hid_im\n"
         ";   40 B_x (unused)  48 w_gate (576x4608)  56 w_up  64 w_down (4608x576)  72 d_out  80 d_debug  88 d_ws\n")
    for k in (launches or kernels):
        s += "; @launch kernel=%s grid=(%d,%d,%d) block=(%d,%d,%d) lds=%d\n" % ((k.label,) + k.grid + k.block + (k.lds,))
    s += "; opts: %s\n" % OPTS[0]
    s += '.amdgcn_target "amdgcn-amd-amdhsa--gfx950"\n.text\n'
    for k in kernels: s += k.text_out
    s += '.section .rodata,"a"\n'
    for k in kernels: s += ".p2align 6\n" + k.desc()
    open(path, "w").write(s)
    print("wrote", path, len(s), "bytes", file=sys.stderr)

if __name__ == "__main__":
    ap = argparse.ArgumentParser()
    ap.add_argument("out"); ap.add_argument("-v", type=int, default=1); ap.add_argument("--only", default="123")
    ap.add_argument("--opt", default="")
    args = ap.parse_args()
    opts = dict(x.split("=") for x in args.opt.split(",") if x)
    OPTS[0] = args.opt
    import gen2
    if opts.get("wsb"):
        b = int(opts["wsb"], 0)
        XN += b; XEE += b; XOO += b; PART += b; WS_BYTES = 0x10000000
        gen2.XN += b; gen2.XEE += b; gen2.XOO += b; gen2.PART += b; gen2.WS_BYTES = WS_BYTES
    if opts.get("prof"): PROFON[0] = int(opts["prof"])
    ks = []
    if "1" in args.only: ks.append(gen_k1(opts))
    if "2" in args.only:
        import gen2
        gen2.stamp = stamp; gen2.prof_store = prof_store
        ks.append(gen2.gen_k2(Kern, srd, opts))
    if "3" in args.only: ks.append(gen_k3(opts))
    for k in ks: k.text_out = k.build(args.v)
    write_file(args.out, ks)
```

```python
from emit import *
XN   = 0x0
XEE  = 0x240000
XOO  = 0x300000
PART = 0x400000
SLOTB = 2359296
T64B = 73728
WS_BYTES = 0x4000000
SLOT = 12288; NS = 6
HB = 73728
HX = HB + 81920
LDS_BYTES = HX + 1024
PF = 3
NF = 8
CNEG = 33
NS2 = [6]
M16 = [0]
LA = [4]
def stamp(seg, i): pass
def prof_store(*a): pass

def wt(ins, o):
    if ins.startswith("v_exp") or ins.startswith("v_rcp"): return o['wtrans']
    if ins.startswith("s_"): return o['wsalu']
    return 1.0

def spread(gaps, queue, o, start=0, end=None):
    if not queue: return
    G = len(gaps) if end is None else end
    idx = list(range(start, G))
    load = {g: sum(wt(i, o) for i in gaps[g] if isinstance(i, str)) for g in idx}
    tot = sum(load.values()) + sum(wt(i, o) for i in queue)
    p = 0; cum = load[idx[0]]
    for ins in queue:
        w = wt(ins, o)
        while p < len(idx) - 1 and cum + w * 0.5 > tot * (p + 1) / len(idx):
            p += 1; cum += load[idx[p]]
        gaps[idx[p]].append(ins); cum += w

def emit_gaps(s, mf, gaps):
    for m, g in zip(mf, gaps):
        for pre in m[:-1]: put(s, pre)
        s.e(m[-1])
        for x in g: put(s, x)

def put(s, x):
    if isinstance(x, str): s.e(x)
    elif x[0] == 'mark': s.mark(x[1])
    elif x[0] == 'waitmark': s.waitmark(x[1], x[2])
    elif x[0] == 'waitlg': s.waitlg(x[1])
    elif x[0] == 'c': s.c(x[1])
    else: raise ValueError(x)

def xreg(i):
    return ("a[%d:%d]" % (4 * i, 4 * i + 3)) if i < 64 else ("v[%d:%d]" % (224 + 4 * (i - 64), 227 + 4 * (i - 64)))

def areg(n): r = 80 + 4 * (n % NF); return r

def rd1(n, half):
    if M16[0]:
        st = n // 6; q = n % 6; fh = q // 3; kkl = q % 3
        r = areg(n) + 2 * half
        off = (st % NS) * SLOT + kkl * 4096 + half * 512; base = 5 if fh == 0 else 13
        if off >= 65536: off -= 65536; base += 1
        return "ds_read_b64_tr_b16 v[%d:%d], v%d offset:%d" % (r, r + 1, base, off)
    st = n // 6; kp = n % 6
    r = areg(n) + 2 * half
    off = (st % NS) * SLOT + kp * 2048 + half * 512; base = 5
    if off >= 65536: off -= 65536; base = 6
    return "ds_read_b64_tr_b16 v[%d:%d], v%d offset:%d" % (r, r + 1, base, off)

def rd2(n, half, n0):
    if M16[0]:
        q = n - n0; st = q // 6; qq = q % 6; dh = qq // 3; bl = qq % 3
        r = areg(n) + 2 * half
        off = (st % NS2[0]) * SLOT + bl * 4096 + half * 2048; base = 8
        if off >= 131072: off -= 131072; base = 2
        elif off >= 65536: off -= 65536; base = 5
        return "ds_read_b64_tr_b16 v[%d:%d], v%d offset:%d" % (r, r + 1, base + dh, off)
    q = n - n0; st = q // 6; kp = q % 6
    r = areg(n) + 2 * half
    off = (st % NS2[0]) * SLOT + kp * 2048 + half * 1024; base = 8
    if off >= 131072: off -= 131072; base = 5
    elif off >= 65536: off -= 65536; base = 9
    return "ds_read_b64_tr_b16 v[%d:%d], v%d offset:%d" % (r, r + 1, base, off)

def dma1(mat, kc, slot):
    sr = 12 if mat == 0 else 16
    su = ["s_add_u32 m0, s29, %d" % (slot * SLOT), "s_add_u32 s31, s30, %d" % (kc * 96 * 9216)]
    ld = ["buffer_load_dwordx4 v%d, s[%d:%d], s31 offen offset:%d lds" % (2 + j, sr, sr + 3, 1024 * j) for j in range(3)]
    return su, ld

def dma2(st, K):
    out = []
    for j in range(3):
        R = 96 * st + 32 * j; sg = R // K; row0 = R % K
        su = ["s_add_u32 m0, s34, %d" % ((st % NS2[0]) * SLOT + j * 4096), "s_add_u32 s31, s35, %d" % (sg * 128 + row0 * 1152)]
        out.append((su, "buffer_load_dwordx4 v10, s[20:23], s31 offen lds"))
    return out

def epi1():
    L = []
    for p0 in range(0, 32, 4):
        for j in range(4): L.append("v_mul_f32 v%d, s%d, v%d" % (112 + p0 + j, CNEG, 16 + p0 + j))
        for j in range(4): L.append("v_exp_f32 v%d, v%d" % (144 + p0 + j, 112 + p0 + j))
        for j in range(4): L.append("v_fma_f32 v%d, v%d, s%d, s%d" % (144 + p0 + j, 144 + p0 + j, CNEG, CNEG))
    return L

def epi2():
    L = []
    for p0 in range(0, 32, 4):
        for j in range(4): L.append("v_rcp_f32 v%d, v%d" % (144 + p0 + j, 144 + p0 + j))
        for j in range(4): L.append("v_mul_f32 v%d, v%d, v%d" % (112 + p0 + j, 112 + p0 + j, 48 + p0 + j))
        for j in range(4): L.append("v_mul_f32 v%d, v%d, v%d" % (112 + p0 + j, 112 + p0 + j, 144 + p0 + j))
        for j in range(0, 4, 2): L.append("v_cvt_pk_bf16_f32 v%d, v%d, v%d" % (176 + (p0 + j) // 2, 112 + p0 + j, 112 + p0 + j + 1))
        if p0 % 8 == 4 and M16[0]:
            tq = p0 // 8
            L.append("ds_write_b128 v7, v[%d:%d] offset:%d" % (176 + 4 * tq, 179 + 4 * tq, tq * 10240))
        elif p0 % 8 == 4:
            n = p0 // 16; J = (p0 // 8) % 2
            L.append("ds_write_b128 v7, v[%d:%d] offset:%d" % (176 + n * 8 + 4 * J, 179 + n * 8 + 4 * J, n * 20480 + J * 1024))
    return L

def code_addr(s, va, vt, frm, to, ssel=None):
    if ssel:
        s.e("v_add_u32 v%d, s%d, v%d" % (va, ssel[0], vt)); s.e("v_min_u32 v%d, s%d, v%d" % (va, ssel[1], va))
    else:
        s.e("v_add_u32 v%d, %s-K2_pc, v%d" % (va, frm, vt)); s.e("v_min_u32 v%d, %s-K2_pc-4, v%d" % (va, to, va))
    s.e("v_add_co_u32 v%d, s[98:99], s96, v%d" % (va, va)); s.e("v_mov_b32 v%d, s97" % (va + 1))
    s.e("v_addc_co_u32 v%d, s[98:99], 0, v%d, s[98:99]" % (va + 1, va + 1))

def code_ld(vd, va): return "global_load_dword v%d, v[%d:%d], off ; pf" % (vd, va, va + 1)

class P1:
    def __init__(self, o): self.n = 0; self.o = o
    def phase(self, s, mat, epi, dmaf, extra_first=None, nextrd=None, last_barrier=True, first_c0=True, post=None):
        o = self.o
        if M16[0]: return self.phase16(s, mat, epi, dmaf, nextrd, last_barrier, post)
        acc = 16 if mat == 0 else 48
        per = (len(epi) + 5) // 6
        epi = list(epi)
        for i in range(6):
            gaps = [[] for _ in range(12)]
            mf = []
            for kp in range(6):
                n = self.n + kp
                f = nextrd if nextrd else rd1
                nn = n + PF
                if nextrd and (i * 6 + kp + PF) < 36: f = rd1
                gaps[2 * kp].append(f(nn, 0)); gaps[2 * kp + 1].append(f(nn, 1))
                kap = i * 6 + kp
                for t in range(2):
                    A = areg(n); D = acc + 16 * t
                    C = "0" if kap == 0 else "v[%d:%d]" % (D, D + 15)
                    mf.append(["v_mfma_f32_32x32x16_bf16 v[%d:%d], v[%d:%d], %s, %s" % (D, D + 15, A, A + 3, xreg(kap * 2 + t), C)])
            for g, ins in dmaf(i): gaps[g].append(ins)
            if i == 0:
                mine = epi[:per - o['first_less']]; epi = epi[len(mine):]
                spread(gaps, mine, o, start=o['epi_start'])
            else:
                rem = 6 - i
                cnt = (len(epi) + rem - 1) // rem
                mine = epi[:cnt]; epi = epi[cnt:]
                spread(gaps, mine, o)
            if post and i in post:
                for g, ins in post[i]: gaps[g].append(ins)
            if s.name == "ffn_loop":
                def keep(x):
                    if not isinstance(x, str): return True
                    if o['nords'] and x.startswith("ds_read"): return False
                    if o['noepi'] and (x.startswith("v_") or x.startswith("ds_write")) : return False
                    if o['nodma'] and x.startswith("buffer_load"): return False
                    return True
                gaps = [[x for x in g if keep(x)] for g in gaps]
            emit_gaps(s, mf, gaps)
            self.n += 6
            if i < 5 or last_barrier:
                s.waitmark("dma", 3)
                if not (s.name == "ffn_loop" and (o['nobar'] == 1 or (o['nobar'] == 2 and i % 2 == 0))): s.e("s_barrier")
        assert not epi

def g24(g):
    return 2 * g + 1

def phase16(self, s, mat, epi, dmaf, nextrd, last_barrier, post):
    o = self.o
    acc = 16 if mat == 0 else 48
    per = (len(epi) + 5) // 6
    epi = list(epi)
    la = LA[0]
    for i in range(6):
        gaps = [[] for _ in range(24)]
        mf = []
        for fh in range(2):
            G0 = self.n + 3 * fh
            k = 0
            for j in range(3):
                nn = G0 + la + j
                f = rd1
                if nextrd and (i * 6 + 3 * fh + la + j) >= 36: f = nextrd
                for h in range(2):
                    gaps[12 * fh + o['rdpos'] + o['rdstep'] * k].append(f(nn, h)); k += 1
            for tq in range(4):
                for kkl in range(3):
                    A = areg(G0 + kkl); D = acc + 8 * tq + 4 * fh
                    C = "0" if (i == 0 and kkl == 0) else "v[%d:%d]" % (D, D + 3)
                    mf.append(["v_mfma_f32_16x16x32_bf16 v[%d:%d], v[%d:%d], %s, %s" % (D, D + 3, A, A + 3, xreg((3 * i + kkl) * 4 + tq), C)])
        for g, ins in dmaf(i): gaps[g24(g)].append(ins)
        if post and i in post:
            for g, ins in post[i]: gaps[g24(g)].append(ins)
        if i == 0:
            mine = epi[:max(per - o['first_less'], 0)]; epi = epi[len(mine):]
            spread(gaps, mine, o, start=o['epi_start'])
        else:
            rem = 6 - i
            cnt = (len(epi) + rem - 1) // rem
            mine = epi[:cnt]; epi = epi[cnt:]
            spread(gaps, mine, o)
        if s.name == "ffn_loop":
            def keep(x):
                if not isinstance(x, str): return True
                if o['nords'] and x.startswith("ds_read"): return False
                if o['noepi'] and (x.startswith("v_") or x.startswith("ds_write")) : return False
                if o['nodma'] and x.startswith("buffer_load"): return False
                return True
            gaps = [[x for x in g if keep(x)] for g in gaps]
        emit_gaps(s, mf, gaps)
        self.n += 6
        if i < 5 or last_barrier:
            s.waitmark("dma", 3)
            if not (s.name == "ffn_loop" and (o['nobar'] == 1 or (o['nobar'] == 2 and i % 2 == 0))): s.e("s_barrier")
    assert not epi
P1.phase16 = phase16

def pf_loads():
    return ["buffer_load_dwordx4 v[%d:%d], v%d, s[20:23], 0 offen offset:%d" % (196 + 4 * (j % 4), 199 + 4 * (j % 4), 192 + j // 4, (j % 4) * 1024) + " ; pf" for j in range(12)]

def pf_post(mode):
    L = pf_loads(); post = {}
    if mode == 1:
        for i in range(4): post[1 + i] = [(4, L[3 * i]), (7, L[3 * i + 1]), (10, L[3 * i + 2])]
    elif mode == 5:
        for i in range(4): post[1 + i] = [(4, L[3 * i]), (7, L[3 * i + 1]), (10, L[3 * i + 2])]
    elif mode == 3:
        ar = [192, 193, 194, 195, 212, 213, 214]
        L = ["buffer_load_dwordx4 v[%d:%d], v%d, s[20:23], 0 offen offset:%d ; pf" % (196 + 4 * (j % 4), 199 + 4 * (j % 4), ar[j // 4], (j % 4) * 1024) for j in range(27)]
        pos = [2, 4, 5, 7, 8, 10]
        for i in range(6):
            mine = L[5 * i: 5 * i + 5] if i < 5 else L[25:]
            post[i] = [(pos[k], x) for k, x in enumerate(mine)]
    elif mode == 2:
        for i in range(6): post[i] = [(4, L[2 * i]), (10, L[2 * i + 1])]
    return post

def dma_gaps1(mat, kc, slot):
    su, ld = dma1(mat, kc, slot)
    return [(0, su[0]), (1, su[1]), (3, ld[0]), (6, ld[1]), (9, ld[2]), (9, ('mark', 'dma'))]

def dma_gaps2(st, K, pos=(1, 5, 9)):
    L = []
    for j, (su, ld) in enumerate(dma2(st, K)):
        g = pos[j]
        L += [(g - 1, su[0]), (g - 1, su[1]), (g, ld)]
    L.append((pos[2], ('mark', 'dma'))); L.append((pos[2], ('mark', 'w2_%d' % st)))
    return L

def phase2_16(s, o, n0, K, dft):
    nk = K // 32; NB = 9 * nk; nst = NB // 3; Q = 6 * nst; la = LA[0]
    NT = 5 if dft else 4
    def accof(seg, tq, dh):
        if tq == 4: return 208 + 8 * (seg % 2) + 4 * dh
        return (16 if seg % 2 == 0 else 48) + 8 * tq + 4 * dh
    stf = o['stf'].replace('+', ' ')
    def st_out(seg):
        L = ["s_add_u32 s37, s36, %d" % (seg * 8192)]
        for tq in range(4):
            r = accof(seg, tq, 0)
            for q in range(4): L.append("v_cvt_pk_bf16_f32 v%d, v%d, v%d" % (176 + 4 * tq + q, r + 2 * q, r + 2 * q + 1))
            if not (o['nostore'] and seg < 8):
                L.append("buffer_store_dwordx4 v[%d:%d], v11, s[8:11], s37 offen offset:%d %s" % (176 + 4 * tq, 179 + 4 * tq, tq * 1024, stf))
        if dft:
            r = accof(seg, 4, 0)
            L.append("s_add_u32 s39, s38, %d" % (seg * 8192))
            for q in range(4): L.append("v_cvt_pk_bf16_f32 v%d, v%d, v%d" % (192 + q, r + 2 * q, r + 2 * q + 1))
            L.append("buffer_store_dwordx4 v[192:195], v11, s[8:11], s39 offen %s" % stf)
        return L
    s.e("v_add_u32 v5, 0x10000, v8"); s.e("v_add_u32 v6, 0x10000, v9")
    if NS2[0] > 6: s.e("v_add_u32 v2, 0x20000, v8"); s.e("v_add_u32 v3, 0x20000, v9")
    pend = []; GP = 6 * NT
    for st in range(nst):
        gaps = [[] for _ in range(GP)]
        mf = []
        done = None
        for dh in range(2):
            G0 = n0 + 6 * st + 3 * dh
            k = 0
            for j in range(3):
                nn = G0 + la + j
                for h in range(2):
                    if nn - n0 < Q: gaps[3 * NT * dh + o['rdpos'] + o['rdstep'] * k].append(rd2(nn, h, n0))
                    k += 1
            for tq in range(NT):
                for bl in range(3):
                    b = 3 * st + bl; seg = b // nk; kk = b % nk
                    A = areg(G0 + bl); D = accof(seg, tq, dh)
                    C = "0" if kk == 0 else "v[%d:%d]" % (D, D + 3)
                    B = ("a[%d:%d]" % (4 * (kk * 4 + tq), 4 * (kk * 4 + tq) + 3)) if tq < 4 else ("v[%d:%d]" % (112 + 4 * kk, 115 + 4 * kk))
                    mf.append(["v_mfma_f32_16x16x32_bf16 v[%d:%d], v[%d:%d], %s, %s" % (D, D + 3, A, A + 3, B, C)])
                    if kk == nk - 1: done = seg
        if NS2[0] == 6: iss = [st + 5]
        elif st == 0: iss = [5]
        elif st <= 6: iss = [2 * st + 4, 2 * st + 5]
        else: iss = [st + 11]
        iss = [x for x in iss if x < nst]
        if len(iss) == 2:
            L = dma_gaps2(iss[0], K, (1, 3, 5)) + dma_gaps2(iss[1], K, (7, 9, 11))
        elif iss: L = dma_gaps2(iss[0], K)
        else: L = []
        def gm(g): return min(GP - 1, (2 * g + 1) * GP // 24)
        for g, ins in L: gaps[gm(g)].append(ins)
        if o['cpk3'] and st == nst - o['cpk3']: gaps[3].append(code_ld(222 if not dft else 254, 220 if not dft else 252))
        if pend:
            start = pend_start
            room = int((GP - start) * o['p2_rate16'])
            mine = pend[:room]; pend = pend[room:]
            spread(gaps, mine, o, start=start)
            pend_start = 0
        emit_gaps(s, mf, gaps)
        if done is not None and done < 8:
            assert not pend
            pend = st_out(done); pend_start = o['p2_delay16']
        if st + 2 <= nst - 1:
            s.waitmark("w2_%d" % (st + 2), 0); s.e("s_barrier")
    assert not pend
    for ins in st_out(8): s.e(ins)

def phase2(s, o, n0, K, dft):
    if M16[0]: return phase2_16(s, o, n0, K, dft)
    nk = K // 16; Q = 9 * nk; nst = Q // 6
    def st_out(seg):
        acc = 16 if seg % 2 == 0 else 48
        L = ["s_add_u32 s37, s36, %d" % (seg * 8192)]
        for n in range(2):
            for J in range(2):
                for q in range(4):
                    r = acc + 16 * n + 8 * J + 2 * q
                    L.append("v_cvt_pk_bf16_f32 v%d, v%d, v%d" % (176 + n * 8 + 4 * J + q, r, r + 1))
                if not (o['nostore'] and seg < 8):
                    L.append("buffer_store_dwordx4 v[%d:%d], v11, s[8:11], s37 offen offset:%d %s" % (176 + n * 8 + 4 * J, 179 + n * 8 + 4 * J, n * 2048 + J * 1024, o['stf'].replace('+', ' ')))
        if dft:
            x = 208 + 4 * (seg % 2)
            L += ["v_mov_b32 v%d, v%d" % (216 + i, x + i) for i in range(4)]
            L += ["s_add_u32 s39, s38, %d" % (seg * 8192)]
            L += ["v_permlane32_swap_b32 v%d, v%d" % (x + i, 216 + i) for i in range(4)]
            L += ["v_add_f32 v%d, v%d, v%d" % (216 + i, x + i, 216 + i) for i in range(4)]
            L += ["v_cvt_pk_bf16_f32 v216, v216, v217", "v_cvt_pk_bf16_f32 v217, v218, v219",
                  "buffer_store_dwordx2 v[216:217], v12, s[8:11], s39 offen"]
        return L
    def hx(kap, j):
        return (112 + 4 * kap + j) if kap < 16 else (192 + 4 * (kap - 16) + j)
    pend = []
    if NS2[0] > 6: s.e("v_add_u32 v5, 0x20000, v8")
    for st in range(nst):
        gaps = [[] for _ in range(12)]
        mf = []
        newseg = None
        for kp in range(6):
            q = st * 6 + kp; seg = q // nk; kap = q % nk
            n = n0 + q
            if q + PF < Q:
                gaps[2 * kp].append(rd2(n + PF, 0, n0)); gaps[2 * kp + 1].append(rd2(n + PF, 1, n0))
            acc = 16 if seg % 2 == 0 else 48
            for t in range(2):
                A = areg(n); D = acc + 16 * t
                C = "0" if kap == 0 else "v[%d:%d]" % (D, D + 15)
                j = kap * 2 + t
                mf.append(["v_mfma_f32_32x32x16_bf16 v[%d:%d], v[%d:%d], a[%d:%d], %s" % (D, D + 15, A, A + 3, 4 * j, 4 * j + 3, C)])
            if dft:
                x = 208 + 4 * (seg % 2); A = areg(n)
                for jj in range(2):
                    c = "0" if (kap == 0 and jj == 0) else "v[%d:%d]" % (x, x + 3)
                    gaps[2 * kp + jj].insert(0, "v_mfma_f32_4x4x4_16b_bf16 v[%d:%d], v[%d:%d], v[%d:%d], %s" % (x, x + 3, A + 2 * jj, A + 2 * jj + 1, hx(kap, 2 * jj), hx(kap, 2 * jj + 1), c))
            if kap == 0 and seg > 0:
                newseg = (kp, seg - 1)
        if NS2[0] == 6: iss = [st + 5]
        elif st == 0: iss = [5]
        elif st <= 6: iss = [2 * st + 4, 2 * st + 5]
        else: iss = [st + 11]
        iss = [x for x in iss if x < nst]
        if len(iss) == 2:
            L = dma_gaps2(iss[0], K, (1, 3, 5)) + dma_gaps2(iss[1], K, (7, 9, 11))
        elif iss: L = dma_gaps2(iss[0], K)
        else: L = []
        for g, ins in L: gaps[g].append(ins)
        if newseg is not None:
            kp, sg = newseg
            assert not pend
            pend = st_out(sg)
            start = 2 * kp + o['p2_epi_delay']
        else:
            start = 0
        if pend:
            if start < 12:
                room = (12 - start) * o['p2_epi_rate']
                mine = pend[:room]; pend = pend[room:]
                spread(gaps, mine, o, start=start)
        emit_gaps(s, mf, gaps)
        if st + 2 <= nst - 1:
            s.waitmark("w2_%d" % (st + 2), 0); s.e("s_barrier")
    assert not pend
    for ins in st_out(8): s.e(ins)

def gen_k2(Kern, srd, opts):
    o = dict(cpf=0, cpfst=1, cpk3=0, cpd1=18, m16=0, la=4, rdpos=0, rdstep=2, p2_rate16=1.0, p2_delay16=2, pfw=0, pfc=0, ns2=6, map=0, prof=0, nostore=0, stf='', nords=0, noepi=0, nodma=0, nobar=0, wtrans=2.0, wsalu=0.3, epi_start=4, first_less=4, p2_epi_delay=5, p2_epi_rate=2)
    for k, v in opts.items():
        if k in o: o[k] = type(o[k])(v)
    NS2[0] = o['ns2']; M16[0] = o['m16']; LA[0] = o['la']
    NPRE = o['la'] if o['m16'] else PF
    K = Kern("main_kernel", (256, 1, 1), (256, 1, 1), LDS_BYTES, vgpr=512, accum=256)
    a = K.seg("head")
    a.e("s_cmp_ge_u32 s2, 256"); a.e("s_cbranch_scc1 K2_end")
    stamp(a, 0)
    a.e("s_load_dwordx2 s[4:5], s[0:1], 88")
    a.e("s_load_dwordx4 s[40:43], s[0:1], 48")
    a.e("s_load_dwordx2 s[44:45], s[0:1], 64")
    a.e("s_load_dwordx4 s[48:51], s[0:1], 8")
    a.e("s_load_dwordx4 s[52:55], s[0:1], 24")
    a.e("v_lshrrev_b32 v1, 6, v0"); a.e("v_and_b32 v0, 63, v0"); a.e("v_readfirstlane_b32 s24, v1")
    if o['map'] == 0:
        a.e("s_and_b32 s3, s2, 7"); a.e("s_lshr_b32 s28, s2, 3"); a.e("s_lshr_b32 s27, s28, 4"); a.e("s_lshl_b32 s3, s3, 1")
        a.e("s_add_u32 s27, s27, s3"); a.e("s_and_b32 s28, s28, 15")
    else:
        tb = {1: 3, 2: 2, 3: 3}[o['map']]
        a.e("s_and_b32 s3, s2, 7"); a.e("s_lshr_b32 s46, s2, 3")
        a.e("s_and_b32 s28, s3, %d" % ((16 >> tb) - 1)); a.e("s_lshl_b32 s28, s28, %d" % tb); a.e("s_and_b32 s47, s46, %d" % ((1 << tb) - 1)); a.e("s_add_u32 s28, s28, s47")
        a.e("s_lshr_b32 s27, s3, %d" % (4 - tb)); a.e("s_lshl_b32 s27, s27, %d" % (5 - tb)); a.e("s_lshr_b32 s47, s46, %d" % tb); a.e("s_add_u32 s27, s27, s47")
    if o['map'] == 3:
        a.e("s_lshr_b32 s46, s27, 2"); a.e("s_and_b32 s47, s27, 3"); a.e("s_mul_i32 s27, s46, 3"); a.e("s_add_u32 s27, s27, s47"); a.e("s_add_u32 s46, s46, 12")
        a.e("s_cmp_eq_u32 s47, 3"); a.e("s_cselect_b32 s27, s46, s27")
    a.e("s_lshr_b32 s25, s24, 1"); a.e("s_and_b32 s26, s24, 1")
    a.e("s_mov_b32 s%d, 0xbfb8aa3b" % CNEG)
    a.e("v_lshrrev_b32 v13, 4, v0"); a.e("v_bfe_u32 v14, v0, 2, 2"); a.e("v_and_b32 v15, 3, v0")
    a.e("v_lshlrev_b32 v11, 4, v0")
    if o['m16']:
        a.e("v_lshrrev_b32 v1, 1, v14"); a.e("v_lshlrev_b32 v1, 1, v1"); a.e("v_and_b32 v9, 1, v13"); a.e("v_lshlrev_b32 v9, 2, v9"); a.e("v_add_u32 v9, v9, v1")
        a.e("v_lshrrev_b32 v12, 1, v15"); a.e("s_lshl_b32 s3, s26, 2"); a.e("v_add_u32 v12, s3, v12"); a.e("v_xor_b32 v12, v12, v9"); a.e("v_lshlrev_b32 v12, 4, v12")
        a.e("v_and_b32 v1, 1, v15"); a.e("v_lshlrev_b32 v1, 3, v1"); a.e("v_add_u32 v12, v12, v1")
        a.e("v_lshlrev_b32 v8, 2, v13"); a.e("v_add_u32 v8, v8, v14"); a.e("v_lshlrev_b32 v8, 7, v8"); a.e("v_add_u32 v8, v8, v12"); a.e("v_xor_b32 v9, 32, v8")
        a.e("v_lshlrev_b32 v5, 3, v13"); a.e("v_add_u32 v5, v5, v14"); a.e("v_lshlrev_b32 v5, 7, v5"); a.e("v_add_u32 v5, v5, v12"); a.e("v_add_u32 v6, 0x10000, v5")
        a.e("v_lshrrev_b32 v13, 3, v0"); a.e("v_and_b32 v14, 7, v0")
        a.e("v_bfe_u32 v15, v13, 1, 2"); a.e("v_lshlrev_b32 v15, 1, v15"); a.e("v_xor_b32 v15, v14, v15"); a.e("v_lshlrev_b32 v15, 4, v15")
        a.e("s_movk_i32 s3, 1152"); a.e("v_mul_lo_u32 v10, v13, s3"); a.e("v_add_u32 v10, v10, v15")
        a.e("v_bfe_u32 v15, v13, 1, 1"); a.e("v_lshlrev_b32 v15, 1, v15"); a.e("v_xor_b32 v15, v14, v15"); a.e("v_lshlrev_b32 v15, 4, v15")
        a.e("s_and_b32 s3, s24, 1"); a.e("s_lshl_b32 s3, s3, 6"); a.e("v_xor_b32 v15, s3, v15")
        a.e("s_movk_i32 s3, 9216"); a.e("v_mul_lo_u32 v13, v13, s3")
        a.e("v_add_u32 v2, v13, v15"); a.e("v_add_u32 v4, %d, v2" % (16 * 9216 - 2048))
        a.e("v_xor_b32 v15, 64, v15"); a.e("v_add_u32 v3, v13, v15"); a.e("v_add_u32 v3, %d, v3" % (8 * 9216 - 1024))
        a.e("v_xor_b32 v13, 32, v5"); a.e("v_add_u32 v14, 0x10000, v13")
    else:
        a.e("v_lshrrev_b32 v1, 1, v13"); a.e("v_lshlrev_b32 v1, 2, v1"); a.e("v_add_u32 v1, v1, v14"); a.e("v_lshlrev_b32 v8, 7, v1")
        a.e("v_and_b32 v1, 1, v13"); a.e("v_lshlrev_b32 v1, 1, v1"); a.e("s_lshl_b32 s3, s26, 2"); a.e("v_add_u32 v1, s3, v1")
        a.e("v_bfe_u32 v9, v14, 1, 1"); a.e("v_lshlrev_b32 v9, 2, v9")
        a.e("v_and_b32 v12, 1, v15"); a.e("v_add_u32 v12, v1, v12"); a.e("v_xor_b32 v12, v12, v9"); a.e("v_lshlrev_b32 v12, 4, v12"); a.e("v_add_u32 v8, v8, v12")
        a.e("v_lshrrev_b32 v12, 1, v15"); a.e("v_lshlrev_b32 v12, 3, v12"); a.e("v_add_u32 v8, v8, v12")
        a.e("v_lshrrev_b32 v12, 1, v15"); a.e("v_add_u32 v12, v1, v12"); a.e("v_xor_b32 v12, v12, v9"); a.e("v_lshlrev_b32 v12, 4, v12")
        a.e("v_lshrrev_b32 v5, 1, v13"); a.e("v_lshlrev_b32 v5, 3, v5"); a.e("v_add_u32 v5, v5, v14"); a.e("v_lshlrev_b32 v5, 7, v5"); a.e("v_add_u32 v5, v5, v12")
        a.e("v_and_b32 v12, 1, v15"); a.e("v_lshlrev_b32 v12, 3, v12"); a.e("v_add_u32 v5, v5, v12")
        a.e("v_add_u32 v6, 0x10000, v5"); a.e("v_add_u32 v9, 0x10000, v8")
        a.e("v_lshrrev_b32 v13, 3, v0"); a.e("v_and_b32 v14, 7, v0"); a.e("v_bfe_u32 v15, v13, 1, 1"); a.e("v_lshlrev_b32 v15, 2, v15")
        a.e("v_xor_b32 v14, v14, v15"); a.e("v_lshlrev_b32 v14, 4, v14")
        a.e("s_movk_i32 s3, 1152"); a.e("v_mul_lo_u32 v10, v13, s3"); a.e("v_add_u32 v10, v10, v14")
        a.e("s_movk_i32 s3, 9216"); a.e("v_mul_lo_u32 v2, v13, s3"); a.e("v_add_u32 v2, v2, v14")
        a.e("v_add_u32 v3, %d, v2" % (8 * 9216 - 1024)); a.e("v_add_u32 v4, %d, v2" % (16 * 9216 - 2048))
    a.e("s_lshl_b32 s34, s24, 10")
    a.e("s_mul_i32 s36, s27, %d" % SLOTB); a.e("s_lshl_b32 s3, s28, 1"); a.e("s_add_u32 s3, s3, s25"); a.e("s_mul_i32 s3, s3, %d" % T64B)
    a.e("s_add_u32 s36, s36, s3"); a.e("s_lshl_b32 s46, s26, 12"); a.e("s_add_u32 s36, s36, s46"); a.e("s_add_u32 s36, s36, %d" % PART)
    if o['cpf']:
        a.e("s_getpc_b64 s[96:97]"); a.lab("K2_pc")
    a.waitlg(0)
    srd(a, 8, 4, WS_BYTES)
    a.e("s_cmp_eq_u32 s27, 15"); a.e("s_cbranch_scc1 K2_dft")
    f = K.seg("ffn_pro")
    srd(f, 12, 40, 576 * 9216); srd(f, 16, 42, 576 * 9216); srd(f, 20, 44, 4608 * 1152)
    f.e("s_mul_i32 s46, s27, 5"); f.e("s_lshl_b32 s47, s27, 2"); f.e("s_add_u32 s47, s47, 12")
    f.e("s_cmp_lt_u32 s27, 12"); f.e("s_cselect_b32 s46, s46, s47"); f.e("s_cselect_b32 s32, 4, 3")
    f.e("s_mul_i32 s30, s24, %d" % (24 * 9216)); f.e("s_lshl_b32 s47, s46, 7"); f.e("s_add_u32 s30, s30, s47")
    f.e("s_mul_i32 s29, s24, 3072")
    f.e("s_lshl_b32 s47, s46, 6"); f.e("s_lshl_b32 s56, s24, 3"); f.e("s_add_u32 s47, s47, s56"); f.e("s_mul_i32 s35, s47, 1152")
    for st in range(5):
        su, ld = dma1(0, st, st)
        for x in su + ld: f.e(x)
        f.mark("dma")
    if o['cpf']:
        f.e("v_lshlrev_b32 v219, 7, v0"); f.e("s_lshl_b32 s3, s24, 13"); f.e("v_add_u32 v219, s3, v219")
        if o['cpf'] & 2:
            code_addr(f, 216, 219, "K2_g0", "K2_tail320"); f.e(code_ld(218, 216))
        f.e("s_mov_b32 s100, K2_tail320-K2_pc"); f.e("s_mov_b32 s101, K2_ffn4-K2_pc-4"); f.e("s_cmp_ge_u32 s27, 12")
        f.e("s_cselect_b32 s100, K2_ffn4-K2_pc, s100"); f.e("s_cselect_b32 s101, K2_dft-K2_pc-4, s101")
        code_addr(f, 216, 219, None, None, ssel=(100, 101))
        if o['cpk3']:
            code_addr(f, 220, 219, "final_kernel", "K3_end")
    f.e("s_lshl_b32 s3, s28, 1"); f.e("s_add_u32 s3, s3, s25"); f.e("s_mul_i32 s3, s3, %d" % T64B)
    if XN: f.e("s_add_u32 s3, s3, %d" % XN)
    for i in range(72):
        if i % 4 == 0 and i > 0: f.e("s_add_u32 s3, s3, 4096")
        f.e("buffer_load_dwordx4 %s, v11, s[8:11], s3 offen offset:%d" % (xreg(i), (i % 4) * 1024))
    if o['pfw']:
        f.e("s_and_b32 s56, s28, 7"); f.e("s_lshl_b32 s56, s56, 2"); f.e("s_add_u32 s56, s56, s24"); f.e("s_add_u32 s57, s32, 1")
        f.e("s_mul_i32 s57, s57, 2304"); f.e("s_mul_i32 s56, s56, s57"); f.e("s_mul_i32 s57, s46, 73728"); f.e("s_add_u32 s56, s56, s57")
        if o['pfw'] in (3, 10):
            f.e("s_sub_u32 s56, s27, 12"); f.e("s_lshl_b32 s56, s56, 4"); f.e("s_add_u32 s56, s56, s28"); f.e("s_lshl_b32 s56, s56, 2"); f.e("s_add_u32 s56, s56, s24")
            f.e("s_mul_i32 s56, s56, 27648"); f.e("s_cmp_lt_u32 s27, 12"); f.e("s_cselect_b32 s56, 0x7ff00000, s56")
        f.e("v_add_u32 v192, s56, v11"); f.e("v_add_u32 v193, 4096, v192"); f.e("v_add_u32 v194, 8192, v192")
        if o['pfw'] in (3, 10):
            for j in range(3, 7): f.e("v_add_u32 v%d, %d, v192" % (192 + j + (0 if j < 4 else 16), 4096 * j))
        if o['pfw'] == 4:
            for x in pf_loads(): f.e(x)
        if o['pfw'] == 5:
            f.e("buffer_load_dword v196, v192, s[20:23], 0 offen ; pf")
        if o['pfw'] == 8:
            f.e("v_lshlrev_b32 v195, 6, v0"); f.e("v_add_u32 v192, s56, v195"); f.e("v_add_u32 v193, 4096, v192"); f.e("v_add_u32 v194, 8192, v192")
            for j in range(3): f.e("buffer_load_dword v%d, v%d, s[20:23], 0 offen ; pf" % (196 + j, 192 + j))
        if o['pfw'] == 9:
            f.e("v_lshlrev_b32 v195, 7, v0"); f.e("v_add_u32 v192, s56, v195"); f.e("v_add_u32 v193, 8192, v192")
            for j in range(2): f.e("buffer_load_dword v%d, v%d, s[20:23], 0 offen ; pf" % (196 + j, 192 + j))
    f.e("s_mul_i32 s3, s25, 40960"); f.e("s_lshl_b32 s46, s26, %d" % (10 if o['m16'] else 11)); f.e("s_add_u32 s3, s3, s46"); f.e("s_add_u32 s3, s3, %d" % HB)
    f.e("v_add_u32 v7, s3, v11")
    f.waitmark("dma", 3); f.e("s_barrier")
    stamp(f, 1)
    if o['cpf']: f.lab("K2_g0")
    for n in range(NPRE):
        f.e(rd1(n, 0)); f.e(rd1(n, 1))
    p1 = P1(o)
    def d_g0(i):
        return dma_gaps1(0, 5, 5) if i == 0 else dma_gaps1(1, i - 1, i - 1)
    post0 = None
    if o['pfw'] and o['pfw'] not in (4, 6, 7, 8, 9, 10):
        post0 = pf_post(o['pfw'])
    g0a = g0b = None
    if o['pfw'] == 10:
        f.e("s_cmp_ge_u32 s27, 12"); f.e("s_cbranch_scc1 K2_g0b")
        g0a = K.seg("g0a"); p1.phase(g0a, 0, [], d_g0); stamp(g0a, 2); g0a.e("s_branch K2_loop")
        g0b = K.seg("g0b"); g0b.lab("K2_g0b"); pb = P1(o); pb.phase(g0b, 0, [], d_g0, post=pf_post(3)); stamp(g0b, 2)
    else:
        p1.phase(f, 0, [], d_g0, post=post0)
        stamp(f, 2)
    lp = K.seg("ffn_loop"); lp.lab("K2_loop")
    def d_up(i):
        if i == 0: return dma_gaps1(1, 5, 5) + [(10, "s_add_u32 s30, s30, 128")]
        return dma_gaps1(0, i - 1, i - 1)
    def d_gate(i):
        return dma_gaps1(0, 5, 5) if i == 0 else dma_gaps1(1, i - 1, i - 1)
    postu = postg = None
    if o['pfw'] == 6:
        L = pf_loads()[:4]
        postu = {1 + j: [(4, L[j])] for j in range(4)}
        postu[5] = [(4, "v_add_u32 v192, 4096, v192")]
    if o['pfw'] == 7:
        L = pf_loads()[:4]
        postu = {1: [(4, L[0])], 4: [(4, L[1])]}
        postg = {1: [(4, L[2])], 4: [(4, L[3])], 5: [(4, "v_add_u32 v192, 4096, v192")]}
    if o['cpf'] & 1:
        postu = dict(postu or {}); postu.setdefault(o['cpfst'], []); postu[o['cpfst']] = postu[o['cpfst']] + [(5, code_ld(218, 216))]
    p1.phase(lp, 1, epi1(), d_up, post=postu)
    p1.phase(lp, 0, epi2() + ["v_add_u32 v7, %d, v7" % (2048 if o['m16'] else 4096)], d_gate, post=postg)
    lp.e("s_sub_u32 s32, s32, 1"); lp.e("s_cmp_lg_u32 s32, 0"); lp.e("s_cbranch_scc1 K2_loop")
    nloop = p1.n
    br = K.seg("ffn_br")
    stamp(br, 3)
    br.e("s_cmp_ge_u32 s27, 12"); br.e("s_cbranch_scc1 K2_ffn4")
    tails = {}
    for Kd, lab in ((320, None), (256, "K2_ffn4")):
        t = K.seg("ffn_tail%d" % Kd)
        if lab: t.lab(lab)
        elif o['cpf']: t.lab("K2_tail320")
        p = P1(o); p.n = nloop
        n0 = nloop + 36
        def d_last(i, Kd=Kd):
            return dma_gaps1(1, 5, 5) if i == 0 else dma_gaps2(i - 1, Kd)
        p.phase(t, 1, epi1(), d_last, nextrd=lambda n, h, n0=n0: rd2(n, h, n0), last_barrier=False)
        stamp(t, 4)
        t.e("s_nop 7")
        for x in epi2(): t.e(x)
        t.waitmark("dma", 3); t.waitlg(0); t.e("s_barrier")
        t.e("s_mul_i32 s3, s25, 40960"); t.e("s_add_u32 s3, s3, %d" % HB); t.e("v_add_u32 v1, s3, v11")
        if o['m16']:
            for kk, tq in sorted(((kk, tq) for kk in range(Kd // 32) for tq in range(4)), key=lambda z: (z[0] // 3, z[1], z[0])):
                    j = kk * 4 + tq
                    t.e("ds_read_b128 a[%d:%d], v1 offset:%d" % (4 * j, 4 * j + 3, (tq * 10 + kk) * 1024))
        else:
          for kap in range(Kd // 16):
            for n in range(2):
                j = kap * 2 + n
                t.e("ds_read_b128 a[%d:%d], v1 offset:%d" % (4 * j, 4 * j + 3, (n * 20 + kap) * 1024))
        stamp(t, 5)
        phase2(t, o, n0, Kd, False)
        stamp(t, 6)
        if o['prof']: t.waitall()
        stamp(t, 7); prof_store(t, 1, 8, 8, 24, 12, 60)
        t.e("s_endpgm")
        tails[Kd] = t
    d = K.seg("dft"); d.lab("K2_dft")
    gen_dft(d, o, srd)
    e = K.seg("end"); e.lab("K2_end"); e.e("s_endpgm")
    A_ = [g0a] if g0a else []; B_ = [g0b] if g0b else []
    K.paths = [[a, f] + A_ + [lp] * 4 + [br, tails[320]], [a, f] + B_ + [lp] * 3 + [br, tails[256]], [a, d]]
    return K

def gen_dft(d, o, srd):
    d.e("s_cmp_ge_u32 s28, 8"); d.e("s_cselect_b32 s46, s50, s48"); d.e("s_cselect_b32 s47, s51, s49")
    d.e("s_cselect_b32 s56, s54, s52"); d.e("s_cselect_b32 s57, s55, s53")
    d.e("s_mov_b32 s58, %d" % XEE); d.e("s_cselect_b32 s58, %d, s58" % XOO); d.e("s_cselect_b32 s59, 1536, 0"); d.e("s_cselect_b32 s60, 0, 0xbf803f80")
    srd(d, 12, 46, 2048 * 4096); srd(d, 20, 56, 576 * 1152)
    d.e("s_and_b32 s3, s28, 7"); d.e("s_lshl_b32 s3, s3, 6"); d.e("s_add_u32 s59, s59, s3"); d.e("s_lshl_b32 s59, s59, 1")
    d.e("s_mul_i32 s61, s24, %d" % (16 * 640)); d.e("s_add_u32 s61, s61, s58")
    d.e("s_lshl_b32 s62, s24, 16"); d.e("s_add_u32 s62, s62, s59")
    d.e("v_lshrrev_b32 v13, 3, v0"); d.e("v_and_b32 v14, 7, v0"); d.e("v_bfe_u32 v15, v13, 1, 2"); d.e("v_lshlrev_b32 v15, 1, v15")
    d.e("v_xor_b32 v14, v14, v15"); d.e("v_lshlrev_b32 v14, 4, v14")
    d.e("s_movk_i32 s3, 1280"); d.e("v_mul_lo_u32 v2, v13, s3"); d.e("v_add_u32 v2, v2, v14")
    d.e("v_lshlrev_b32 v3, 13, v13"); d.e("v_add_u32 v3, v3, v14")
    NSD = 33; SL = 24576
    def stage_rows(st):
        return (st % 2, st // 2)
    def dmad(st):
        par, ks = stage_rows(st); slot = st % 6
        L = []
        r0 = 64 * ks + par
        L.append(("s", "s_add_u32 s31, s61, %d" % (r0 * 640)))
        for b in range(5):
            L.append(("s", "s_add_u32 m0, s34, %d" % (slot * SL + b * 4096 - 128 * b)))
            L.append(("l", "buffer_load_dwordx4 v2, s[8:11], s31 offen offset:%d lds" % (128 * b)))
        L.append(("s", "s_add_u32 s63, s62, %d" % (r0 * 4096)))
        L.append(("s", "s_add_u32 m0, s34, %d" % (slot * SL + 5 * 4096)))
        L.append(("l", "buffer_load_dwordx4 v3, s[12:15], s63 offen lds"))
        return L
    for st in range(5):
        for _, x in dmad(st): d.e(x)
        d.mark("dma")
    if o['cpf']:
        d.e("v_lshlrev_b32 v255, 7, v0"); d.e("s_lshl_b32 s3, s24, 13"); d.e("v_add_u32 v255, s3, v255")
        code_addr(d, 252, 255, "K2_dft1", "K2_dft2"); d.e(code_ld(254, 252))
        code_addr(d, 250, 255, "K2_dft2", "K2_dft3")
    if o['pfc'] == 1:
        d.e("v_lshrrev_b32 v13, 3, v0"); d.e("v_and_b32 v14, 7, v0"); d.e("v_lshlrev_b32 v14, 4, v14"); d.e("v_lshlrev_b32 v13, 12, v13"); d.e("v_add_u32 v192, v13, v14")
        d.e("s_mul_i32 s3, s24, %d" % (240 * 4096)); d.e("s_add_u32 s3, s3, s59"); d.e("s_add_u32 s3, s3, %d" % (128 * 4096)); d.e("v_add_u32 v192, s3, v192")
        for j in range(30):
            d.e("buffer_load_dwordx4 v[%d:%d], v192, s[12:15], 0 offen ; pf" % (224 + 4 * (j % 4), 227 + 4 * (j % 4)))
            if j < 29: d.e("v_add_u32 v192, 0x8000, v192")
    if o['pfc']:
        d.e("s_and_b32 s3, s28, 7"); d.e("s_lshl_b32 s3, s3, 2"); d.e("s_add_u32 s3, s3, s24"); d.e("s_mul_i32 s3, s3, 11520")
        d.e("v_add_u32 v192, s3, v11"); d.e("v_add_u32 v193, 4096, v192"); d.e("v_add_u32 v194, 8192, v192")
        for j in range(12):
            d.e("buffer_load_dwordx4 v[%d:%d], v%d, s[20:23], 0 offen offset:%d ; pf" % (224 + 4 * (j % 4), 227 + 4 * (j % 4), 192 + j // 4, (j % 4) * 1024))
    d.e("v_lshrrev_b32 v13, 2, v0"); d.e("v_and_b32 v15, 3, v0"); d.e("v_bfe_u32 v14, v13, 1, 2"); d.e("v_lshlrev_b32 v14, 1, v14")
    d.e("v_lshlrev_b32 v13, 7, v13"); d.e("v_and_b32 v1, 1, v15"); d.e("v_lshlrev_b32 v1, 3, v1"); d.e("v_add_u32 v13, v13, v1")
    d.e("v_lshrrev_b32 v15, 1, v15")
    for u in range(4):
        d.e("v_add_u32 v1, %d, v15" % (2 * u)); d.e("v_xor_b32 v1, v1, v14"); d.e("v_lshlrev_b32 v1, 4, v1"); d.e("v_add_u32 v1, v1, v13")
        d.e("v_add_u32 v%d, %d, v1" % (196 + u, 5 * 4096))
    for i in range(5):
        d.e("s_mul_i32 s3, s24, 5"); d.e("s_add_u32 s3, s3, %d" % i)
        d.e("s_and_b32 s46, s3, 3"); d.e("s_lshl_b32 s46, s46, 1"); d.e("s_lshr_b32 s47, s3, 2"); d.e("s_lshl_b32 s47, s47, 12")
        d.e("v_add_u32 v1, s46, v15"); d.e("v_xor_b32 v1, v1, v14"); d.e("v_lshlrev_b32 v1, 4, v1"); d.e("v_add_u32 v1, v1, v13")
        d.e("v_add_u32 v%d, s47, v1" % (200 + i))
    for q in range(9): d.e("v_add_u32 v%d, %d, v%d" % (205 + q, 3 * SL, 196 + q))
    for q in range(4): d.e("v_mov_b32 v%d, s60" % (216 + q))
    def frag(st, q):
        return (st % 2) * 36 + 4 * q
    def rdd(st, q, half):
        slot = st % 6; base = 196 + q
        if slot >= 3: base += 9; slot -= 3
        r = frag(st, q) + 2 * half
        return "ds_read_b64_tr_b16 a[%d:%d], v%d offset:%d" % (r, r + 1, base, slot * SL + half * 2048)
    d.waitmark("dma", 3); d.e("s_barrier")
    stamp(d, 1); stamp(d, 2)
    if o['cpf']: d.lab("K2_dft1")
    order = [4, 0, 1, 2, 3, 5, 6, 7, 8]
    for q in order: d.e(rdd(0, q, 0)); d.e(rdd(0, q, 1))
    for st in range(NSD):
        par, ks = stage_rows(st)
        mf = []
        for i in range(5):
            A = frag(st, 4 + i)
            for u in range(4):
                B = frag(st, u); D = 16 + par * 80 + (i * 4 + u) * 4
                C = "0" if ks == 0 else "v[%d:%d]" % (D, D + 3)
                mf.append(["v_mfma_f32_16x16x32_bf16 v[%d:%d], a[%d:%d], a[%d:%d], %s" % (D, D + 3, A, A + 3, B, B + 3, C)])
            if par == 0:
                D = 176 + 4 * i; C = "0" if ks == 0 else "v[%d:%d]" % (D, D + 3)
                mf.append(["v_mfma_f32_16x16x32_bf16 v[%d:%d], a[%d:%d], v[216:219], %s" % (D, D + 3, A, A + 3, C)])
        G = len(mf)
        gaps = [[] for _ in range(G)]
        fill = []
        if st + 1 < NSD:
            for q in order: fill += [rdd(st + 1, q, 0), rdd(st + 1, q, 1)]
        dm = dmad(st + 5) if st + 5 < NSD else []
        for g, x in enumerate(fill): gaps[g].append(x)
        if dm:
            pos = [2, 5, 8, 11, 14, 17]; li = 0; pendS = []
            for kind, x in dm:
                if kind == "s": pendS.append(x)
                else:
                    g = pos[li]; li += 1
                    for y in pendS: gaps[g - 1].append(y)
                    pendS = []
                    gaps[g].append(x)
            gaps[17].append(('mark', 'dma'))
        if o['cpf'] and st == o['cpd1']: gaps[19].append(code_ld(254, 250))
        emit_gaps(d, mf, gaps)
        if st + 2 <= NSD - 1:
            last_issued = min(st + 5, NSD - 1)
            d.waitmark("dma", last_issued - (st + 2)); d.e("s_barrier")
    d.e("s_barrier")
    stamp(d, 3)
    if o['cpf']:
        d.lab("K2_dft2")
        if o['cpk3']: code_addr(d, 252, 255, "final_kernel", "K3_end")
    d.e("s_mul_i32 s35, s24, %d" % (8 * 1152))
    for st in range(5):
        for su, ld in dma2(st, 320):
            for x in su: d.e(x)
            d.e(ld)
        d.mark("dma"); d.mark("w2_%d" % st)
    if o['m16']:
        d.e("s_and_b32 s46, s24, 1"); d.e("s_mul_i32 s3, s24, 5"); d.e("s_sub_u32 s3, s3, s46"); d.e("s_lshr_b32 s3, s3, 1")
        d.e("s_lshl_b32 s47, s46, 3")
        d.e("s_cmp_eq_u32 s46, 1"); d.e("s_cselect_b32 s56, 1024, 8"); d.e("s_cselect_b32 s57, 64, 8")
        d.e("s_lshl_b32 s58, s3, 10"); d.e("s_add_u32 s58, s58, %d" % HB)
        d.e("s_add_u32 s59, s58, s47"); d.e("v_add_u32 v7, s59, v11"); d.e("v_add_u32 v6, 40960, v7")
        d.e("s_add_u32 s59, s58, s56"); d.e("v_add_u32 v4, s59, v11"); d.e("v_add_u32 v3, 40960, v4")
        d.e("v_lshrrev_b32 v15, 4, v0"); d.e("v_lshlrev_b32 v15, 4, v15")
        d.e("s_lshl_b32 s58, s3, 6"); d.e("s_add_u32 s58, s58, %d" % HX)
        d.e("s_add_u32 s59, s58, s47"); d.e("v_add_u32 v5, s59, v15"); d.e("s_add_u32 s59, s58, s57"); d.e("v_add_u32 v2, s59, v15")
    else:
        d.e("v_lshrrev_b32 v13, 4, v0"); d.e("v_and_b32 v14, 15, v0"); d.e("v_and_b32 v15, 1, v13"); d.e("v_lshlrev_b32 v15, 5, v15"); d.e("v_add_u32 v14, v14, v15")
        d.e("v_lshlrev_b32 v14, 4, v14"); d.e("v_lshrrev_b32 v13, 1, v13"); d.e("v_lshlrev_b32 v1, 3, v13"); d.e("v_add_u32 v14, v14, v1")
        d.e("s_mul_i32 s3, s24, 5120"); d.e("s_add_u32 s3, s3, %d" % HB); d.e("v_add_u32 v7, s3, v14")
        d.e("v_add_u32 v6, 40960, v7")
        d.e("v_lshlrev_b32 v15, 4, v0"); d.e("v_lshrrev_b32 v15, 8, v15"); d.e("v_and_b32 v15, 1, v15"); d.e("v_lshlrev_b32 v15, 4, v15"); d.e("v_add_u32 v15, v15, v1")
        d.e("s_mul_i32 s3, s24, 160"); d.e("s_add_u32 s3, s3, %d" % HX); d.e("v_add_u32 v5, s3, v15")
    k = 0
    for i in range(5):
        for u in range(4):
            E = 16 + (i * 4 + u) * 4; O = E + 80
            t = 220 + 8 * (k % 4); k += 1
            for j in range(4):
                d.e("v_add_f32 v%d, v%d, v%d" % (t + j, E + j, O + j)); d.e("v_sub_f32 v%d, v%d, v%d" % (t + 4 + j, E + j, O + j))
            d.e("v_cvt_pk_bf16_f32 v%d, v%d, v%d" % (t, t, t + 1)); d.e("v_cvt_pk_bf16_f32 v%d, v%d, v%d" % (t + 1, t + 2, t + 3))
            d.e("v_cvt_pk_bf16_f32 v%d, v%d, v%d" % (t + 4, t + 4, t + 5)); d.e("v_cvt_pk_bf16_f32 v%d, v%d, v%d" % (t + 5, t + 6, t + 7))
            if o['m16']:
                off = (i // 2) * 1024 + u * 10240; ra, rb = (7, 6) if i % 2 == 0 else (4, 3)
                d.e("ds_write_b64 v%d, v[%d:%d] offset:%d" % (ra, t, t + 1, off)); d.e("ds_write_b64 v%d, v[%d:%d] offset:%d" % (rb, t + 4, t + 5, off))
                continue
            off = i * 1024 + (u >> 1) * 20480 + (u & 1) * 256
            d.e("ds_write_b64 v7, v[%d:%d] offset:%d" % (t, t + 1, off)); d.e("ds_write_b64 v6, v[%d:%d] offset:%d" % (t + 4, t + 5, off))
        X = 176 + 4 * i
        d.e("v_cvt_pk_bf16_f32 v%d, v%d, v%d" % (X, X, X + 1)); d.e("v_cvt_pk_bf16_f32 v%d, v%d, v%d" % (X + 1, X + 2, X + 3))
        if o['m16']: d.e("ds_write_b64 v%d, v[%d:%d] offset:%d" % (5 if i % 2 == 0 else 2, X, X + 1, (i // 2) * 64))
        else: d.e("ds_write_b64 v5, v[%d:%d] offset:%d" % (X, X + 1, i * 32))
    d.e("v_and_b32 v13, 31, v0"); d.e("v_lshrrev_b32 v14, 4, v13"); d.e("v_lshlrev_b32 v12, 10, v14")
    d.e("v_bfe_u32 v14, v13, 2, 1"); d.e("v_lshlrev_b32 v14, 9, v14"); d.e("v_add_u32 v12, v12, v14")
    d.e("v_bfe_u32 v14, v13, 3, 1"); d.e("v_lshlrev_b32 v14, 3, v14"); d.e("v_add_u32 v12, v12, v14")
    d.e("s_add_u32 s38, s28, 32"); d.e("s_mul_i32 s38, s38, %d" % T64B); d.e("s_lshl_b32 s3, s26, 12"); d.e("s_add_u32 s38, s38, s3")
    d.e("s_add_u32 s38, s38, %d" % (PART + 15 * SLOTB))
    d.waitmark("dma", 3); d.waitlg(0); d.e("s_barrier")
    stamp(d, 4)
    d.e("s_mul_i32 s3, s25, 40960"); d.e("s_add_u32 s3, s3, %d" % HB); d.e("v_add_u32 v1, s3, v11")
    d.e("v_lshrrev_b32 v13, %d, v0" % (4 if o['m16'] else 5)); d.e("v_lshlrev_b32 v13, 4, v13"); d.e("v_add_u32 v13, %d, v13" % HX)
    n0 = 0
    for n in range(LA[0] if o['m16'] else PF):
        d.e(rd2(n, 0, n0)); d.e(rd2(n, 1, n0))
    for kk, tq in (sorted(((kk, tq) for kk in range(10) for tq in range(5)), key=lambda z: (z[0] // 3, z[1], z[0])) if o['m16'] else []):
        j = kk * 4 + tq
        if tq < 4: d.e("ds_read_b128 a[%d:%d], v1 offset:%d" % (4 * j, 4 * j + 3, (tq * 10 + kk) * 1024))
        else: d.e("ds_read_b128 v[%d:%d], v13 offset:%d" % (112 + 4 * kk, 115 + 4 * kk, kk * 64))
    for kap in ([] if o['m16'] else range(20)):
        for n in range(2):
            j = kap * 2 + n
            d.e("ds_read_b128 a[%d:%d], v1 offset:%d" % (4 * j, 4 * j + 3, (n * 20 + kap) * 1024))
        r = (112 + 4 * kap) if kap < 16 else (192 + 4 * (kap - 16))
        d.e("ds_read_b128 v[%d:%d], v13 offset:%d" % (r, r + 3, kap * 32))
    stamp(d, 5)
    phase2(d, o, n0, 320, True)
    stamp(d, 6)
    if o['prof']: d.waitall()
    stamp(d, 7); prof_store(d, 1, 8, 8, 24, 14, 60)
    if o['cpf']: d.lab("K2_dft3")
    d.e("s_endpgm")
```

```python
import sys, argparse
from emit import *
import gen2
NAME = "recurrent_scan__spectral_fnet__swiglu_ffn__prompt"
XN   = 0x0
XEE  = 0x240000
XOO  = 0x300000
PART = 0x400000
SLOTB = 2359296
T64B = 73728
WS_BYTES = 0x4000000

class Kern:
    def __init__(self, label, grid, block, lds, vgpr, accum=None, sgpr=102):
        self.label = label; self.grid = grid; self.block = block; self.lds = lds
        self.vgpr = vgpr; self.accum = accum if accum else min(256, (vgpr + 3) // 4 * 4); self.sgpr = sgpr
        self.order = []
        self.paths = []
    def seg(self, name):
        s = Seg(name); self.order.append(s); return s
    def build(self, verbose=True):
        probs = resolve(self.paths)
        if probs:
            for p in probs[:20]: print("PROBLEM", self.label, p, file=sys.stderr)
            raise SystemExit("unresolved hazards")
        stats = []
        L = []
        for s in self.order: L += render(s, stats)
        if verbose:
            tot = sum(x[1] for x in stats)
            print("%s: %d lines, auto nops %d at %d places" % (self.label, len(L), tot, len(stats)), file=sys.stderr)
            if verbose > 1:
                for x in stats: print("   nop", x, file=sys.stderr)
        out = [".globl %s" % self.label, ".p2align 8", ".type %s,@function" % self.label, "%s:" % self.label]
        for l in L:
            out.append(l if l.endswith(':') else l)
        return "\n".join(out) + "\n"
    def desc(self):
        return (".amdhsa_kernel %s\n  .amdhsa_next_free_vgpr %d\n  .amdhsa_next_free_sgpr %d\n  .amdhsa_accum_offset %d\n"
                "  .amdhsa_group_segment_fixed_size 0\n  .amdhsa_kernarg_size 96\n  .amdhsa_user_sgpr_count 2\n"
                "  .amdhsa_user_sgpr_kernarg_segment_ptr 1\n  .amdhsa_system_sgpr_workgroup_id_x 1\n.end_amdhsa_kernel\n") % (
                self.label, self.vgpr, self.sgpr, self.accum)

PROF = 0x3800000
PROFON = [False]
def stamp(seg, i):
    if PROFON[0] == 3:
        seg.e("s_memrealtime s[%d:%d]" % (64 + 2 * i, 65 + 2 * i)); seg.e("s_memtime s[%d:%d]" % (80 + 2 * i, 81 + 2 * i))
    elif PROFON[0]: seg.e("%s s[%d:%d]" % ("s_memtime" if PROFON[0] == 2 else "s_memrealtime", 64 + 2 * i, 65 + 2 * i))
def prof_store(seg, kidx, n, wsrd, wave_s, va, tmp_s):
    if not PROFON[0]: return
    seg.waitall()
    seg.e("s_lshl_b32 s%d, s2, 2" % tmp_s); seg.e("s_add_u32 s%d, s%d, s%d" % (tmp_s, tmp_s, wave_s)); seg.e("s_lshl_b32 s%d, s%d, 7" % (tmp_s, tmp_s))
    seg.e("s_add_u32 s%d, s%d, %d" % (tmp_s, tmp_s, PROF + kidx * 0x80000))
    seg.e("s_mov_b64 exec, 1"); seg.e("v_mov_b32 v%d, 0" % (va + 2))
    for i in (list(range(n)) + (list(range(8, 8 + n)) if PROFON[0] == 3 else [])):
        seg.e("v_mov_b32 v%d, s%d" % (va, 64 + 2 * i)); seg.e("v_mov_b32 v%d, s%d" % (va + 1, 65 + 2 * i))
        seg.e("buffer_store_dwordx2 v[%d:%d], v%d, s[%d:%d], s%d offen offset:%d" % (va, va + 1, va + 2, wsrd, wsrd + 3, tmp_s, 8 * i))

def srd(k, d, lo, nbytes):
    k.e("s_mov_b32 s%d, s%d" % (d, lo)); k.e("s_mov_b32 s%d, s%d" % (d + 1, lo + 1))
    k.e("s_mov_b32 s%d, 0x%x" % (d + 2, nbytes)); k.e("s_mov_b32 s%d, 0x00020000" % (d + 3))

def gen_k1(o=None):
    o = o or {}
    k1pf = int(o.get('k1pf', 0))
    K = Kern("prep_kernel", (528, 1, 1), (256, 1, 1), 4 * 2304 + 1280, vgpr=104)
    k1s = int(o.get('k1s', 0)); k1u = int(o.get('k1u', 0))
    a = K.seg("k1_head")
    a.e("s_cmp_ge_u32 s2, 528"); a.e("s_cbranch_scc1 K1_end")
    stamp(a, 0)
    a.e("s_load_dwordx2 s[4:5], s[0:1], 0"); a.e("s_load_dwordx2 s[6:7], s[0:1], 88")
    if k1pf:
        a.e("s_load_dwordx4 s[40:43], s[0:1], 8"); a.e("s_load_dwordx2 s[44:45], s[0:1], 48")
        a.e("s_load_dwordx2 s[60:61], s[0:1], 56")
    a.e("v_lshrrev_b32 v1, 6, v0"); a.e("v_and_b32 v0, 63, v0"); a.e("v_readfirstlane_b32 s20, v1")
    a.e("v_and_b32 v2, 31, v0")
    a.e("v_lshrrev_b32 v3, 5, v0")
    a.waitlg(0)
    srd(a, 8, 4, 2359296); srd(a, 12, 6, WS_BYTES)
    a.e("s_cmp_ge_u32 s2, 256"); a.e("s_cbranch_scc1 K1_typeB_rows")
    a.e("s_lshl_b32 s21, s2, 3"); a.e("s_lshl_b32 s22, s20, 1"); a.e("s_add_u32 s21, s21, s22"); a.e("s_add_u32 s22, s21, 1")
    a.e("s_branch K1_rows_done")
    b = K.seg("k1_brows"); b.lab("K1_typeB_rows")
    b.e("s_sub_u32 s23, s2, 256"); b.e("s_lshl_b32 s23, s23, 2"); b.e("s_add_u32 s23, s23, s20")
    b.e("s_cmp_gt_u32 s23, 1024"); b.e("s_cbranch_scc1 K1_zero")
    b.e("s_mov_b32 s21, s23"); b.e("s_sub_u32 s22, 2048, s23"); b.e("s_and_b32 s22, s22, 2047")
    c = K.seg("k1_ln"); c.lab("K1_rows_done")
    c.e("v_mov_b32 v4, s21"); c.e("v_mov_b32 v5, s22"); c.e("v_cmp_eq_u32 vcc, 1, v3"); c.e("v_cndmask_b32 v4, v4, v5, vcc")
    c.e("s_movk_i32 s24, 1152"); c.e("v_mul_lo_u32 v5, v4, s24"); c.e("v_lshlrev_b32 v6, 4, v2"); c.e("v_add_u32 v5, v5, v6")
    c.e("v_cmp_gt_u32 s[26:27], 8, v2")
    c.e("v_add_u32 v7, 1024, v5"); c.e("v_mov_b32 v8, 0x7fffffff"); c.e("v_cndmask_b32 v7, v8, v7, s[26:27]")
    c.e("buffer_load_dwordx4 v[8:11], v5, s[8:11], 0 offen")
    c.e("buffer_load_dwordx4 v[12:15], v5, s[8:11], 0 offen offset:512")
    c.e("buffer_load_dwordx4 v[16:19], v7, s[8:11], 0 offen")
    if k1pf:
        c.e("s_lshl_b32 s46, s2, 2"); c.e("s_add_u32 s46, s46, s20")
        c.e("s_sub_u32 s47, s46, 1088"); c.e("s_lshl_b32 s47, s47, 12"); c.e("s_add_u32 s47, s47, 3072"); c.e("s_lshl_b32 s48, s46, 12")
        c.e("s_cmp_lt_u32 s46, 1088"); c.e("s_cselect_b32 s47, s48, s47"); c.e("s_cselect_b32 s52, s40, s42"); c.e("s_cselect_b32 s53, s41, s43")
        c.e("s_mov_b32 s54, 0x%x" % (2048 * 4096)); c.e("s_mov_b32 s55, 0x00020000")
        c.e("v_lshlrev_b32 v84, 4, v0"); c.e("v_add_u32 v85, s47, v84")
        c.e("buffer_load_dwordx4 v[88:91], v85, s[52:55], 0 offen ; pf")
        if k1pf >= 2:
            c.e("s_mul_i32 s47, s46, 911"); c.e("s_lshr_b32 s47, s47, 16"); c.e("s_mul_i32 s48, s47, 72"); c.e("s_sub_u32 s48, s46, s48")
            gen2.p0_code(c, 47, 49, 50, int(o.get('ord', 0)))
            c.e("s_lshl_b32 s49, s49, 7"); c.e("s_mul_i32 s48, s48, %d" % (8 * 9216)); c.e("s_add_u32 s49, s49, s48")
            c.e("s_sub_u32 s50, s46, 119"); c.e("s_lshl_b32 s50, s50, 12"); c.e("s_add_u32 s50, s50, 3072")
            c.e("s_cmp_lt_u32 s46, 1207"); c.e("s_cselect_b32 s50, s50, 0x7ff00000")
            c.e("v_lshrrev_b32 v86, 3, v0"); c.e("v_and_b32 v87, 7, v0"); c.e("s_movk_i32 s48, 9216"); c.e("v_mul_lo_u32 v86, v86, s48"); c.e("v_lshlrev_b32 v87, 4, v87"); c.e("v_add_u32 v86, v86, v87")
            c.e("s_cmp_lt_u32 s46, 1080"); c.e("s_cselect_b32 s49, s49, s50"); c.e("s_cselect_b32 s56, s44, s42"); c.e("s_cselect_b32 s57, s45, s43")
            c.e("s_cselect_b32 s58, 0x%x, s54" % (576 * 9216)); c.e("s_mov_b32 s59, 0x00020000"); c.e("s_cselect_b64 vcc, -1, 0")
            c.e("v_cndmask_b32 v86, v84, v86, vcc"); c.e("v_add_u32 v86, s49, v86")
            c.e("buffer_load_dwordx4 v[92:95], v86, s[56:59], 0 offen ; pf")
        if k1s:
            G0 = int(o.get('k1sg', 0))
            c.e("s_sub_u32 s62, s46, %d" % G0)
            c.e("s_mul_i32 s47, s62, 3641"); c.e("s_lshr_b32 s47, s47, 16"); c.e("s_mul_i32 s48, s47, 18"); c.e("s_sub_u32 s48, s62, s48")
            c.e("s_and_b32 s49, s47, 1"); c.e("s_cmp_eq_u32 s49, 1"); c.e("s_cselect_b32 s72, s60, s44"); c.e("s_cselect_b32 s73, s61, s45")
            c.e("s_mov_b32 s74, 0x%x" % (576 * 9216)); c.e("s_mov_b32 s75, 0x00020000")
            c.e("s_lshr_b32 s49, s72, 7"); c.e("s_sub_u32 s49, 3, s49"); c.e("s_and_b32 s49, s49, 7")
            c.e("s_lshr_b32 s47, s47, 1"); c.e("s_lshl_b32 s47, s47, 3"); c.e("s_add_u32 s47, s47, s49"); c.e("s_lshl_b32 s47, s47, 7")
            c.e("s_mul_i32 s48, s48, %d" % (32 * 9216)); c.e("s_add_u32 s47, s47, s48")
            c.e("s_cmp_lt_u32 s62, 324"); c.e("s_cselect_b32 s47, s47, 0x7ff00000")
            c.e("v_lshrrev_b32 v96, 1, v0"); c.e("s_movk_i32 s48, 9216"); c.e("v_mul_lo_u32 v96, v96, s48"); c.e("v_and_b32 v97, 1, v0"); c.e("v_lshlrev_b32 v97, 6, v97")
            c.e("v_add_u32 v96, v96, v97"); c.e("v_add_u32 v96, s47, v96")
            c.e("buffer_load_dword v98, v96, s[72:75], 0 offen ; pf")
        if k1u:
            c.e("s_sub_u32 s62, s46, 1032")
            c.e("s_mul_i32 s47, s62, 911"); c.e("s_lshr_b32 s47, s47, 16"); c.e("s_mul_i32 s48, s47, 72"); c.e("s_sub_u32 s48, s62, s48")
            gen2.p0_code(c, 47, 49, 50, int(o.get('ord', 0)))
            c.e("s_lshl_b32 s49, s49, 7"); c.e("s_mul_i32 s48, s48, %d" % (8 * 9216)); c.e("s_add_u32 s49, s49, s48")
            c.e("s_cmp_lt_u32 s62, 1080"); c.e("s_cselect_b32 s49, s49, 0x7ff00000")
            c.e("s_mov_b32 s76, s60"); c.e("s_mov_b32 s77, s61"); c.e("s_mov_b32 s78, 0x%x" % (576 * 9216)); c.e("s_mov_b32 s79, 0x00020000")
            c.e("v_lshrrev_b32 v96, 3, v0"); c.e("v_and_b32 v97, 7, v0"); c.e("s_movk_i32 s48, 9216"); c.e("v_mul_lo_u32 v96, v96, s48"); c.e("v_lshlrev_b32 v97, 4, v97"); c.e("v_add_u32 v96, v96, v97")
            c.e("v_add_u32 v96, s49, v96")
            c.e("buffer_load_dwordx4 v[100:103], v96, s[76:79], 0 offen ; pf")
    if int(o.get('cpk1', 0)):
        nw = int(o.get('cpk1', 0))
        c.e("s_getpc_b64 s[86:87]"); c.lab("K1_pc")
        c.e("s_mov_b32 s88, main_kernel-K1_pc"); c.e("s_mov_b32 s89, K2_tail320-K1_pc-4"); c.e("s_bitcmp1_b32 s2, 3")
        c.e("s_cselect_b32 s88, K2_dft-K1_pc, s88"); c.e("s_cselect_b32 s89, K2_dft2-K1_pc-4, s89")
        c.e("v_lshlrev_b32 v80, 7, v0"); c.e("s_lshl_b32 s90, s20, 13"); c.e("s_add_u32 s88, s88, s90")
        c.e("s_cmp_ge_u32 s2, %d" % (16 * nw)); c.e("s_cselect_b32 s89, 0, s89")
        c.e("v_add_u32 v80, s88, v80"); c.e("v_min_u32 v80, s89, v80")
        c.e("v_add_co_u32 v80, s[90:91], s86, v80"); c.e("v_mov_b32 v81, s87"); c.e("v_addc_co_u32 v81, s[90:91], 0, v81, s[90:91]")
        c.e("global_load_dword v82, v[80:81], off ; pf")
    for i in range(60, 80): c.e("v_mov_b32 v%d, 0" % i)
    for q in range(12):
        c.e("v_lshlrev_b32 v%d, 16, v%d" % (20 + 2 * q, 8 + q)); c.e("v_and_b32 v%d, 0xffff0000, v%d" % (21 + 2 * q, 8 + q))
    c.e("v_add_f32 v44, v20, v21"); c.e("v_add_f32 v45, v22, v23"); c.e("v_add_f32 v46, v24, v25"); c.e("v_add_f32 v47, v26, v27")
    for q in range(8, 24, 4):
        for r in range(4): c.e("v_add_f32 v%d, v%d, v%d" % (44 + r, 44 + r, 20 + q + r))
    c.e("v_add_f32 v44, v44, v45"); c.e("v_add_f32 v46, v46, v47"); c.e("v_add_f32 v44, v44, v46")
    def reduce32(r, t):
        c.e("v_add_f32_dpp v%d, v%d, v%d quad_perm:[1,0,3,2] row_mask:0xf bank_mask:0xf" % (r, r, r))
        c.e("v_add_f32_dpp v%d, v%d, v%d quad_perm:[2,3,0,1] row_mask:0xf bank_mask:0xf" % (r, r, r))
        c.e("v_add_f32_dpp v%d, v%d, v%d row_half_mirror row_mask:0xf bank_mask:0xf" % (r, r, r))
        c.e("v_add_f32_dpp v%d, v%d, v%d row_mirror row_mask:0xf bank_mask:0xf" % (r, r, r))
        c.e("v_mov_b32 v%d, v%d" % (t, r))
        c.e("v_permlane16_swap_b32 v%d, v%d" % (r, t))
        c.e("v_add_f32 v%d, v%d, v%d" % (r, r, t))
    reduce32(44, 45)
    c.e("s_mov_b32 s25, 0x3ae38e39")
    c.e("v_mul_f32 v44, s25, v44")
    c.e("v_mov_b32 v46, 0"); c.e("v_mov_b32 v47, 0")
    for q in range(16):
        c.e("v_sub_f32 v%d, v%d, v44" % (48 + (q % 4), 20 + q)); c.e("v_fmac_f32 v%d, v%d, v%d" % (46 + (q % 2), 48 + (q % 4), 48 + (q % 4)))
    c.e("s_mov_b64 exec, s[26:27]")
    for q in range(16, 24):
        c.e("v_sub_f32 v%d, v%d, v44" % (48 + (q % 4), 20 + q)); c.e("v_fmac_f32 v%d, v%d, v%d" % (46 + (q % 2), 48 + (q % 4), 48 + (q % 4)))
    c.e("s_mov_b64 exec, -1")
    c.e("v_add_f32 v46, v46, v47")
    reduce32(46, 47)
    c.e("v_mul_f32 v46, s25, v46")
    c.e("v_cvt_pk_bf16_f32 v46, v46, v44")
    c.e("v_and_b32 v44, 0xffff0000, v46")
    c.e("v_lshlrev_b32 v46, 16, v46")
    c.e("v_add_f32 v46, 0x3727c5ac, v46")
    c.e("v_cvt_pk_bf16_f32 v46, v46, v46"); c.e("v_lshlrev_b32 v46, 16, v46")
    c.e("v_sqrt_f32 v46, v46")
    c.e("v_cvt_pk_bf16_f32 v46, v46, v46"); c.e("v_lshlrev_b32 v46, 16, v46")
    c.e("v_rcp_f32 v46, v46")
    for q in range(24): c.e("v_sub_f32 v%d, v%d, v44" % (20 + q, 20 + q))
    for q in range(12): c.e("v_cvt_pk_bf16_f32 v%d, v%d, v%d" % (8 + q, 20 + 2 * q, 21 + 2 * q))
    for q in range(12):
        c.e("v_lshlrev_b32 v%d, 16, v%d" % (20 + 2 * q, 8 + q)); c.e("v_and_b32 v%d, 0xffff0000, v%d" % (21 + 2 * q, 8 + q))
    for q in range(24): c.e("v_mul_f32 v%d, v%d, v46" % (20 + q, 20 + q))
    for q in range(12): c.e("v_cvt_pk_bf16_f32 v%d, v%d, v%d" % (8 + q, 20 + 2 * q, 21 + 2 * q))
    c.e("s_cmp_ge_u32 s2, 256"); c.e("s_cbranch_scc1 K1_typeB")
    d = K.seg("k1_storeA")
    d.e("v_lshrrev_b32 v20, 6, v4"); d.e("s_mov_b32 s24, %d" % T64B); d.e("v_mul_lo_u32 v20, v20, s24")
    if int(o.get('m16', 0)):
        d.e("v_lshrrev_b32 v21, 2, v2"); d.e("v_lshlrev_b32 v21, 12, v21"); d.e("v_add_u32 v20, v20, v21")
        d.e("v_bfe_u32 v21, v4, 4, 2"); d.e("v_lshlrev_b32 v21, 10, v21"); d.e("v_add_u32 v20, v20, v21")
        d.e("v_and_b32 v21, 3, v2"); d.e("v_lshlrev_b32 v21, 8, v21"); d.e("v_add_u32 v20, v20, v21")
        d.e("v_and_b32 v21, 15, v4"); d.e("v_lshlrev_b32 v21, 4, v21"); d.e("v_add_u32 v20, v20, v21")
    else:
        d.e("v_lshrrev_b32 v21, 1, v2"); d.e("v_lshlrev_b32 v21, 11, v21"); d.e("v_add_u32 v20, v20, v21")
        d.e("v_bfe_u32 v21, v4, 5, 1"); d.e("v_lshlrev_b32 v21, 10, v21"); d.e("v_add_u32 v20, v20, v21")
        d.e("v_and_b32 v21, 1, v2"); d.e("v_lshlrev_b32 v21, 9, v21"); d.e("v_add_u32 v20, v20, v21")
        d.e("v_and_b32 v21, 31, v4"); d.e("v_lshlrev_b32 v21, 4, v21"); d.e("v_add_u32 v20, v20, v21")
    d.e("s_mov_b32 s28, %d" % (XN + 32768)); d.e("s_mov_b32 s29, %d" % (XN + 65536)); d.e("s_mov_b32 s30, %d" % XN)
    d.e("buffer_store_dwordx4 v[8:11], v20, s[12:15], s30 offen")
    d.e("buffer_store_dwordx4 v[12:15], v20, s[12:15], s28 offen")
    d.e("s_mov_b64 exec, s[26:27]")
    d.e("buffer_store_dwordx4 v[16:19], v20, s[12:15], s29 offen")
    if PROFON[0]: d.waitall()
    stamp(d, 1); prof_store(d, 0, 2, 12, 20, 44, 40)
    d.e("s_endpgm")
    f = K.seg("k1_typeB"); f.lab("K1_typeB")
    f.e("s_mul_i32 s28, s20, 2304")
    f.e("s_movk_i32 s24, 1152"); f.e("v_mul_lo_u32 v20, v3, s24"); f.e("v_lshlrev_b32 v21, 4, v2"); f.e("v_add_u32 v20, v20, v21"); f.e("v_add_u32 v20, s28, v20")
    f.e("ds_write_b128 v20, v[8:11]"); f.e("ds_write_b128 v20, v[12:15] offset:512")
    f.e("s_mov_b64 exec, s[26:27]"); f.e("ds_write_b128 v20, v[16:19] offset:1024"); f.e("s_mov_b64 exec, -1")
    f.e("v_lshlrev_b32 v21, 1, v0"); f.e("v_add_u32 v22, s28, v21")
    f.e("v_sub_u32 v23, 640, v21"); f.e("v_add_u32 v23, s28, v23")
    f.waitlg(0)
    for i in range(5):
        f.e("ds_read_u16_d16_hi v%d, v22 offset:%d" % (60 + i, 128 * i))
        f.e("ds_read_u16_d16_hi v%d, v22 offset:%d" % (65 + i, 1152 + 128 * i))
        f.e("ds_read_u16_d16_hi v%d, v23 offset:%d" % (70 + i, 512 - 128 * i))
        f.e("ds_read_u16_d16_hi v%d, v23 offset:%d" % (75 + i, 1152 + 512 - 128 * i))
    f.e("s_and_b32 s29, s23, 1023"); f.e("s_cmp_lg_u32 s29, 0"); f.e("s_cselect_b32 s29, 1.0, 0")
    f.e("v_cmp_ne_u32 s[30:31], 0, v0")
    f.e("v_cmp_gt_u32 s[32:33], 32, v0")
    f.e("v_cmp_ge_u32 s[34:35], 32, v0")
    f.e("s_mul_i32 s36, s23, 640"); f.e("s_add_u32 s37, s36, %d" % XOO); f.e("s_add_u32 s36, s36, %d" % XEE)
    for i in range(5):
        A, B, A2, B2 = 60 + i, 65 + i, 70 + i, 75 + i
        t0, t1, o0, o1 = 20 + 4 * i + 4, 21 + 4 * i + 4, 22 + 4 * i + 4, 23 + 4 * i + 4
        f.e("v_fma_f32 v%d, v%d, s29, v%d" % (t0, B, A))
        f.e("v_fma_f32 v%d, v%d, s29, v%d" % (t1, B2, A2))
        f.e("v_sub_f32 v%d, v%d, v%d" % (o0, A, B)); f.e("v_sub_f32 v%d, v%d, v%d" % (o1, A2, B2))
        if i == 0:
            f.e("v_cndmask_b32 v%d, 0, v%d, s[30:31]" % (t1, t1))
        if i == 4:
            f.e("v_cndmask_b32 v%d, 0, v%d, s[32:33]" % (t1, t1))
        f.e("v_add_f32 v%d, v%d, v%d" % (t0, t0, t1)); f.e("v_sub_f32 v%d, v%d, v%d" % (o0, o0, o1))
        if i == 0:
            f.e("v_cndmask_b32 v%d, 0, v%d, s[30:31]" % (o0, o0))
        if i == 4:
            f.e("v_cndmask_b32 v%d, 0, v%d, s[34:35]" % (t0, t0)); f.e("v_cndmask_b32 v%d, 0, v%d, s[32:33]" % (o0, o0))
        f.e("v_cvt_pk_bf16_f32 v%d, v%d, v%d" % (t0, t0, o0))
        f.e("buffer_store_short v%d, v21, s[12:15], s36 offen offset:%d" % (t0, 128 * i))
        f.e("buffer_store_short_d16_hi v%d, v21, s[12:15], s37 offen offset:%d" % (t0, 128 * i))
    if PROFON[0]: f.waitall()
    stamp(f, 1); prof_store(f, 0, 2, 12, 20, 44, 40)
    f.e("s_endpgm")
    z = K.seg("k1_zero"); z.lab("K1_zero")
    z.e("v_mov_b32 v20, 0"); z.e("v_lshlrev_b32 v21, 1, v0")
    z.e("s_mul_i32 s36, s23, 640"); z.e("s_add_u32 s37, s36, %d" % XOO); z.e("s_add_u32 s36, s36, %d" % XEE)
    for i in range(5):
        z.e("buffer_store_short v20, v21, s[12:15], s36 offen offset:%d" % (128 * i))
        z.e("buffer_store_short v20, v21, s[12:15], s37 offen offset:%d" % (128 * i))
    z.lab("K1_end"); z.e("s_endpgm")
    K.paths = [[a, c, d], [a, b, c, f], [a, b, z]]
    return K

def gen_k3(o=None):
    o = o or {}
    nodot = int(o.get('k3nodot', 0))
    K = Kern("final_kernel", (256, 1, 1), (576, 1, 1), 0, vgpr=128)
    a = K.seg("k3")
    a.e("s_cmp_ge_u32 s2, 256"); a.e("s_cbranch_scc1 K3_end")
    stamp(a, 0)
    a.e("s_load_dwordx2 s[6:7], s[0:1], 88"); a.e("s_load_dwordx2 s[4:5], s[0:1], 0"); a.e("s_load_dwordx2 s[16:17], s[0:1], 72")
    a.e("v_lshrrev_b32 v1, 6, v0"); a.e("v_and_b32 v0, 63, v0"); a.e("v_readfirstlane_b32 s20, v1")
    m16 = int(o.get('m16', 0))
    if m16:
        a.e("s_lshr_b32 s21, s2, 3"); a.e("s_bfe_u32 s22, s2, 0x20001"); a.e("s_and_b32 s23, s2, 1"); a.e("s_mul_i32 s23, s23, 9"); a.e("s_add_u32 s23, s23, s20")
        a.e("s_lshl_b32 s24, s23, 12")
        a.e("s_mul_i32 s26, s21, %d" % T64B); a.e("s_lshl_b32 s25, s22, 10"); a.e("s_add_u32 s26, s26, s25"); a.e("s_add_u32 s26, s26, s24"); a.e("s_add_u32 s26, s26, %d" % PART)
    else:
        a.e("s_lshr_b32 s21, s2, 3"); a.e("s_bfe_u32 s22, s2, 0x10002"); a.e("s_and_b32 s23, s2, 3"); a.e("s_mul_i32 s23, s23, 9"); a.e("s_add_u32 s23, s23, s20")
        a.e("s_lshr_b32 s24, s23, 1"); a.e("s_lshl_b32 s24, s24, 12"); a.e("s_and_b32 s25, s23, 1"); a.e("s_lshl_b32 s25, s25, 10"); a.e("s_add_u32 s24, s24, s25")
        a.e("s_mul_i32 s26, s21, %d" % T64B); a.e("s_lshl_b32 s25, s22, 11"); a.e("s_add_u32 s26, s26, s25"); a.e("s_add_u32 s26, s26, s24"); a.e("s_add_u32 s26, s26, %d" % PART)
    a.e("v_lshlrev_b32 v5, 4, v0")
    for i in range(15):
        a.e("s_add_u32 s%d, s26, %d" % (40 + i, i * SLOTB))
    a.waitlg(0)
    srd(a, 12, 6, WS_BYTES)
    for i in range(15):
        a.e("buffer_load_dwordx4 v[%d:%d], v5, s[12:15], s%d offen" % (32 + 4 * i, 35 + 4 * i, 40 + i))
    srd(a, 8, 4, 2359296); srd(a, 28, 16, 2359296)
    if m16:
        a.e("v_and_b32 v3, 15, v0"); a.e("v_lshrrev_b32 v4, 4, v0")
        a.e("s_lshl_b32 s25, s21, 6"); a.e("s_lshl_b32 s27, s22, 4"); a.e("s_add_u32 s25, s25, s27"); a.e("v_add_u32 v2, s25, v3")
        a.e("s_movk_i32 s27, 1152"); a.e("v_mul_lo_u32 v8, v2, s27"); a.e("v_lshlrev_b32 v9, 4, v4"); a.e("v_add_u32 v8, v8, v9"); a.e("s_lshl_b32 s27, s23, 6"); a.e("v_add_u32 v8, s27, v8")
        a.e("v_lshlrev_b32 v4, 8, v4"); a.e("v_add_u32 v4, s24, v4")
    else:
        a.e("v_and_b32 v3, 31, v0"); a.e("v_lshrrev_b32 v4, 5, v0")
        a.e("s_lshl_b32 s25, s21, 6"); a.e("s_lshl_b32 s27, s22, 5"); a.e("s_add_u32 s25, s25, s27"); a.e("v_add_u32 v2, s25, v3")
        a.e("s_movk_i32 s27, 1152"); a.e("v_mul_lo_u32 v8, v2, s27"); a.e("v_lshlrev_b32 v9, 4, v4"); a.e("v_add_u32 v8, v8, v9"); a.e("s_lshl_b32 s27, s23, 5"); a.e("v_add_u32 v8, s27, v8")
        a.e("v_lshlrev_b32 v4, 9, v4"); a.e("v_add_u32 v4, s24, v4")
    a.e("s_mov_b32 s26, %d" % T64B)
    def fragaddr(dst, T64, tok, tmp):
        a.e("v_mul_lo_u32 v%d, v%d, s26" % (dst, T64))
        if m16:
            a.e("v_bfe_u32 v%d, v%d, 4, 2" % (tmp, tok)); a.e("v_lshlrev_b32 v%d, 10, v%d" % (tmp, tmp)); a.e("v_add_u32 v%d, v%d, v%d" % (dst, dst, tmp))
            a.e("v_and_b32 v%d, 15, v%d" % (tmp, tok)); a.e("v_lshlrev_b32 v%d, 4, v%d" % (tmp, tmp)); a.e("v_add_u32 v%d, v%d, v%d" % (dst, dst, tmp))
        else:
            a.e("v_bfe_u32 v%d, v%d, 5, 1" % (tmp, tok)); a.e("v_lshlrev_b32 v%d, 11, v%d" % (tmp, tmp)); a.e("v_add_u32 v%d, v%d, v%d" % (dst, dst, tmp))
            a.e("v_and_b32 v%d, 31, v%d" % (tmp, tok)); a.e("v_lshlrev_b32 v%d, 4, v%d" % (tmp, tmp)); a.e("v_add_u32 v%d, v%d, v%d" % (dst, dst, tmp))
        a.e("v_add_u32 v%d, v%d, v4" % (dst, dst))
    a.e("v_sub_u32 v9, 2048, v2"); a.e("v_cmp_ge_u32 vcc, 1024, v2"); a.e("v_cndmask_b32 v9, v9, v2, vcc")
    a.e("v_mov_b32 v10, -1.0"); a.e("v_mov_b32 v11, 1.0"); a.e("v_cndmask_b32 v10, v10, v11, vcc")
    a.e("v_sub_u32 v11, 1024, v9"); a.e("v_cmp_gt_u32 vcc, 512, v9")
    a.e("v_cndmask_b32 v12, v11, v9, vcc")
    a.e("v_cndmask_b32 v13, 1, 0, vcc")
    a.e("v_lshrrev_b32 v14, 6, v12"); a.e("v_lshlrev_b32 v14, 1, v14"); a.e("v_add_u32 v14, v14, v13")
    a.e("v_and_b32 v12, 63, v12")
    a.e("v_cmp_eq_u32 vcc, 512, v9"); a.e("v_cndmask_b32 v14, v14, 32, vcc"); a.e("v_cndmask_b32 v12, v12, 0, vcc")
    fragaddr(15, 14, 12, 7)
    a.e("s_mov_b32 s55, %d" % (PART + 15 * SLOTB))
    a.e("buffer_load_dwordx4 v[92:95], v15, s[12:15], s55 offen")
    a.e("v_sub_u32 v11, 512, v9"); a.e("v_subrev_u32 v12, 512, v9"); a.e("v_cmp_ge_u32 vcc, 512, v9")
    a.e("v_cndmask_b32 v12, v12, v11, vcc"); a.e("v_cndmask_b32 v13, 1, 0, vcc")
    a.e("v_mov_b32 v11, -1.0"); a.e("v_cndmask_b32 v11, v11, 1.0, vcc"); a.e("v_mul_f32 v10, v10, v11")
    a.e("v_lshrrev_b32 v14, 6, v12"); a.e("v_lshlrev_b32 v14, 1, v14"); a.e("v_add_u32 v14, v14, v13"); a.e("v_add_u32 v14, 16, v14")
    a.e("v_and_b32 v12, 63, v12")
    a.e("v_and_b32 v11, 1023, v9"); a.e("v_cmp_eq_u32 vcc, 0, v11"); a.e("v_cndmask_b32 v14, v14, 40, vcc"); a.e("v_cndmask_b32 v12, v12, 0, vcc")
    fragaddr(16, 14, 12, 7)
    a.e("buffer_load_dwordx4 v[96:99], v16, s[12:15], s55 offen")
    a.e("buffer_load_dwordx4 v[100:103], v8, s[8:11], 0 offen")
    a.e("s_mov_b32 s56, 0x00003f80"); a.e("s_mov_b32 s57, 0x3f800000")
    for q in range(4):
        a.e("v_lshlrev_b32 v%d, 16, v%d" % (20 + 2 * q, 32 + q)); a.e("v_and_b32 v%d, 0xffff0000, v%d" % (21 + 2 * q, 32 + q))
    for i in range(1, 15):
        if nodot:
            for q in range(4):
                a.e("v_lshlrev_b32 v%d, 16, v%d" % (104 + 2 * q, 32 + 4 * i + q)); a.e("v_and_b32 v%d, 0xffff0000, v%d" % (105 + 2 * q, 32 + 4 * i + q))
            for q in range(8): a.e("v_add_f32 v%d, v%d, v%d" % (20 + q, 20 + q, 104 + q))
        else:
            for q in range(4):
                a.e("v_dot2_f32_bf16 v%d, v%d, s56, v%d" % (20 + 2 * q, 32 + 4 * i + q, 20 + 2 * q))
                a.e("v_dot2_f32_bf16 v%d, v%d, s57, v%d" % (21 + 2 * q, 32 + 4 * i + q, 21 + 2 * q))
    for q in range(4): a.e("v_cvt_pk_bf16_f32 v%d, v%d, v%d" % (32 + q, 20 + 2 * q, 21 + 2 * q))
    for q in range(4):
        a.e("v_lshlrev_b32 v%d, 16, v%d" % (20 + 2 * q, 32 + q)); a.e("v_and_b32 v%d, 0xffff0000, v%d" % (21 + 2 * q, 32 + q))
    a.e("s_mov_b32 s58, 0xbfb8aa3b")
    for q in range(8): a.e("v_mul_f32 v%d, s58, v%d" % (40 + q, 20 + q))
    for q in range(8): a.e("v_exp_f32 v%d, v%d" % (40 + q, 40 + q))
    for q in range(8): a.e("v_add_f32 v%d, 1.0, v%d" % (40 + q, 40 + q))
    for q in range(8): a.e("v_rcp_f32 v%d, v%d" % (40 + q, 40 + q))
    for q in range(8): a.e("v_mul_f32 v%d, v%d, v%d" % (20 + q, 20 + q, 40 + q))
    for q in range(4): a.e("v_cvt_pk_bf16_f32 v%d, v%d, v%d" % (32 + q, 20 + 2 * q, 21 + 2 * q))
    for q in range(4):
        a.e("v_lshlrev_b32 v%d, 16, v%d" % (20 + 2 * q, 32 + q)); a.e("v_and_b32 v%d, 0xffff0000, v%d" % (21 + 2 * q, 32 + q))
    for q in range(4):
        a.e("v_lshlrev_b32 v%d, 16, v%d" % (40 + 2 * q, 92 + q)); a.e("v_and_b32 v%d, 0xffff0000, v%d" % (41 + 2 * q, 92 + q))
        a.e("v_lshlrev_b32 v%d, 16, v%d" % (48 + 2 * q, 96 + q)); a.e("v_and_b32 v%d, 0xffff0000, v%d" % (49 + 2 * q, 96 + q))
    for q in range(8): a.e("v_fma_f32 v%d, v%d, v10, v%d" % (40 + q, 48 + q, 40 + q))
    for q in range(4): a.e("v_cvt_pk_bf16_f32 v%d, v%d, v%d" % (36 + q, 40 + 2 * q, 41 + 2 * q))
    for q in range(4):
        a.e("v_lshlrev_b32 v%d, 16, v%d" % (40 + 2 * q, 36 + q)); a.e("v_and_b32 v%d, 0xffff0000, v%d" % (41 + 2 * q, 36 + q))
    for q in range(8): a.e("v_mul_f32 v%d, v%d, v%d" % (40 + q, 40 + q, 20 + q))
    for q in range(4): a.e("v_cvt_pk_bf16_f32 v%d, v%d, v%d" % (36 + q, 40 + 2 * q, 41 + 2 * q))
    if m16:
        a.e("v_permlane32_swap_b32 v36, v38"); a.e("v_permlane32_swap_b32 v37, v39")
        a.e("v_permlane16_swap_b32 v36, v38"); a.e("v_permlane16_swap_b32 v37, v39")
    for q in range(4):
        a.e("v_lshlrev_b32 v%d, 16, v%d" % (40 + 2 * q, 36 + q)); a.e("v_and_b32 v%d, 0xffff0000, v%d" % (41 + 2 * q, 36 + q))
        a.e("v_lshlrev_b32 v%d, 16, v%d" % (48 + 2 * q, 100 + q)); a.e("v_and_b32 v%d, 0xffff0000, v%d" % (49 + 2 * q, 100 + q))
    for q in range(8): a.e("v_add_f32 v%d, v%d, v%d" % (40 + q, 40 + q, 48 + q))
    for q in range(4): a.e("v_cvt_pk_bf16_f32 v%d, v%d, v%d" % (36 + q, 40 + 2 * q, 41 + 2 * q))
    a.e("buffer_store_dwordx4 v[36:39], v8, s[28:31], 0 offen")
    if PROFON[0]: a.waitall()
    stamp(a, 1)
    if PROFON[0]:
        a.e("s_cmp_ge_u32 s20, 4"); a.e("s_cbranch_scc1 K3_end")
    prof_store(a, 2, 2, 12, 20, 44, 60)
    a.lab("K3_end"); a.e("s_endpgm")
    K.paths = [[a]]
    return K

OPTS = ['']
def write_file(path, kernels, launches=None):
    s = ("; Kernarg layout (96 bytes, ptrs only, base s[0:1]):\n"
         ";   0 A_x (2048x576 bf16)  8 dft_seq_re (2048x2048)  16 dft_seq_im  24 dft_hid_re (576x576)  32 dft_hid_im\n"
         ";   40 B_x (unused)  48 w_gate (576x4608)  56 w_up  64 w_down (4608x576)  72 d_out  80 d_debug  88 d_ws\n")
    for k in (launches or kernels):
        s += "; @launch kernel=%s grid=(%d,%d,%d) block=(%d,%d,%d) lds=%d\n" % ((k.label,) + k.grid + k.block + (k.lds,))
    s += "; opts: %s\n" % OPTS[0]
    s += '.amdgcn_target "amdgcn-amd-amdhsa--gfx950"\n.text\n'
    for k in kernels: s += k.text_out
    s += '.section .rodata,"a"\n'
    for k in kernels: s += ".p2align 6\n" + k.desc()
    open(path, "w").write(s)
    print("wrote", path, len(s), "bytes", file=sys.stderr)

if __name__ == "__main__":
    ap = argparse.ArgumentParser()
    ap.add_argument("out"); ap.add_argument("-v", type=int, default=1); ap.add_argument("--only", default="123")
    ap.add_argument("--opt", default="")
    args = ap.parse_args()
    opts = dict(x.split("=") for x in args.opt.split(",") if x)
    OPTS[0] = args.opt
    import gen2
    if opts.get("wsb"):
        b = int(opts["wsb"], 0)
        XN += b; XEE += b; XOO += b; PART += b; WS_BYTES = 0x10000000
        gen2.XN += b; gen2.XEE += b; gen2.XOO += b; gen2.PART += b; gen2.WS_BYTES = WS_BYTES
    if opts.get("prof"): PROFON[0] = int(opts["prof"])
    ks = []
    if "1" in args.only: ks.append(gen_k1(opts))
    if "2" in args.only:
        import gen2
        gen2.stamp = stamp; gen2.prof_store = prof_store
        ks.append(gen2.gen_k2(Kern, srd, opts))
    if "3" in args.only: ks.append(gen_k3(opts))
    for k in ks: k.text_out = k.build(args.v)
    write_file(args.out, ks)
```

```python
from emit import *
XN   = 0x0
XEE  = 0x240000
XOO  = 0x300000
PART = 0x400000
SLOTB = 2359296
T64B = 73728
WS_BYTES = 0x4000000
SLOT = 12288; NS = 6
HB = 73728
HX = HB + 81920
LDS_BYTES = HX + 1024
PF = 3
NF = 8
CNEG = 33
NS2 = [6]
M16 = [0]
LA = [4]
def stamp(seg, i): pass
def prof_store(*a): pass

def wt(ins, o):
    if ins.startswith("v_exp") or ins.startswith("v_rcp"): return o['wtrans']
    if ins.startswith("s_"): return o['wsalu']
    return 1.0

def spread(gaps, queue, o, start=0, end=None):
    if not queue: return
    G = len(gaps) if end is None else end
    idx = list(range(start, G))
    load = {g: sum(wt(i, o) for i in gaps[g] if isinstance(i, str)) for g in idx}
    tot = sum(load.values()) + sum(wt(i, o) for i in queue)
    p = 0; cum = load[idx[0]]
    for ins in queue:
        w = wt(ins, o)
        while p < len(idx) - 1 and cum + w * 0.5 > tot * (p + 1) / len(idx):
            p += 1; cum += load[idx[p]]
        gaps[idx[p]].append(ins); cum += w

def emit_gaps(s, mf, gaps):
    for m, g in zip(mf, gaps):
        for pre in m[:-1]: put(s, pre)
        s.e(m[-1])
        for x in g: put(s, x)

def put(s, x):
    if isinstance(x, str): s.e(x)
    elif x[0] == 'mark': s.mark(x[1])
    elif x[0] == 'waitmark': s.waitmark(x[1], x[2])
    elif x[0] == 'waitlg': s.waitlg(x[1])
    elif x[0] == 'c': s.c(x[1])
    else: raise ValueError(x)

def xreg(i):
    return ("a[%d:%d]" % (4 * i, 4 * i + 3)) if i < 64 else ("v[%d:%d]" % (224 + 4 * (i - 64), 227 + 4 * (i - 64)))

def areg(n): r = 80 + 4 * (n % NF); return r

def rd1(n, half):
    if M16[0]:
        st = n // 6; q = n % 6; fh = q // 3; kkl = q % 3
        r = areg(n) + 2 * half
        off = (st % NS) * SLOT + kkl * 4096 + half * 512; base = 5 if fh == 0 else 13
        if off >= 65536: off -= 65536; base += 1
        return "ds_read_b64_tr_b16 v[%d:%d], v%d offset:%d" % (r, r + 1, base, off)
    st = n // 6; kp = n % 6
    r = areg(n) + 2 * half
    off = (st % NS) * SLOT + kp * 2048 + half * 512; base = 5
    if off >= 65536: off -= 65536; base = 6
    return "ds_read_b64_tr_b16 v[%d:%d], v%d offset:%d" % (r, r + 1, base, off)

def rd2(n, half, n0):
    if M16[0]:
        q = n - n0; st = q // 6; qq = q % 6; dh = qq // 3; bl = qq % 3
        r = areg(n) + 2 * half
        off = (st % NS2[0]) * SLOT + bl * 4096 + half * 2048; base = 8
        if off >= 131072: off -= 131072; base = 2
        elif off >= 65536: off -= 65536; base = 5
        return "ds_read_b64_tr_b16 v[%d:%d], v%d offset:%d" % (r, r + 1, base + dh, off)
    q = n - n0; st = q // 6; kp = q % 6
    r = areg(n) + 2 * half
    off = (st % NS2[0]) * SLOT + kp * 2048 + half * 1024; base = 8
    if off >= 131072: off -= 131072; base = 5
    elif off >= 65536: off -= 65536; base = 9
    return "ds_read_b64_tr_b16 v[%d:%d], v%d offset:%d" % (r, r + 1, base, off)

def dma1(mat, kc, slot):
    sr = 12 if mat == 0 else 16
    su = ["s_add_u32 m0, s29, %d" % (slot * SLOT), "s_add_u32 s31, s30, %d" % (kc * 96 * 9216)]
    ld = ["buffer_load_dwordx4 v%d, s[%d:%d], s31 offen offset:%d lds" % (2 + j, sr, sr + 3, 1024 * j) for j in range(3)]
    return su, ld

def dma2(st, K):
    out = []
    for j in range(3):
        R = 96 * st + 32 * j; sg = R // K; row0 = R % K
        su = ["s_add_u32 m0, s34, %d" % ((st % NS2[0]) * SLOT + j * 4096), "s_add_u32 s31, s35, %d" % (sg * 128 + row0 * 1152)]
        out.append((su, "buffer_load_dwordx4 v10, s[20:23], s31 offen lds"))
    return out

def epi1():
    L = []
    for p0 in range(0, 32, 4):
        for j in range(4): L.append("v_mul_f32 v%d, s%d, v%d" % (112 + p0 + j, CNEG, 16 + p0 + j))
        for j in range(4): L.append("v_exp_f32 v%d, v%d" % (144 + p0 + j, 112 + p0 + j))
        for j in range(4): L.append("v_fma_f32 v%d, v%d, s%d, s%d" % (144 + p0 + j, 144 + p0 + j, CNEG, CNEG))
    return L

def epi2():
    L = []
    for p0 in range(0, 32, 4):
        for j in range(4): L.append("v_rcp_f32 v%d, v%d" % (144 + p0 + j, 144 + p0 + j))
        for j in range(4): L.append("v_mul_f32 v%d, v%d, v%d" % (112 + p0 + j, 112 + p0 + j, 48 + p0 + j))
        for j in range(4): L.append("v_mul_f32 v%d, v%d, v%d" % (112 + p0 + j, 112 + p0 + j, 144 + p0 + j))
        for j in range(0, 4, 2): L.append("v_cvt_pk_bf16_f32 v%d, v%d, v%d" % (176 + (p0 + j) // 2, 112 + p0 + j, 112 + p0 + j + 1))
        if p0 % 8 == 4 and M16[0]:
            tq = p0 // 8
            L.append("ds_write_b128 v7, v[%d:%d] offset:%d" % (176 + 4 * tq, 179 + 4 * tq, tq * 10240))
        elif p0 % 8 == 4:
            n = p0 // 16; J = (p0 // 8) % 2
            L.append("ds_write_b128 v7, v[%d:%d] offset:%d" % (176 + n * 8 + 4 * J, 179 + n * 8 + 4 * J, n * 20480 + J * 1024))
    return L

def p0_code(f, sp, d, t, order):
    if order == 0:
        f.e("s_mul_i32 s%d, s%d, 5" % (d, sp)); f.e("s_lshl_b32 s%d, s%d, 2" % (t, sp)); f.e("s_add_u32 s%d, s%d, 12" % (t, t))
        f.e("s_cmp_lt_u32 s%d, 12" % sp); f.e("s_cselect_b32 s%d, s%d, s%d" % (d, d, t))
    else:
        f.e("s_mul_i32 s%d, s%d, 5" % (d, sp))
        f.e("s_cmp_ge_u32 s%d, 5" % sp); f.e("s_cselect_b32 s%d, 4, 0" % t); f.e("s_add_u32 s%d, s%d, s%d" % (d, d, t))
        f.e("s_cmp_ge_u32 s%d, 10" % sp); f.e("s_cselect_b32 s%d, 4, 0" % t); f.e("s_add_u32 s%d, s%d, s%d" % (d, d, t))
        f.e("s_cmp_eq_u32 s%d, 12" % sp); f.e("s_cselect_b32 s%d, 25, s%d" % (d, d))
        f.e("s_cmp_eq_u32 s%d, 13" % sp); f.e("s_cselect_b32 s%d, 54, s%d" % (d, d))
        f.e("s_cmp_eq_u32 s%d, 14" % sp); f.e("s_cselect_b32 s%d, 0x44, s%d" % (d, d))

def code_addr(s, va, vt, frm, to, ssel=None):
    if ssel:
        s.e("v_add_u32 v%d, s%d, v%d" % (va, ssel[0], vt)); s.e("v_min_u32 v%d, s%d, v%d" % (va, ssel[1], va))
    else:
        s.e("v_add_u32 v%d, %s-K2_pc, v%d" % (va, frm, vt)); s.e("v_min_u32 v%d, %s-K2_pc-4, v%d" % (va, to, va))
    s.e("v_add_co_u32 v%d, s[98:99], s96, v%d" % (va, va)); s.e("v_mov_b32 v%d, s97" % (va + 1))
    s.e("v_addc_co_u32 v%d, s[98:99], 0, v%d, s[98:99]" % (va + 1, va + 1))

def code_ld(vd, va): return "global_load_dword v%d, v[%d:%d], off ; pf" % (vd, va, va + 1)

class P1:
    def __init__(self, o): self.n = 0; self.o = o
    def phase(self, s, mat, epi, dmaf, extra_first=None, nextrd=None, last_barrier=True, first_c0=True, post=None):
        o = self.o
        if M16[0]: return self.phase16(s, mat, epi, dmaf, nextrd, last_barrier, post)
        acc = 16 if mat == 0 else 48
        per = (len(epi) + 5) // 6
        epi = list(epi)
        for i in range(6):
            gaps = [[] for _ in range(12)]
            mf = []
            for kp in range(6):
                n = self.n + kp
                f = nextrd if nextrd else rd1
                nn = n + PF
                if nextrd and (i * 6 + kp + PF) < 36: f = rd1
                gaps[2 * kp].append(f(nn, 0)); gaps[2 * kp + 1].append(f(nn, 1))
                kap = i * 6 + kp
                for t in range(2):
                    A = areg(n); D = acc + 16 * t
                    C = "0" if kap == 0 else "v[%d:%d]" % (D, D + 15)
                    mf.append(["v_mfma_f32_32x32x16_bf16 v[%d:%d], v[%d:%d], %s, %s" % (D, D + 15, A, A + 3, xreg(kap * 2 + t), C)])
            for g, ins in dmaf(i): gaps[g].append(ins)
            if i == 0:
                mine = epi[:per - o['first_less']]; epi = epi[len(mine):]
                spread(gaps, mine, o, start=o['epi_start'])
            else:
                rem = 6 - i
                cnt = (len(epi) + rem - 1) // rem
                mine = epi[:cnt]; epi = epi[cnt:]
                spread(gaps, mine, o)
            if post and i in post:
                for g, ins in post[i]: gaps[g].append(ins)
            if s.name == "ffn_loop":
                def keep(x):
                    if not isinstance(x, str): return True
                    if o['nords'] and x.startswith("ds_read"): return False
                    if o['noepi'] and (x.startswith("v_") or x.startswith("ds_write")) : return False
                    if o['nodma'] and x.startswith("buffer_load"): return False
                    return True
                gaps = [[x for x in g if keep(x)] for g in gaps]
            emit_gaps(s, mf, gaps)
            self.n += 6
            if i < 5 or last_barrier:
                s.waitmark("dma", 3)
                if not (s.name == "ffn_loop" and (o['nobar'] == 1 or (o['nobar'] == 2 and i % 2 == 0))): s.e("s_barrier")
        assert not epi

def g24(g):
    return 2 * g + 1

def phase16(self, s, mat, epi, dmaf, nextrd, last_barrier, post):
    o = self.o
    acc = 16 if mat == 0 else 48
    per = (len(epi) + 5) // 6
    epi = list(epi)
    la = LA[0]
    for i in range(6):
        gaps = [[] for _ in range(24)]
        mf = []
        for fh in range(2):
            G0 = self.n + 3 * fh
            k = 0
            for j in range(3):
                nn = G0 + la + j
                f = rd1
                if nextrd and (i * 6 + 3 * fh + la + j) >= 36: f = nextrd
                for h in range(2):
                    gaps[12 * fh + o['rdpos'] + o['rdstep'] * k].append(f(nn, h)); k += 1
            for tq in range(4):
                for kkl in range(3):
                    A = areg(G0 + kkl); D = acc + 8 * tq + 4 * fh
                    C = "0" if (i == 0 and kkl == 0) else "v[%d:%d]" % (D, D + 3)
                    mf.append(["v_mfma_f32_16x16x32_bf16 v[%d:%d], v[%d:%d], %s, %s" % (D, D + 3, A, A + 3, xreg((3 * i + kkl) * 4 + tq), C)])
        for g, ins in dmaf(i): gaps[g24(g)].append(ins)
        if post and i in post:
            for g, ins in post[i]: gaps[g24(g)].append(ins)
        if i == 0:
            mine = epi[:max(per - o['first_less'], 0)]; epi = epi[len(mine):]
            spread(gaps, mine, o, start=o['epi_start'])
        else:
            rem = 6 - i
            cnt = (len(epi) + rem - 1) // rem
            mine = epi[:cnt]; epi = epi[cnt:]
            spread(gaps, mine, o)
        if s.name == "ffn_loop":
            def keep(x):
                if not isinstance(x, str): return True
                if o['nords'] and x.startswith("ds_read"): return False
                if o['noepi'] and (x.startswith("v_") or x.startswith("ds_write")) : return False
                if o['nodma'] and x.startswith("buffer_load"): return False
                return True
            gaps = [[x for x in g if keep(x)] for g in gaps]
        emit_gaps(s, mf, gaps)
        self.n += 6
        if i < 5 or last_barrier:
            s.waitmark("dma", 3)
            if not (s.name == "ffn_loop" and (o['nobar'] == 1 or (o['nobar'] == 2 and i % 2 == 0))): s.e("s_barrier")
    assert not epi
P1.phase16 = phase16

def pf_loads():
    return ["buffer_load_dwordx4 v[%d:%d], v%d, s[20:23], 0 offen offset:%d" % (196 + 4 * (j % 4), 199 + 4 * (j % 4), 192 + j // 4, (j % 4) * 1024) + " ; pf" for j in range(12)]

def pf_post(mode):
    L = pf_loads(); post = {}
    if mode == 1:
        for i in range(4): post[1 + i] = [(4, L[3 * i]), (7, L[3 * i + 1]), (10, L[3 * i + 2])]
    elif mode == 5:
        for i in range(4): post[1 + i] = [(4, L[3 * i]), (7, L[3 * i + 1]), (10, L[3 * i + 2])]
    elif mode == 3:
        ar = [192, 193, 194, 195, 212, 213, 214]
        L = ["buffer_load_dwordx4 v[%d:%d], v%d, s[20:23], 0 offen offset:%d ; pf" % (196 + 4 * (j % 4), 199 + 4 * (j % 4), ar[j // 4], (j % 4) * 1024) for j in range(27)]
        pos = [2, 4, 5, 7, 8, 10]
        for i in range(6):
            mine = L[5 * i: 5 * i + 5] if i < 5 else L[25:]
            post[i] = [(pos[k], x) for k, x in enumerate(mine)]
    elif mode == 2:
        for i in range(6): post[i] = [(4, L[2 * i]), (10, L[2 * i + 1])]
    return post

def dma_gaps1(mat, kc, slot):
    su, ld = dma1(mat, kc, slot)
    return [(0, su[0]), (1, su[1]), (3, ld[0]), (6, ld[1]), (9, ld[2]), (9, ('mark', 'dma'))]

def dma_gaps2(st, K, pos=(1, 5, 9)):
    L = []
    for j, (su, ld) in enumerate(dma2(st, K)):
        g = pos[j]
        L += [(g - 1, su[0]), (g - 1, su[1]), (g, ld)]
    L.append((pos[2], ('mark', 'dma'))); L.append((pos[2], ('mark', 'w2_%d' % st)))
    return L

def phase2_16(s, o, n0, K, dft):
    nk = K // 32; NB = 9 * nk; nst = NB // 3; Q = 6 * nst; la = LA[0]
    NT = 5 if dft else 4
    def accof(seg, tq, dh):
        if tq == 4: return 208 + 8 * (seg % 2) + 4 * dh
        return (16 if seg % 2 == 0 else 48) + 8 * tq + 4 * dh
    stf = o['stf'].replace('+', ' ')
    def st_out(seg):
        L = ["s_add_u32 s37, s36, %d" % (seg * 8192)]
        for tq in range(4):
            r = accof(seg, tq, 0)
            for q in range(4): L.append("v_cvt_pk_bf16_f32 v%d, v%d, v%d" % (176 + 4 * tq + q, r + 2 * q, r + 2 * q + 1))
            if not (o['nostore'] and seg < 8):
                L.append("buffer_store_dwordx4 v[%d:%d], v11, s[8:11], s37 offen offset:%d %s" % (176 + 4 * tq, 179 + 4 * tq, tq * 1024, stf))
        if dft:
            r = accof(seg, 4, 0)
            L.append("s_add_u32 s39, s38, %d" % (seg * 8192))
            for q in range(4): L.append("v_cvt_pk_bf16_f32 v%d, v%d, v%d" % (192 + q, r + 2 * q, r + 2 * q + 1))
            L.append("buffer_store_dwordx4 v[192:195], v11, s[8:11], s39 offen %s" % stf)
        return L
    s.e("v_add_u32 v5, 0x10000, v8"); s.e("v_add_u32 v6, 0x10000, v9")
    if NS2[0] > 6: s.e("v_add_u32 v2, 0x20000, v8"); s.e("v_add_u32 v3, 0x20000, v9")
    pend = []; GP = 6 * NT
    for st in range(nst):
        gaps = [[] for _ in range(GP)]
        mf = []
        done = None
        for dh in range(2):
            G0 = n0 + 6 * st + 3 * dh
            k = 0
            for j in range(3):
                nn = G0 + la + j
                for h in range(2):
                    if nn - n0 < Q: gaps[3 * NT * dh + o['rdpos'] + o['rdstep'] * k].append(rd2(nn, h, n0))
                    k += 1
            for tq in range(NT):
                for bl in range(3):
                    b = 3 * st + bl; seg = b // nk; kk = b % nk
                    A = areg(G0 + bl); D = accof(seg, tq, dh)
                    C = "0" if kk == 0 else "v[%d:%d]" % (D, D + 3)
                    B = ("a[%d:%d]" % (4 * (kk * 4 + tq), 4 * (kk * 4 + tq) + 3)) if tq < 4 else ("v[%d:%d]" % (112 + 4 * kk, 115 + 4 * kk))
                    mf.append(["v_mfma_f32_16x16x32_bf16 v[%d:%d], v[%d:%d], %s, %s" % (D, D + 3, A, A + 3, B, C)])
                    if kk == nk - 1: done = seg
        if NS2[0] == 6: iss = [st + 5]
        elif st == 0: iss = [5]
        elif st <= 6: iss = [2 * st + 4, 2 * st + 5]
        else: iss = [st + 11]
        iss = [x for x in iss if x < nst]
        if len(iss) == 2:
            L = dma_gaps2(iss[0], K, (1, 3, 5)) + dma_gaps2(iss[1], K, (7, 9, 11))
        elif iss: L = dma_gaps2(iss[0], K)
        else: L = []
        def gm(g): return min(GP - 1, (2 * g + 1) * GP // 24)
        for g, ins in L: gaps[gm(g)].append(ins)
        if o['cpk3'] and st == nst - o['cpk3']: gaps[3].append(code_ld(222 if not dft else 254, 220 if not dft else 252))
        if pend:
            start = pend_start
            room = int((GP - start) * o['p2_rate16'])
            mine = pend[:room]; pend = pend[room:]
            spread(gaps, mine, o, start=start)
            pend_start = 0
        emit_gaps(s, mf, gaps)
        if done is not None and done < 8:
            assert not pend
            pend = st_out(done); pend_start = o['p2_delay16']
        if st + 2 <= nst - 1:
            s.waitmark("w2_%d" % (st + 2), 0); s.e("s_barrier")
    assert not pend
    for ins in st_out(8): s.e(ins)

def phase2(s, o, n0, K, dft):
    if M16[0]: return phase2_16(s, o, n0, K, dft)
    nk = K // 16; Q = 9 * nk; nst = Q // 6
    def st_out(seg):
        acc = 16 if seg % 2 == 0 else 48
        L = ["s_add_u32 s37, s36, %d" % (seg * 8192)]
        for n in range(2):
            for J in range(2):
                for q in range(4):
                    r = acc + 16 * n + 8 * J + 2 * q
                    L.append("v_cvt_pk_bf16_f32 v%d, v%d, v%d" % (176 + n * 8 + 4 * J + q, r, r + 1))
                if not (o['nostore'] and seg < 8):
                    L.append("buffer_store_dwordx4 v[%d:%d], v11, s[8:11], s37 offen offset:%d %s" % (176 + n * 8 + 4 * J, 179 + n * 8 + 4 * J, n * 2048 + J * 1024, o['stf'].replace('+', ' ')))
        if dft:
            x = 208 + 4 * (seg % 2)
            L += ["v_mov_b32 v%d, v%d" % (216 + i, x + i) for i in range(4)]
            L += ["s_add_u32 s39, s38, %d" % (seg * 8192)]
            L += ["v_permlane32_swap_b32 v%d, v%d" % (x + i, 216 + i) for i in range(4)]
            L += ["v_add_f32 v%d, v%d, v%d" % (216 + i, x + i, 216 + i) for i in range(4)]
            L += ["v_cvt_pk_bf16_f32 v216, v216, v217", "v_cvt_pk_bf16_f32 v217, v218, v219",
                  "buffer_store_dwordx2 v[216:217], v12, s[8:11], s39 offen"]
        return L
    def hx(kap, j):
        return (112 + 4 * kap + j) if kap < 16 else (192 + 4 * (kap - 16) + j)
    pend = []
    if NS2[0] > 6: s.e("v_add_u32 v5, 0x20000, v8")
    for st in range(nst):
        gaps = [[] for _ in range(12)]
        mf = []
        newseg = None
        for kp in range(6):
            q = st * 6 + kp; seg = q // nk; kap = q % nk
            n = n0 + q
            if q + PF < Q:
                gaps[2 * kp].append(rd2(n + PF, 0, n0)); gaps[2 * kp + 1].append(rd2(n + PF, 1, n0))
            acc = 16 if seg % 2 == 0 else 48
            for t in range(2):
                A = areg(n); D = acc + 16 * t
                C = "0" if kap == 0 else "v[%d:%d]" % (D, D + 15)
                j = kap * 2 + t
                mf.append(["v_mfma_f32_32x32x16_bf16 v[%d:%d], v[%d:%d], a[%d:%d], %s" % (D, D + 15, A, A + 3, 4 * j, 4 * j + 3, C)])
            if dft:
                x = 208 + 4 * (seg % 2); A = areg(n)
                for jj in range(2):
                    c = "0" if (kap == 0 and jj == 0) else "v[%d:%d]" % (x, x + 3)
                    gaps[2 * kp + jj].insert(0, "v_mfma_f32_4x4x4_16b_bf16 v[%d:%d], v[%d:%d], v[%d:%d], %s" % (x, x + 3, A + 2 * jj, A + 2 * jj + 1, hx(kap, 2 * jj), hx(kap, 2 * jj + 1), c))
            if kap == 0 and seg > 0:
                newseg = (kp, seg - 1)
        if NS2[0] == 6: iss = [st + 5]
        elif st == 0: iss = [5]
        elif st <= 6: iss = [2 * st + 4, 2 * st + 5]
        else: iss = [st + 11]
        iss = [x for x in iss if x < nst]
        if len(iss) == 2:
            L = dma_gaps2(iss[0], K, (1, 3, 5)) + dma_gaps2(iss[1], K, (7, 9, 11))
        elif iss: L = dma_gaps2(iss[0], K)
        else: L = []
        for g, ins in L: gaps[g].append(ins)
        if newseg is not None:
            kp, sg = newseg
            assert not pend
            pend = st_out(sg)
            start = 2 * kp + o['p2_epi_delay']
        else:
            start = 0
        if pend:
            if start < 12:
                room = (12 - start) * o['p2_epi_rate']
                mine = pend[:room]; pend = pend[room:]
                spread(gaps, mine, o, start=start)
        emit_gaps(s, mf, gaps)
        if st + 2 <= nst - 1:
            s.waitmark("w2_%d" % (st + 2), 0); s.e("s_barrier")
    assert not pend
    for ins in st_out(8): s.e(ins)

def gen_k2(Kern, srd, opts):
    o = dict(pstamp=0, ord=0, slowpf=0, cpf=0, cpfst=1, cpk3=0, cpd1=18, m16=0, la=4, rdpos=0, rdstep=2, p2_rate16=1.0, p2_delay16=2, pfw=0, pfc=0, ns2=6, map=0, prof=0, nostore=0, stf='', nords=0, noepi=0, nodma=0, nobar=0, wtrans=2.0, wsalu=0.3, epi_start=4, first_less=4, p2_epi_delay=5, p2_epi_rate=2)
    for k, v in opts.items():
        if k in o: o[k] = type(o[k])(v)
    NS2[0] = o['ns2']; M16[0] = o['m16']; LA[0] = o['la']
    global stamp
    stamp_ = stamp
    pst = lambda seg, i: None
    if o['pstamp']:
        pst = stamp_
        stamp = lambda seg, i: (stamp_(seg, i) if i in (0, 6, 7) else None)
    NPRE = o['la'] if o['m16'] else PF
    K = Kern("main_kernel", (256, 1, 1), (256, 1, 1), LDS_BYTES, vgpr=512, accum=256)
    a = K.seg("head")
    a.e("s_cmp_ge_u32 s2, 256"); a.e("s_cbranch_scc1 K2_end")
    stamp(a, 0)
    a.e("s_load_dwordx2 s[4:5], s[0:1], 88")
    a.e("s_load_dwordx4 s[40:43], s[0:1], 48")
    a.e("s_load_dwordx2 s[44:45], s[0:1], 64")
    a.e("s_load_dwordx4 s[48:51], s[0:1], 8")
    a.e("s_load_dwordx4 s[52:55], s[0:1], 24")
    a.e("v_lshrrev_b32 v1, 6, v0"); a.e("v_and_b32 v0, 63, v0"); a.e("v_readfirstlane_b32 s24, v1")
    if o['map'] == 0:
        a.e("s_and_b32 s3, s2, 7"); a.e("s_lshr_b32 s28, s2, 3"); a.e("s_lshr_b32 s27, s28, 4"); a.e("s_lshl_b32 s3, s3, 1")
        a.e("s_add_u32 s27, s27, s3"); a.e("s_and_b32 s28, s28, 15")
    else:
        tb = {1: 3, 2: 2, 3: 3}[o['map']]
        a.e("s_and_b32 s3, s2, 7"); a.e("s_lshr_b32 s46, s2, 3")
        a.e("s_and_b32 s28, s3, %d" % ((16 >> tb) - 1)); a.e("s_lshl_b32 s28, s28, %d" % tb); a.e("s_and_b32 s47, s46, %d" % ((1 << tb) - 1)); a.e("s_add_u32 s28, s28, s47")
        a.e("s_lshr_b32 s27, s3, %d" % (4 - tb)); a.e("s_lshl_b32 s27, s27, %d" % (5 - tb)); a.e("s_lshr_b32 s47, s46, %d" % tb); a.e("s_add_u32 s27, s27, s47")
    if o['map'] == 3:
        a.e("s_lshr_b32 s46, s27, 2"); a.e("s_and_b32 s47, s27, 3"); a.e("s_mul_i32 s27, s46, 3"); a.e("s_add_u32 s27, s27, s47"); a.e("s_add_u32 s46, s46, 12")
        a.e("s_cmp_eq_u32 s47, 3"); a.e("s_cselect_b32 s27, s46, s27")
    a.e("s_lshr_b32 s25, s24, 1"); a.e("s_and_b32 s26, s24, 1")
    a.e("s_mov_b32 s%d, 0xbfb8aa3b" % CNEG)
    a.e("v_lshrrev_b32 v13, 4, v0"); a.e("v_bfe_u32 v14, v0, 2, 2"); a.e("v_and_b32 v15, 3, v0")
    a.e("v_lshlrev_b32 v11, 4, v0")
    if o['m16']:
        a.e("v_lshrrev_b32 v1, 1, v14"); a.e("v_lshlrev_b32 v1, 1, v1"); a.e("v_and_b32 v9, 1, v13"); a.e("v_lshlrev_b32 v9, 2, v9"); a.e("v_add_u32 v9, v9, v1")
        a.e("v_lshrrev_b32 v12, 1, v15"); a.e("s_lshl_b32 s3, s26, 2"); a.e("v_add_u32 v12, s3, v12"); a.e("v_xor_b32 v12, v12, v9"); a.e("v_lshlrev_b32 v12, 4, v12")
        a.e("v_and_b32 v1, 1, v15"); a.e("v_lshlrev_b32 v1, 3, v1"); a.e("v_add_u32 v12, v12, v1")
        a.e("v_lshlrev_b32 v8, 2, v13"); a.e("v_add_u32 v8, v8, v14"); a.e("v_lshlrev_b32 v8, 7, v8"); a.e("v_add_u32 v8, v8, v12"); a.e("v_xor_b32 v9, 32, v8")
        a.e("v_lshlrev_b32 v5, 3, v13"); a.e("v_add_u32 v5, v5, v14"); a.e("v_lshlrev_b32 v5, 7, v5"); a.e("v_add_u32 v5, v5, v12"); a.e("v_add_u32 v6, 0x10000, v5")
        a.e("v_lshrrev_b32 v13, 3, v0"); a.e("v_and_b32 v14, 7, v0")
        a.e("v_bfe_u32 v15, v13, 1, 2"); a.e("v_lshlrev_b32 v15, 1, v15"); a.e("v_xor_b32 v15, v14, v15"); a.e("v_lshlrev_b32 v15, 4, v15")
        a.e("s_movk_i32 s3, 1152"); a.e("v_mul_lo_u32 v10, v13, s3"); a.e("v_add_u32 v10, v10, v15")
        a.e("v_bfe_u32 v15, v13, 1, 1"); a.e("v_lshlrev_b32 v15, 1, v15"); a.e("v_xor_b32 v15, v14, v15"); a.e("v_lshlrev_b32 v15, 4, v15")
        a.e("s_and_b32 s3, s24, 1"); a.e("s_lshl_b32 s3, s3, 6"); a.e("v_xor_b32 v15, s3, v15")
        a.e("s_movk_i32 s3, 9216"); a.e("v_mul_lo_u32 v13, v13, s3")
        a.e("v_add_u32 v2, v13, v15"); a.e("v_add_u32 v4, %d, v2" % (16 * 9216 - 2048))
        a.e("v_xor_b32 v15, 64, v15"); a.e("v_add_u32 v3, v13, v15"); a.e("v_add_u32 v3, %d, v3" % (8 * 9216 - 1024))
        a.e("v_xor_b32 v13, 32, v5"); a.e("v_add_u32 v14, 0x10000, v13")
    else:
        a.e("v_lshrrev_b32 v1, 1, v13"); a.e("v_lshlrev_b32 v1, 2, v1"); a.e("v_add_u32 v1, v1, v14"); a.e("v_lshlrev_b32 v8, 7, v1")
        a.e("v_and_b32 v1, 1, v13"); a.e("v_lshlrev_b32 v1, 1, v1"); a.e("s_lshl_b32 s3, s26, 2"); a.e("v_add_u32 v1, s3, v1")
        a.e("v_bfe_u32 v9, v14, 1, 1"); a.e("v_lshlrev_b32 v9, 2, v9")
        a.e("v_and_b32 v12, 1, v15"); a.e("v_add_u32 v12, v1, v12"); a.e("v_xor_b32 v12, v12, v9"); a.e("v_lshlrev_b32 v12, 4, v12"); a.e("v_add_u32 v8, v8, v12")
        a.e("v_lshrrev_b32 v12, 1, v15"); a.e("v_lshlrev_b32 v12, 3, v12"); a.e("v_add_u32 v8, v8, v12")
        a.e("v_lshrrev_b32 v12, 1, v15"); a.e("v_add_u32 v12, v1, v12"); a.e("v_xor_b32 v12, v12, v9"); a.e("v_lshlrev_b32 v12, 4, v12")
        a.e("v_lshrrev_b32 v5, 1, v13"); a.e("v_lshlrev_b32 v5, 3, v5"); a.e("v_add_u32 v5, v5, v14"); a.e("v_lshlrev_b32 v5, 7, v5"); a.e("v_add_u32 v5, v5, v12")
        a.e("v_and_b32 v12, 1, v15"); a.e("v_lshlrev_b32 v12, 3, v12"); a.e("v_add_u32 v5, v5, v12")
        a.e("v_add_u32 v6, 0x10000, v5"); a.e("v_add_u32 v9, 0x10000, v8")
        a.e("v_lshrrev_b32 v13, 3, v0"); a.e("v_and_b32 v14, 7, v0"); a.e("v_bfe_u32 v15, v13, 1, 1"); a.e("v_lshlrev_b32 v15, 2, v15")
        a.e("v_xor_b32 v14, v14, v15"); a.e("v_lshlrev_b32 v14, 4, v14")
        a.e("s_movk_i32 s3, 1152"); a.e("v_mul_lo_u32 v10, v13, s3"); a.e("v_add_u32 v10, v10, v14")
        a.e("s_movk_i32 s3, 9216"); a.e("v_mul_lo_u32 v2, v13, s3"); a.e("v_add_u32 v2, v2, v14")
        a.e("v_add_u32 v3, %d, v2" % (8 * 9216 - 1024)); a.e("v_add_u32 v4, %d, v2" % (16 * 9216 - 2048))
    a.e("s_lshl_b32 s34, s24, 10")
    a.e("s_mul_i32 s36, s27, %d" % SLOTB); a.e("s_lshl_b32 s3, s28, 1"); a.e("s_add_u32 s3, s3, s25"); a.e("s_mul_i32 s3, s3, %d" % T64B)
    a.e("s_add_u32 s36, s36, s3"); a.e("s_lshl_b32 s46, s26, 12"); a.e("s_add_u32 s36, s36, s46"); a.e("s_add_u32 s36, s36, %d" % PART)
    if o['cpf']:
        a.e("s_getpc_b64 s[96:97]"); a.lab("K2_pc")
    a.waitlg(0)
    pst(a, 1)
    srd(a, 8, 4, WS_BYTES)
    a.e("s_cmp_eq_u32 s27, 15"); a.e("s_cbranch_scc1 K2_dft")
    f = K.seg("ffn_pro")
    srd(f, 12, 40, 576 * 9216); srd(f, 16, 42, 576 * 9216); srd(f, 20, 44, 4608 * 1152)
    if o['slowpf']:
        f.e("s_sub_u32 s46, s27, 12"); f.e("s_lshl_b32 s46, s46, 4"); f.e("s_add_u32 s46, s46, s28"); f.e("s_lshl_b32 s46, s46, 2"); f.e("s_add_u32 s46, s46, s24")
        f.e("s_lshl_b32 s46, s46, 1")
        f.e("v_lshrrev_b32 v216, 1, v0"); f.e("s_movk_i32 s47, 9216"); f.e("v_mul_lo_u32 v216, v216, s47"); f.e("v_and_b32 v217, 1, v0"); f.e("v_lshlrev_b32 v217, 6, v217")
        f.e("v_add_u32 v216, v216, v217")
        for i in range(2):
            f.e("s_add_u32 s56, s46, %d" % i)
            f.e("s_mul_i32 s47, s56, 3641"); f.e("s_lshr_b32 s47, s47, 16"); f.e("s_mul_i32 s57, s47, 18"); f.e("s_sub_u32 s57, s56, s57")
            f.e("s_and_b32 s58, s47, 1"); f.e("s_cmp_eq_u32 s58, 1"); f.e("s_cselect_b32 s60, s42, s40"); f.e("s_cselect_b32 s61, s43, s41")
            f.e("s_mov_b32 s62, 0x%x" % (576 * 9216)); f.e("s_mov_b32 s63, 0x00020000")
            f.e("s_lshr_b32 s58, s60, 7"); f.e("s_sub_u32 s58, 3, s58"); f.e("s_and_b32 s58, s58, 7")
            f.e("s_lshr_b32 s47, s47, 1"); f.e("s_lshl_b32 s47, s47, 3"); f.e("s_add_u32 s47, s47, s58"); f.e("s_lshl_b32 s47, s47, 7")
            f.e("s_mul_i32 s57, s57, %d" % (32 * 9216)); f.e("s_add_u32 s47, s47, s57")
            f.e("s_cmp_lt_u32 s56, 324"); f.e("s_cselect_b32 s47, s47, 0x7ff00000"); f.e("s_cmp_ge_u32 s27, 12"); f.e("s_cselect_b32 s47, s47, 0x7ff00000")
            f.e("v_add_u32 v217, s47, v216")
            f.e("buffer_load_dword v218, v217, s[60:63], 0 offen ; pf")
    p0_code(f, 27, 46, 47, o['ord'])
    f.e("s_cmp_lt_u32 s27, 12"); f.e("s_cselect_b32 s32, 4, 3")
    f.e("s_mul_i32 s30, s24, %d" % (24 * 9216)); f.e("s_lshl_b32 s47, s46, 7"); f.e("s_add_u32 s30, s30, s47")
    f.e("s_mul_i32 s29, s24, 3072")
    f.e("s_lshl_b32 s47, s46, 6"); f.e("s_lshl_b32 s56, s24, 3"); f.e("s_add_u32 s47, s47, s56"); f.e("s_mul_i32 s35, s47, 1152")
    for st in range(5):
        su, ld = dma1(0, st, st)
        for x in su + ld: f.e(x)
        f.mark("dma")
    pst(f, 2)
    if o['cpf']:
        f.e("v_lshlrev_b32 v219, 7, v0"); f.e("s_lshl_b32 s3, s24, 13"); f.e("v_add_u32 v219, s3, v219")
        if o['cpf'] & 2:
            code_addr(f, 216, 219, "K2_g0", "K2_tail320"); f.e(code_ld(218, 216))
        f.e("s_mov_b32 s100, K2_tail320-K2_pc"); f.e("s_mov_b32 s101, K2_ffn4-K2_pc-4"); f.e("s_cmp_ge_u32 s27, 12")
        f.e("s_cselect_b32 s100, K2_ffn4-K2_pc, s100"); f.e("s_cselect_b32 s101, K2_dft-K2_pc-4, s101")
        code_addr(f, 216, 219, None, None, ssel=(100, 101))
        if o['cpk3']:
            code_addr(f, 220, 219, "final_kernel", "K3_end")
    f.e("s_lshl_b32 s3, s28, 1"); f.e("s_add_u32 s3, s3, s25"); f.e("s_mul_i32 s3, s3, %d" % T64B)
    if XN: f.e("s_add_u32 s3, s3, %d" % XN)
    for i in range(72):
        if i % 4 == 0 and i > 0: f.e("s_add_u32 s3, s3, 4096")
        f.e("buffer_load_dwordx4 %s, v11, s[8:11], s3 offen offset:%d" % (xreg(i), (i % 4) * 1024))
    pst(f, 3)
    if o['pfw']:
        f.e("s_and_b32 s56, s28, 7"); f.e("s_lshl_b32 s56, s56, 2"); f.e("s_add_u32 s56, s56, s24"); f.e("s_add_u32 s57, s32, 1")
        f.e("s_mul_i32 s57, s57, 2304"); f.e("s_mul_i32 s56, s56, s57"); f.e("s_mul_i32 s57, s46, 73728"); f.e("s_add_u32 s56, s56, s57")
        if o['pfw'] in (3, 10):
            f.e("s_sub_u32 s56, s27, 12"); f.e("s_lshl_b32 s56, s56, 4"); f.e("s_add_u32 s56, s56, s28"); f.e("s_lshl_b32 s56, s56, 2"); f.e("s_add_u32 s56, s56, s24")
            f.e("s_mul_i32 s56, s56, 27648"); f.e("s_cmp_lt_u32 s27, 12"); f.e("s_cselect_b32 s56, 0x7ff00000, s56")
        f.e("v_add_u32 v192, s56, v11"); f.e("v_add_u32 v193, 4096, v192"); f.e("v_add_u32 v194, 8192, v192")
        if o['pfw'] in (3, 10):
            for j in range(3, 7): f.e("v_add_u32 v%d, %d, v192" % (192 + j + (0 if j < 4 else 16), 4096 * j))
        if o['pfw'] == 4:
            for x in pf_loads(): f.e(x)
        if o['pfw'] == 5:
            f.e("buffer_load_dword v196, v192, s[20:23], 0 offen ; pf")
        if o['pfw'] == 8:
            f.e("v_lshlrev_b32 v195, 6, v0"); f.e("v_add_u32 v192, s56, v195"); f.e("v_add_u32 v193, 4096, v192"); f.e("v_add_u32 v194, 8192, v192")
            for j in range(3): f.e("buffer_load_dword v%d, v%d, s[20:23], 0 offen ; pf" % (196 + j, 192 + j))
        if o['pfw'] == 9:
            f.e("v_lshlrev_b32 v195, 7, v0"); f.e("v_add_u32 v192, s56, v195"); f.e("v_add_u32 v193, 8192, v192")
            for j in range(2): f.e("buffer_load_dword v%d, v%d, s[20:23], 0 offen ; pf" % (196 + j, 192 + j))
    f.e("s_mul_i32 s3, s25, 40960"); f.e("s_lshl_b32 s46, s26, %d" % (10 if o['m16'] else 11)); f.e("s_add_u32 s3, s3, s46"); f.e("s_add_u32 s3, s3, %d" % HB)
    f.e("v_add_u32 v7, s3, v11")
    f.waitmark("dma", 3); pst(f, 4); f.e("s_barrier")
    pst(f, 5)
    stamp(f, 1)
    if o['cpf']: f.lab("K2_g0")
    for n in range(NPRE):
        f.e(rd1(n, 0)); f.e(rd1(n, 1))
    p1 = P1(o)
    def d_g0(i):
        return dma_gaps1(0, 5, 5) if i == 0 else dma_gaps1(1, i - 1, i - 1)
    post0 = None
    if o['pfw'] and o['pfw'] not in (4, 6, 7, 8, 9, 10):
        post0 = pf_post(o['pfw'])
    g0a = g0b = None
    if o['pfw'] == 10:
        f.e("s_cmp_ge_u32 s27, 12"); f.e("s_cbranch_scc1 K2_g0b")
        g0a = K.seg("g0a"); p1.phase(g0a, 0, [], d_g0); stamp(g0a, 2); g0a.e("s_branch K2_loop")
        g0b = K.seg("g0b"); g0b.lab("K2_g0b"); pb = P1(o); pb.phase(g0b, 0, [], d_g0, post=pf_post(3)); stamp(g0b, 2)
    else:
        p1.phase(f, 0, [], d_g0, post=post0)
        stamp(f, 2)
    lp = K.seg("ffn_loop"); lp.lab("K2_loop")
    def d_up(i):
        if i == 0: return dma_gaps1(1, 5, 5) + [(10, "s_add_u32 s30, s30, 128")]
        return dma_gaps1(0, i - 1, i - 1)
    def d_gate(i):
        return dma_gaps1(0, 5, 5) if i == 0 else dma_gaps1(1, i - 1, i - 1)
    postu = postg = None
    if o['pfw'] == 6:
        L = pf_loads()[:4]
        postu = {1 + j: [(4, L[j])] for j in range(4)}
        postu[5] = [(4, "v_add_u32 v192, 4096, v192")]
    if o['pfw'] == 7:
        L = pf_loads()[:4]
        postu = {1: [(4, L[0])], 4: [(4, L[1])]}
        postg = {1: [(4, L[2])], 4: [(4, L[3])], 5: [(4, "v_add_u32 v192, 4096, v192")]}
    if o['cpf'] & 1:
        postu = dict(postu or {}); postu.setdefault(o['cpfst'], []); postu[o['cpfst']] = postu[o['cpfst']] + [(5, code_ld(218, 216))]
    p1.phase(lp, 1, epi1(), d_up, post=postu)
    p1.phase(lp, 0, epi2() + ["v_add_u32 v7, %d, v7" % (2048 if o['m16'] else 4096)], d_gate, post=postg)
    lp.e("s_sub_u32 s32, s32, 1"); lp.e("s_cmp_lg_u32 s32, 0"); lp.e("s_cbranch_scc1 K2_loop")
    nloop = p1.n
    br = K.seg("ffn_br")
    stamp(br, 3)
    br.e("s_cmp_ge_u32 s27, 12"); br.e("s_cbranch_scc1 K2_ffn4")
    tails = {}
    for Kd, lab in ((320, None), (256, "K2_ffn4")):
        t = K.seg("ffn_tail%d" % Kd)
        if lab: t.lab(lab)
        elif o['cpf']: t.lab("K2_tail320")
        p = P1(o); p.n = nloop
        n0 = nloop + 36
        def d_last(i, Kd=Kd):
            return dma_gaps1(1, 5, 5) if i == 0 else dma_gaps2(i - 1, Kd)
        p.phase(t, 1, epi1(), d_last, nextrd=lambda n, h, n0=n0: rd2(n, h, n0), last_barrier=False)
        stamp(t, 4)
        t.e("s_nop 7")
        for x in epi2(): t.e(x)
        t.waitmark("dma", 3); t.waitlg(0); t.e("s_barrier")
        t.e("s_mul_i32 s3, s25, 40960"); t.e("s_add_u32 s3, s3, %d" % HB); t.e("v_add_u32 v1, s3, v11")
        if o['m16']:
            for kk, tq in sorted(((kk, tq) for kk in range(Kd // 32) for tq in range(4)), key=lambda z: (z[0] // 3, z[1], z[0])):
                    j = kk * 4 + tq
                    t.e("ds_read_b128 a[%d:%d], v1 offset:%d" % (4 * j, 4 * j + 3, (tq * 10 + kk) * 1024))
        else:
          for kap in range(Kd // 16):
            for n in range(2):
                j = kap * 2 + n
                t.e("ds_read_b128 a[%d:%d], v1 offset:%d" % (4 * j, 4 * j + 3, (n * 20 + kap) * 1024))
        stamp(t, 5)
        phase2(t, o, n0, Kd, False)
        stamp(t, 6)
        if o['prof']: t.waitall()
        stamp(t, 7); prof_store(t, 1, 8, 8, 24, 12, 60)
        t.e("s_endpgm")
        tails[Kd] = t
    d = K.seg("dft"); d.lab("K2_dft")
    gen_dft(d, o, srd)
    e = K.seg("end"); e.lab("K2_end"); e.e("s_endpgm")
    A_ = [g0a] if g0a else []; B_ = [g0b] if g0b else []
    K.paths = [[a, f] + A_ + [lp] * 4 + [br, tails[320]], [a, f] + B_ + [lp] * 3 + [br, tails[256]], [a, d]]
    return K

def gen_dft(d, o, srd):
    d.e("s_cmp_ge_u32 s28, 8"); d.e("s_cselect_b32 s46, s50, s48"); d.e("s_cselect_b32 s47, s51, s49")
    d.e("s_cselect_b32 s56, s54, s52"); d.e("s_cselect_b32 s57, s55, s53")
    d.e("s_mov_b32 s58, %d" % XEE); d.e("s_cselect_b32 s58, %d, s58" % XOO); d.e("s_cselect_b32 s59, 1536, 0"); d.e("s_cselect_b32 s60, 0, 0xbf803f80")
    srd(d, 12, 46, 2048 * 4096); srd(d, 20, 56, 576 * 1152)
    d.e("s_and_b32 s3, s28, 7"); d.e("s_lshl_b32 s3, s3, 6"); d.e("s_add_u32 s59, s59, s3"); d.e("s_lshl_b32 s59, s59, 1")
    d.e("s_mul_i32 s61, s24, %d" % (16 * 640)); d.e("s_add_u32 s61, s61, s58")
    d.e("s_lshl_b32 s62, s24, 16"); d.e("s_add_u32 s62, s62, s59")
    d.e("v_lshrrev_b32 v13, 3, v0"); d.e("v_and_b32 v14, 7, v0"); d.e("v_bfe_u32 v15, v13, 1, 2"); d.e("v_lshlrev_b32 v15, 1, v15")
    d.e("v_xor_b32 v14, v14, v15"); d.e("v_lshlrev_b32 v14, 4, v14")
    d.e("s_movk_i32 s3, 1280"); d.e("v_mul_lo_u32 v2, v13, s3"); d.e("v_add_u32 v2, v2, v14")
    d.e("v_lshlrev_b32 v3, 13, v13"); d.e("v_add_u32 v3, v3, v14")
    NSD = 33; SL = 24576
    def stage_rows(st):
        return (st % 2, st // 2)
    def dmad(st):
        par, ks = stage_rows(st); slot = st % 6
        L = []
        r0 = 64 * ks + par
        L.append(("s", "s_add_u32 s31, s61, %d" % (r0 * 640)))
        for b in range(5):
            L.append(("s", "s_add_u32 m0, s34, %d" % (slot * SL + b * 4096 - 128 * b)))
            L.append(("l", "buffer_load_dwordx4 v2, s[8:11], s31 offen offset:%d lds" % (128 * b)))
        L.append(("s", "s_add_u32 s63, s62, %d" % (r0 * 4096)))
        L.append(("s", "s_add_u32 m0, s34, %d" % (slot * SL + 5 * 4096)))
        L.append(("l", "buffer_load_dwordx4 v3, s[12:15], s63 offen lds"))
        return L
    for st in range(5):
        for _, x in dmad(st): d.e(x)
        d.mark("dma")
    if o['cpf']:
        d.e("v_lshlrev_b32 v255, 7, v0"); d.e("s_lshl_b32 s3, s24, 13"); d.e("v_add_u32 v255, s3, v255")
        code_addr(d, 252, 255, "K2_dft1", "K2_dft2"); d.e(code_ld(254, 252))
        code_addr(d, 250, 255, "K2_dft2", "K2_dft3")
    if o['pfc'] == 1:
        d.e("v_lshrrev_b32 v13, 3, v0"); d.e("v_and_b32 v14, 7, v0"); d.e("v_lshlrev_b32 v14, 4, v14"); d.e("v_lshlrev_b32 v13, 12, v13"); d.e("v_add_u32 v192, v13, v14")
        d.e("s_mul_i32 s3, s24, %d" % (240 * 4096)); d.e("s_add_u32 s3, s3, s59"); d.e("s_add_u32 s3, s3, %d" % (128 * 4096)); d.e("v_add_u32 v192, s3, v192")
        for j in range(30):
            d.e("buffer_load_dwordx4 v[%d:%d], v192, s[12:15], 0 offen ; pf" % (224 + 4 * (j % 4), 227 + 4 * (j % 4)))
            if j < 29: d.e("v_add_u32 v192, 0x8000, v192")
    if o['pfc']:
        d.e("s_and_b32 s3, s28, 7"); d.e("s_lshl_b32 s3, s3, 2"); d.e("s_add_u32 s3, s3, s24"); d.e("s_mul_i32 s3, s3, 11520")
        d.e("v_add_u32 v192, s3, v11"); d.e("v_add_u32 v193, 4096, v192"); d.e("v_add_u32 v194, 8192, v192")
        for j in range(12):
            d.e("buffer_load_dwordx4 v[%d:%d], v%d, s[20:23], 0 offen offset:%d ; pf" % (224 + 4 * (j % 4), 227 + 4 * (j % 4), 192 + j // 4, (j % 4) * 1024))
    d.e("v_lshrrev_b32 v13, 2, v0"); d.e("v_and_b32 v15, 3, v0"); d.e("v_bfe_u32 v14, v13, 1, 2"); d.e("v_lshlrev_b32 v14, 1, v14")
    d.e("v_lshlrev_b32 v13, 7, v13"); d.e("v_and_b32 v1, 1, v15"); d.e("v_lshlrev_b32 v1, 3, v1"); d.e("v_add_u32 v13, v13, v1")
    d.e("v_lshrrev_b32 v15, 1, v15")
    for u in range(4):
        d.e("v_add_u32 v1, %d, v15" % (2 * u)); d.e("v_xor_b32 v1, v1, v14"); d.e("v_lshlrev_b32 v1, 4, v1"); d.e("v_add_u32 v1, v1, v13")
        d.e("v_add_u32 v%d, %d, v1" % (196 + u, 5 * 4096))
    for i in range(5):
        d.e("s_mul_i32 s3, s24, 5"); d.e("s_add_u32 s3, s3, %d" % i)
        d.e("s_and_b32 s46, s3, 3"); d.e("s_lshl_b32 s46, s46, 1"); d.e("s_lshr_b32 s47, s3, 2"); d.e("s_lshl_b32 s47, s47, 12")
        d.e("v_add_u32 v1, s46, v15"); d.e("v_xor_b32 v1, v1, v14"); d.e("v_lshlrev_b32 v1, 4, v1"); d.e("v_add_u32 v1, v1, v13")
        d.e("v_add_u32 v%d, s47, v1" % (200 + i))
    for q in range(9): d.e("v_add_u32 v%d, %d, v%d" % (205 + q, 3 * SL, 196 + q))
    for q in range(4): d.e("v_mov_b32 v%d, s60" % (216 + q))
    def frag(st, q):
        return (st % 2) * 36 + 4 * q
    def rdd(st, q, half):
        slot = st % 6; base = 196 + q
        if slot >= 3: base += 9; slot -= 3
        r = frag(st, q) + 2 * half
        return "ds_read_b64_tr_b16 a[%d:%d], v%d offset:%d" % (r, r + 1, base, slot * SL + half * 2048)
    d.waitmark("dma", 3); d.e("s_barrier")
    stamp(d, 1); stamp(d, 2)
    if o['cpf']: d.lab("K2_dft1")
    order = [4, 0, 1, 2, 3, 5, 6, 7, 8]
    for q in order: d.e(rdd(0, q, 0)); d.e(rdd(0, q, 1))
    for st in range(NSD):
        par, ks = stage_rows(st)
        mf = []
        for i in range(5):
            A = frag(st, 4 + i)
            for u in range(4):
                B = frag(st, u); D = 16 + par * 80 + (i * 4 + u) * 4
                C = "0" if ks == 0 else "v[%d:%d]" % (D, D + 3)
                mf.append(["v_mfma_f32_16x16x32_bf16 v[%d:%d], a[%d:%d], a[%d:%d], %s" % (D, D + 3, A, A + 3, B, B + 3, C)])
            if par == 0:
                D = 176 + 4 * i; C = "0" if ks == 0 else "v[%d:%d]" % (D, D + 3)
                mf.append(["v_mfma_f32_16x16x32_bf16 v[%d:%d], a[%d:%d], v[216:219], %s" % (D, D + 3, A, A + 3, C)])
        G = len(mf)
        gaps = [[] for _ in range(G)]
        fill = []
        if st + 1 < NSD:
            for q in order: fill += [rdd(st + 1, q, 0), rdd(st + 1, q, 1)]
        dm = dmad(st + 5) if st + 5 < NSD else []
        for g, x in enumerate(fill): gaps[g].append(x)
        if dm:
            pos = [2, 5, 8, 11, 14, 17]; li = 0; pendS = []
            for kind, x in dm:
                if kind == "s": pendS.append(x)
                else:
                    g = pos[li]; li += 1
                    for y in pendS: gaps[g - 1].append(y)
                    pendS = []
                    gaps[g].append(x)
            gaps[17].append(('mark', 'dma'))
        if o['cpf'] and st == o['cpd1']: gaps[19].append(code_ld(254, 250))
        emit_gaps(d, mf, gaps)
        if st + 2 <= NSD - 1:
            last_issued = min(st + 5, NSD - 1)
            d.waitmark("dma", last_issued - (st + 2)); d.e("s_barrier")
    d.e("s_barrier")
    stamp(d, 3)
    if o['cpf']:
        d.lab("K2_dft2")
        if o['cpk3']: code_addr(d, 252, 255, "final_kernel", "K3_end")
    d.e("s_mul_i32 s35, s24, %d" % (8 * 1152))
    for st in range(5):
        for su, ld in dma2(st, 320):
            for x in su: d.e(x)
            d.e(ld)
        d.mark("dma"); d.mark("w2_%d" % st)
    if o['m16']:
        d.e("s_and_b32 s46, s24, 1"); d.e("s_mul_i32 s3, s24, 5"); d.e("s_sub_u32 s3, s3, s46"); d.e("s_lshr_b32 s3, s3, 1")
        d.e("s_lshl_b32 s47, s46, 3")
        d.e("s_cmp_eq_u32 s46, 1"); d.e("s_cselect_b32 s56, 1024, 8"); d.e("s_cselect_b32 s57, 64, 8")
        d.e("s_lshl_b32 s58, s3, 10"); d.e("s_add_u32 s58, s58, %d" % HB)
        d.e("s_add_u32 s59, s58, s47"); d.e("v_add_u32 v7, s59, v11"); d.e("v_add_u32 v6, 40960, v7")
        d.e("s_add_u32 s59, s58, s56"); d.e("v_add_u32 v4, s59, v11"); d.e("v_add_u32 v3, 40960, v4")
        d.e("v_lshrrev_b32 v15, 4, v0"); d.e("v_lshlrev_b32 v15, 4, v15")
        d.e("s_lshl_b32 s58, s3, 6"); d.e("s_add_u32 s58, s58, %d" % HX)
        d.e("s_add_u32 s59, s58, s47"); d.e("v_add_u32 v5, s59, v15"); d.e("s_add_u32 s59, s58, s57"); d.e("v_add_u32 v2, s59, v15")
    else:
        d.e("v_lshrrev_b32 v13, 4, v0"); d.e("v_and_b32 v14, 15, v0"); d.e("v_and_b32 v15, 1, v13"); d.e("v_lshlrev_b32 v15, 5, v15"); d.e("v_add_u32 v14, v14, v15")
        d.e("v_lshlrev_b32 v14, 4, v14"); d.e("v_lshrrev_b32 v13, 1, v13"); d.e("v_lshlrev_b32 v1, 3, v13"); d.e("v_add_u32 v14, v14, v1")
        d.e("s_mul_i32 s3, s24, 5120"); d.e("s_add_u32 s3, s3, %d" % HB); d.e("v_add_u32 v7, s3, v14")
        d.e("v_add_u32 v6, 40960, v7")
        d.e("v_lshlrev_b32 v15, 4, v0"); d.e("v_lshrrev_b32 v15, 8, v15"); d.e("v_and_b32 v15, 1, v15"); d.e("v_lshlrev_b32 v15, 4, v15"); d.e("v_add_u32 v15, v15, v1")
        d.e("s_mul_i32 s3, s24, 160"); d.e("s_add_u32 s3, s3, %d" % HX); d.e("v_add_u32 v5, s3, v15")
    k = 0
    for i in range(5):
        for u in range(4):
            E = 16 + (i * 4 + u) * 4; O = E + 80
            t = 220 + 8 * (k % 4); k += 1
            for j in range(4):
                d.e("v_add_f32 v%d, v%d, v%d" % (t + j, E + j, O + j)); d.e("v_sub_f32 v%d, v%d, v%d" % (t + 4 + j, E + j, O + j))
            d.e("v_cvt_pk_bf16_f32 v%d, v%d, v%d" % (t, t, t + 1)); d.e("v_cvt_pk_bf16_f32 v%d, v%d, v%d" % (t + 1, t + 2, t + 3))
            d.e("v_cvt_pk_bf16_f32 v%d, v%d, v%d" % (t + 4, t + 4, t + 5)); d.e("v_cvt_pk_bf16_f32 v%d, v%d, v%d" % (t + 5, t + 6, t + 7))
            if o['m16']:
                off = (i // 2) * 1024 + u * 10240; ra, rb = (7, 6) if i % 2 == 0 else (4, 3)
                d.e("ds_write_b64 v%d, v[%d:%d] offset:%d" % (ra, t, t + 1, off)); d.e("ds_write_b64 v%d, v[%d:%d] offset:%d" % (rb, t + 4, t + 5, off))
                continue
            off = i * 1024 + (u >> 1) * 20480 + (u & 1) * 256
            d.e("ds_write_b64 v7, v[%d:%d] offset:%d" % (t, t + 1, off)); d.e("ds_write_b64 v6, v[%d:%d] offset:%d" % (t + 4, t + 5, off))
        X = 176 + 4 * i
        d.e("v_cvt_pk_bf16_f32 v%d, v%d, v%d" % (X, X, X + 1)); d.e("v_cvt_pk_bf16_f32 v%d, v%d, v%d" % (X + 1, X + 2, X + 3))
        if o['m16']: d.e("ds_write_b64 v%d, v[%d:%d] offset:%d" % (5 if i % 2 == 0 else 2, X, X + 1, (i // 2) * 64))
        else: d.e("ds_write_b64 v5, v[%d:%d] offset:%d" % (X, X + 1, i * 32))
    d.e("v_and_b32 v13, 31, v0"); d.e("v_lshrrev_b32 v14, 4, v13"); d.e("v_lshlrev_b32 v12, 10, v14")
    d.e("v_bfe_u32 v14, v13, 2, 1"); d.e("v_lshlrev_b32 v14, 9, v14"); d.e("v_add_u32 v12, v12, v14")
    d.e("v_bfe_u32 v14, v13, 3, 1"); d.e("v_lshlrev_b32 v14, 3, v14"); d.e("v_add_u32 v12, v12, v14")
    d.e("s_add_u32 s38, s28, 32"); d.e("s_mul_i32 s38, s38, %d" % T64B); d.e("s_lshl_b32 s3, s26, 12"); d.e("s_add_u32 s38, s38, s3")
    d.e("s_add_u32 s38, s38, %d" % (PART + 15 * SLOTB))
    d.waitmark("dma", 3); d.waitlg(0); d.e("s_barrier")
    stamp(d, 4)
    d.e("s_mul_i32 s3, s25, 40960"); d.e("s_add_u32 s3, s3, %d" % HB); d.e("v_add_u32 v1, s3, v11")
    d.e("v_lshrrev_b32 v13, %d, v0" % (4 if o['m16'] else 5)); d.e("v_lshlrev_b32 v13, 4, v13"); d.e("v_add_u32 v13, %d, v13" % HX)
    n0 = 0
    for n in range(LA[0] if o['m16'] else PF):
        d.e(rd2(n, 0, n0)); d.e(rd2(n, 1, n0))
    for kk, tq in (sorted(((kk, tq) for kk in range(10) for tq in range(5)), key=lambda z: (z[0] // 3, z[1], z[0])) if o['m16'] else []):
        j = kk * 4 + tq
        if tq < 4: d.e("ds_read_b128 a[%d:%d], v1 offset:%d" % (4 * j, 4 * j + 3, (tq * 10 + kk) * 1024))
        else: d.e("ds_read_b128 v[%d:%d], v13 offset:%d" % (112 + 4 * kk, 115 + 4 * kk, kk * 64))
    for kap in ([] if o['m16'] else range(20)):
        for n in range(2):
            j = kap * 2 + n
            d.e("ds_read_b128 a[%d:%d], v1 offset:%d" % (4 * j, 4 * j + 3, (n * 20 + kap) * 1024))
        r = (112 + 4 * kap) if kap < 16 else (192 + 4 * (kap - 16))
        d.e("ds_read_b128 v[%d:%d], v13 offset:%d" % (r, r + 3, kap * 32))
    stamp(d, 5)
    phase2(d, o, n0, 320, True)
    stamp(d, 6)
    if o['prof']: d.waitall()
    stamp(d, 7); prof_store(d, 1, 8, 8, 24, 14, 60)
    if o['cpf']: d.lab("K2_dft3")
    d.e("s_endpgm")
```

```python
from emit import *
XN   = 0x0
XEE  = 0x240000
XOO  = 0x300000
PART = 0x400000
SLOTB = 2359296
T64B = 73728
WS_BYTES = 0x4000000
SLOT = 12288; NS = 6
HB = 73728
HX = HB + 81920
LDS_BYTES = HX + 1024
PF = 3
NF = 8
CNEG = 33
NS2 = [6]
M16 = [0]
LA = [4]
def stamp(seg, i): pass
def prof_store(*a): pass

def wt(ins, o):
    if ins.startswith("v_exp") or ins.startswith("v_rcp"): return o['wtrans']
    if ins.startswith("s_"): return o['wsalu']
    return 1.0

def spread(gaps, queue, o, start=0, end=None):
    if not queue: return
    G = len(gaps) if end is None else end
    idx = list(range(start, G))
    load = {g: sum(wt(i, o) for i in gaps[g] if isinstance(i, str)) for g in idx}
    tot = sum(load.values()) + sum(wt(i, o) for i in queue)
    p = 0; cum = load[idx[0]]
    for ins in queue:
        w = wt(ins, o)
        while p < len(idx) - 1 and cum + w * 0.5 > tot * (p + 1) / len(idx):
            p += 1; cum += load[idx[p]]
        gaps[idx[p]].append(ins); cum += w

def emit_gaps(s, mf, gaps):
    for m, g in zip(mf, gaps):
        for pre in m[:-1]: put(s, pre)
        s.e(m[-1])
        for x in g: put(s, x)

def put(s, x):
    if isinstance(x, str): s.e(x)
    elif x[0] == 'mark': s.mark(x[1])
    elif x[0] == 'waitmark': s.waitmark(x[1], x[2])
    elif x[0] == 'waitlg': s.waitlg(x[1])
    elif x[0] == 'c': s.c(x[1])
    else: raise ValueError(x)

def xreg(i):
    return ("a[%d:%d]" % (4 * i, 4 * i + 3)) if i < 64 else ("v[%d:%d]" % (224 + 4 * (i - 64), 227 + 4 * (i - 64)))

def areg(n): r = 80 + 4 * (n % NF); return r

def rd1(n, half):
    if M16[0]:
        st = n // 6; q = n % 6; fh = q // 3; kkl = q % 3
        r = areg(n) + 2 * half
        off = (st % NS) * SLOT + kkl * 4096 + half * 512; base = 5 if fh == 0 else 13
        if off >= 65536: off -= 65536; base += 1
        return "ds_read_b64_tr_b16 v[%d:%d], v%d offset:%d" % (r, r + 1, base, off)
    st = n // 6; kp = n % 6
    r = areg(n) + 2 * half
    off = (st % NS) * SLOT + kp * 2048 + half * 512; base = 5
    if off >= 65536: off -= 65536; base = 6
    return "ds_read_b64_tr_b16 v[%d:%d], v%d offset:%d" % (r, r + 1, base, off)

def rd2(n, half, n0):
    if M16[0]:
        q = n - n0; st = q // 6; qq = q % 6; dh = qq // 3; bl = qq % 3
        r = areg(n) + 2 * half
        off = (st % NS2[0]) * SLOT + bl * 4096 + half * 2048; base = 8
        if off >= 131072: off -= 131072; base = 2
        elif off >= 65536: off -= 65536; base = 5
        return "ds_read_b64_tr_b16 v[%d:%d], v%d offset:%d" % (r, r + 1, base + dh, off)
    q = n - n0; st = q // 6; kp = q % 6
    r = areg(n) + 2 * half
    off = (st % NS2[0]) * SLOT + kp * 2048 + half * 1024; base = 8
    if off >= 131072: off -= 131072; base = 5
    elif off >= 65536: off -= 65536; base = 9
    return "ds_read_b64_tr_b16 v[%d:%d], v%d offset:%d" % (r, r + 1, base, off)

def dma1(mat, kc, slot):
    sr = 12 if mat == 0 else 16
    su = ["s_add_u32 m0, s29, %d" % (slot * SLOT), "s_add_u32 s31, s30, %d" % (kc * 96 * 9216)]
    ld = ["buffer_load_dwordx4 v%d, s[%d:%d], s31 offen offset:%d lds" % (2 + j, sr, sr + 3, 1024 * j) for j in range(3)]
    return su, ld

def dma2(st, K):
    out = []
    for j in range(3):
        R = 96 * st + 32 * j; sg = R // K; row0 = R % K
        su = ["s_add_u32 m0, s34, %d" % ((st % NS2[0]) * SLOT + j * 4096), "s_add_u32 s31, s35, %d" % (sg * 128 + row0 * 1152)]
        out.append((su, "buffer_load_dwordx4 v10, s[20:23], s31 offen lds"))
    return out

def epi1():
    L = []
    for p0 in range(0, 32, 4):
        for j in range(4): L.append("v_mul_f32 v%d, s%d, v%d" % (112 + p0 + j, CNEG, 16 + p0 + j))
        for j in range(4): L.append("v_exp_f32 v%d, v%d" % (144 + p0 + j, 112 + p0 + j))
        for j in range(4): L.append("v_fma_f32 v%d, v%d, s%d, s%d" % (144 + p0 + j, 144 + p0 + j, CNEG, CNEG))
    return L

def epi2():
    L = []
    for p0 in range(0, 32, 4):
        for j in range(4): L.append("v_rcp_f32 v%d, v%d" % (144 + p0 + j, 144 + p0 + j))
        for j in range(4): L.append("v_mul_f32 v%d, v%d, v%d" % (112 + p0 + j, 112 + p0 + j, 48 + p0 + j))
        for j in range(4): L.append("v_mul_f32 v%d, v%d, v%d" % (112 + p0 + j, 112 + p0 + j, 144 + p0 + j))
        for j in range(0, 4, 2): L.append("v_cvt_pk_bf16_f32 v%d, v%d, v%d" % (176 + (p0 + j) // 2, 112 + p0 + j, 112 + p0 + j + 1))
        if p0 % 8 == 4 and M16[0]:
            tq = p0 // 8
            L.append("ds_write_b128 v7, v[%d:%d] offset:%d" % (176 + 4 * tq, 179 + 4 * tq, tq * 10240))
        elif p0 % 8 == 4:
            n = p0 // 16; J = (p0 // 8) % 2
            L.append("ds_write_b128 v7, v[%d:%d] offset:%d" % (176 + n * 8 + 4 * J, 179 + n * 8 + 4 * J, n * 20480 + J * 1024))
    return L

def p0_code(f, sp, d, t, order):
    if order == 0:
        f.e("s_mul_i32 s%d, s%d, 5" % (d, sp)); f.e("s_lshl_b32 s%d, s%d, 2" % (t, sp)); f.e("s_add_u32 s%d, s%d, 12" % (t, t))
        f.e("s_cmp_lt_u32 s%d, 12" % sp); f.e("s_cselect_b32 s%d, s%d, s%d" % (d, d, t))
    else:
        f.e("s_mul_i32 s%d, s%d, 5" % (d, sp))
        f.e("s_cmp_ge_u32 s%d, 5" % sp); f.e("s_cselect_b32 s%d, 4, 0" % t); f.e("s_add_u32 s%d, s%d, s%d" % (d, d, t))
        f.e("s_cmp_ge_u32 s%d, 10" % sp); f.e("s_cselect_b32 s%d, 4, 0" % t); f.e("s_add_u32 s%d, s%d, s%d" % (d, d, t))
        f.e("s_cmp_eq_u32 s%d, 12" % sp); f.e("s_cselect_b32 s%d, 25, s%d" % (d, d))
        f.e("s_cmp_eq_u32 s%d, 13" % sp); f.e("s_cselect_b32 s%d, 54, s%d" % (d, d))
        f.e("s_cmp_eq_u32 s%d, 14" % sp); f.e("s_cselect_b32 s%d, 0x44, s%d" % (d, d))

def code_addr(s, va, vt, frm, to, ssel=None):
    if ssel:
        s.e("v_add_u32 v%d, s%d, v%d" % (va, ssel[0], vt)); s.e("v_min_u32 v%d, s%d, v%d" % (va, ssel[1], va))
    else:
        s.e("v_add_u32 v%d, %s-K2_pc, v%d" % (va, frm, vt)); s.e("v_min_u32 v%d, %s-K2_pc-4, v%d" % (va, to, va))
    s.e("v_add_co_u32 v%d, s[98:99], s96, v%d" % (va, va)); s.e("v_mov_b32 v%d, s97" % (va + 1))
    s.e("v_addc_co_u32 v%d, s[98:99], 0, v%d, s[98:99]" % (va + 1, va + 1))

def code_ld(vd, va): return "global_load_dword v%d, v[%d:%d], off ; pf" % (vd, va, va + 1)

class P1:
    def __init__(self, o): self.n = 0; self.o = o
    def phase(self, s, mat, epi, dmaf, extra_first=None, nextrd=None, last_barrier=True, first_c0=True, post=None):
        o = self.o
        if M16[0]: return self.phase16(s, mat, epi, dmaf, nextrd, last_barrier, post)
        acc = 16 if mat == 0 else 48
        per = (len(epi) + 5) // 6
        epi = list(epi)
        for i in range(6):
            gaps = [[] for _ in range(12)]
            mf = []
            for kp in range(6):
                n = self.n + kp
                f = nextrd if nextrd else rd1
                nn = n + PF
                if nextrd and (i * 6 + kp + PF) < 36: f = rd1
                gaps[2 * kp].append(f(nn, 0)); gaps[2 * kp + 1].append(f(nn, 1))
                kap = i * 6 + kp
                for t in range(2):
                    A = areg(n); D = acc + 16 * t
                    C = "0" if kap == 0 else "v[%d:%d]" % (D, D + 15)
                    mf.append(["v_mfma_f32_32x32x16_bf16 v[%d:%d], v[%d:%d], %s, %s" % (D, D + 15, A, A + 3, xreg(kap * 2 + t), C)])
            for g, ins in dmaf(i): gaps[g].append(ins)
            if i == 0:
                mine = epi[:per - o['first_less']]; epi = epi[len(mine):]
                spread(gaps, mine, o, start=o['epi_start'])
            else:
                rem = 6 - i
                cnt = (len(epi) + rem - 1) // rem
                mine = epi[:cnt]; epi = epi[cnt:]
                spread(gaps, mine, o)
            if post and i in post:
                for g, ins in post[i]: gaps[g].append(ins)
            if s.name == "ffn_loop":
                def keep(x):
                    if not isinstance(x, str): return True
                    if o['nords'] and x.startswith("ds_read"): return False
                    if o['noepi'] and (x.startswith("v_") or x.startswith("ds_write")) : return False
                    if o['nodma'] and x.startswith("buffer_load"): return False
                    return True
                gaps = [[x for x in g if keep(x)] for g in gaps]
            emit_gaps(s, mf, gaps)
            self.n += 6
            if i < 5 or last_barrier:
                s.waitmark("dma", 3)
                if not (s.name == "ffn_loop" and (o['nobar'] == 1 or (o['nobar'] == 2 and i % 2 == 0))): s.e("s_barrier")
        assert not epi

def g24(g):
    return 2 * g + 1

def phase16(self, s, mat, epi, dmaf, nextrd, last_barrier, post):
    o = self.o
    acc = 16 if mat == 0 else 48
    per = (len(epi) + 5) // 6
    epi = list(epi)
    la = LA[0]
    for i in range(6):
        gaps = [[] for _ in range(24)]
        mf = []
        for fh in range(2):
            G0 = self.n + 3 * fh
            k = 0
            for j in range(3):
                nn = G0 + la + j
                f = rd1
                if nextrd and (i * 6 + 3 * fh + la + j) >= 36: f = nextrd
                for h in range(2):
                    gaps[12 * fh + o['rdpos'] + o['rdstep'] * k].append(f(nn, h)); k += 1
            for tq in range(4):
                for kkl in range(3):
                    A = areg(G0 + kkl); D = acc + 8 * tq + 4 * fh
                    C = "0" if (i == 0 and kkl == 0) else "v[%d:%d]" % (D, D + 3)
                    mf.append(["v_mfma_f32_16x16x32_bf16 v[%d:%d], v[%d:%d], %s, %s" % (D, D + 3, A, A + 3, xreg((3 * i + kkl) * 4 + tq), C)])
        for g, ins in dmaf(i): gaps[g24(g)].append(ins)
        if post and i in post:
            for g, ins in post[i]: gaps[g24(g)].append(ins)
        if post and ('g24', i) in post:
            for g, ins in post[('g24', i)]: gaps[g].append(ins)
        if i == 0:
            mine = epi[:max(per - o['first_less'], 0)]; epi = epi[len(mine):]
            spread(gaps, mine, o, start=o['epi_start'])
        else:
            rem = 6 - i
            cnt = (len(epi) + rem - 1) // rem
            mine = epi[:cnt]; epi = epi[cnt:]
            spread(gaps, mine, o)
        if s.name == "ffn_loop":
            def keep(x):
                if not isinstance(x, str): return True
                if o['nords'] and x.startswith("ds_read"): return False
                if o['noepi'] and (x.startswith("v_") or x.startswith("ds_write")) : return False
                if o['nodma'] and x.startswith("buffer_load"): return False
                return True
            gaps = [[x for x in g if keep(x)] for g in gaps]
        emit_gaps(s, mf, gaps)
        self.n += 6
        if i < 5 or last_barrier:
            s.waitmark("dma", 3)
            if not (s.name == "ffn_loop" and (o['nobar'] == 1 or (o['nobar'] == 2 and i % 2 == 0))): s.e("s_barrier")
    assert not epi
P1.phase16 = phase16

def pf_loads():
    return ["buffer_load_dwordx4 v[%d:%d], v%d, s[20:23], 0 offen offset:%d" % (196 + 4 * (j % 4), 199 + 4 * (j % 4), 192 + j // 4, (j % 4) * 1024) + " ; pf" for j in range(12)]

def pf_post(mode):
    L = pf_loads(); post = {}
    if mode == 1:
        for i in range(4): post[1 + i] = [(4, L[3 * i]), (7, L[3 * i + 1]), (10, L[3 * i + 2])]
    elif mode == 5:
        for i in range(4): post[1 + i] = [(4, L[3 * i]), (7, L[3 * i + 1]), (10, L[3 * i + 2])]
    elif mode == 3:
        ar = [192, 193, 194, 195, 212, 213, 214]
        L = ["buffer_load_dwordx4 v[%d:%d], v%d, s[20:23], 0 offen offset:%d ; pf" % (196 + 4 * (j % 4), 199 + 4 * (j % 4), ar[j // 4], (j % 4) * 1024) for j in range(27)]
        pos = [2, 4, 5, 7, 8, 10]
        for i in range(6):
            mine = L[5 * i: 5 * i + 5] if i < 5 else L[25:]
            post[i] = [(pos[k], x) for k, x in enumerate(mine)]
    elif mode == 2:
        for i in range(6): post[i] = [(4, L[2 * i]), (10, L[2 * i + 1])]
    return post

def dma_gaps1(mat, kc, slot):
    su, ld = dma1(mat, kc, slot)
    return [(0, su[0]), (1, su[1]), (3, ld[0]), (6, ld[1]), (9, ld[2]), (9, ('mark', 'dma'))]

def dma_gaps2(st, K, pos=(1, 5, 9)):
    L = []
    for j, (su, ld) in enumerate(dma2(st, K)):
        g = pos[j]
        L += [(g - 1, su[0]), (g - 1, su[1]), (g, ld)]
    L.append((pos[2], ('mark', 'dma'))); L.append((pos[2], ('mark', 'w2_%d' % st)))
    return L

def phase2_16(s, o, n0, K, dft):
    nk = K // 32; NB = 9 * nk; nst = NB // 3; Q = 6 * nst; la = LA[0]
    NT = 5 if dft else 4
    def accof(seg, tq, dh):
        if tq == 4: return 208 + 8 * (seg % 2) + 4 * dh
        return (16 if seg % 2 == 0 else 48) + 8 * tq + 4 * dh
    stf = o['stf'].replace('+', ' ')
    def st_out(seg):
        L = ["s_add_u32 s37, s36, %d" % (seg * 8192)]
        for tq in range(4):
            r = accof(seg, tq, 0)
            for q in range(4): L.append("v_cvt_pk_bf16_f32 v%d, v%d, v%d" % (176 + 4 * tq + q, r + 2 * q, r + 2 * q + 1))
            if not (o['nostore'] and seg < 8):
                L.append("buffer_store_dwordx4 v[%d:%d], v11, s[8:11], s37 offen offset:%d %s" % (176 + 4 * tq, 179 + 4 * tq, tq * 1024, stf))
        if dft:
            r = accof(seg, 4, 0)
            L.append("s_add_u32 s39, s38, %d" % (seg * 8192))
            for q in range(4): L.append("v_cvt_pk_bf16_f32 v%d, v%d, v%d" % (192 + q, r + 2 * q, r + 2 * q + 1))
            L.append("buffer_store_dwordx4 v[192:195], v11, s[8:11], s39 offen %s" % stf)
        return L
    s.e("v_add_u32 v5, 0x10000, v8"); s.e("v_add_u32 v6, 0x10000, v9")
    if NS2[0] > 6: s.e("v_add_u32 v2, 0x20000, v8"); s.e("v_add_u32 v3, 0x20000, v9")
    pend = []; GP = 6 * NT
    for st in range(nst):
        gaps = [[] for _ in range(GP)]
        mf = []
        done = None
        for dh in range(2):
            G0 = n0 + 6 * st + 3 * dh
            k = 0
            for j in range(3):
                nn = G0 + la + j
                for h in range(2):
                    if nn - n0 < Q: gaps[3 * NT * dh + o['rdpos'] + o['rdstep'] * k].append(rd2(nn, h, n0))
                    k += 1
            for tq in range(NT):
                for bl in range(3):
                    b = 3 * st + bl; seg = b // nk; kk = b % nk
                    A = areg(G0 + bl); D = accof(seg, tq, dh)
                    C = "0" if kk == 0 else "v[%d:%d]" % (D, D + 3)
                    B = ("a[%d:%d]" % (4 * (kk * 4 + tq), 4 * (kk * 4 + tq) + 3)) if tq < 4 else ("v[%d:%d]" % (112 + 4 * kk, 115 + 4 * kk))
                    mf.append(["v_mfma_f32_16x16x32_bf16 v[%d:%d], v[%d:%d], %s, %s" % (D, D + 3, A, A + 3, B, C)])
                    if kk == nk - 1: done = seg
        if NS2[0] == 6: iss = [st + 5]
        elif st == 0: iss = [5]
        elif st <= 6: iss = [2 * st + 4, 2 * st + 5]
        else: iss = [st + 11]
        iss = [x for x in iss if x < nst]
        if len(iss) == 2:
            L = dma_gaps2(iss[0], K, (1, 3, 5)) + dma_gaps2(iss[1], K, (7, 9, 11))
        elif iss: L = dma_gaps2(iss[0], K)
        else: L = []
        def gm(g): return min(GP - 1, (2 * g + 1) * GP // 24)
        for g, ins in L: gaps[gm(g)].append(ins)
        if o['cpk3'] and st == nst - o['cpk3']: gaps[3].append(code_ld(222 if not dft else 254, 220 if not dft else 252))
        if pend:
            start = pend_start
            room = int((GP - start) * o['p2_rate16'])
            mine = pend[:room]; pend = pend[room:]
            spread(gaps, mine, o, start=start)
            pend_start = 0
        emit_gaps(s, mf, gaps)
        if done is not None and done < 8:
            assert not pend
            pend = st_out(done); pend_start = o['p2_delay16']
        if st + 2 <= nst - 1:
            s.waitmark("w2_%d" % (st + 2), 0); s.e("s_barrier")
    assert not pend
    for ins in st_out(8): s.e(ins)

def phase2(s, o, n0, K, dft):
    if M16[0]: return phase2_16(s, o, n0, K, dft)
    nk = K // 16; Q = 9 * nk; nst = Q // 6
    def st_out(seg):
        acc = 16 if seg % 2 == 0 else 48
        L = ["s_add_u32 s37, s36, %d" % (seg * 8192)]
        for n in range(2):
            for J in range(2):
                for q in range(4):
                    r = acc + 16 * n + 8 * J + 2 * q
                    L.append("v_cvt_pk_bf16_f32 v%d, v%d, v%d" % (176 + n * 8 + 4 * J + q, r, r + 1))
                if not (o['nostore'] and seg < 8):
                    L.append("buffer_store_dwordx4 v[%d:%d], v11, s[8:11], s37 offen offset:%d %s" % (176 + n * 8 + 4 * J, 179 + n * 8 + 4 * J, n * 2048 + J * 1024, o['stf'].replace('+', ' ')))
        if dft:
            x = 208 + 4 * (seg % 2)
            L += ["v_mov_b32 v%d, v%d" % (216 + i, x + i) for i in range(4)]
            L += ["s_add_u32 s39, s38, %d" % (seg * 8192)]
            L += ["v_permlane32_swap_b32 v%d, v%d" % (x + i, 216 + i) for i in range(4)]
            L += ["v_add_f32 v%d, v%d, v%d" % (216 + i, x + i, 216 + i) for i in range(4)]
            L += ["v_cvt_pk_bf16_f32 v216, v216, v217", "v_cvt_pk_bf16_f32 v217, v218, v219",
                  "buffer_store_dwordx2 v[216:217], v12, s[8:11], s39 offen"]
        return L
    def hx(kap, j):
        return (112 + 4 * kap + j) if kap < 16 else (192 + 4 * (kap - 16) + j)
    pend = []
    if NS2[0] > 6: s.e("v_add_u32 v5, 0x20000, v8")
    for st in range(nst):
        gaps = [[] for _ in range(12)]
        mf = []
        newseg = None
        for kp in range(6):
            q = st * 6 + kp; seg = q // nk; kap = q % nk
            n = n0 + q
            if q + PF < Q:
                gaps[2 * kp].append(rd2(n + PF, 0, n0)); gaps[2 * kp + 1].append(rd2(n + PF, 1, n0))
            acc = 16 if seg % 2 == 0 else 48
            for t in range(2):
                A = areg(n); D = acc + 16 * t
                C = "0" if kap == 0 else "v[%d:%d]" % (D, D + 15)
                j = kap * 2 + t
                mf.append(["v_mfma_f32_32x32x16_bf16 v[%d:%d], v[%d:%d], a[%d:%d], %s" % (D, D + 15, A, A + 3, 4 * j, 4 * j + 3, C)])
            if dft:
                x = 208 + 4 * (seg % 2); A = areg(n)
                for jj in range(2):
                    c = "0" if (kap == 0 and jj == 0) else "v[%d:%d]" % (x, x + 3)
                    gaps[2 * kp + jj].insert(0, "v_mfma_f32_4x4x4_16b_bf16 v[%d:%d], v[%d:%d], v[%d:%d], %s" % (x, x + 3, A + 2 * jj, A + 2 * jj + 1, hx(kap, 2 * jj), hx(kap, 2 * jj + 1), c))
            if kap == 0 and seg > 0:
                newseg = (kp, seg - 1)
        if NS2[0] == 6: iss = [st + 5]
        elif st == 0: iss = [5]
        elif st <= 6: iss = [2 * st + 4, 2 * st + 5]
        else: iss = [st + 11]
        iss = [x for x in iss if x < nst]
        if len(iss) == 2:
            L = dma_gaps2(iss[0], K, (1, 3, 5)) + dma_gaps2(iss[1], K, (7, 9, 11))
        elif iss: L = dma_gaps2(iss[0], K)
        else: L = []
        for g, ins in L: gaps[g].append(ins)
        if newseg is not None:
            kp, sg = newseg
            assert not pend
            pend = st_out(sg)
            start = 2 * kp + o['p2_epi_delay']
        else:
            start = 0
        if pend:
            if start < 12:
                room = (12 - start) * o['p2_epi_rate']
                mine = pend[:room]; pend = pend[room:]
                spread(gaps, mine, o, start=start)
        emit_gaps(s, mf, gaps)
        if st + 2 <= nst - 1:
            s.waitmark("w2_%d" % (st + 2), 0); s.e("s_barrier")
    assert not pend
    for ins in st_out(8): s.e(ins)

def gen_k2(Kern, srd, opts):
    o = dict(xil=0, xpre=2, xpf=0, xdm=2, pstamp=0, ord=0, slowpf=0, cpf=0, cpfst=1, cpk3=0, cpd1=18, m16=0, la=4, rdpos=0, rdstep=2, p2_rate16=1.0, p2_delay16=2, pfw=0, pfc=0, ns2=6, map=0, prof=0, nostore=0, stf='', nords=0, noepi=0, nodma=0, nobar=0, wtrans=2.0, wsalu=0.3, epi_start=4, first_less=4, p2_epi_delay=5, p2_epi_rate=2)
    for k, v in opts.items():
        if k in o: o[k] = type(o[k])(v)
    NS2[0] = o['ns2']; M16[0] = o['m16']; LA[0] = o['la']
    global stamp
    stamp_ = stamp
    pst = lambda seg, i: None
    if o['pstamp']:
        pst = stamp_
        stamp = lambda seg, i: (stamp_(seg, i) if i in (0, 6, 7) else None)
    NPRE = o['la'] if o['m16'] else PF
    K = Kern("main_kernel", (256, 1, 1), (256, 1, 1), LDS_BYTES, vgpr=512, accum=256)
    a = K.seg("head")
    a.e("s_cmp_ge_u32 s2, 256"); a.e("s_cbranch_scc1 K2_end")
    stamp(a, 0)
    a.e("s_load_dwordx2 s[4:5], s[0:1], 88")
    a.e("s_load_dwordx4 s[40:43], s[0:1], 48")
    a.e("s_load_dwordx2 s[44:45], s[0:1], 64")
    a.e("s_load_dwordx4 s[48:51], s[0:1], 8")
    a.e("s_load_dwordx4 s[52:55], s[0:1], 24")
    a.e("v_lshrrev_b32 v1, 6, v0"); a.e("v_and_b32 v0, 63, v0"); a.e("v_readfirstlane_b32 s24, v1")
    if o['map'] == 0:
        a.e("s_and_b32 s3, s2, 7"); a.e("s_lshr_b32 s28, s2, 3"); a.e("s_lshr_b32 s27, s28, 4"); a.e("s_lshl_b32 s3, s3, 1")
        a.e("s_add_u32 s27, s27, s3"); a.e("s_and_b32 s28, s28, 15")
    else:
        tb = {1: 3, 2: 2, 3: 3}[o['map']]
        a.e("s_and_b32 s3, s2, 7"); a.e("s_lshr_b32 s46, s2, 3")
        a.e("s_and_b32 s28, s3, %d" % ((16 >> tb) - 1)); a.e("s_lshl_b32 s28, s28, %d" % tb); a.e("s_and_b32 s47, s46, %d" % ((1 << tb) - 1)); a.e("s_add_u32 s28, s28, s47")
        a.e("s_lshr_b32 s27, s3, %d" % (4 - tb)); a.e("s_lshl_b32 s27, s27, %d" % (5 - tb)); a.e("s_lshr_b32 s47, s46, %d" % tb); a.e("s_add_u32 s27, s27, s47")
    if o['map'] == 3:
        a.e("s_lshr_b32 s46, s27, 2"); a.e("s_and_b32 s47, s27, 3"); a.e("s_mul_i32 s27, s46, 3"); a.e("s_add_u32 s27, s27, s47"); a.e("s_add_u32 s46, s46, 12")
        a.e("s_cmp_eq_u32 s47, 3"); a.e("s_cselect_b32 s27, s46, s27")
    a.e("s_lshr_b32 s25, s24, 1"); a.e("s_and_b32 s26, s24, 1")
    a.e("s_mov_b32 s%d, 0xbfb8aa3b" % CNEG)
    a.e("v_lshrrev_b32 v13, 4, v0"); a.e("v_bfe_u32 v14, v0, 2, 2"); a.e("v_and_b32 v15, 3, v0")
    a.e("v_lshlrev_b32 v11, 4, v0")
    if o['m16']:
        a.e("v_lshrrev_b32 v1, 1, v14"); a.e("v_lshlrev_b32 v1, 1, v1"); a.e("v_and_b32 v9, 1, v13"); a.e("v_lshlrev_b32 v9, 2, v9"); a.e("v_add_u32 v9, v9, v1")
        a.e("v_lshrrev_b32 v12, 1, v15"); a.e("s_lshl_b32 s3, s26, 2"); a.e("v_add_u32 v12, s3, v12"); a.e("v_xor_b32 v12, v12, v9"); a.e("v_lshlrev_b32 v12, 4, v12")
        a.e("v_and_b32 v1, 1, v15"); a.e("v_lshlrev_b32 v1, 3, v1"); a.e("v_add_u32 v12, v12, v1")
        a.e("v_lshlrev_b32 v8, 2, v13"); a.e("v_add_u32 v8, v8, v14"); a.e("v_lshlrev_b32 v8, 7, v8"); a.e("v_add_u32 v8, v8, v12"); a.e("v_xor_b32 v9, 32, v8")
        a.e("v_lshlrev_b32 v5, 3, v13"); a.e("v_add_u32 v5, v5, v14"); a.e("v_lshlrev_b32 v5, 7, v5"); a.e("v_add_u32 v5, v5, v12"); a.e("v_add_u32 v6, 0x10000, v5")
        a.e("v_lshrrev_b32 v13, 3, v0"); a.e("v_and_b32 v14, 7, v0")
        a.e("v_bfe_u32 v15, v13, 1, 2"); a.e("v_lshlrev_b32 v15, 1, v15"); a.e("v_xor_b32 v15, v14, v15"); a.e("v_lshlrev_b32 v15, 4, v15")
        a.e("s_movk_i32 s3, 1152"); a.e("v_mul_lo_u32 v10, v13, s3"); a.e("v_add_u32 v10, v10, v15")
        a.e("v_bfe_u32 v15, v13, 1, 1"); a.e("v_lshlrev_b32 v15, 1, v15"); a.e("v_xor_b32 v15, v14, v15"); a.e("v_lshlrev_b32 v15, 4, v15")
        a.e("s_and_b32 s3, s24, 1"); a.e("s_lshl_b32 s3, s3, 6"); a.e("v_xor_b32 v15, s3, v15")
        a.e("s_movk_i32 s3, 9216"); a.e("v_mul_lo_u32 v13, v13, s3")
        a.e("v_add_u32 v2, v13, v15"); a.e("v_add_u32 v4, %d, v2" % (16 * 9216 - 2048))
        a.e("v_xor_b32 v15, 64, v15"); a.e("v_add_u32 v3, v13, v15"); a.e("v_add_u32 v3, %d, v3" % (8 * 9216 - 1024))
        a.e("v_xor_b32 v13, 32, v5"); a.e("v_add_u32 v14, 0x10000, v13")
    else:
        a.e("v_lshrrev_b32 v1, 1, v13"); a.e("v_lshlrev_b32 v1, 2, v1"); a.e("v_add_u32 v1, v1, v14"); a.e("v_lshlrev_b32 v8, 7, v1")
        a.e("v_and_b32 v1, 1, v13"); a.e("v_lshlrev_b32 v1, 1, v1"); a.e("s_lshl_b32 s3, s26, 2"); a.e("v_add_u32 v1, s3, v1")
        a.e("v_bfe_u32 v9, v14, 1, 1"); a.e("v_lshlrev_b32 v9, 2, v9")
        a.e("v_and_b32 v12, 1, v15"); a.e("v_add_u32 v12, v1, v12"); a.e("v_xor_b32 v12, v12, v9"); a.e("v_lshlrev_b32 v12, 4, v12"); a.e("v_add_u32 v8, v8, v12")
        a.e("v_lshrrev_b32 v12, 1, v15"); a.e("v_lshlrev_b32 v12, 3, v12"); a.e("v_add_u32 v8, v8, v12")
        a.e("v_lshrrev_b32 v12, 1, v15"); a.e("v_add_u32 v12, v1, v12"); a.e("v_xor_b32 v12, v12, v9"); a.e("v_lshlrev_b32 v12, 4, v12")
        a.e("v_lshrrev_b32 v5, 1, v13"); a.e("v_lshlrev_b32 v5, 3, v5"); a.e("v_add_u32 v5, v5, v14"); a.e("v_lshlrev_b32 v5, 7, v5"); a.e("v_add_u32 v5, v5, v12")
        a.e("v_and_b32 v12, 1, v15"); a.e("v_lshlrev_b32 v12, 3, v12"); a.e("v_add_u32 v5, v5, v12")
        a.e("v_add_u32 v6, 0x10000, v5"); a.e("v_add_u32 v9, 0x10000, v8")
        a.e("v_lshrrev_b32 v13, 3, v0"); a.e("v_and_b32 v14, 7, v0"); a.e("v_bfe_u32 v15, v13, 1, 1"); a.e("v_lshlrev_b32 v15, 2, v15")
        a.e("v_xor_b32 v14, v14, v15"); a.e("v_lshlrev_b32 v14, 4, v14")
        a.e("s_movk_i32 s3, 1152"); a.e("v_mul_lo_u32 v10, v13, s3"); a.e("v_add_u32 v10, v10, v14")
        a.e("s_movk_i32 s3, 9216"); a.e("v_mul_lo_u32 v2, v13, s3"); a.e("v_add_u32 v2, v2, v14")
        a.e("v_add_u32 v3, %d, v2" % (8 * 9216 - 1024)); a.e("v_add_u32 v4, %d, v2" % (16 * 9216 - 2048))
    a.e("s_lshl_b32 s34, s24, 10")
    a.e("s_mul_i32 s36, s27, %d" % SLOTB); a.e("s_lshl_b32 s3, s28, 1"); a.e("s_add_u32 s3, s3, s25"); a.e("s_mul_i32 s3, s3, %d" % T64B)
    a.e("s_add_u32 s36, s36, s3"); a.e("s_lshl_b32 s46, s26, 12"); a.e("s_add_u32 s36, s36, s46"); a.e("s_add_u32 s36, s36, %d" % PART)
    if o['cpf']:
        a.e("s_getpc_b64 s[96:97]"); a.lab("K2_pc")
    a.waitlg(0)
    pst(a, 1)
    srd(a, 8, 4, WS_BYTES)
    a.e("s_cmp_eq_u32 s27, 15"); a.e("s_cbranch_scc1 K2_dft")
    f = K.seg("ffn_pro")
    srd(f, 12, 40, 576 * 9216); srd(f, 16, 42, 576 * 9216); srd(f, 20, 44, 4608 * 1152)
    if o['slowpf']:
        f.e("s_sub_u32 s46, s27, 12"); f.e("s_lshl_b32 s46, s46, 4"); f.e("s_add_u32 s46, s46, s28"); f.e("s_lshl_b32 s46, s46, 2"); f.e("s_add_u32 s46, s46, s24")
        f.e("s_lshl_b32 s46, s46, 1")
        f.e("v_lshrrev_b32 v216, 1, v0"); f.e("s_movk_i32 s47, 9216"); f.e("v_mul_lo_u32 v216, v216, s47"); f.e("v_and_b32 v217, 1, v0"); f.e("v_lshlrev_b32 v217, 6, v217")
        f.e("v_add_u32 v216, v216, v217")
        for i in range(2):
            f.e("s_add_u32 s56, s46, %d" % i)
            f.e("s_mul_i32 s47, s56, 3641"); f.e("s_lshr_b32 s47, s47, 16"); f.e("s_mul_i32 s57, s47, 18"); f.e("s_sub_u32 s57, s56, s57")
            f.e("s_and_b32 s58, s47, 1"); f.e("s_cmp_eq_u32 s58, 1"); f.e("s_cselect_b32 s60, s42, s40"); f.e("s_cselect_b32 s61, s43, s41")
            f.e("s_mov_b32 s62, 0x%x" % (576 * 9216)); f.e("s_mov_b32 s63, 0x00020000")
            f.e("s_lshr_b32 s58, s60, 7"); f.e("s_sub_u32 s58, 3, s58"); f.e("s_and_b32 s58, s58, 7")
            f.e("s_lshr_b32 s47, s47, 1"); f.e("s_lshl_b32 s47, s47, 3"); f.e("s_add_u32 s47, s47, s58"); f.e("s_lshl_b32 s47, s47, 7")
            f.e("s_mul_i32 s57, s57, %d" % (32 * 9216)); f.e("s_add_u32 s47, s47, s57")
            f.e("s_cmp_lt_u32 s56, 324"); f.e("s_cselect_b32 s47, s47, 0x7ff00000"); f.e("s_cmp_ge_u32 s27, 12"); f.e("s_cselect_b32 s47, s47, 0x7ff00000")
            f.e("v_add_u32 v217, s47, v216")
            f.e("buffer_load_dword v218, v217, s[60:63], 0 offen ; pf")
    p0_code(f, 27, 46, 47, o['ord'])
    f.e("s_cmp_lt_u32 s27, 12"); f.e("s_cselect_b32 s32, 4, 3")
    f.e("s_mul_i32 s30, s24, %d" % (24 * 9216)); f.e("s_lshl_b32 s47, s46, 7"); f.e("s_add_u32 s30, s30, s47")
    f.e("s_mul_i32 s29, s24, 3072")
    f.e("s_lshl_b32 s47, s46, 6"); f.e("s_lshl_b32 s56, s24, 3"); f.e("s_add_u32 s47, s47, s56"); f.e("s_mul_i32 s35, s47, 1152")
    def xld(st):
        L = []
        for tq in range(4):
            for kkl in range(3):
                L.append("buffer_load_dwordx4 %s, v11, s[8:11], s%d offen offset:%d" % (xreg((3 * st + kkl) * 4 + tq), 64 + kkl, tq * 1024))
        return L, ["s_add_u32 s%d, s%d, 12288" % (64 + kkl, 64 + kkl) for kkl in range(3)]
    if o['xil']:
        f.e("s_lshl_b32 s64, s28, 1"); f.e("s_add_u32 s64, s64, s25"); f.e("s_mul_i32 s64, s64, %d" % T64B)
        if XN: f.e("s_add_u32 s64, s64, %d" % XN)
        f.e("s_add_u32 s65, s64, 4096"); f.e("s_add_u32 s66, s64, 8192")
        xdone = 0
        for st in range(5):
            su, ld = dma1(0, st, st)
            for x in su + ld: f.e(x)
            f.mark("dma")
            if st + 1 >= o['xdm'] and xdone < o['xpre']:
                L, U = xld(xdone); xdone += 1
                for x in L + U: f.e(x)
        while xdone < o['xpre']:
            L, U = xld(xdone); xdone += 1
            for x in L + U: f.e(x)
    else:
      for st in range(5):
        su, ld = dma1(0, st, st)
        for x in su + ld: f.e(x)
        f.mark("dma")
    pst(f, 2)
    if o['cpf']:
        f.e("v_lshlrev_b32 v219, 7, v0"); f.e("s_lshl_b32 s3, s24, 13"); f.e("v_add_u32 v219, s3, v219")
        if o['cpf'] & 2:
            code_addr(f, 216, 219, "K2_g0", "K2_tail320"); f.e(code_ld(218, 216))
        f.e("s_mov_b32 s100, K2_tail320-K2_pc"); f.e("s_mov_b32 s101, K2_ffn4-K2_pc-4"); f.e("s_cmp_ge_u32 s27, 12")
        f.e("s_cselect_b32 s100, K2_ffn4-K2_pc, s100"); f.e("s_cselect_b32 s101, K2_dft-K2_pc-4, s101")
        code_addr(f, 216, 219, None, None, ssel=(100, 101))
        if o['cpk3']:
            code_addr(f, 220, 219, "final_kernel", "K3_end")
    f.e("s_lshl_b32 s3, s28, 1"); f.e("s_add_u32 s3, s3, s25"); f.e("s_mul_i32 s3, s3, %d" % T64B)
    if XN: f.e("s_add_u32 s3, s3, %d" % XN)
    for i in range(72 if not o['xil'] else 0):
        if i % 4 == 0 and i > 0: f.e("s_add_u32 s3, s3, 4096")
        f.e("buffer_load_dwordx4 %s, v11, s[8:11], s3 offen offset:%d" % (xreg(i), (i % 4) * 1024))
    pst(f, 3)
    if o['pfw']:
        f.e("s_and_b32 s56, s28, 7"); f.e("s_lshl_b32 s56, s56, 2"); f.e("s_add_u32 s56, s56, s24"); f.e("s_add_u32 s57, s32, 1")
        f.e("s_mul_i32 s57, s57, 2304"); f.e("s_mul_i32 s56, s56, s57"); f.e("s_mul_i32 s57, s46, 73728"); f.e("s_add_u32 s56, s56, s57")
        if o['pfw'] in (3, 10):
            f.e("s_sub_u32 s56, s27, 12"); f.e("s_lshl_b32 s56, s56, 4"); f.e("s_add_u32 s56, s56, s28"); f.e("s_lshl_b32 s56, s56, 2"); f.e("s_add_u32 s56, s56, s24")
            f.e("s_mul_i32 s56, s56, 27648"); f.e("s_cmp_lt_u32 s27, 12"); f.e("s_cselect_b32 s56, 0x7ff00000, s56")
        f.e("v_add_u32 v192, s56, v11"); f.e("v_add_u32 v193, 4096, v192"); f.e("v_add_u32 v194, 8192, v192")
        if o['pfw'] in (3, 10):
            for j in range(3, 7): f.e("v_add_u32 v%d, %d, v192" % (192 + j + (0 if j < 4 else 16), 4096 * j))
        if o['pfw'] == 4:
            for x in pf_loads(): f.e(x)
        if o['pfw'] == 5:
            f.e("buffer_load_dword v196, v192, s[20:23], 0 offen ; pf")
        if o['pfw'] == 8:
            f.e("v_lshlrev_b32 v195, 6, v0"); f.e("v_add_u32 v192, s56, v195"); f.e("v_add_u32 v193, 4096, v192"); f.e("v_add_u32 v194, 8192, v192")
            for j in range(3): f.e("buffer_load_dword v%d, v%d, s[20:23], 0 offen ; pf" % (196 + j, 192 + j))
        if o['pfw'] == 9:
            f.e("v_lshlrev_b32 v195, 7, v0"); f.e("v_add_u32 v192, s56, v195"); f.e("v_add_u32 v193, 8192, v192")
            for j in range(2): f.e("buffer_load_dword v%d, v%d, s[20:23], 0 offen ; pf" % (196 + j, 192 + j))
    f.e("s_mul_i32 s3, s25, 40960"); f.e("s_lshl_b32 s46, s26, %d" % (10 if o['m16'] else 11)); f.e("s_add_u32 s3, s3, s46"); f.e("s_add_u32 s3, s3, %d" % HB)
    f.e("v_add_u32 v7, s3, v11")
    f.waitmark("dma", 3); pst(f, 4); f.e("s_barrier")
    pst(f, 5)
    stamp(f, 1)
    if o['cpf']: f.lab("K2_g0")
    for n in range(NPRE):
        f.e(rd1(n, 0)); f.e(rd1(n, 1))
    p1 = P1(o)
    def d_g0(i):
        return dma_gaps1(0, 5, 5) if i == 0 else dma_gaps1(1, i - 1, i - 1)
    post0 = None
    if o['pfw'] and o['pfw'] not in (4, 6, 7, 8, 9, 10):
        post0 = pf_post(o['pfw'])
    if o['xil']:
        post0 = dict(post0 or {})
        if o['xpf']:
            L = pf_loads(); post0 = {}
            if o['xpf'] == 1:
                for i in range(2): post0[4 + i] = [(g, L[6 * i + k]) for k, g in enumerate((1, 2, 4, 5, 7, 8))]
            elif o['xpf'] == 2:
                for i in range(3): post0[3 + i] = [(g, L[4 * i + k]) for k, g in enumerate((2, 4, 7, 10))]
        for st in range(o['xpre'], 6):
            L, U = xld(st)
            post0[('g24', st - o['xpre'])] = [(2 * k + 1, x) for k, x in enumerate(L)] + [(23, x) for x in U]
    g0a = g0b = None
    if o['pfw'] == 10:
        f.e("s_cmp_ge_u32 s27, 12"); f.e("s_cbranch_scc1 K2_g0b")
        g0a = K.seg("g0a"); p1.phase(g0a, 0, [], d_g0); stamp(g0a, 2); g0a.e("s_branch K2_loop")
        g0b = K.seg("g0b"); g0b.lab("K2_g0b"); pb = P1(o); pb.phase(g0b, 0, [], d_g0, post=pf_post(3)); stamp(g0b, 2)
    else:
        p1.phase(f, 0, [], d_g0, post=post0)
        stamp(f, 2)
    lp = K.seg("ffn_loop"); lp.lab("K2_loop")
    def d_up(i):
        if i == 0: return dma_gaps1(1, 5, 5) + [(10, "s_add_u32 s30, s30, 128")]
        return dma_gaps1(0, i - 1, i - 1)
    def d_gate(i):
        return dma_gaps1(0, 5, 5) if i == 0 else dma_gaps1(1, i - 1, i - 1)
    postu = postg = None
    if o['pfw'] == 6:
        L = pf_loads()[:4]
        postu = {1 + j: [(4, L[j])] for j in range(4)}
        postu[5] = [(4, "v_add_u32 v192, 4096, v192")]
    if o['pfw'] == 7:
        L = pf_loads()[:4]
        postu = {1: [(4, L[0])], 4: [(4, L[1])]}
        postg = {1: [(4, L[2])], 4: [(4, L[3])], 5: [(4, "v_add_u32 v192, 4096, v192")]}
    if o['cpf'] & 1:
        postu = dict(postu or {}); postu.setdefault(o['cpfst'], []); postu[o['cpfst']] = postu[o['cpfst']] + [(5, code_ld(218, 216))]
    p1.phase(lp, 1, epi1(), d_up, post=postu)
    p1.phase(lp, 0, epi2() + ["v_add_u32 v7, %d, v7" % (2048 if o['m16'] else 4096)], d_gate, post=postg)
    lp.e("s_sub_u32 s32, s32, 1"); lp.e("s_cmp_lg_u32 s32, 0"); lp.e("s_cbranch_scc1 K2_loop")
    nloop = p1.n
    br = K.seg("ffn_br")
    stamp(br, 3)
    br.e("s_cmp_ge_u32 s27, 12"); br.e("s_cbranch_scc1 K2_ffn4")
    tails = {}
    for Kd, lab in ((320, None), (256, "K2_ffn4")):
        t = K.seg("ffn_tail%d" % Kd)
        if lab: t.lab(lab)
        elif o['cpf']: t.lab("K2_tail320")
        p = P1(o); p.n = nloop
        n0 = nloop + 36
        def d_last(i, Kd=Kd):
            return dma_gaps1(1, 5, 5) if i == 0 else dma_gaps2(i - 1, Kd)
        p.phase(t, 1, epi1(), d_last, nextrd=lambda n, h, n0=n0: rd2(n, h, n0), last_barrier=False)
        stamp(t, 4)
        t.e("s_nop 7")
        for x in epi2(): t.e(x)
        t.waitmark("dma", 3); t.waitlg(0); t.e("s_barrier")
        t.e("s_mul_i32 s3, s25, 40960"); t.e("s_add_u32 s3, s3, %d" % HB); t.e("v_add_u32 v1, s3, v11")
        if o['m16']:
            for kk, tq in sorted(((kk, tq) for kk in range(Kd // 32) for tq in range(4)), key=lambda z: (z[0] // 3, z[1], z[0])):
                    j = kk * 4 + tq
                    t.e("ds_read_b128 a[%d:%d], v1 offset:%d" % (4 * j, 4 * j + 3, (tq * 10 + kk) * 1024))
        else:
          for kap in range(Kd // 16):
            for n in range(2):
                j = kap * 2 + n
                t.e("ds_read_b128 a[%d:%d], v1 offset:%d" % (4 * j, 4 * j + 3, (n * 20 + kap) * 1024))
        stamp(t, 5)
        phase2(t, o, n0, Kd, False)
        stamp(t, 6)
        if o['prof']: t.waitall()
        stamp(t, 7); prof_store(t, 1, 8, 8, 24, 12, 60)
        t.e("s_endpgm")
        tails[Kd] = t
    d = K.seg("dft"); d.lab("K2_dft")
    gen_dft(d, o, srd)
    e = K.seg("end"); e.lab("K2_end"); e.e("s_endpgm")
    A_ = [g0a] if g0a else []; B_ = [g0b] if g0b else []
    K.paths = [[a, f] + A_ + [lp] * 4 + [br, tails[320]], [a, f] + B_ + [lp] * 3 + [br, tails[256]], [a, d]]
    return K

def gen_dft(d, o, srd):
    d.e("s_cmp_ge_u32 s28, 8"); d.e("s_cselect_b32 s46, s50, s48"); d.e("s_cselect_b32 s47, s51, s49")
    d.e("s_cselect_b32 s56, s54, s52"); d.e("s_cselect_b32 s57, s55, s53")
    d.e("s_mov_b32 s58, %d" % XEE); d.e("s_cselect_b32 s58, %d, s58" % XOO); d.e("s_cselect_b32 s59, 1536, 0"); d.e("s_cselect_b32 s60, 0, 0xbf803f80")
    srd(d, 12, 46, 2048 * 4096); srd(d, 20, 56, 576 * 1152)
    d.e("s_and_b32 s3, s28, 7"); d.e("s_lshl_b32 s3, s3, 6"); d.e("s_add_u32 s59, s59, s3"); d.e("s_lshl_b32 s59, s59, 1")
    d.e("s_mul_i32 s61, s24, %d" % (16 * 640)); d.e("s_add_u32 s61, s61, s58")
    d.e("s_lshl_b32 s62, s24, 16"); d.e("s_add_u32 s62, s62, s59")
    d.e("v_lshrrev_b32 v13, 3, v0"); d.e("v_and_b32 v14, 7, v0"); d.e("v_bfe_u32 v15, v13, 1, 2"); d.e("v_lshlrev_b32 v15, 1, v15")
    d.e("v_xor_b32 v14, v14, v15"); d.e("v_lshlrev_b32 v14, 4, v14")
    d.e("s_movk_i32 s3, 1280"); d.e("v_mul_lo_u32 v2, v13, s3"); d.e("v_add_u32 v2, v2, v14")
    d.e("v_lshlrev_b32 v3, 13, v13"); d.e("v_add_u32 v3, v3, v14")
    NSD = 33; SL = 24576
    def stage_rows(st):
        return (st % 2, st // 2)
    def dmad(st):
        par, ks = stage_rows(st); slot = st % 6
        L = []
        r0 = 64 * ks + par
        L.append(("s", "s_add_u32 s31, s61, %d" % (r0 * 640)))
        for b in range(5):
            L.append(("s", "s_add_u32 m0, s34, %d" % (slot * SL + b * 4096 - 128 * b)))
            L.append(("l", "buffer_load_dwordx4 v2, s[8:11], s31 offen offset:%d lds" % (128 * b)))
        L.append(("s", "s_add_u32 s63, s62, %d" % (r0 * 4096)))
        L.append(("s", "s_add_u32 m0, s34, %d" % (slot * SL + 5 * 4096)))
        L.append(("l", "buffer_load_dwordx4 v3, s[12:15], s63 offen lds"))
        return L
    for st in range(5):
        for _, x in dmad(st): d.e(x)
        d.mark("dma")
    if o['cpf']:
        d.e("v_lshlrev_b32 v255, 7, v0"); d.e("s_lshl_b32 s3, s24, 13"); d.e("v_add_u32 v255, s3, v255")
        code_addr(d, 252, 255, "K2_dft1", "K2_dft2"); d.e(code_ld(254, 252))
        code_addr(d, 250, 255, "K2_dft2", "K2_dft3")
    if o['pfc'] == 1:
        d.e("v_lshrrev_b32 v13, 3, v0"); d.e("v_and_b32 v14, 7, v0"); d.e("v_lshlrev_b32 v14, 4, v14"); d.e("v_lshlrev_b32 v13, 12, v13"); d.e("v_add_u32 v192, v13, v14")
        d.e("s_mul_i32 s3, s24, %d" % (240 * 4096)); d.e("s_add_u32 s3, s3, s59"); d.e("s_add_u32 s3, s3, %d" % (128 * 4096)); d.e("v_add_u32 v192, s3, v192")
        for j in range(30):
            d.e("buffer_load_dwordx4 v[%d:%d], v192, s[12:15], 0 offen ; pf" % (224 + 4 * (j % 4), 227 + 4 * (j % 4)))
            if j < 29: d.e("v_add_u32 v192, 0x8000, v192")
    if o['pfc']:
        d.e("s_and_b32 s3, s28, 7"); d.e("s_lshl_b32 s3, s3, 2"); d.e("s_add_u32 s3, s3, s24"); d.e("s_mul_i32 s3, s3, 11520")
        d.e("v_add_u32 v192, s3, v11"); d.e("v_add_u32 v193, 4096, v192"); d.e("v_add_u32 v194, 8192, v192")
        for j in range(12):
            d.e("buffer_load_dwordx4 v[%d:%d], v%d, s[20:23], 0 offen offset:%d ; pf" % (224 + 4 * (j % 4), 227 + 4 * (j % 4), 192 + j // 4, (j % 4) * 1024))
    d.e("v_lshrrev_b32 v13, 2, v0"); d.e("v_and_b32 v15, 3, v0"); d.e("v_bfe_u32 v14, v13, 1, 2"); d.e("v_lshlrev_b32 v14, 1, v14")
    d.e("v_lshlrev_b32 v13, 7, v13"); d.e("v_and_b32 v1, 1, v15"); d.e("v_lshlrev_b32 v1, 3, v1"); d.e("v_add_u32 v13, v13, v1")
    d.e("v_lshrrev_b32 v15, 1, v15")
    for u in range(4):
        d.e("v_add_u32 v1, %d, v15" % (2 * u)); d.e("v_xor_b32 v1, v1, v14"); d.e("v_lshlrev_b32 v1, 4, v1"); d.e("v_add_u32 v1, v1, v13")
        d.e("v_add_u32 v%d, %d, v1" % (196 + u, 5 * 4096))
    for i in range(5):
        d.e("s_mul_i32 s3, s24, 5"); d.e("s_add_u32 s3, s3, %d" % i)
        d.e("s_and_b32 s46, s3, 3"); d.e("s_lshl_b32 s46, s46, 1"); d.e("s_lshr_b32 s47, s3, 2"); d.e("s_lshl_b32 s47, s47, 12")
        d.e("v_add_u32 v1, s46, v15"); d.e("v_xor_b32 v1, v1, v14"); d.e("v_lshlrev_b32 v1, 4, v1"); d.e("v_add_u32 v1, v1, v13")
        d.e("v_add_u32 v%d, s47, v1" % (200 + i))
    for q in range(9): d.e("v_add_u32 v%d, %d, v%d" % (205 + q, 3 * SL, 196 + q))
    for q in range(4): d.e("v_mov_b32 v%d, s60" % (216 + q))
    def frag(st, q):
        return (st % 2) * 36 + 4 * q
    def rdd(st, q, half):
        slot = st % 6; base = 196 + q
        if slot >= 3: base += 9; slot -= 3
        r = frag(st, q) + 2 * half
        return "ds_read_b64_tr_b16 a[%d:%d], v%d offset:%d" % (r, r + 1, base, slot * SL + half * 2048)
    d.waitmark("dma", 3); d.e("s_barrier")
    stamp(d, 1); stamp(d, 2)
    if o['cpf']: d.lab("K2_dft1")
    order = [4, 0, 1, 2, 3, 5, 6, 7, 8]
    for q in order: d.e(rdd(0, q, 0)); d.e(rdd(0, q, 1))
    for st in range(NSD):
        par, ks = stage_rows(st)
        mf = []
        for i in range(5):
            A = frag(st, 4 + i)
            for u in range(4):
                B = frag(st, u); D = 16 + par * 80 + (i * 4 + u) * 4
                C = "0" if ks == 0 else "v[%d:%d]" % (D, D + 3)
                mf.append(["v_mfma_f32_16x16x32_bf16 v[%d:%d], a[%d:%d], a[%d:%d], %s" % (D, D + 3, A, A + 3, B, B + 3, C)])
            if par == 0:
                D = 176 + 4 * i; C = "0" if ks == 0 else "v[%d:%d]" % (D, D + 3)
                mf.append(["v_mfma_f32_16x16x32_bf16 v[%d:%d], a[%d:%d], v[216:219], %s" % (D, D + 3, A, A + 3, C)])
        G = len(mf)
        gaps = [[] for _ in range(G)]
        fill = []
        if st + 1 < NSD:
            for q in order: fill += [rdd(st + 1, q, 0), rdd(st + 1, q, 1)]
        dm = dmad(st + 5) if st + 5 < NSD else []
        for g, x in enumerate(fill): gaps[g].append(x)
        if dm:
            pos = [2, 5, 8, 11, 14, 17]; li = 0; pendS = []
            for kind, x in dm:
                if kind == "s": pendS.append(x)
                else:
                    g = pos[li]; li += 1
                    for y in pendS: gaps[g - 1].append(y)
                    pendS = []
                    gaps[g].append(x)
            gaps[17].append(('mark', 'dma'))
        if o['cpf'] and st == o['cpd1']: gaps[19].append(code_ld(254, 250))
        emit_gaps(d, mf, gaps)
        if st + 2 <= NSD - 1:
            last_issued = min(st + 5, NSD - 1)
            d.waitmark("dma", last_issued - (st + 2)); d.e("s_barrier")
    d.e("s_barrier")
    stamp(d, 3)
    if o['cpf']:
        d.lab("K2_dft2")
        if o['cpk3']: code_addr(d, 252, 255, "final_kernel", "K3_end")
    d.e("s_mul_i32 s35, s24, %d" % (8 * 1152))
    for st in range(5):
        for su, ld in dma2(st, 320):
            for x in su: d.e(x)
            d.e(ld)
        d.mark("dma"); d.mark("w2_%d" % st)
    if o['m16']:
        d.e("s_and_b32 s46, s24, 1"); d.e("s_mul_i32 s3, s24, 5"); d.e("s_sub_u32 s3, s3, s46"); d.e("s_lshr_b32 s3, s3, 1")
        d.e("s_lshl_b32 s47, s46, 3")
        d.e("s_cmp_eq_u32 s46, 1"); d.e("s_cselect_b32 s56, 1024, 8"); d.e("s_cselect_b32 s57, 64, 8")
        d.e("s_lshl_b32 s58, s3, 10"); d.e("s_add_u32 s58, s58, %d" % HB)
        d.e("s_add_u32 s59, s58, s47"); d.e("v_add_u32 v7, s59, v11"); d.e("v_add_u32 v6, 40960, v7")
        d.e("s_add_u32 s59, s58, s56"); d.e("v_add_u32 v4, s59, v11"); d.e("v_add_u32 v3, 40960, v4")
        d.e("v_lshrrev_b32 v15, 4, v0"); d.e("v_lshlrev_b32 v15, 4, v15")
        d.e("s_lshl_b32 s58, s3, 6"); d.e("s_add_u32 s58, s58, %d" % HX)
        d.e("s_add_u32 s59, s58, s47"); d.e("v_add_u32 v5, s59, v15"); d.e("s_add_u32 s59, s58, s57"); d.e("v_add_u32 v2, s59, v15")
    else:
        d.e("v_lshrrev_b32 v13, 4, v0"); d.e("v_and_b32 v14, 15, v0"); d.e("v_and_b32 v15, 1, v13"); d.e("v_lshlrev_b32 v15, 5, v15"); d.e("v_add_u32 v14, v14, v15")
        d.e("v_lshlrev_b32 v14, 4, v14"); d.e("v_lshrrev_b32 v13, 1, v13"); d.e("v_lshlrev_b32 v1, 3, v13"); d.e("v_add_u32 v14, v14, v1")
        d.e("s_mul_i32 s3, s24, 5120"); d.e("s_add_u32 s3, s3, %d" % HB); d.e("v_add_u32 v7, s3, v14")
        d.e("v_add_u32 v6, 40960, v7")
        d.e("v_lshlrev_b32 v15, 4, v0"); d.e("v_lshrrev_b32 v15, 8, v15"); d.e("v_and_b32 v15, 1, v15"); d.e("v_lshlrev_b32 v15, 4, v15"); d.e("v_add_u32 v15, v15, v1")
        d.e("s_mul_i32 s3, s24, 160"); d.e("s_add_u32 s3, s3, %d" % HX); d.e("v_add_u32 v5, s3, v15")
    k = 0
    for i in range(5):
        for u in range(4):
            E = 16 + (i * 4 + u) * 4; O = E + 80
            t = 220 + 8 * (k % 4); k += 1
            for j in range(4):
                d.e("v_add_f32 v%d, v%d, v%d" % (t + j, E + j, O + j)); d.e("v_sub_f32 v%d, v%d, v%d" % (t + 4 + j, E + j, O + j))
            d.e("v_cvt_pk_bf16_f32 v%d, v%d, v%d" % (t, t, t + 1)); d.e("v_cvt_pk_bf16_f32 v%d, v%d, v%d" % (t + 1, t + 2, t + 3))
            d.e("v_cvt_pk_bf16_f32 v%d, v%d, v%d" % (t + 4, t + 4, t + 5)); d.e("v_cvt_pk_bf16_f32 v%d, v%d, v%d" % (t + 5, t + 6, t + 7))
            if o['m16']:
                off = (i // 2) * 1024 + u * 10240; ra, rb = (7, 6) if i % 2 == 0 else (4, 3)
                d.e("ds_write_b64 v%d, v[%d:%d] offset:%d" % (ra, t, t + 1, off)); d.e("ds_write_b64 v%d, v[%d:%d] offset:%d" % (rb, t + 4, t + 5, off))
                continue
            off = i * 1024 + (u >> 1) * 20480 + (u & 1) * 256
            d.e("ds_write_b64 v7, v[%d:%d] offset:%d" % (t, t + 1, off)); d.e("ds_write_b64 v6, v[%d:%d] offset:%d" % (t + 4, t + 5, off))
        X = 176 + 4 * i
        d.e("v_cvt_pk_bf16_f32 v%d, v%d, v%d" % (X, X, X + 1)); d.e("v_cvt_pk_bf16_f32 v%d, v%d, v%d" % (X + 1, X + 2, X + 3))
        if o['m16']: d.e("ds_write_b64 v%d, v[%d:%d] offset:%d" % (5 if i % 2 == 0 else 2, X, X + 1, (i // 2) * 64))
        else: d.e("ds_write_b64 v5, v[%d:%d] offset:%d" % (X, X + 1, i * 32))
    d.e("v_and_b32 v13, 31, v0"); d.e("v_lshrrev_b32 v14, 4, v13"); d.e("v_lshlrev_b32 v12, 10, v14")
    d.e("v_bfe_u32 v14, v13, 2, 1"); d.e("v_lshlrev_b32 v14, 9, v14"); d.e("v_add_u32 v12, v12, v14")
    d.e("v_bfe_u32 v14, v13, 3, 1"); d.e("v_lshlrev_b32 v14, 3, v14"); d.e("v_add_u32 v12, v12, v14")
    d.e("s_add_u32 s38, s28, 32"); d.e("s_mul_i32 s38, s38, %d" % T64B); d.e("s_lshl_b32 s3, s26, 12"); d.e("s_add_u32 s38, s38, s3")
    d.e("s_add_u32 s38, s38, %d" % (PART + 15 * SLOTB))
    d.waitmark("dma", 3); d.waitlg(0); d.e("s_barrier")
    stamp(d, 4)
    d.e("s_mul_i32 s3, s25, 40960"); d.e("s_add_u32 s3, s3, %d" % HB); d.e("v_add_u32 v1, s3, v11")
    d.e("v_lshrrev_b32 v13, %d, v0" % (4 if o['m16'] else 5)); d.e("v_lshlrev_b32 v13, 4, v13"); d.e("v_add_u32 v13, %d, v13" % HX)
    n0 = 0
    for n in range(LA[0] if o['m16'] else PF):
        d.e(rd2(n, 0, n0)); d.e(rd2(n, 1, n0))
    for kk, tq in (sorted(((kk, tq) for kk in range(10) for tq in range(5)), key=lambda z: (z[0] // 3, z[1], z[0])) if o['m16'] else []):
        j = kk * 4 + tq
        if tq < 4: d.e("ds_read_b128 a[%d:%d], v1 offset:%d" % (4 * j, 4 * j + 3, (tq * 10 + kk) * 1024))
        else: d.e("ds_read_b128 v[%d:%d], v13 offset:%d" % (112 + 4 * kk, 115 + 4 * kk, kk * 64))
    for kap in ([] if o['m16'] else range(20)):
        for n in range(2):
            j = kap * 2 + n
            d.e("ds_read_b128 a[%d:%d], v1 offset:%d" % (4 * j, 4 * j + 3, (n * 20 + kap) * 1024))
        r = (112 + 4 * kap) if kap < 16 else (192 + 4 * (kap - 16))
        d.e("ds_read_b128 v[%d:%d], v13 offset:%d" % (r, r + 3, kap * 32))
    stamp(d, 5)
    phase2(d, o, n0, 320, True)
    stamp(d, 6)
    if o['prof']: d.waitall()
    stamp(d, 7); prof_store(d, 1, 8, 8, 24, 14, 60)
    if o['cpf']: d.lab("K2_dft3")
    d.e("s_endpgm")
```

```python
from emit import *
XN   = 0x0
XEE  = 0x240000
XOO  = 0x300000
PART = 0x400000
SLOTB = 2359296
T64B = 73728
WS_BYTES = 0x4000000
SLOT = 12288; NS = 6
HB = 73728
HX = HB + 81920
LDS_BYTES = HX + 1024
PF = 3
NF = 8
CNEG = 33
NS2 = [6]
M16 = [0]
LA = [4]
def stamp(seg, i): pass
def prof_store(*a): pass

def wt(ins, o):
    if ins.startswith("v_exp") or ins.startswith("v_rcp"): return o['wtrans']
    if ins.startswith("s_"): return o['wsalu']
    return 1.0

def spread(gaps, queue, o, start=0, end=None):
    if not queue: return
    G = len(gaps) if end is None else end
    idx = list(range(start, G))
    load = {g: sum(wt(i, o) for i in gaps[g] if isinstance(i, str)) for g in idx}
    tot = sum(load.values()) + sum(wt(i, o) for i in queue)
    p = 0; cum = load[idx[0]]
    for ins in queue:
        w = wt(ins, o)
        while p < len(idx) - 1 and cum + w * 0.5 > tot * (p + 1) / len(idx):
            p += 1; cum += load[idx[p]]
        gaps[idx[p]].append(ins); cum += w

def emit_gaps(s, mf, gaps):
    for m, g in zip(mf, gaps):
        for pre in m[:-1]: put(s, pre)
        s.e(m[-1])
        for x in g: put(s, x)

def put(s, x):
    if isinstance(x, str): s.e(x)
    elif x[0] == 'mark': s.mark(x[1])
    elif x[0] == 'waitmark': s.waitmark(x[1], x[2])
    elif x[0] == 'waitlg': s.waitlg(x[1])
    elif x[0] == 'c': s.c(x[1])
    else: raise ValueError(x)

def xreg(i):
    return ("a[%d:%d]" % (4 * i, 4 * i + 3)) if i < 64 else ("v[%d:%d]" % (224 + 4 * (i - 64), 227 + 4 * (i - 64)))

def areg(n): r = 80 + 4 * (n % NF); return r

def rd1(n, half):
    if M16[0]:
        st = n // 6; q = n % 6; fh = q // 3; kkl = q % 3
        r = areg(n) + 2 * half
        off = (st % NS) * SLOT + kkl * 4096 + half * 512; base = 5 if fh == 0 else 13
        if off >= 65536: off -= 65536; base += 1
        return "ds_read_b64_tr_b16 v[%d:%d], v%d offset:%d" % (r, r + 1, base, off)
    st = n // 6; kp = n % 6
    r = areg(n) + 2 * half
    off = (st % NS) * SLOT + kp * 2048 + half * 512; base = 5
    if off >= 65536: off -= 65536; base = 6
    return "ds_read_b64_tr_b16 v[%d:%d], v%d offset:%d" % (r, r + 1, base, off)

def rd2(n, half, n0):
    if M16[0]:
        q = n - n0; st = q // 6; qq = q % 6; dh = qq // 3; bl = qq % 3
        r = areg(n) + 2 * half
        off = (st % NS2[0]) * SLOT + bl * 4096 + half * 2048; base = 8
        if off >= 131072: off -= 131072; base = 2
        elif off >= 65536: off -= 65536; base = 5
        return "ds_read_b64_tr_b16 v[%d:%d], v%d offset:%d" % (r, r + 1, base + dh, off)
    q = n - n0; st = q // 6; kp = q % 6
    r = areg(n) + 2 * half
    off = (st % NS2[0]) * SLOT + kp * 2048 + half * 1024; base = 8
    if off >= 131072: off -= 131072; base = 5
    elif off >= 65536: off -= 65536; base = 9
    return "ds_read_b64_tr_b16 v[%d:%d], v%d offset:%d" % (r, r + 1, base, off)

def dma1(mat, kc, slot):
    sr = 12 if mat == 0 else 16
    su = ["s_add_u32 m0, s29, %d" % (slot * SLOT), "s_add_u32 s31, s30, %d" % (kc * 96 * 9216)]
    ld = ["buffer_load_dwordx4 v%d, s[%d:%d], s31 offen offset:%d lds" % (2 + j, sr, sr + 3, 1024 * j) for j in range(3)]
    return su, ld

def dma2(st, K):
    out = []
    for j in range(3):
        R = 96 * st + 32 * j; sg = R // K; row0 = R % K
        su = ["s_add_u32 m0, s34, %d" % ((st % NS2[0]) * SLOT + j * 4096), "s_add_u32 s31, s35, %d" % (sg * 128 + row0 * 1152)]
        out.append((su, "buffer_load_dwordx4 v10, s[20:23], s31 offen lds"))
    return out

def epi1():
    L = []
    for p0 in range(0, 32, 4):
        for j in range(4): L.append("v_mul_f32 v%d, s%d, v%d" % (112 + p0 + j, CNEG, 16 + p0 + j))
        for j in range(4): L.append("v_exp_f32 v%d, v%d" % (144 + p0 + j, 112 + p0 + j))
        for j in range(4): L.append("v_fma_f32 v%d, v%d, s%d, s%d" % (144 + p0 + j, 144 + p0 + j, CNEG, CNEG))
    return L

def epi2():
    L = []
    for p0 in range(0, 32, 4):
        for j in range(4): L.append("v_rcp_f32 v%d, v%d" % (144 + p0 + j, 144 + p0 + j))
        for j in range(4): L.append("v_mul_f32 v%d, v%d, v%d" % (112 + p0 + j, 112 + p0 + j, 48 + p0 + j))
        for j in range(4): L.append("v_mul_f32 v%d, v%d, v%d" % (112 + p0 + j, 112 + p0 + j, 144 + p0 + j))
        for j in range(0, 4, 2): L.append("v_cvt_pk_bf16_f32 v%d, v%d, v%d" % (176 + (p0 + j) // 2, 112 + p0 + j, 112 + p0 + j + 1))
        if p0 % 8 == 4 and M16[0]:
            tq = p0 // 8
            L.append("ds_write_b128 v7, v[%d:%d] offset:%d" % (176 + 4 * tq, 179 + 4 * tq, tq * 10240))
        elif p0 % 8 == 4:
            n = p0 // 16; J = (p0 // 8) % 2
            L.append("ds_write_b128 v7, v[%d:%d] offset:%d" % (176 + n * 8 + 4 * J, 179 + n * 8 + 4 * J, n * 20480 + J * 1024))
    return L

def p0_code(f, sp, d, t, order):
    if order == 0:
        f.e("s_mul_i32 s%d, s%d, 5" % (d, sp)); f.e("s_lshl_b32 s%d, s%d, 2" % (t, sp)); f.e("s_add_u32 s%d, s%d, 12" % (t, t))
        f.e("s_cmp_lt_u32 s%d, 12" % sp); f.e("s_cselect_b32 s%d, s%d, s%d" % (d, d, t))
    else:
        f.e("s_mul_i32 s%d, s%d, 5" % (d, sp))
        f.e("s_cmp_ge_u32 s%d, 5" % sp); f.e("s_cselect_b32 s%d, 4, 0" % t); f.e("s_add_u32 s%d, s%d, s%d" % (d, d, t))
        f.e("s_cmp_ge_u32 s%d, 10" % sp); f.e("s_cselect_b32 s%d, 4, 0" % t); f.e("s_add_u32 s%d, s%d, s%d" % (d, d, t))
        f.e("s_cmp_eq_u32 s%d, 12" % sp); f.e("s_cselect_b32 s%d, 25, s%d" % (d, d))
        f.e("s_cmp_eq_u32 s%d, 13" % sp); f.e("s_cselect_b32 s%d, 54, s%d" % (d, d))
        f.e("s_cmp_eq_u32 s%d, 14" % sp); f.e("s_cselect_b32 s%d, 0x44, s%d" % (d, d))

def code_addr(s, va, vt, frm, to, ssel=None):
    if ssel:
        s.e("v_add_u32 v%d, s%d, v%d" % (va, ssel[0], vt)); s.e("v_min_u32 v%d, s%d, v%d" % (va, ssel[1], va))
    else:
        s.e("v_add_u32 v%d, %s-K2_pc, v%d" % (va, frm, vt)); s.e("v_min_u32 v%d, %s-K2_pc-4, v%d" % (va, to, va))
    s.e("v_add_co_u32 v%d, s[98:99], s96, v%d" % (va, va)); s.e("v_mov_b32 v%d, s97" % (va + 1))
    s.e("v_addc_co_u32 v%d, s[98:99], 0, v%d, s[98:99]" % (va + 1, va + 1))

def code_ld(vd, va): return "global_load_dword v%d, v[%d:%d], off ; pf" % (vd, va, va + 1)

class P1:
    def __init__(self, o): self.n = 0; self.o = o
    def phase(self, s, mat, epi, dmaf, extra_first=None, nextrd=None, last_barrier=True, first_c0=True, post=None):
        o = self.o
        if M16[0]: return self.phase16(s, mat, epi, dmaf, nextrd, last_barrier, post)
        acc = 16 if mat == 0 else 48
        per = (len(epi) + 5) // 6
        epi = list(epi)
        for i in range(6):
            gaps = [[] for _ in range(12)]
            mf = []
            for kp in range(6):
                n = self.n + kp
                f = nextrd if nextrd else rd1
                nn = n + PF
                if nextrd and (i * 6 + kp + PF) < 36: f = rd1
                gaps[2 * kp].append(f(nn, 0)); gaps[2 * kp + 1].append(f(nn, 1))
                kap = i * 6 + kp
                for t in range(2):
                    A = areg(n); D = acc + 16 * t
                    C = "0" if kap == 0 else "v[%d:%d]" % (D, D + 15)
                    mf.append(["v_mfma_f32_32x32x16_bf16 v[%d:%d], v[%d:%d], %s, %s" % (D, D + 15, A, A + 3, xreg(kap * 2 + t), C)])
            for g, ins in dmaf(i): gaps[g].append(ins)
            if i == 0:
                mine = epi[:per - o['first_less']]; epi = epi[len(mine):]
                spread(gaps, mine, o, start=o['epi_start'])
            else:
                rem = 6 - i
                cnt = (len(epi) + rem - 1) // rem
                mine = epi[:cnt]; epi = epi[cnt:]
                spread(gaps, mine, o)
            if post and i in post:
                for g, ins in post[i]: gaps[g].append(ins)
            if s.name == "ffn_loop":
                def keep(x):
                    if not isinstance(x, str): return True
                    if o['nords'] and x.startswith("ds_read"): return False
                    if o['noepi'] and (x.startswith("v_") or x.startswith("ds_write")) : return False
                    if o['nodma'] and x.startswith("buffer_load"): return False
                    return True
                gaps = [[x for x in g if keep(x)] for g in gaps]
            emit_gaps(s, mf, gaps)
            self.n += 6
            if i < 5 or last_barrier:
                s.waitmark("dma", 3)
                if not (s.name == "ffn_loop" and (o['nobar'] == 1 or (o['nobar'] == 2 and i % 2 == 0))): s.e("s_barrier")
        assert not epi

def g24(g):
    return 2 * g + 1

def phase16(self, s, mat, epi, dmaf, nextrd, last_barrier, post):
    o = self.o
    acc = 16 if mat == 0 else 48
    per = (len(epi) + 5) // 6
    epi = list(epi)
    la = LA[0]
    for i in range(6):
        gaps = [[] for _ in range(24)]
        mf = []
        for fh in range(2):
            G0 = self.n + 3 * fh
            k = 0
            for j in range(3):
                nn = G0 + la + j
                f = rd1
                if nextrd and (i * 6 + 3 * fh + la + j) >= 36: f = nextrd
                for h in range(2):
                    gaps[12 * fh + o['rdpos'] + o['rdstep'] * k].append(f(nn, h)); k += 1
            for tq in range(4):
                for kkl in range(3):
                    A = areg(G0 + kkl); D = acc + 8 * tq + 4 * fh
                    C = "0" if (i == 0 and kkl == 0) else "v[%d:%d]" % (D, D + 3)
                    mf.append(["v_mfma_f32_16x16x32_bf16 v[%d:%d], v[%d:%d], %s, %s" % (D, D + 3, A, A + 3, xreg((3 * i + kkl) * 4 + tq), C)])
        for g, ins in dmaf(i): gaps[g24(g)].append(ins)
        if post and i in post:
            for g, ins in post[i]: gaps[g24(g)].append(ins)
        if post and ('g24', i) in post:
            for g, ins in post[('g24', i)]: gaps[g].append(ins)
        if i == 0:
            mine = epi[:max(per - o['first_less'], 0)]; epi = epi[len(mine):]
            spread(gaps, mine, o, start=o['epi_start'])
        else:
            rem = 6 - i
            cnt = (len(epi) + rem - 1) // rem
            mine = epi[:cnt]; epi = epi[cnt:]
            spread(gaps, mine, o)
        if s.name == "ffn_loop":
            def keep(x):
                if not isinstance(x, str): return True
                if o['nords'] and x.startswith("ds_read"): return False
                if o['noepi'] and (x.startswith("v_") or x.startswith("ds_write")) : return False
                if o['nodma'] and x.startswith("buffer_load"): return False
                return True
            gaps = [[x for x in g if keep(x)] for g in gaps]
        emit_gaps(s, mf, gaps)
        self.n += 6
        if i < 5 or last_barrier:
            s.waitmark("dma", 3)
            if not (s.name == "ffn_loop" and (o['nobar'] == 1 or (o['nobar'] == 2 and i % 2 == 0))): s.e("s_barrier")
    assert not epi
P1.phase16 = phase16

def pf_loads():
    return ["buffer_load_dwordx4 v[%d:%d], v%d, s[20:23], 0 offen offset:%d" % (196 + 4 * (j % 4), 199 + 4 * (j % 4), 192 + j // 4, (j % 4) * 1024) + " ; pf" for j in range(12)]

def pf_post(mode):
    L = pf_loads(); post = {}
    if mode == 1:
        for i in range(4): post[1 + i] = [(4, L[3 * i]), (7, L[3 * i + 1]), (10, L[3 * i + 2])]
    elif mode == 5:
        for i in range(4): post[1 + i] = [(4, L[3 * i]), (7, L[3 * i + 1]), (10, L[3 * i + 2])]
    elif mode == 3:
        ar = [192, 193, 194, 195, 212, 213, 214]
        L = ["buffer_load_dwordx4 v[%d:%d], v%d, s[20:23], 0 offen offset:%d ; pf" % (196 + 4 * (j % 4), 199 + 4 * (j % 4), ar[j // 4], (j % 4) * 1024) for j in range(27)]
        pos = [2, 4, 5, 7, 8, 10]
        for i in range(6):
            mine = L[5 * i: 5 * i + 5] if i < 5 else L[25:]
            post[i] = [(pos[k], x) for k, x in enumerate(mine)]
    elif mode == 2:
        for i in range(6): post[i] = [(4, L[2 * i]), (10, L[2 * i + 1])]
    return post

def dma_gaps1(mat, kc, slot):
    su, ld = dma1(mat, kc, slot)
    return [(0, su[0]), (1, su[1]), (3, ld[0]), (6, ld[1]), (9, ld[2]), (9, ('mark', 'dma'))]

def dma_gaps2(st, K, pos=(1, 5, 9)):
    L = []
    for j, (su, ld) in enumerate(dma2(st, K)):
        g = pos[j]
        L += [(g - 1, su[0]), (g - 1, su[1]), (g, ld)]
    L.append((pos[2], ('mark', 'dma'))); L.append((pos[2], ('mark', 'w2_%d' % st)))
    return L

def phase2_16(s, o, n0, K, dft):
    nk = K // 32; NB = 9 * nk; nst = NB // 3; Q = 6 * nst; la = LA[0]
    NT = 5 if dft else 4
    def accof(seg, tq, dh):
        if tq == 4: return 208 + 8 * (seg % 2) + 4 * dh
        return (16 if seg % 2 == 0 else 48) + 8 * tq + 4 * dh
    stf = o['stf'].replace('+', ' ')
    def st_out(seg):
        L = ["s_add_u32 s37, s36, %d" % (seg * 8192)]
        for tq in range(4):
            r = accof(seg, tq, 0)
            for q in range(4): L.append("v_cvt_pk_bf16_f32 v%d, v%d, v%d" % (176 + 4 * tq + q, r + 2 * q, r + 2 * q + 1))
            if not (o['nostore'] and seg < 8):
                L.append("buffer_store_dwordx4 v[%d:%d], v11, s[8:11], s37 offen offset:%d %s" % (176 + 4 * tq, 179 + 4 * tq, tq * 1024, stf))
        if dft:
            r = accof(seg, 4, 0)
            L.append("s_add_u32 s39, s38, %d" % (seg * 8192))
            for q in range(4): L.append("v_cvt_pk_bf16_f32 v%d, v%d, v%d" % (192 + q, r + 2 * q, r + 2 * q + 1))
            L.append("buffer_store_dwordx4 v[192:195], v11, s[8:11], s39 offen %s" % stf)
        return L
    s.e("v_add_u32 v5, 0x10000, v8"); s.e("v_add_u32 v6, 0x10000, v9")
    if NS2[0] > 6: s.e("v_add_u32 v2, 0x20000, v8"); s.e("v_add_u32 v3, 0x20000, v9")
    pend = []; GP = 6 * NT
    for st in range(nst):
        gaps = [[] for _ in range(GP)]
        mf = []
        done = None
        for dh in range(2):
            G0 = n0 + 6 * st + 3 * dh
            k = 0
            for j in range(3):
                nn = G0 + la + j
                for h in range(2):
                    if nn - n0 < Q: gaps[3 * NT * dh + o['rdpos'] + o['rdstep'] * k].append(rd2(nn, h, n0))
                    k += 1
            for tq in range(NT):
                for bl in range(3):
                    b = 3 * st + bl; seg = b // nk; kk = b % nk
                    A = areg(G0 + bl); D = accof(seg, tq, dh)
                    C = "0" if kk == 0 else "v[%d:%d]" % (D, D + 3)
                    B = ("a[%d:%d]" % (4 * (kk * 4 + tq), 4 * (kk * 4 + tq) + 3)) if tq < 4 else ("v[%d:%d]" % (112 + 4 * kk, 115 + 4 * kk))
                    mf.append(["v_mfma_f32_16x16x32_bf16 v[%d:%d], v[%d:%d], %s, %s" % (D, D + 3, A, A + 3, B, C)])
                    if kk == nk - 1: done = seg
        if NS2[0] == 6: iss = [st + 5]
        elif st == 0: iss = [5]
        elif st <= 6: iss = [2 * st + 4, 2 * st + 5]
        else: iss = [st + 11]
        iss = [x for x in iss if x < nst]
        if len(iss) == 2:
            L = dma_gaps2(iss[0], K, (1, 3, 5)) + dma_gaps2(iss[1], K, (7, 9, 11))
        elif iss: L = dma_gaps2(iss[0], K)
        else: L = []
        def gm(g): return min(GP - 1, (2 * g + 1) * GP // 24)
        for g, ins in L: gaps[gm(g)].append(ins)
        if o['cpk3'] and st == nst - o['cpk3']: gaps[3].append(code_ld(222 if not dft else 254, 220 if not dft else 252))
        if pend:
            start = pend_start
            room = int((GP - start) * o['p2_rate16'])
            mine = pend[:room]; pend = pend[room:]
            spread(gaps, mine, o, start=start)
            pend_start = 0
        emit_gaps(s, mf, gaps)
        if done is not None and done < 8:
            assert not pend
            pend = st_out(done); pend_start = o['p2_delay16']
        if st + 2 <= nst - 1:
            s.waitmark("w2_%d" % (st + 2), 0); s.e("s_barrier")
    assert not pend
    for ins in st_out(8): s.e(ins)

def phase2(s, o, n0, K, dft):
    if M16[0]: return phase2_16(s, o, n0, K, dft)
    nk = K // 16; Q = 9 * nk; nst = Q // 6
    def st_out(seg):
        acc = 16 if seg % 2 == 0 else 48
        L = ["s_add_u32 s37, s36, %d" % (seg * 8192)]
        for n in range(2):
            for J in range(2):
                for q in range(4):
                    r = acc + 16 * n + 8 * J + 2 * q
                    L.append("v_cvt_pk_bf16_f32 v%d, v%d, v%d" % (176 + n * 8 + 4 * J + q, r, r + 1))
                if not (o['nostore'] and seg < 8):
                    L.append("buffer_store_dwordx4 v[%d:%d], v11, s[8:11], s37 offen offset:%d %s" % (176 + n * 8 + 4 * J, 179 + n * 8 + 4 * J, n * 2048 + J * 1024, o['stf'].replace('+', ' ')))
        if dft:
            x = 208 + 4 * (seg % 2)
            L += ["v_mov_b32 v%d, v%d" % (216 + i, x + i) for i in range(4)]
            L += ["s_add_u32 s39, s38, %d" % (seg * 8192)]
            L += ["v_permlane32_swap_b32 v%d, v%d" % (x + i, 216 + i) for i in range(4)]
            L += ["v_add_f32 v%d, v%d, v%d" % (216 + i, x + i, 216 + i) for i in range(4)]
            L += ["v_cvt_pk_bf16_f32 v216, v216, v217", "v_cvt_pk_bf16_f32 v217, v218, v219",
                  "buffer_store_dwordx2 v[216:217], v12, s[8:11], s39 offen"]
        return L
    def hx(kap, j):
        return (112 + 4 * kap + j) if kap < 16 else (192 + 4 * (kap - 16) + j)
    pend = []
    if NS2[0] > 6: s.e("v_add_u32 v5, 0x20000, v8")
    for st in range(nst):
        gaps = [[] for _ in range(12)]
        mf = []
        newseg = None
        for kp in range(6):
            q = st * 6 + kp; seg = q // nk; kap = q % nk
            n = n0 + q
            if q + PF < Q:
                gaps[2 * kp].append(rd2(n + PF, 0, n0)); gaps[2 * kp + 1].append(rd2(n + PF, 1, n0))
            acc = 16 if seg % 2 == 0 else 48
            for t in range(2):
                A = areg(n); D = acc + 16 * t
                C = "0" if kap == 0 else "v[%d:%d]" % (D, D + 15)
                j = kap * 2 + t
                mf.append(["v_mfma_f32_32x32x16_bf16 v[%d:%d], v[%d:%d], a[%d:%d], %s" % (D, D + 15, A, A + 3, 4 * j, 4 * j + 3, C)])
            if dft:
                x = 208 + 4 * (seg % 2); A = areg(n)
                for jj in range(2):
                    c = "0" if (kap == 0 and jj == 0) else "v[%d:%d]" % (x, x + 3)
                    gaps[2 * kp + jj].insert(0, "v_mfma_f32_4x4x4_16b_bf16 v[%d:%d], v[%d:%d], v[%d:%d], %s" % (x, x + 3, A + 2 * jj, A + 2 * jj + 1, hx(kap, 2 * jj), hx(kap, 2 * jj + 1), c))
            if kap == 0 and seg > 0:
                newseg = (kp, seg - 1)
        if NS2[0] == 6: iss = [st + 5]
        elif st == 0: iss = [5]
        elif st <= 6: iss = [2 * st + 4, 2 * st + 5]
        else: iss = [st + 11]
        iss = [x for x in iss if x < nst]
        if len(iss) == 2:
            L = dma_gaps2(iss[0], K, (1, 3, 5)) + dma_gaps2(iss[1], K, (7, 9, 11))
        elif iss: L = dma_gaps2(iss[0], K)
        else: L = []
        for g, ins in L: gaps[g].append(ins)
        if newseg is not None:
            kp, sg = newseg
            assert not pend
            pend = st_out(sg)
            start = 2 * kp + o['p2_epi_delay']
        else:
            start = 0
        if pend:
            if start < 12:
                room = (12 - start) * o['p2_epi_rate']
                mine = pend[:room]; pend = pend[room:]
                spread(gaps, mine, o, start=start)
        emit_gaps(s, mf, gaps)
        if st + 2 <= nst - 1:
            s.waitmark("w2_%d" % (st + 2), 0); s.e("s_barrier")
    assert not pend
    for ins in st_out(8): s.e(ins)

def gen_k2(Kern, srd, opts):
    o = dict(xl=0, xt=0, xil=0, xpre=2, xpf=0, xdm=2, pstamp=0, ord=0, slowpf=0, cpf=0, cpfst=1, cpk3=0, cpd1=18, m16=0, la=4, rdpos=0, rdstep=2, p2_rate16=1.0, p2_delay16=2, pfw=0, pfc=0, ns2=6, map=0, prof=0, nostore=0, stf='', nords=0, noepi=0, nodma=0, nobar=0, wtrans=2.0, wsalu=0.3, epi_start=4, first_less=4, p2_epi_delay=5, p2_epi_rate=2)
    for k, v in opts.items():
        if k in o: o[k] = type(o[k])(v)
    NS2[0] = o['ns2']; M16[0] = o['m16']; LA[0] = o['la']
    global stamp
    stamp_ = stamp
    pst = lambda seg, i: None
    if o['pstamp']:
        pst = stamp_
        stamp = lambda seg, i: (stamp_(seg, i) if i in (0, 6, 7) else None)
    NPRE = o['la'] if o['m16'] else PF
    K = Kern("main_kernel", (256, 1, 1), (256, 1, 1), 159744 if o['xl'] else LDS_BYTES, vgpr=512, accum=256)
    a = K.seg("head")
    a.e("s_cmp_ge_u32 s2, 256"); a.e("s_cbranch_scc1 K2_end")
    stamp(a, 0)
    a.e("s_load_dwordx2 s[4:5], s[0:1], 88")
    a.e("s_load_dwordx4 s[40:43], s[0:1], 48")
    a.e("s_load_dwordx2 s[44:45], s[0:1], 64")
    a.e("s_load_dwordx4 s[48:51], s[0:1], 8")
    a.e("s_load_dwordx4 s[52:55], s[0:1], 24")
    a.e("v_lshrrev_b32 v1, 6, v0"); a.e("v_and_b32 v0, 63, v0"); a.e("v_readfirstlane_b32 s24, v1")
    if o['map'] == 0:
        a.e("s_and_b32 s3, s2, 7"); a.e("s_lshr_b32 s28, s2, 3"); a.e("s_lshr_b32 s27, s28, 4"); a.e("s_lshl_b32 s3, s3, 1")
        a.e("s_add_u32 s27, s27, s3"); a.e("s_and_b32 s28, s28, 15")
    else:
        tb = {1: 3, 2: 2, 3: 3}[o['map']]
        a.e("s_and_b32 s3, s2, 7"); a.e("s_lshr_b32 s46, s2, 3")
        a.e("s_and_b32 s28, s3, %d" % ((16 >> tb) - 1)); a.e("s_lshl_b32 s28, s28, %d" % tb); a.e("s_and_b32 s47, s46, %d" % ((1 << tb) - 1)); a.e("s_add_u32 s28, s28, s47")
        a.e("s_lshr_b32 s27, s3, %d" % (4 - tb)); a.e("s_lshl_b32 s27, s27, %d" % (5 - tb)); a.e("s_lshr_b32 s47, s46, %d" % tb); a.e("s_add_u32 s27, s27, s47")
    if o['map'] == 3:
        a.e("s_lshr_b32 s46, s27, 2"); a.e("s_and_b32 s47, s27, 3"); a.e("s_mul_i32 s27, s46, 3"); a.e("s_add_u32 s27, s27, s47"); a.e("s_add_u32 s46, s46, 12")
        a.e("s_cmp_eq_u32 s47, 3"); a.e("s_cselect_b32 s27, s46, s27")
    a.e("s_lshr_b32 s25, s24, 1"); a.e("s_and_b32 s26, s24, 1")
    a.e("s_mov_b32 s%d, 0xbfb8aa3b" % CNEG)
    a.e("v_lshrrev_b32 v13, 4, v0"); a.e("v_bfe_u32 v14, v0, 2, 2"); a.e("v_and_b32 v15, 3, v0")
    a.e("v_lshlrev_b32 v11, 4, v0")
    if o['m16']:
        a.e("v_lshrrev_b32 v1, 1, v14"); a.e("v_lshlrev_b32 v1, 1, v1"); a.e("v_and_b32 v9, 1, v13"); a.e("v_lshlrev_b32 v9, 2, v9"); a.e("v_add_u32 v9, v9, v1")
        a.e("v_lshrrev_b32 v12, 1, v15"); a.e("s_lshl_b32 s3, s26, 2"); a.e("v_add_u32 v12, s3, v12"); a.e("v_xor_b32 v12, v12, v9"); a.e("v_lshlrev_b32 v12, 4, v12")
        a.e("v_and_b32 v1, 1, v15"); a.e("v_lshlrev_b32 v1, 3, v1"); a.e("v_add_u32 v12, v12, v1")
        a.e("v_lshlrev_b32 v8, 2, v13"); a.e("v_add_u32 v8, v8, v14"); a.e("v_lshlrev_b32 v8, 7, v8"); a.e("v_add_u32 v8, v8, v12"); a.e("v_xor_b32 v9, 32, v8")
        a.e("v_lshlrev_b32 v5, 3, v13"); a.e("v_add_u32 v5, v5, v14"); a.e("v_lshlrev_b32 v5, 7, v5"); a.e("v_add_u32 v5, v5, v12"); a.e("v_add_u32 v6, 0x10000, v5")
        a.e("v_lshrrev_b32 v13, 3, v0"); a.e("v_and_b32 v14, 7, v0")
        a.e("v_bfe_u32 v15, v13, 1, 2"); a.e("v_lshlrev_b32 v15, 1, v15"); a.e("v_xor_b32 v15, v14, v15"); a.e("v_lshlrev_b32 v15, 4, v15")
        a.e("s_movk_i32 s3, 1152"); a.e("v_mul_lo_u32 v10, v13, s3"); a.e("v_add_u32 v10, v10, v15")
        a.e("v_bfe_u32 v15, v13, 1, 1"); a.e("v_lshlrev_b32 v15, 1, v15"); a.e("v_xor_b32 v15, v14, v15"); a.e("v_lshlrev_b32 v15, 4, v15")
        a.e("s_and_b32 s3, s24, 1"); a.e("s_lshl_b32 s3, s3, 6"); a.e("v_xor_b32 v15, s3, v15")
        a.e("s_movk_i32 s3, 9216"); a.e("v_mul_lo_u32 v13, v13, s3")
        a.e("v_add_u32 v2, v13, v15"); a.e("v_add_u32 v4, %d, v2" % (16 * 9216 - 2048))
        a.e("v_xor_b32 v15, 64, v15"); a.e("v_add_u32 v3, v13, v15"); a.e("v_add_u32 v3, %d, v3" % (8 * 9216 - 1024))
        a.e("v_xor_b32 v13, 32, v5"); a.e("v_add_u32 v14, 0x10000, v13")
    else:
        a.e("v_lshrrev_b32 v1, 1, v13"); a.e("v_lshlrev_b32 v1, 2, v1"); a.e("v_add_u32 v1, v1, v14"); a.e("v_lshlrev_b32 v8, 7, v1")
        a.e("v_and_b32 v1, 1, v13"); a.e("v_lshlrev_b32 v1, 1, v1"); a.e("s_lshl_b32 s3, s26, 2"); a.e("v_add_u32 v1, s3, v1")
        a.e("v_bfe_u32 v9, v14, 1, 1"); a.e("v_lshlrev_b32 v9, 2, v9")
        a.e("v_and_b32 v12, 1, v15"); a.e("v_add_u32 v12, v1, v12"); a.e("v_xor_b32 v12, v12, v9"); a.e("v_lshlrev_b32 v12, 4, v12"); a.e("v_add_u32 v8, v8, v12")
        a.e("v_lshrrev_b32 v12, 1, v15"); a.e("v_lshlrev_b32 v12, 3, v12"); a.e("v_add_u32 v8, v8, v12")
        a.e("v_lshrrev_b32 v12, 1, v15"); a.e("v_add_u32 v12, v1, v12"); a.e("v_xor_b32 v12, v12, v9"); a.e("v_lshlrev_b32 v12, 4, v12")
        a.e("v_lshrrev_b32 v5, 1, v13"); a.e("v_lshlrev_b32 v5, 3, v5"); a.e("v_add_u32 v5, v5, v14"); a.e("v_lshlrev_b32 v5, 7, v5"); a.e("v_add_u32 v5, v5, v12")
        a.e("v_and_b32 v12, 1, v15"); a.e("v_lshlrev_b32 v12, 3, v12"); a.e("v_add_u32 v5, v5, v12")
        a.e("v_add_u32 v6, 0x10000, v5"); a.e("v_add_u32 v9, 0x10000, v8")
        a.e("v_lshrrev_b32 v13, 3, v0"); a.e("v_and_b32 v14, 7, v0"); a.e("v_bfe_u32 v15, v13, 1, 1"); a.e("v_lshlrev_b32 v15, 2, v15")
        a.e("v_xor_b32 v14, v14, v15"); a.e("v_lshlrev_b32 v14, 4, v14")
        a.e("s_movk_i32 s3, 1152"); a.e("v_mul_lo_u32 v10, v13, s3"); a.e("v_add_u32 v10, v10, v14")
        a.e("s_movk_i32 s3, 9216"); a.e("v_mul_lo_u32 v2, v13, s3"); a.e("v_add_u32 v2, v2, v14")
        a.e("v_add_u32 v3, %d, v2" % (8 * 9216 - 1024)); a.e("v_add_u32 v4, %d, v2" % (16 * 9216 - 2048))
    a.e("s_lshl_b32 s34, s24, 10")
    a.e("s_mul_i32 s36, s27, %d" % SLOTB); a.e("s_lshl_b32 s3, s28, 1"); a.e("s_add_u32 s3, s3, s25"); a.e("s_mul_i32 s3, s3, %d" % T64B)
    a.e("s_add_u32 s36, s36, s3"); a.e("s_lshl_b32 s46, s26, 12"); a.e("s_add_u32 s36, s36, s46"); a.e("s_add_u32 s36, s36, %d" % PART)
    if o['cpf']:
        a.e("s_getpc_b64 s[96:97]"); a.lab("K2_pc")
    a.waitlg(0)
    pst(a, 1)
    srd(a, 8, 4, WS_BYTES)
    if o['xt']:
        a.e("s_lshr_b32 s56, s2, 6"); a.e("s_and_b32 s56, s56, 3"); a.e("s_lshl_b32 s56, s56, 2"); a.e("s_add_u32 s56, s56, s24")
        a.e("s_lshr_b32 s57, s56, 3"); a.e("s_and_b32 s56, s56, 7"); a.e("s_mul_i32 s56, s56, 4608")
        a.e("s_lshl_b32 s58, s28, 1"); a.e("s_add_u32 s58, s58, s57"); a.e("s_mul_i32 s58, s58, %d" % T64B); a.e("s_add_u32 s56, s56, s58")
        if XN: a.e("s_add_u32 s56, s56, %d" % XN)
        a.e("s_add_u32 s57, s56, 36864")
        if o['xt'] == 1:
            a.e("v_min_u32 v216, 35, v0"); a.e("v_lshlrev_b32 v216, 7, v216")
            a.e("buffer_load_dword v218, v216, s[8:11], s56 offen ; pf"); a.e("buffer_load_dword v218, v216, s[8:11], s57 offen ; pf")
        else:
            a.e("v_lshlrev_b32 v216, 6, v0"); a.e("v_min_u32 v217, 7, v0"); a.e("v_lshlrev_b32 v217, 6, v217"); a.e("v_add_u32 v217, 4096, v217")
            for sb in (56, 57):
                a.e("buffer_load_dword v218, v216, s[8:11], s%d offen ; pf" % sb); a.e("buffer_load_dword v218, v217, s[8:11], s%d offen ; pf" % sb)
    a.e("s_cmp_eq_u32 s27, 15"); a.e("s_cbranch_scc1 K2_dft")
    f = K.seg("ffn_pro")
    srd(f, 12, 40, 576 * 9216); srd(f, 16, 42, 576 * 9216); srd(f, 20, 44, 4608 * 1152)
    if o['slowpf']:
        f.e("s_sub_u32 s46, s27, 12"); f.e("s_lshl_b32 s46, s46, 4"); f.e("s_add_u32 s46, s46, s28"); f.e("s_lshl_b32 s46, s46, 2"); f.e("s_add_u32 s46, s46, s24")
        f.e("s_lshl_b32 s46, s46, 1")
        f.e("v_lshrrev_b32 v216, 1, v0"); f.e("s_movk_i32 s47, 9216"); f.e("v_mul_lo_u32 v216, v216, s47"); f.e("v_and_b32 v217, 1, v0"); f.e("v_lshlrev_b32 v217, 6, v217")
        f.e("v_add_u32 v216, v216, v217")
        for i in range(2):
            f.e("s_add_u32 s56, s46, %d" % i)
            f.e("s_mul_i32 s47, s56, 3641"); f.e("s_lshr_b32 s47, s47, 16"); f.e("s_mul_i32 s57, s47, 18"); f.e("s_sub_u32 s57, s56, s57")
            f.e("s_and_b32 s58, s47, 1"); f.e("s_cmp_eq_u32 s58, 1"); f.e("s_cselect_b32 s60, s42, s40"); f.e("s_cselect_b32 s61, s43, s41")
            f.e("s_mov_b32 s62, 0x%x" % (576 * 9216)); f.e("s_mov_b32 s63, 0x00020000")
            f.e("s_lshr_b32 s58, s60, 7"); f.e("s_sub_u32 s58, 3, s58"); f.e("s_and_b32 s58, s58, 7")
            f.e("s_lshr_b32 s47, s47, 1"); f.e("s_lshl_b32 s47, s47, 3"); f.e("s_add_u32 s47, s47, s58"); f.e("s_lshl_b32 s47, s47, 7")
            f.e("s_mul_i32 s57, s57, %d" % (32 * 9216)); f.e("s_add_u32 s47, s47, s57")
            f.e("s_cmp_lt_u32 s56, 324"); f.e("s_cselect_b32 s47, s47, 0x7ff00000"); f.e("s_cmp_ge_u32 s27, 12"); f.e("s_cselect_b32 s47, s47, 0x7ff00000")
            f.e("v_add_u32 v217, s47, v216")
            f.e("buffer_load_dword v218, v217, s[60:63], 0 offen ; pf")
    p0_code(f, 27, 46, 47, o['ord'])
    f.e("s_cmp_lt_u32 s27, 12"); f.e("s_cselect_b32 s32, 4, 3")
    f.e("s_mul_i32 s30, s24, %d" % (24 * 9216)); f.e("s_lshl_b32 s47, s46, 7"); f.e("s_add_u32 s30, s30, s47")
    f.e("s_mul_i32 s29, s24, 3072")
    f.e("s_lshl_b32 s47, s46, 6"); f.e("s_lshl_b32 s56, s24, 3"); f.e("s_add_u32 s47, s47, s56"); f.e("s_mul_i32 s35, s47, 1152")
    def xld(st):
        L = []
        for tq in range(4):
            for kkl in range(3):
                L.append("buffer_load_dwordx4 %s, v11, s[8:11], s%d offen offset:%d" % (xreg((3 * st + kkl) * 4 + tq), 37 + kkl, tq * 1024))
        return L, ["s_add_u32 s%d, s%d, 12288" % (37 + kkl, 37 + kkl) for kkl in range(3)]
    if o['xil']:
        f.e("s_lshl_b32 s37, s28, 1"); f.e("s_add_u32 s37, s37, s25"); f.e("s_mul_i32 s37, s37, %d" % T64B)
        if XN: f.e("s_add_u32 s37, s37, %d" % XN)
        f.e("s_add_u32 s38, s37, 4096"); f.e("s_add_u32 s39, s37, 8192")
        xdone = 0
        for st in range(5):
            su, ld = dma1(0, st, st)
            for x in su + ld: f.e(x)
            f.mark("dma")
            if st + 1 >= o['xdm'] and xdone < o['xpre']:
                L, U = xld(xdone); xdone += 1
                for x in L + U: f.e(x)
        while xdone < o['xpre']:
            L, U = xld(xdone); xdone += 1
            for x in L + U: f.e(x)
    elif o['xl']:
        su, ld = dma1(0, 0, 0)
        for x in su + ld: f.e(x)
        f.mark("dma")
    else:
      for st in range(5):
        su, ld = dma1(0, st, st)
        for x in su + ld: f.e(x)
        f.mark("dma")
    pst(f, 2)
    if o['cpf']:
        f.e("v_lshlrev_b32 v219, 7, v0"); f.e("s_lshl_b32 s3, s24, 13"); f.e("v_add_u32 v219, s3, v219")
        if o['cpf'] & 2:
            code_addr(f, 216, 219, "K2_g0", "K2_tail320"); f.e(code_ld(218, 216))
        f.e("s_mov_b32 s100, K2_tail320-K2_pc"); f.e("s_mov_b32 s101, K2_ffn4-K2_pc-4"); f.e("s_cmp_ge_u32 s27, 12")
        f.e("s_cselect_b32 s100, K2_ffn4-K2_pc, s100"); f.e("s_cselect_b32 s101, K2_dft-K2_pc-4, s101")
        code_addr(f, 216, 219, None, None, ssel=(100, 101))
        if o['cpk3']:
            code_addr(f, 220, 219, "final_kernel", "K3_end")
    f.e("s_lshl_b32 s3, s28, 1"); f.e("s_add_u32 s3, s3, s25"); f.e("s_mul_i32 s3, s3, %d" % T64B)
    if XN: f.e("s_add_u32 s3, s3, %d" % XN)
    if o['xl']:
        f.e("s_lshl_b32 s37, s26, 11"); f.e("s_add_u32 s37, s37, s3")
        f.e("s_mul_i32 s38, s25, 12288"); f.e("s_lshl_b32 s39, s26, 11"); f.e("s_add_u32 s38, s38, s39"); f.e("s_add_u32 s38, s38, 12288")
        for c in range(6):
            for kkl in range(3):
                f.e("s_add_u32 m0, s38, %d" % (c * 24576 + kkl * 4096)); f.e("s_add_u32 s39, s37, %d" % ((3 * c + kkl) * 4096))
                for t in range(2): f.e("buffer_load_dwordx4 v11, s[8:11], s39 offen offset:%d lds" % (t * 1024))
            f.mark("xc")
        f.e("s_mul_i32 s3, s25, 12288"); f.e("s_add_u32 s3, s3, 12288"); f.e("v_add_u32 v16, s3, v11"); f.e("v_add_u32 v17, 73728, v16")
    for i in range(72 if not (o['xil'] or o['xl']) else 0):
        if i % 4 == 0 and i > 0: f.e("s_add_u32 s3, s3, 4096")
        f.e("buffer_load_dwordx4 %s, v11, s[8:11], s3 offen offset:%d" % (xreg(i), (i % 4) * 1024))
    pst(f, 3)
    if o['pfw']:
        f.e("s_and_b32 s56, s28, 7"); f.e("s_lshl_b32 s56, s56, 2"); f.e("s_add_u32 s56, s56, s24"); f.e("s_add_u32 s57, s32, 1")
        f.e("s_mul_i32 s57, s57, 2304"); f.e("s_mul_i32 s56, s56, s57"); f.e("s_mul_i32 s57, s46, 73728"); f.e("s_add_u32 s56, s56, s57")
        if o['pfw'] in (3, 10):
            f.e("s_sub_u32 s56, s27, 12"); f.e("s_lshl_b32 s56, s56, 4"); f.e("s_add_u32 s56, s56, s28"); f.e("s_lshl_b32 s56, s56, 2"); f.e("s_add_u32 s56, s56, s24")
            f.e("s_mul_i32 s56, s56, 27648"); f.e("s_cmp_lt_u32 s27, 12"); f.e("s_cselect_b32 s56, 0x7ff00000, s56")
        f.e("v_add_u32 v192, s56, v11"); f.e("v_add_u32 v193, 4096, v192"); f.e("v_add_u32 v194, 8192, v192")
        if o['pfw'] in (3, 10):
            for j in range(3, 7): f.e("v_add_u32 v%d, %d, v192" % (192 + j + (0 if j < 4 else 16), 4096 * j))
        if o['pfw'] == 4:
            for x in pf_loads(): f.e(x)
        if o['pfw'] == 5:
            f.e("buffer_load_dword v196, v192, s[20:23], 0 offen ; pf")
        if o['pfw'] == 8:
            f.e("v_lshlrev_b32 v195, 6, v0"); f.e("v_add_u32 v192, s56, v195"); f.e("v_add_u32 v193, 4096, v192"); f.e("v_add_u32 v194, 8192, v192")
            for j in range(3): f.e("buffer_load_dword v%d, v%d, s[20:23], 0 offen ; pf" % (196 + j, 192 + j))
        if o['pfw'] == 9:
            f.e("v_lshlrev_b32 v195, 7, v0"); f.e("v_add_u32 v192, s56, v195"); f.e("v_add_u32 v193, 8192, v192")
            for j in range(2): f.e("buffer_load_dword v%d, v%d, s[20:23], 0 offen ; pf" % (196 + j, 192 + j))
    f.e("s_mul_i32 s3, s25, 40960"); f.e("s_lshl_b32 s46, s26, %d" % (10 if o['m16'] else 11)); f.e("s_add_u32 s3, s3, s46"); f.e("s_add_u32 s3, s3, %d" % HB)
    f.e("v_add_u32 v7, s3, v11")
    if o['xl']:
        for c in range(6):
            f.waitmark("xc", 5 - c)
            if c in (1, 2): f.waitlg(0)
            f.e("s_barrier")
            if c in (1, 2):
                for st in (2 * c - 1, 2 * c):
                    su, ld = dma1(0, st, st)
                    for x in su + ld: f.e(x)
                    f.mark("dma")
            for tq in range(4):
                for kkl in range(3):
                    f.e("ds_read_b128 %s, v%d offset:%d" % (xreg((3 * c + kkl) * 4 + tq), 16 + c // 3, (c % 3) * 24576 + kkl * 4096 + tq * 1024))
        f.waitlg(0)
    f.waitmark("dma", 3); pst(f, 4); f.e("s_barrier")
    pst(f, 5)
    stamp(f, 1)
    if o['cpf']: f.lab("K2_g0")
    for n in range(NPRE):
        f.e(rd1(n, 0)); f.e(rd1(n, 1))
    p1 = P1(o)
    def d_g0(i):
        return dma_gaps1(0, 5, 5) if i == 0 else dma_gaps1(1, i - 1, i - 1)
    post0 = None
    if o['pfw'] and o['pfw'] not in (4, 6, 7, 8, 9, 10):
        post0 = pf_post(o['pfw'])
    if o['xil']:
        post0 = dict(post0 or {})
        if o['xpf']:
            L = pf_loads(); post0 = {}
            if o['xpf'] == 1:
                for i in range(2): post0[4 + i] = [(g, L[6 * i + k]) for k, g in enumerate((1, 2, 4, 5, 7, 8))]
            elif o['xpf'] == 2:
                for i in range(3): post0[3 + i] = [(g, L[4 * i + k]) for k, g in enumerate((2, 4, 7, 10))]
        for st in range(o['xpre'], 6):
            L, U = xld(st)
            post0[('g24', st - o['xpre'])] = [(2 * k + 1, x) for k, x in enumerate(L)] + [(23, x) for x in U]
    g0a = g0b = None
    if o['pfw'] == 10:
        f.e("s_cmp_ge_u32 s27, 12"); f.e("s_cbranch_scc1 K2_g0b")
        g0a = K.seg("g0a"); p1.phase(g0a, 0, [], d_g0); stamp(g0a, 2); g0a.e("s_branch K2_loop")
        g0b = K.seg("g0b"); g0b.lab("K2_g0b"); pb = P1(o); pb.phase(g0b, 0, [], d_g0, post=pf_post(3)); stamp(g0b, 2)
    else:
        p1.phase(f, 0, [], d_g0, post=post0)
        stamp(f, 2)
    lp = K.seg("ffn_loop"); lp.lab("K2_loop")
    def d_up(i):
        if i == 0: return dma_gaps1(1, 5, 5) + [(10, "s_add_u32 s30, s30, 128")]
        return dma_gaps1(0, i - 1, i - 1)
    def d_gate(i):
        return dma_gaps1(0, 5, 5) if i == 0 else dma_gaps1(1, i - 1, i - 1)
    postu = postg = None
    if o['pfw'] == 6:
        L = pf_loads()[:4]
        postu = {1 + j: [(4, L[j])] for j in range(4)}
        postu[5] = [(4, "v_add_u32 v192, 4096, v192")]
    if o['pfw'] == 7:
        L = pf_loads()[:4]
        postu = {1: [(4, L[0])], 4: [(4, L[1])]}
        postg = {1: [(4, L[2])], 4: [(4, L[3])], 5: [(4, "v_add_u32 v192, 4096, v192")]}
    if o['cpf'] & 1:
        postu = dict(postu or {}); postu.setdefault(o['cpfst'], []); postu[o['cpfst']] = postu[o['cpfst']] + [(5, code_ld(218, 216))]
    p1.phase(lp, 1, epi1(), d_up, post=postu)
    p1.phase(lp, 0, epi2() + ["v_add_u32 v7, %d, v7" % (2048 if o['m16'] else 4096)], d_gate, post=postg)
    lp.e("s_sub_u32 s32, s32, 1"); lp.e("s_cmp_lg_u32 s32, 0"); lp.e("s_cbranch_scc1 K2_loop")
    nloop = p1.n
    br = K.seg("ffn_br")
    stamp(br, 3)
    br.e("s_cmp_ge_u32 s27, 12"); br.e("s_cbranch_scc1 K2_ffn4")
    tails = {}
    for Kd, lab in ((320, None), (256, "K2_ffn4")):
        t = K.seg("ffn_tail%d" % Kd)
        if lab: t.lab(lab)
        elif o['cpf']: t.lab("K2_tail320")
        p = P1(o); p.n = nloop
        n0 = nloop + 36
        def d_last(i, Kd=Kd):
            return dma_gaps1(1, 5, 5) if i == 0 else dma_gaps2(i - 1, Kd)
        p.phase(t, 1, epi1(), d_last, nextrd=lambda n, h, n0=n0: rd2(n, h, n0), last_barrier=False)
        stamp(t, 4)
        t.e("s_nop 7")
        for x in epi2(): t.e(x)
        t.waitmark("dma", 3); t.waitlg(0); t.e("s_barrier")
        t.e("s_mul_i32 s3, s25, 40960"); t.e("s_add_u32 s3, s3, %d" % HB); t.e("v_add_u32 v1, s3, v11")
        if o['m16']:
            for kk, tq in sorted(((kk, tq) for kk in range(Kd // 32) for tq in range(4)), key=lambda z: (z[0] // 3, z[1], z[0])):
                    j = kk * 4 + tq
                    t.e("ds_read_b128 a[%d:%d], v1 offset:%d" % (4 * j, 4 * j + 3, (tq * 10 + kk) * 1024))
        else:
          for kap in range(Kd // 16):
            for n in range(2):
                j = kap * 2 + n
                t.e("ds_read_b128 a[%d:%d], v1 offset:%d" % (4 * j, 4 * j + 3, (n * 20 + kap) * 1024))
        stamp(t, 5)
        phase2(t, o, n0, Kd, False)
        stamp(t, 6)
        if o['prof']: t.waitall()
        stamp(t, 7); prof_store(t, 1, 8, 8, 24, 12, 60)
        t.e("s_endpgm")
        tails[Kd] = t
    d = K.seg("dft"); d.lab("K2_dft")
    gen_dft(d, o, srd)
    e = K.seg("end"); e.lab("K2_end"); e.e("s_endpgm")
    A_ = [g0a] if g0a else []; B_ = [g0b] if g0b else []
    K.paths = [[a, f] + A_ + [lp] * 4 + [br, tails[320]], [a, f] + B_ + [lp] * 3 + [br, tails[256]], [a, d]]
    return K

def gen_dft(d, o, srd):
    d.e("s_cmp_ge_u32 s28, 8"); d.e("s_cselect_b32 s46, s50, s48"); d.e("s_cselect_b32 s47, s51, s49")
    d.e("s_cselect_b32 s56, s54, s52"); d.e("s_cselect_b32 s57, s55, s53")
    d.e("s_mov_b32 s58, %d" % XEE); d.e("s_cselect_b32 s58, %d, s58" % XOO); d.e("s_cselect_b32 s59, 1536, 0"); d.e("s_cselect_b32 s60, 0, 0xbf803f80")
    srd(d, 12, 46, 2048 * 4096); srd(d, 20, 56, 576 * 1152)
    d.e("s_and_b32 s3, s28, 7"); d.e("s_lshl_b32 s3, s3, 6"); d.e("s_add_u32 s59, s59, s3"); d.e("s_lshl_b32 s59, s59, 1")
    d.e("s_mul_i32 s61, s24, %d" % (16 * 640)); d.e("s_add_u32 s61, s61, s58")
    d.e("s_lshl_b32 s62, s24, 16"); d.e("s_add_u32 s62, s62, s59")
    d.e("v_lshrrev_b32 v13, 3, v0"); d.e("v_and_b32 v14, 7, v0"); d.e("v_bfe_u32 v15, v13, 1, 2"); d.e("v_lshlrev_b32 v15, 1, v15")
    d.e("v_xor_b32 v14, v14, v15"); d.e("v_lshlrev_b32 v14, 4, v14")
    d.e("s_movk_i32 s3, 1280"); d.e("v_mul_lo_u32 v2, v13, s3"); d.e("v_add_u32 v2, v2, v14")
    d.e("v_lshlrev_b32 v3, 13, v13"); d.e("v_add_u32 v3, v3, v14")
    NSD = 33; SL = 24576
    def stage_rows(st):
        return (st % 2, st // 2)
    def dmad(st):
        par, ks = stage_rows(st); slot = st % 6
        L = []
        r0 = 64 * ks + par
        L.append(("s", "s_add_u32 s31, s61, %d" % (r0 * 640)))
        for b in range(5):
            L.append(("s", "s_add_u32 m0, s34, %d" % (slot * SL + b * 4096 - 128 * b)))
            L.append(("l", "buffer_load_dwordx4 v2, s[8:11], s31 offen offset:%d lds" % (128 * b)))
        L.append(("s", "s_add_u32 s63, s62, %d" % (r0 * 4096)))
        L.append(("s", "s_add_u32 m0, s34, %d" % (slot * SL + 5 * 4096)))
        L.append(("l", "buffer_load_dwordx4 v3, s[12:15], s63 offen lds"))
        return L
    for st in range(5):
        for _, x in dmad(st): d.e(x)
        d.mark("dma")
    if o['cpf']:
        d.e("v_lshlrev_b32 v255, 7, v0"); d.e("s_lshl_b32 s3, s24, 13"); d.e("v_add_u32 v255, s3, v255")
        code_addr(d, 252, 255, "K2_dft1", "K2_dft2"); d.e(code_ld(254, 252))
        code_addr(d, 250, 255, "K2_dft2", "K2_dft3")
    if o['pfc'] == 1:
        d.e("v_lshrrev_b32 v13, 3, v0"); d.e("v_and_b32 v14, 7, v0"); d.e("v_lshlrev_b32 v14, 4, v14"); d.e("v_lshlrev_b32 v13, 12, v13"); d.e("v_add_u32 v192, v13, v14")
        d.e("s_mul_i32 s3, s24, %d" % (240 * 4096)); d.e("s_add_u32 s3, s3, s59"); d.e("s_add_u32 s3, s3, %d" % (128 * 4096)); d.e("v_add_u32 v192, s3, v192")
        for j in range(30):
            d.e("buffer_load_dwordx4 v[%d:%d], v192, s[12:15], 0 offen ; pf" % (224 + 4 * (j % 4), 227 + 4 * (j % 4)))
            if j < 29: d.e("v_add_u32 v192, 0x8000, v192")
    if o['pfc']:
        d.e("s_and_b32 s3, s28, 7"); d.e("s_lshl_b32 s3, s3, 2"); d.e("s_add_u32 s3, s3, s24"); d.e("s_mul_i32 s3, s3, 11520")
        d.e("v_add_u32 v192, s3, v11"); d.e("v_add_u32 v193, 4096, v192"); d.e("v_add_u32 v194, 8192, v192")
        for j in range(12):
            d.e("buffer_load_dwordx4 v[%d:%d], v%d, s[20:23], 0 offen offset:%d ; pf" % (224 + 4 * (j % 4), 227 + 4 * (j % 4), 192 + j // 4, (j % 4) * 1024))
    d.e("v_lshrrev_b32 v13, 2, v0"); d.e("v_and_b32 v15, 3, v0"); d.e("v_bfe_u32 v14, v13, 1, 2"); d.e("v_lshlrev_b32 v14, 1, v14")
    d.e("v_lshlrev_b32 v13, 7, v13"); d.e("v_and_b32 v1, 1, v15"); d.e("v_lshlrev_b32 v1, 3, v1"); d.e("v_add_u32 v13, v13, v1")
    d.e("v_lshrrev_b32 v15, 1, v15")
    for u in range(4):
        d.e("v_add_u32 v1, %d, v15" % (2 * u)); d.e("v_xor_b32 v1, v1, v14"); d.e("v_lshlrev_b32 v1, 4, v1"); d.e("v_add_u32 v1, v1, v13")
        d.e("v_add_u32 v%d, %d, v1" % (196 + u, 5 * 4096))
    for i in range(5):
        d.e("s_mul_i32 s3, s24, 5"); d.e("s_add_u32 s3, s3, %d" % i)
        d.e("s_and_b32 s46, s3, 3"); d.e("s_lshl_b32 s46, s46, 1"); d.e("s_lshr_b32 s47, s3, 2"); d.e("s_lshl_b32 s47, s47, 12")
        d.e("v_add_u32 v1, s46, v15"); d.e("v_xor_b32 v1, v1, v14"); d.e("v_lshlrev_b32 v1, 4, v1"); d.e("v_add_u32 v1, v1, v13")
        d.e("v_add_u32 v%d, s47, v1" % (200 + i))
    for q in range(9): d.e("v_add_u32 v%d, %d, v%d" % (205 + q, 3 * SL, 196 + q))
    for q in range(4): d.e("v_mov_b32 v%d, s60" % (216 + q))
    def frag(st, q):
        return (st % 2) * 36 + 4 * q
    def rdd(st, q, half):
        slot = st % 6; base = 196 + q
        if slot >= 3: base += 9; slot -= 3
        r = frag(st, q) + 2 * half
        return "ds_read_b64_tr_b16 a[%d:%d], v%d offset:%d" % (r, r + 1, base, slot * SL + half * 2048)
    d.waitmark("dma", 3); d.e("s_barrier")
    stamp(d, 1); stamp(d, 2)
    if o['cpf']: d.lab("K2_dft1")
    order = [4, 0, 1, 2, 3, 5, 6, 7, 8]
    for q in order: d.e(rdd(0, q, 0)); d.e(rdd(0, q, 1))
    for st in range(NSD):
        par, ks = stage_rows(st)
        mf = []
        for i in range(5):
            A = frag(st, 4 + i)
            for u in range(4):
                B = frag(st, u); D = 16 + par * 80 + (i * 4 + u) * 4
                C = "0" if ks == 0 else "v[%d:%d]" % (D, D + 3)
                mf.append(["v_mfma_f32_16x16x32_bf16 v[%d:%d], a[%d:%d], a[%d:%d], %s" % (D, D + 3, A, A + 3, B, B + 3, C)])
            if par == 0:
                D = 176 + 4 * i; C = "0" if ks == 0 else "v[%d:%d]" % (D, D + 3)
                mf.append(["v_mfma_f32_16x16x32_bf16 v[%d:%d], a[%d:%d], v[216:219], %s" % (D, D + 3, A, A + 3, C)])
        G = len(mf)
        gaps = [[] for _ in range(G)]
        fill = []
        if st + 1 < NSD:
            for q in order: fill += [rdd(st + 1, q, 0), rdd(st + 1, q, 1)]
        dm = dmad(st + 5) if st + 5 < NSD else []
        for g, x in enumerate(fill): gaps[g].append(x)
        if dm:
            pos = [2, 5, 8, 11, 14, 17]; li = 0; pendS = []
            for kind, x in dm:
                if kind == "s": pendS.append(x)
                else:
                    g = pos[li]; li += 1
                    for y in pendS: gaps[g - 1].append(y)
                    pendS = []
                    gaps[g].append(x)
            gaps[17].append(('mark', 'dma'))
        if o['cpf'] and st == o['cpd1']: gaps[19].append(code_ld(254, 250))
        emit_gaps(d, mf, gaps)
        if st + 2 <= NSD - 1:
            last_issued = min(st + 5, NSD - 1)
            d.waitmark("dma", last_issued - (st + 2)); d.e("s_barrier")
    d.e("s_barrier")
    stamp(d, 3)
    if o['cpf']:
        d.lab("K2_dft2")
        if o['cpk3']: code_addr(d, 252, 255, "final_kernel", "K3_end")
    d.e("s_mul_i32 s35, s24, %d" % (8 * 1152))
    for st in range(5):
        for su, ld in dma2(st, 320):
            for x in su: d.e(x)
            d.e(ld)
        d.mark("dma"); d.mark("w2_%d" % st)
    if o['m16']:
        d.e("s_and_b32 s46, s24, 1"); d.e("s_mul_i32 s3, s24, 5"); d.e("s_sub_u32 s3, s3, s46"); d.e("s_lshr_b32 s3, s3, 1")
        d.e("s_lshl_b32 s47, s46, 3")
        d.e("s_cmp_eq_u32 s46, 1"); d.e("s_cselect_b32 s56, 1024, 8"); d.e("s_cselect_b32 s57, 64, 8")
        d.e("s_lshl_b32 s58, s3, 10"); d.e("s_add_u32 s58, s58, %d" % HB)
        d.e("s_add_u32 s59, s58, s47"); d.e("v_add_u32 v7, s59, v11"); d.e("v_add_u32 v6, 40960, v7")
        d.e("s_add_u32 s59, s58, s56"); d.e("v_add_u32 v4, s59, v11"); d.e("v_add_u32 v3, 40960, v4")
        d.e("v_lshrrev_b32 v15, 4, v0"); d.e("v_lshlrev_b32 v15, 4, v15")
        d.e("s_lshl_b32 s58, s3, 6"); d.e("s_add_u32 s58, s58, %d" % HX)
        d.e("s_add_u32 s59, s58, s47"); d.e("v_add_u32 v5, s59, v15"); d.e("s_add_u32 s59, s58, s57"); d.e("v_add_u32 v2, s59, v15")
    else:
        d.e("v_lshrrev_b32 v13, 4, v0"); d.e("v_and_b32 v14, 15, v0"); d.e("v_and_b32 v15, 1, v13"); d.e("v_lshlrev_b32 v15, 5, v15"); d.e("v_add_u32 v14, v14, v15")
        d.e("v_lshlrev_b32 v14, 4, v14"); d.e("v_lshrrev_b32 v13, 1, v13"); d.e("v_lshlrev_b32 v1, 3, v13"); d.e("v_add_u32 v14, v14, v1")
        d.e("s_mul_i32 s3, s24, 5120"); d.e("s_add_u32 s3, s3, %d" % HB); d.e("v_add_u32 v7, s3, v14")
        d.e("v_add_u32 v6, 40960, v7")
        d.e("v_lshlrev_b32 v15, 4, v0"); d.e("v_lshrrev_b32 v15, 8, v15"); d.e("v_and_b32 v15, 1, v15"); d.e("v_lshlrev_b32 v15, 4, v15"); d.e("v_add_u32 v15, v15, v1")
        d.e("s_mul_i32 s3, s24, 160"); d.e("s_add_u32 s3, s3, %d" % HX); d.e("v_add_u32 v5, s3, v15")
    k = 0
    for i in range(5):
        for u in range(4):
            E = 16 + (i * 4 + u) * 4; O = E + 80
            t = 220 + 8 * (k % 4); k += 1
            for j in range(4):
                d.e("v_add_f32 v%d, v%d, v%d" % (t + j, E + j, O + j)); d.e("v_sub_f32 v%d, v%d, v%d" % (t + 4 + j, E + j, O + j))
            d.e("v_cvt_pk_bf16_f32 v%d, v%d, v%d" % (t, t, t + 1)); d.e("v_cvt_pk_bf16_f32 v%d, v%d, v%d" % (t + 1, t + 2, t + 3))
            d.e("v_cvt_pk_bf16_f32 v%d, v%d, v%d" % (t + 4, t + 4, t + 5)); d.e("v_cvt_pk_bf16_f32 v%d, v%d, v%d" % (t + 5, t + 6, t + 7))
            if o['m16']:
                off = (i // 2) * 1024 + u * 10240; ra, rb = (7, 6) if i % 2 == 0 else (4, 3)
                d.e("ds_write_b64 v%d, v[%d:%d] offset:%d" % (ra, t, t + 1, off)); d.e("ds_write_b64 v%d, v[%d:%d] offset:%d" % (rb, t + 4, t + 5, off))
                continue
            off = i * 1024 + (u >> 1) * 20480 + (u & 1) * 256
            d.e("ds_write_b64 v7, v[%d:%d] offset:%d" % (t, t + 1, off)); d.e("ds_write_b64 v6, v[%d:%d] offset:%d" % (t + 4, t + 5, off))
        X = 176 + 4 * i
        d.e("v_cvt_pk_bf16_f32 v%d, v%d, v%d" % (X, X, X + 1)); d.e("v_cvt_pk_bf16_f32 v%d, v%d, v%d" % (X + 1, X + 2, X + 3))
        if o['m16']: d.e("ds_write_b64 v%d, v[%d:%d] offset:%d" % (5 if i % 2 == 0 else 2, X, X + 1, (i // 2) * 64))
        else: d.e("ds_write_b64 v5, v[%d:%d] offset:%d" % (X, X + 1, i * 32))
    d.e("v_and_b32 v13, 31, v0"); d.e("v_lshrrev_b32 v14, 4, v13"); d.e("v_lshlrev_b32 v12, 10, v14")
    d.e("v_bfe_u32 v14, v13, 2, 1"); d.e("v_lshlrev_b32 v14, 9, v14"); d.e("v_add_u32 v12, v12, v14")
    d.e("v_bfe_u32 v14, v13, 3, 1"); d.e("v_lshlrev_b32 v14, 3, v14"); d.e("v_add_u32 v12, v12, v14")
    d.e("s_add_u32 s38, s28, 32"); d.e("s_mul_i32 s38, s38, %d" % T64B); d.e("s_lshl_b32 s3, s26, 12"); d.e("s_add_u32 s38, s38, s3")
    d.e("s_add_u32 s38, s38, %d" % (PART + 15 * SLOTB))
    d.waitmark("dma", 3); d.waitlg(0); d.e("s_barrier")
    stamp(d, 4)
    d.e("s_mul_i32 s3, s25, 40960"); d.e("s_add_u32 s3, s3, %d" % HB); d.e("v_add_u32 v1, s3, v11")
    d.e("v_lshrrev_b32 v13, %d, v0" % (4 if o['m16'] else 5)); d.e("v_lshlrev_b32 v13, 4, v13"); d.e("v_add_u32 v13, %d, v13" % HX)
    n0 = 0
    for n in range(LA[0] if o['m16'] else PF):
        d.e(rd2(n, 0, n0)); d.e(rd2(n, 1, n0))
    for kk, tq in (sorted(((kk, tq) for kk in range(10) for tq in range(5)), key=lambda z: (z[0] // 3, z[1], z[0])) if o['m16'] else []):
        j = kk * 4 + tq
        if tq < 4: d.e("ds_read_b128 a[%d:%d], v1 offset:%d" % (4 * j, 4 * j + 3, (tq * 10 + kk) * 1024))
        else: d.e("ds_read_b128 v[%d:%d], v13 offset:%d" % (112 + 4 * kk, 115 + 4 * kk, kk * 64))
    for kap in ([] if o['m16'] else range(20)):
        for n in range(2):
            j = kap * 2 + n
            d.e("ds_read_b128 a[%d:%d], v1 offset:%d" % (4 * j, 4 * j + 3, (n * 20 + kap) * 1024))
        r = (112 + 4 * kap) if kap < 16 else (192 + 4 * (kap - 16))
        d.e("ds_read_b128 v[%d:%d], v13 offset:%d" % (r, r + 3, kap * 32))
    stamp(d, 5)
    phase2(d, o, n0, 320, True)
    stamp(d, 6)
    if o['prof']: d.waitall()
    stamp(d, 7); prof_store(d, 1, 8, 8, 24, 14, 60)
    if o['cpf']: d.lab("K2_dft3")
    d.e("s_endpgm")
```

```python
import sys, argparse
from emit import *
import gen2
NAME = "recurrent_scan__spectral_fnet__swiglu_ffn__prompt"
XN   = 0x0
XEE  = 0x240000
XOO  = 0x300000
PART = 0x400000
SLOTB = 2359296
T64B = 73728
WS_BYTES = 0x4000000

class Kern:
    def __init__(self, label, grid, block, lds, vgpr, accum=None, sgpr=102):
        self.label = label; self.grid = grid; self.block = block; self.lds = lds
        self.vgpr = vgpr; self.accum = accum if accum else min(256, (vgpr + 3) // 4 * 4); self.sgpr = sgpr
        self.order = []
        self.paths = []
    def seg(self, name):
        s = Seg(name); self.order.append(s); return s
    def build(self, verbose=True):
        probs = resolve(self.paths)
        if probs:
            for p in probs[:20]: print("PROBLEM", self.label, p, file=sys.stderr)
            raise SystemExit("unresolved hazards")
        stats = []
        L = []
        for s in self.order: L += render(s, stats)
        if verbose:
            tot = sum(x[1] for x in stats)
            print("%s: %d lines, auto nops %d at %d places" % (self.label, len(L), tot, len(stats)), file=sys.stderr)
            if verbose > 1:
                for x in stats: print("   nop", x, file=sys.stderr)
        out = [".globl %s" % self.label, ".p2align 8", ".type %s,@function" % self.label, "%s:" % self.label]
        for l in L:
            out.append(l if l.endswith(':') else l)
        return "\n".join(out) + "\n"
    def desc(self):
        return (".amdhsa_kernel %s\n  .amdhsa_next_free_vgpr %d\n  .amdhsa_next_free_sgpr %d\n  .amdhsa_accum_offset %d\n"
                "  .amdhsa_group_segment_fixed_size 0\n  .amdhsa_kernarg_size 96\n  .amdhsa_user_sgpr_count 2\n"
                "  .amdhsa_user_sgpr_kernarg_segment_ptr 1\n  .amdhsa_system_sgpr_workgroup_id_x 1\n.end_amdhsa_kernel\n") % (
                self.label, self.vgpr, self.sgpr, self.accum)

PROF = 0x3800000
PROFON = [False]
def stamp(seg, i):
    if PROFON[0] == 3:
        seg.e("s_memrealtime s[%d:%d]" % (64 + 2 * i, 65 + 2 * i)); seg.e("s_memtime s[%d:%d]" % (80 + 2 * i, 81 + 2 * i))
    elif PROFON[0]: seg.e("%s s[%d:%d]" % ("s_memtime" if PROFON[0] == 2 else "s_memrealtime", 64 + 2 * i, 65 + 2 * i))
def prof_store(seg, kidx, n, wsrd, wave_s, va, tmp_s):
    if not PROFON[0]: return
    seg.waitall()
    seg.e("s_lshl_b32 s%d, s2, 2" % tmp_s); seg.e("s_add_u32 s%d, s%d, s%d" % (tmp_s, tmp_s, wave_s)); seg.e("s_lshl_b32 s%d, s%d, 7" % (tmp_s, tmp_s))
    seg.e("s_add_u32 s%d, s%d, %d" % (tmp_s, tmp_s, PROF + kidx * 0x80000))
    seg.e("s_mov_b64 exec, 1"); seg.e("v_mov_b32 v%d, 0" % (va + 2))
    for i in (list(range(n)) + (list(range(8, 8 + n)) if PROFON[0] == 3 else [])):
        seg.e("v_mov_b32 v%d, s%d" % (va, 64 + 2 * i)); seg.e("v_mov_b32 v%d, s%d" % (va + 1, 65 + 2 * i))
        seg.e("buffer_store_dwordx2 v[%d:%d], v%d, s[%d:%d], s%d offen offset:%d" % (va, va + 1, va + 2, wsrd, wsrd + 3, tmp_s, 8 * i))

def srd(k, d, lo, nbytes):
    k.e("s_mov_b32 s%d, s%d" % (d, lo)); k.e("s_mov_b32 s%d, s%d" % (d + 1, lo + 1))
    k.e("s_mov_b32 s%d, 0x%x" % (d + 2, nbytes)); k.e("s_mov_b32 s%d, 0x00020000" % (d + 3))

def gen_k1(o=None):
    o = o or {}
    k1pf = int(o.get('k1pf', 0))
    K = Kern("prep_kernel", (528, 1, 1), (256, 1, 1), 4 * 2304 + 1280, vgpr=104)
    k1s = int(o.get('k1s', 0)); k1u = int(o.get('k1u', 0))
    a = K.seg("k1_head")
    a.e("s_cmp_ge_u32 s2, 528"); a.e("s_cbranch_scc1 K1_end")
    stamp(a, 0)
    a.e("s_load_dwordx2 s[4:5], s[0:1], 0"); a.e("s_load_dwordx2 s[6:7], s[0:1], 88")
    if k1pf:
        a.e("s_load_dwordx4 s[40:43], s[0:1], 8"); a.e("s_load_dwordx2 s[44:45], s[0:1], 48")
        a.e("s_load_dwordx2 s[60:61], s[0:1], 56")
    a.e("v_lshrrev_b32 v1, 6, v0"); a.e("v_and_b32 v0, 63, v0"); a.e("v_readfirstlane_b32 s20, v1")
    a.e("v_and_b32 v2, 31, v0")
    a.e("v_lshrrev_b32 v3, 5, v0")
    a.waitlg(0)
    srd(a, 8, 4, 2359296); srd(a, 12, 6, WS_BYTES)
    a.e("s_cmp_ge_u32 s2, 256"); a.e("s_cbranch_scc1 K1_typeB_rows")
    k1m = int(o.get('k1m', 0))
    if k1m:
        a.e("s_and_b32 s21, s2, 1")
        if k1m == 2: a.e("s_xor_b32 s21, s21, 1")
        a.e("s_lshl_b32 s21, s21, 7"); a.e("s_lshr_b32 s22, s2, 1"); a.e("s_add_u32 s21, s21, s22"); a.e("s_lshl_b32 s21, s21, 3")
    else:
        a.e("s_lshl_b32 s21, s2, 3")
    a.e("s_lshl_b32 s22, s20, 1"); a.e("s_add_u32 s21, s21, s22"); a.e("s_add_u32 s22, s21, 1")
    a.e("s_branch K1_rows_done")
    b = K.seg("k1_brows"); b.lab("K1_typeB_rows")
    b.e("s_sub_u32 s23, s2, 256"); b.e("s_lshl_b32 s23, s23, 2"); b.e("s_add_u32 s23, s23, s20")
    b.e("s_cmp_gt_u32 s23, 1024"); b.e("s_cbranch_scc1 K1_zero")
    b.e("s_mov_b32 s21, s23"); b.e("s_sub_u32 s22, 2048, s23"); b.e("s_and_b32 s22, s22, 2047")
    c = K.seg("k1_ln"); c.lab("K1_rows_done")
    c.e("v_mov_b32 v4, s21"); c.e("v_mov_b32 v5, s22"); c.e("v_cmp_eq_u32 vcc, 1, v3"); c.e("v_cndmask_b32 v4, v4, v5, vcc")
    c.e("s_movk_i32 s24, 1152"); c.e("v_mul_lo_u32 v5, v4, s24"); c.e("v_lshlrev_b32 v6, 4, v2"); c.e("v_add_u32 v5, v5, v6")
    c.e("v_cmp_gt_u32 s[26:27], 8, v2")
    c.e("v_add_u32 v7, 1024, v5"); c.e("v_mov_b32 v8, 0x7fffffff"); c.e("v_cndmask_b32 v7, v8, v7, s[26:27]")
    c.e("buffer_load_dwordx4 v[8:11], v5, s[8:11], 0 offen")
    c.e("buffer_load_dwordx4 v[12:15], v5, s[8:11], 0 offen offset:512")
    c.e("buffer_load_dwordx4 v[16:19], v7, s[8:11], 0 offen")
    if k1pf:
        c.e("s_lshl_b32 s46, s2, 2"); c.e("s_add_u32 s46, s46, s20")
        c.e("s_sub_u32 s47, s46, 1088"); c.e("s_lshl_b32 s47, s47, 12"); c.e("s_add_u32 s47, s47, 3072"); c.e("s_lshl_b32 s48, s46, 12")
        c.e("s_cmp_lt_u32 s46, 1088"); c.e("s_cselect_b32 s47, s48, s47"); c.e("s_cselect_b32 s52, s40, s42"); c.e("s_cselect_b32 s53, s41, s43")
        c.e("s_mov_b32 s54, 0x%x" % (2048 * 4096)); c.e("s_mov_b32 s55, 0x00020000")
        c.e("v_lshlrev_b32 v84, 4, v0"); c.e("v_add_u32 v85, s47, v84")
        c.e("buffer_load_dwordx4 v[88:91], v85, s[52:55], 0 offen ; pf")
        if k1pf >= 2:
            c.e("s_mul_i32 s47, s46, 911"); c.e("s_lshr_b32 s47, s47, 16"); c.e("s_mul_i32 s48, s47, 72"); c.e("s_sub_u32 s48, s46, s48")
            gen2.p0_code(c, 47, 49, 50, int(o.get('ord', 0)))
            c.e("s_lshl_b32 s49, s49, 7"); c.e("s_mul_i32 s48, s48, %d" % (8 * 9216)); c.e("s_add_u32 s49, s49, s48")
            c.e("s_sub_u32 s50, s46, 119"); c.e("s_lshl_b32 s50, s50, 12"); c.e("s_add_u32 s50, s50, 3072")
            c.e("s_cmp_lt_u32 s46, 1207"); c.e("s_cselect_b32 s50, s50, 0x7ff00000")
            c.e("v_lshrrev_b32 v86, 3, v0"); c.e("v_and_b32 v87, 7, v0"); c.e("s_movk_i32 s48, 9216"); c.e("v_mul_lo_u32 v86, v86, s48"); c.e("v_lshlrev_b32 v87, 4, v87"); c.e("v_add_u32 v86, v86, v87")
            c.e("s_cmp_lt_u32 s46, 1080"); c.e("s_cselect_b32 s49, s49, s50"); c.e("s_cselect_b32 s56, s44, s42"); c.e("s_cselect_b32 s57, s45, s43")
            c.e("s_cselect_b32 s58, 0x%x, s54" % (576 * 9216)); c.e("s_mov_b32 s59, 0x00020000"); c.e("s_cselect_b64 vcc, -1, 0")
            c.e("v_cndmask_b32 v86, v84, v86, vcc"); c.e("v_add_u32 v86, s49, v86")
            c.e("buffer_load_dwordx4 v[92:95], v86, s[56:59], 0 offen ; pf")
        if k1s:
            G0 = int(o.get('k1sg', 0))
            c.e("s_sub_u32 s62, s46, %d" % G0)
            c.e("s_mul_i32 s47, s62, 3641"); c.e("s_lshr_b32 s47, s47, 16"); c.e("s_mul_i32 s48, s47, 18"); c.e("s_sub_u32 s48, s62, s48")
            c.e("s_and_b32 s49, s47, 1"); c.e("s_cmp_eq_u32 s49, 1"); c.e("s_cselect_b32 s72, s60, s44"); c.e("s_cselect_b32 s73, s61, s45")
            c.e("s_mov_b32 s74, 0x%x" % (576 * 9216)); c.e("s_mov_b32 s75, 0x00020000")
            c.e("s_lshr_b32 s49, s72, 7"); c.e("s_sub_u32 s49, 3, s49"); c.e("s_and_b32 s49, s49, 7")
            c.e("s_lshr_b32 s47, s47, 1"); c.e("s_lshl_b32 s47, s47, 3"); c.e("s_add_u32 s47, s47, s49"); c.e("s_lshl_b32 s47, s47, 7")
            c.e("s_mul_i32 s48, s48, %d" % (32 * 9216)); c.e("s_add_u32 s47, s47, s48")
            c.e("s_cmp_lt_u32 s62, 324"); c.e("s_cselect_b32 s47, s47, 0x7ff00000")
            c.e("v_lshrrev_b32 v96, 1, v0"); c.e("s_movk_i32 s48, 9216"); c.e("v_mul_lo_u32 v96, v96, s48"); c.e("v_and_b32 v97, 1, v0"); c.e("v_lshlrev_b32 v97, 6, v97")
            c.e("v_add_u32 v96, v96, v97"); c.e("v_add_u32 v96, s47, v96")
            c.e("buffer_load_dword v98, v96, s[72:75], 0 offen ; pf")
        if k1u:
            c.e("s_sub_u32 s62, s46, 1032")
            c.e("s_mul_i32 s47, s62, 911"); c.e("s_lshr_b32 s47, s47, 16"); c.e("s_mul_i32 s48, s47, 72"); c.e("s_sub_u32 s48, s62, s48")
            gen2.p0_code(c, 47, 49, 50, int(o.get('ord', 0)))
            c.e("s_lshl_b32 s49, s49, 7"); c.e("s_mul_i32 s48, s48, %d" % (8 * 9216)); c.e("s_add_u32 s49, s49, s48")
            c.e("s_cmp_lt_u32 s62, 1080"); c.e("s_cselect_b32 s49, s49, 0x7ff00000")
            c.e("s_mov_b32 s76, s60"); c.e("s_mov_b32 s77, s61"); c.e("s_mov_b32 s78, 0x%x" % (576 * 9216)); c.e("s_mov_b32 s79, 0x00020000")
            c.e("v_lshrrev_b32 v96, 3, v0"); c.e("v_and_b32 v97, 7, v0"); c.e("s_movk_i32 s48, 9216"); c.e("v_mul_lo_u32 v96, v96, s48"); c.e("v_lshlrev_b32 v97, 4, v97"); c.e("v_add_u32 v96, v96, v97")
            c.e("v_add_u32 v96, s49, v96")
            c.e("buffer_load_dwordx4 v[100:103], v96, s[76:79], 0 offen ; pf")
    if int(o.get('cpk1', 0)):
        nw = int(o.get('cpk1', 0))
        c.e("s_getpc_b64 s[86:87]"); c.lab("K1_pc")
        c.e("s_mov_b32 s88, main_kernel-K1_pc"); c.e("s_mov_b32 s89, K2_tail320-K1_pc-4"); c.e("s_bitcmp1_b32 s2, 3")
        c.e("s_cselect_b32 s88, K2_dft-K1_pc, s88"); c.e("s_cselect_b32 s89, K2_dft2-K1_pc-4, s89")
        c.e("v_lshlrev_b32 v80, 7, v0"); c.e("s_lshl_b32 s90, s20, 13"); c.e("s_add_u32 s88, s88, s90")
        c.e("s_cmp_ge_u32 s2, %d" % (16 * nw)); c.e("s_cselect_b32 s89, 0, s89")
        c.e("v_add_u32 v80, s88, v80"); c.e("v_min_u32 v80, s89, v80")
        c.e("v_add_co_u32 v80, s[90:91], s86, v80"); c.e("v_mov_b32 v81, s87"); c.e("v_addc_co_u32 v81, s[90:91], 0, v81, s[90:91]")
        c.e("global_load_dword v82, v[80:81], off ; pf")
    for i in range(60, 80): c.e("v_mov_b32 v%d, 0" % i)
    for q in range(12):
        c.e("v_lshlrev_b32 v%d, 16, v%d" % (20 + 2 * q, 8 + q)); c.e("v_and_b32 v%d, 0xffff0000, v%d" % (21 + 2 * q, 8 + q))
    c.e("v_add_f32 v44, v20, v21"); c.e("v_add_f32 v45, v22, v23"); c.e("v_add_f32 v46, v24, v25"); c.e("v_add_f32 v47, v26, v27")
    for q in range(8, 24, 4):
        for r in range(4): c.e("v_add_f32 v%d, v%d, v%d" % (44 + r, 44 + r, 20 + q + r))
    c.e("v_add_f32 v44, v44, v45"); c.e("v_add_f32 v46, v46, v47"); c.e("v_add_f32 v44, v44, v46")
    def reduce32(r, t):
        c.e("v_add_f32_dpp v%d, v%d, v%d quad_perm:[1,0,3,2] row_mask:0xf bank_mask:0xf" % (r, r, r))
        c.e("v_add_f32_dpp v%d, v%d, v%d quad_perm:[2,3,0,1] row_mask:0xf bank_mask:0xf" % (r, r, r))
        c.e("v_add_f32_dpp v%d, v%d, v%d row_half_mirror row_mask:0xf bank_mask:0xf" % (r, r, r))
        c.e("v_add_f32_dpp v%d, v%d, v%d row_mirror row_mask:0xf bank_mask:0xf" % (r, r, r))
        c.e("v_mov_b32 v%d, v%d" % (t, r))
        c.e("v_permlane16_swap_b32 v%d, v%d" % (r, t))
        c.e("v_add_f32 v%d, v%d, v%d" % (r, r, t))
    reduce32(44, 45)
    c.e("s_mov_b32 s25, 0x3ae38e39")
    c.e("v_mul_f32 v44, s25, v44")
    c.e("v_mov_b32 v46, 0"); c.e("v_mov_b32 v47, 0")
    for q in range(16):
        c.e("v_sub_f32 v%d, v%d, v44" % (48 + (q % 4), 20 + q)); c.e("v_fmac_f32 v%d, v%d, v%d" % (46 + (q % 2), 48 + (q % 4), 48 + (q % 4)))
    c.e("s_mov_b64 exec, s[26:27]")
    for q in range(16, 24):
        c.e("v_sub_f32 v%d, v%d, v44" % (48 + (q % 4), 20 + q)); c.e("v_fmac_f32 v%d, v%d, v%d" % (46 + (q % 2), 48 + (q % 4), 48 + (q % 4)))
    c.e("s_mov_b64 exec, -1")
    c.e("v_add_f32 v46, v46, v47")
    reduce32(46, 47)
    c.e("v_mul_f32 v46, s25, v46")
    c.e("v_cvt_pk_bf16_f32 v46, v46, v44")
    c.e("v_and_b32 v44, 0xffff0000, v46")
    c.e("v_lshlrev_b32 v46, 16, v46")
    c.e("v_add_f32 v46, 0x3727c5ac, v46")
    c.e("v_cvt_pk_bf16_f32 v46, v46, v46"); c.e("v_lshlrev_b32 v46, 16, v46")
    c.e("v_sqrt_f32 v46, v46")
    c.e("v_cvt_pk_bf16_f32 v46, v46, v46"); c.e("v_lshlrev_b32 v46, 16, v46")
    c.e("v_rcp_f32 v46, v46")
    for q in range(24): c.e("v_sub_f32 v%d, v%d, v44" % (20 + q, 20 + q))
    for q in range(12): c.e("v_cvt_pk_bf16_f32 v%d, v%d, v%d" % (8 + q, 20 + 2 * q, 21 + 2 * q))
    for q in range(12):
        c.e("v_lshlrev_b32 v%d, 16, v%d" % (20 + 2 * q, 8 + q)); c.e("v_and_b32 v%d, 0xffff0000, v%d" % (21 + 2 * q, 8 + q))
    for q in range(24): c.e("v_mul_f32 v%d, v%d, v46" % (20 + q, 20 + q))
    for q in range(12): c.e("v_cvt_pk_bf16_f32 v%d, v%d, v%d" % (8 + q, 20 + 2 * q, 21 + 2 * q))
    c.e("s_cmp_ge_u32 s2, 256"); c.e("s_cbranch_scc1 K1_typeB")
    d = K.seg("k1_storeA")
    d.e("v_lshrrev_b32 v20, 6, v4"); d.e("s_mov_b32 s24, %d" % T64B); d.e("v_mul_lo_u32 v20, v20, s24")
    if int(o.get('m16', 0)):
        d.e("v_lshrrev_b32 v21, 2, v2"); d.e("v_lshlrev_b32 v21, 12, v21"); d.e("v_add_u32 v20, v20, v21")
        d.e("v_bfe_u32 v21, v4, 4, 2"); d.e("v_lshlrev_b32 v21, 10, v21"); d.e("v_add_u32 v20, v20, v21")
        d.e("v_and_b32 v21, 3, v2"); d.e("v_lshlrev_b32 v21, 8, v21"); d.e("v_add_u32 v20, v20, v21")
        d.e("v_and_b32 v21, 15, v4"); d.e("v_lshlrev_b32 v21, 4, v21"); d.e("v_add_u32 v20, v20, v21")
    else:
        d.e("v_lshrrev_b32 v21, 1, v2"); d.e("v_lshlrev_b32 v21, 11, v21"); d.e("v_add_u32 v20, v20, v21")
        d.e("v_bfe_u32 v21, v4, 5, 1"); d.e("v_lshlrev_b32 v21, 10, v21"); d.e("v_add_u32 v20, v20, v21")
        d.e("v_and_b32 v21, 1, v2"); d.e("v_lshlrev_b32 v21, 9, v21"); d.e("v_add_u32 v20, v20, v21")
        d.e("v_and_b32 v21, 31, v4"); d.e("v_lshlrev_b32 v21, 4, v21"); d.e("v_add_u32 v20, v20, v21")
    d.e("s_mov_b32 s28, %d" % (XN + 32768)); d.e("s_mov_b32 s29, %d" % (XN + 65536)); d.e("s_mov_b32 s30, %d" % XN)
    k1st = o.get('k1st', '').replace('+', ' ')
    d.e("buffer_store_dwordx4 v[8:11], v20, s[12:15], s30 offen %s" % k1st)
    d.e("buffer_store_dwordx4 v[12:15], v20, s[12:15], s28 offen %s" % k1st)
    d.e("s_mov_b64 exec, s[26:27]")
    d.e("buffer_store_dwordx4 v[16:19], v20, s[12:15], s29 offen %s" % k1st)
    if PROFON[0]: d.waitall()
    stamp(d, 1); prof_store(d, 0, 2, 12, 20, 44, 40)
    d.e("s_endpgm")
    f = K.seg("k1_typeB"); f.lab("K1_typeB")
    f.e("s_mul_i32 s28, s20, 2304")
    f.e("s_movk_i32 s24, 1152"); f.e("v_mul_lo_u32 v20, v3, s24"); f.e("v_lshlrev_b32 v21, 4, v2"); f.e("v_add_u32 v20, v20, v21"); f.e("v_add_u32 v20, s28, v20")
    f.e("ds_write_b128 v20, v[8:11]"); f.e("ds_write_b128 v20, v[12:15] offset:512")
    f.e("s_mov_b64 exec, s[26:27]"); f.e("ds_write_b128 v20, v[16:19] offset:1024"); f.e("s_mov_b64 exec, -1")
    f.e("v_lshlrev_b32 v21, 1, v0"); f.e("v_add_u32 v22, s28, v21")
    f.e("v_sub_u32 v23, 640, v21"); f.e("v_add_u32 v23, s28, v23")
    f.waitlg(0)
    for i in range(5):
        f.e("ds_read_u16_d16_hi v%d, v22 offset:%d" % (60 + i, 128 * i))
        f.e("ds_read_u16_d16_hi v%d, v22 offset:%d" % (65 + i, 1152 + 128 * i))
        f.e("ds_read_u16_d16_hi v%d, v23 offset:%d" % (70 + i, 512 - 128 * i))
        f.e("ds_read_u16_d16_hi v%d, v23 offset:%d" % (75 + i, 1152 + 512 - 128 * i))
    f.e("s_and_b32 s29, s23, 1023"); f.e("s_cmp_lg_u32 s29, 0"); f.e("s_cselect_b32 s29, 1.0, 0")
    f.e("v_cmp_ne_u32 s[30:31], 0, v0")
    f.e("v_cmp_gt_u32 s[32:33], 32, v0")
    f.e("v_cmp_ge_u32 s[34:35], 32, v0")
    f.e("s_mul_i32 s36, s23, 640"); f.e("s_add_u32 s37, s36, %d" % XOO); f.e("s_add_u32 s36, s36, %d" % XEE)
    for i in range(5):
        A, B, A2, B2 = 60 + i, 65 + i, 70 + i, 75 + i
        t0, t1, o0, o1 = 20 + 4 * i + 4, 21 + 4 * i + 4, 22 + 4 * i + 4, 23 + 4 * i + 4
        f.e("v_fma_f32 v%d, v%d, s29, v%d" % (t0, B, A))
        f.e("v_fma_f32 v%d, v%d, s29, v%d" % (t1, B2, A2))
        f.e("v_sub_f32 v%d, v%d, v%d" % (o0, A, B)); f.e("v_sub_f32 v%d, v%d, v%d" % (o1, A2, B2))
        if i == 0:
            f.e("v_cndmask_b32 v%d, 0, v%d, s[30:31]" % (t1, t1))
        if i == 4:
            f.e("v_cndmask_b32 v%d, 0, v%d, s[32:33]" % (t1, t1))
        f.e("v_add_f32 v%d, v%d, v%d" % (t0, t0, t1)); f.e("v_sub_f32 v%d, v%d, v%d" % (o0, o0, o1))
        if i == 0:
            f.e("v_cndmask_b32 v%d, 0, v%d, s[30:31]" % (o0, o0))
        if i == 4:
            f.e("v_cndmask_b32 v%d, 0, v%d, s[34:35]" % (t0, t0)); f.e("v_cndmask_b32 v%d, 0, v%d, s[32:33]" % (o0, o0))
        f.e("v_cvt_pk_bf16_f32 v%d, v%d, v%d" % (t0, t0, o0))
        f.e("buffer_store_short v%d, v21, s[12:15], s36 offen offset:%d" % (t0, 128 * i))
        f.e("buffer_store_short_d16_hi v%d, v21, s[12:15], s37 offen offset:%d" % (t0, 128 * i))
    if PROFON[0]: f.waitall()
    stamp(f, 1); prof_store(f, 0, 2, 12, 20, 44, 40)
    f.e("s_endpgm")
    z = K.seg("k1_zero"); z.lab("K1_zero")
    z.e("v_mov_b32 v20, 0"); z.e("v_lshlrev_b32 v21, 1, v0")
    z.e("s_mul_i32 s36, s23, 640"); z.e("s_add_u32 s37, s36, %d" % XOO); z.e("s_add_u32 s36, s36, %d" % XEE)
    for i in range(5):
        z.e("buffer_store_short v20, v21, s[12:15], s36 offen offset:%d" % (128 * i))
        z.e("buffer_store_short v20, v21, s[12:15], s37 offen offset:%d" % (128 * i))
    z.lab("K1_end"); z.e("s_endpgm")
    K.paths = [[a, c, d], [a, b, c, f], [a, b, z]]
    return K

def gen_k3(o=None):
    o = o or {}
    nodot = int(o.get('k3nodot', 0))
    K = Kern("final_kernel", (256, 1, 1), (576, 1, 1), 0, vgpr=128)
    a = K.seg("k3")
    a.e("s_cmp_ge_u32 s2, 256"); a.e("s_cbranch_scc1 K3_end")
    stamp(a, 0)
    a.e("s_load_dwordx2 s[6:7], s[0:1], 88"); a.e("s_load_dwordx2 s[4:5], s[0:1], 0"); a.e("s_load_dwordx2 s[16:17], s[0:1], 72")
    a.e("v_lshrrev_b32 v1, 6, v0"); a.e("v_and_b32 v0, 63, v0"); a.e("v_readfirstlane_b32 s20, v1")
    m16 = int(o.get('m16', 0))
    if m16:
        a.e("s_lshr_b32 s21, s2, 3"); a.e("s_bfe_u32 s22, s2, 0x20001"); a.e("s_and_b32 s23, s2, 1"); a.e("s_mul_i32 s23, s23, 9"); a.e("s_add_u32 s23, s23, s20")
        a.e("s_lshl_b32 s24, s23, 12")
        a.e("s_mul_i32 s26, s21, %d" % T64B); a.e("s_lshl_b32 s25, s22, 10"); a.e("s_add_u32 s26, s26, s25"); a.e("s_add_u32 s26, s26, s24"); a.e("s_add_u32 s26, s26, %d" % PART)
    else:
        a.e("s_lshr_b32 s21, s2, 3"); a.e("s_bfe_u32 s22, s2, 0x10002"); a.e("s_and_b32 s23, s2, 3"); a.e("s_mul_i32 s23, s23, 9"); a.e("s_add_u32 s23, s23, s20")
        a.e("s_lshr_b32 s24, s23, 1"); a.e("s_lshl_b32 s24, s24, 12"); a.e("s_and_b32 s25, s23, 1"); a.e("s_lshl_b32 s25, s25, 10"); a.e("s_add_u32 s24, s24, s25")
        a.e("s_mul_i32 s26, s21, %d" % T64B); a.e("s_lshl_b32 s25, s22, 11"); a.e("s_add_u32 s26, s26, s25"); a.e("s_add_u32 s26, s26, s24"); a.e("s_add_u32 s26, s26, %d" % PART)
    a.e("v_lshlrev_b32 v5, 4, v0")
    for i in range(15):
        a.e("s_add_u32 s%d, s26, %d" % (40 + i, i * SLOTB))
    a.waitlg(0)
    srd(a, 12, 6, WS_BYTES)
    for i in range(15):
        a.e("buffer_load_dwordx4 v[%d:%d], v5, s[12:15], s%d offen" % (32 + 4 * i, 35 + 4 * i, 40 + i))
    srd(a, 8, 4, 2359296); srd(a, 28, 16, 2359296)
    if m16:
        a.e("v_and_b32 v3, 15, v0"); a.e("v_lshrrev_b32 v4, 4, v0")
        a.e("s_lshl_b32 s25, s21, 6"); a.e("s_lshl_b32 s27, s22, 4"); a.e("s_add_u32 s25, s25, s27"); a.e("v_add_u32 v2, s25, v3")
        a.e("s_movk_i32 s27, 1152"); a.e("v_mul_lo_u32 v8, v2, s27"); a.e("v_lshlrev_b32 v9, 4, v4"); a.e("v_add_u32 v8, v8, v9"); a.e("s_lshl_b32 s27, s23, 6"); a.e("v_add_u32 v8, s27, v8")
        a.e("v_lshlrev_b32 v4, 8, v4"); a.e("v_add_u32 v4, s24, v4")
    else:
        a.e("v_and_b32 v3, 31, v0"); a.e("v_lshrrev_b32 v4, 5, v0")
        a.e("s_lshl_b32 s25, s21, 6"); a.e("s_lshl_b32 s27, s22, 5"); a.e("s_add_u32 s25, s25, s27"); a.e("v_add_u32 v2, s25, v3")
        a.e("s_movk_i32 s27, 1152"); a.e("v_mul_lo_u32 v8, v2, s27"); a.e("v_lshlrev_b32 v9, 4, v4"); a.e("v_add_u32 v8, v8, v9"); a.e("s_lshl_b32 s27, s23, 5"); a.e("v_add_u32 v8, s27, v8")
        a.e("v_lshlrev_b32 v4, 9, v4"); a.e("v_add_u32 v4, s24, v4")
    a.e("s_mov_b32 s26, %d" % T64B)
    def fragaddr(dst, T64, tok, tmp):
        a.e("v_mul_lo_u32 v%d, v%d, s26" % (dst, T64))
        if m16:
            a.e("v_bfe_u32 v%d, v%d, 4, 2" % (tmp, tok)); a.e("v_lshlrev_b32 v%d, 10, v%d" % (tmp, tmp)); a.e("v_add_u32 v%d, v%d, v%d" % (dst, dst, tmp))
            a.e("v_and_b32 v%d, 15, v%d" % (tmp, tok)); a.e("v_lshlrev_b32 v%d, 4, v%d" % (tmp, tmp)); a.e("v_add_u32 v%d, v%d, v%d" % (dst, dst, tmp))
        else:
            a.e("v_bfe_u32 v%d, v%d, 5, 1" % (tmp, tok)); a.e("v_lshlrev_b32 v%d, 11, v%d" % (tmp, tmp)); a.e("v_add_u32 v%d, v%d, v%d" % (dst, dst, tmp))
            a.e("v_and_b32 v%d, 31, v%d" % (tmp, tok)); a.e("v_lshlrev_b32 v%d, 4, v%d" % (tmp, tmp)); a.e("v_add_u32 v%d, v%d, v%d" % (dst, dst, tmp))
        a.e("v_add_u32 v%d, v%d, v4" % (dst, dst))
    a.e("v_sub_u32 v9, 2048, v2"); a.e("v_cmp_ge_u32 vcc, 1024, v2"); a.e("v_cndmask_b32 v9, v9, v2, vcc")
    a.e("v_mov_b32 v10, -1.0"); a.e("v_mov_b32 v11, 1.0"); a.e("v_cndmask_b32 v10, v10, v11, vcc")
    a.e("v_sub_u32 v11, 1024, v9"); a.e("v_cmp_gt_u32 vcc, 512, v9")
    a.e("v_cndmask_b32 v12, v11, v9, vcc")
    a.e("v_cndmask_b32 v13, 1, 0, vcc")
    a.e("v_lshrrev_b32 v14, 6, v12"); a.e("v_lshlrev_b32 v14, 1, v14"); a.e("v_add_u32 v14, v14, v13")
    a.e("v_and_b32 v12, 63, v12")
    a.e("v_cmp_eq_u32 vcc, 512, v9"); a.e("v_cndmask_b32 v14, v14, 32, vcc"); a.e("v_cndmask_b32 v12, v12, 0, vcc")
    fragaddr(15, 14, 12, 7)
    a.e("s_mov_b32 s55, %d" % (PART + 15 * SLOTB))
    a.e("buffer_load_dwordx4 v[92:95], v15, s[12:15], s55 offen")
    a.e("v_sub_u32 v11, 512, v9"); a.e("v_subrev_u32 v12, 512, v9"); a.e("v_cmp_ge_u32 vcc, 512, v9")
    a.e("v_cndmask_b32 v12, v12, v11, vcc"); a.e("v_cndmask_b32 v13, 1, 0, vcc")
    a.e("v_mov_b32 v11, -1.0"); a.e("v_cndmask_b32 v11, v11, 1.0, vcc"); a.e("v_mul_f32 v10, v10, v11")
    a.e("v_lshrrev_b32 v14, 6, v12"); a.e("v_lshlrev_b32 v14, 1, v14"); a.e("v_add_u32 v14, v14, v13"); a.e("v_add_u32 v14, 16, v14")
    a.e("v_and_b32 v12, 63, v12")
    a.e("v_and_b32 v11, 1023, v9"); a.e("v_cmp_eq_u32 vcc, 0, v11"); a.e("v_cndmask_b32 v14, v14, 40, vcc"); a.e("v_cndmask_b32 v12, v12, 0, vcc")
    fragaddr(16, 14, 12, 7)
    a.e("buffer_load_dwordx4 v[96:99], v16, s[12:15], s55 offen")
    a.e("buffer_load_dwordx4 v[100:103], v8, s[8:11], 0 offen")
    a.e("s_mov_b32 s56, 0x00003f80"); a.e("s_mov_b32 s57, 0x3f800000")
    for q in range(4):
        a.e("v_lshlrev_b32 v%d, 16, v%d" % (20 + 2 * q, 32 + q)); a.e("v_and_b32 v%d, 0xffff0000, v%d" % (21 + 2 * q, 32 + q))
    for i in range(1, 15):
        if nodot:
            for q in range(4):
                a.e("v_lshlrev_b32 v%d, 16, v%d" % (104 + 2 * q, 32 + 4 * i + q)); a.e("v_and_b32 v%d, 0xffff0000, v%d" % (105 + 2 * q, 32 + 4 * i + q))
            for q in range(8): a.e("v_add_f32 v%d, v%d, v%d" % (20 + q, 20 + q, 104 + q))
        else:
            for q in range(4):
                a.e("v_dot2_f32_bf16 v%d, v%d, s56, v%d" % (20 + 2 * q, 32 + 4 * i + q, 20 + 2 * q))
                a.e("v_dot2_f32_bf16 v%d, v%d, s57, v%d" % (21 + 2 * q, 32 + 4 * i + q, 21 + 2 * q))
    for q in range(4): a.e("v_cvt_pk_bf16_f32 v%d, v%d, v%d" % (32 + q, 20 + 2 * q, 21 + 2 * q))
    for q in range(4):
        a.e("v_lshlrev_b32 v%d, 16, v%d" % (20 + 2 * q, 32 + q)); a.e("v_and_b32 v%d, 0xffff0000, v%d" % (21 + 2 * q, 32 + q))
    a.e("s_mov_b32 s58, 0xbfb8aa3b")
    for q in range(8): a.e("v_mul_f32 v%d, s58, v%d" % (40 + q, 20 + q))
    for q in range(8): a.e("v_exp_f32 v%d, v%d" % (40 + q, 40 + q))
    for q in range(8): a.e("v_add_f32 v%d, 1.0, v%d" % (40 + q, 40 + q))
    for q in range(8): a.e("v_rcp_f32 v%d, v%d" % (40 + q, 40 + q))
    for q in range(8): a.e("v_mul_f32 v%d, v%d, v%d" % (20 + q, 20 + q, 40 + q))
    for q in range(4): a.e("v_cvt_pk_bf16_f32 v%d, v%d, v%d" % (32 + q, 20 + 2 * q, 21 + 2 * q))
    for q in range(4):
        a.e("v_lshlrev_b32 v%d, 16, v%d" % (20 + 2 * q, 32 + q)); a.e("v_and_b32 v%d, 0xffff0000, v%d" % (21 + 2 * q, 32 + q))
    for q in range(4):
        a.e("v_lshlrev_b32 v%d, 16, v%d" % (40 + 2 * q, 92 + q)); a.e("v_and_b32 v%d, 0xffff0000, v%d" % (41 + 2 * q, 92 + q))
        a.e("v_lshlrev_b32 v%d, 16, v%d" % (48 + 2 * q, 96 + q)); a.e("v_and_b32 v%d, 0xffff0000, v%d" % (49 + 2 * q, 96 + q))
    for q in range(8): a.e("v_fma_f32 v%d, v%d, v10, v%d" % (40 + q, 48 + q, 40 + q))
    for q in range(4): a.e("v_cvt_pk_bf16_f32 v%d, v%d, v%d" % (36 + q, 40 + 2 * q, 41 + 2 * q))
    for q in range(4):
        a.e("v_lshlrev_b32 v%d, 16, v%d" % (40 + 2 * q, 36 + q)); a.e("v_and_b32 v%d, 0xffff0000, v%d" % (41 + 2 * q, 36 + q))
    for q in range(8): a.e("v_mul_f32 v%d, v%d, v%d" % (40 + q, 40 + q, 20 + q))
    for q in range(4): a.e("v_cvt_pk_bf16_f32 v%d, v%d, v%d" % (36 + q, 40 + 2 * q, 41 + 2 * q))
    if m16:
        a.e("v_permlane32_swap_b32 v36, v38"); a.e("v_permlane32_swap_b32 v37, v39")
        a.e("v_permlane16_swap_b32 v36, v38"); a.e("v_permlane16_swap_b32 v37, v39")
    for q in range(4):
        a.e("v_lshlrev_b32 v%d, 16, v%d" % (40 + 2 * q, 36 + q)); a.e("v_and_b32 v%d, 0xffff0000, v%d" % (41 + 2 * q, 36 + q))
        a.e("v_lshlrev_b32 v%d, 16, v%d" % (48 + 2 * q, 100 + q)); a.e("v_and_b32 v%d, 0xffff0000, v%d" % (49 + 2 * q, 100 + q))
    for q in range(8): a.e("v_add_f32 v%d, v%d, v%d" % (40 + q, 40 + q, 48 + q))
    for q in range(4): a.e("v_cvt_pk_bf16_f32 v%d, v%d, v%d" % (36 + q, 40 + 2 * q, 41 + 2 * q))
    a.e("buffer_store_dwordx4 v[36:39], v8, s[28:31], 0 offen")
    if PROFON[0]: a.waitall()
    stamp(a, 1)
    if PROFON[0]:
        a.e("s_cmp_ge_u32 s20, 4"); a.e("s_cbranch_scc1 K3_end")
    prof_store(a, 2, 2, 12, 20, 44, 60)
    a.lab("K3_end"); a.e("s_endpgm")
    K.paths = [[a]]
    return K

OPTS = ['']
def write_file(path, kernels, launches=None):
    s = ("; Kernarg layout (96 bytes, ptrs only, base s[0:1]):\n"
         ";   0 A_x (2048x576 bf16)  8 dft_seq_re (2048x2048)  16 dft_seq_im  24 dft_hid_re (576x576)  32 dft_hid_im\n"
         ";   40 B_x (unused)  48 w_gate (576x4608)  56 w_up  64 w_down (4608x576)  72 d_out  80 d_debug  88 d_ws\n")
    for k in (launches or kernels):
        s += "; @launch kernel=%s grid=(%d,%d,%d) block=(%d,%d,%d) lds=%d\n" % ((k.label,) + k.grid + k.block + (k.lds,))
    s += "; opts: %s\n" % OPTS[0]
    s += '.amdgcn_target "amdgcn-amd-amdhsa--gfx950"\n.text\n'
    for k in kernels: s += k.text_out
    s += '.section .rodata,"a"\n'
    for k in kernels: s += ".p2align 6\n" + k.desc()
    open(path, "w").write(s)
    print("wrote", path, len(s), "bytes", file=sys.stderr)

if __name__ == "__main__":
    ap = argparse.ArgumentParser()
    ap.add_argument("out"); ap.add_argument("-v", type=int, default=1); ap.add_argument("--only", default="123")
    ap.add_argument("--opt", default="")
    args = ap.parse_args()
    opts = dict(x.split("=") for x in args.opt.split(",") if x)
    OPTS[0] = args.opt
    import gen2
    if opts.get("wsb"):
        b = int(opts["wsb"], 0)
        XN += b; XEE += b; XOO += b; PART += b; WS_BYTES = 0x10000000
        gen2.XN += b; gen2.XEE += b; gen2.XOO += b; gen2.PART += b; gen2.WS_BYTES = WS_BYTES
    if opts.get("prof"): PROFON[0] = int(opts["prof"])
    ks = []
    if "1" in args.only: ks.append(gen_k1(opts))
    if "2" in args.only:
        import gen2
        gen2.stamp = stamp; gen2.prof_store = prof_store
        ks.append(gen2.gen_k2(Kern, srd, opts))
    if "3" in args.only: ks.append(gen_k3(opts))
    for k in ks: k.text_out = k.build(args.v)
    write_file(args.out, ks)
```

```python
from emit import *
XN   = 0x0
XEE  = 0x240000
XOO  = 0x300000
PART = 0x400000
SLOTB = 2359296
T64B = 73728
WS_BYTES = 0x4000000
SLOT = 12288; NS = 6
HB = 73728
HX = HB + 81920
LDS_BYTES = HX + 1024
PF = 3
NF = 8
CNEG = 33
NS2 = [6]
M16 = [0]
LA = [4]
def stamp(seg, i): pass
def prof_store(*a): pass

def wt(ins, o):
    if ins.startswith("v_exp") or ins.startswith("v_rcp"): return o['wtrans']
    if ins.startswith("s_"): return o['wsalu']
    return 1.0

def spread(gaps, queue, o, start=0, end=None):
    if not queue: return
    G = len(gaps) if end is None else end
    idx = list(range(start, G))
    load = {g: sum(wt(i, o) for i in gaps[g] if isinstance(i, str)) for g in idx}
    tot = sum(load.values()) + sum(wt(i, o) for i in queue)
    p = 0; cum = load[idx[0]]
    for ins in queue:
        w = wt(ins, o)
        while p < len(idx) - 1 and cum + w * 0.5 > tot * (p + 1) / len(idx):
            p += 1; cum += load[idx[p]]
        gaps[idx[p]].append(ins); cum += w

def emit_gaps(s, mf, gaps):
    for m, g in zip(mf, gaps):
        for pre in m[:-1]: put(s, pre)
        s.e(m[-1])
        for x in g: put(s, x)

def put(s, x):
    if isinstance(x, str): s.e(x)
    elif x[0] == 'mark': s.mark(x[1])
    elif x[0] == 'waitmark': s.waitmark(x[1], x[2])
    elif x[0] == 'waitlg': s.waitlg(x[1])
    elif x[0] == 'c': s.c(x[1])
    else: raise ValueError(x)

def xreg(i):
    return ("a[%d:%d]" % (4 * i, 4 * i + 3)) if i < 64 else ("v[%d:%d]" % (224 + 4 * (i - 64), 227 + 4 * (i - 64)))

def areg(n): r = 80 + 4 * (n % NF); return r

def rd1(n, half):
    if M16[0]:
        st = n // 6; q = n % 6; fh = q // 3; kkl = q % 3
        r = areg(n) + 2 * half
        off = (st % NS) * SLOT + kkl * 4096 + half * 512; base = 5 if fh == 0 else 13
        if off >= 65536: off -= 65536; base += 1
        return "ds_read_b64_tr_b16 v[%d:%d], v%d offset:%d" % (r, r + 1, base, off)
    st = n // 6; kp = n % 6
    r = areg(n) + 2 * half
    off = (st % NS) * SLOT + kp * 2048 + half * 512; base = 5
    if off >= 65536: off -= 65536; base = 6
    return "ds_read_b64_tr_b16 v[%d:%d], v%d offset:%d" % (r, r + 1, base, off)

def rd2(n, half, n0):
    if M16[0]:
        q = n - n0; st = q // 6; qq = q % 6; dh = qq // 3; bl = qq % 3
        r = areg(n) + 2 * half
        off = (st % NS2[0]) * SLOT + bl * 4096 + half * 2048; base = 8
        if off >= 131072: off -= 131072; base = 2
        elif off >= 65536: off -= 65536; base = 5
        return "ds_read_b64_tr_b16 v[%d:%d], v%d offset:%d" % (r, r + 1, base + dh, off)
    q = n - n0; st = q // 6; kp = q % 6
    r = areg(n) + 2 * half
    off = (st % NS2[0]) * SLOT + kp * 2048 + half * 1024; base = 8
    if off >= 131072: off -= 131072; base = 5
    elif off >= 65536: off -= 65536; base = 9
    return "ds_read_b64_tr_b16 v[%d:%d], v%d offset:%d" % (r, r + 1, base, off)

def dma1(mat, kc, slot):
    sr = 12 if mat == 0 else 16
    su = ["s_add_u32 m0, s29, %d" % (slot * SLOT), "s_add_u32 s31, s30, %d" % (kc * 96 * 9216)]
    ld = ["buffer_load_dwordx4 v%d, s[%d:%d], s31 offen offset:%d lds" % (2 + j, sr, sr + 3, 1024 * j) for j in range(3)]
    return su, ld

def dma2(st, K):
    out = []
    for j in range(3):
        R = 96 * st + 32 * j; sg = R // K; row0 = R % K
        su = ["s_add_u32 m0, s34, %d" % ((st % NS2[0]) * SLOT + j * 4096), "s_add_u32 s31, s35, %d" % (sg * 128 + row0 * 1152)]
        out.append((su, "buffer_load_dwordx4 v10, s[20:23], s31 offen lds"))
    return out

def epi1():
    L = []
    for p0 in range(0, 32, 4):
        for j in range(4): L.append("v_mul_f32 v%d, s%d, v%d" % (112 + p0 + j, CNEG, 16 + p0 + j))
        for j in range(4): L.append("v_exp_f32 v%d, v%d" % (144 + p0 + j, 112 + p0 + j))
        for j in range(4): L.append("v_fma_f32 v%d, v%d, s%d, s%d" % (144 + p0 + j, 144 + p0 + j, CNEG, CNEG))
    return L

def epi2():
    L = []
    for p0 in range(0, 32, 4):
        for j in range(4): L.append("v_rcp_f32 v%d, v%d" % (144 + p0 + j, 144 + p0 + j))
        for j in range(4): L.append("v_mul_f32 v%d, v%d, v%d" % (112 + p0 + j, 112 + p0 + j, 48 + p0 + j))
        for j in range(4): L.append("v_mul_f32 v%d, v%d, v%d" % (112 + p0 + j, 112 + p0 + j, 144 + p0 + j))
        for j in range(0, 4, 2): L.append("v_cvt_pk_bf16_f32 v%d, v%d, v%d" % (176 + (p0 + j) // 2, 112 + p0 + j, 112 + p0 + j + 1))
        if p0 % 8 == 4 and M16[0]:
            tq = p0 // 8
            L.append("ds_write_b128 v7, v[%d:%d] offset:%d" % (176 + 4 * tq, 179 + 4 * tq, tq * 10240))
        elif p0 % 8 == 4:
            n = p0 // 16; J = (p0 // 8) % 2
            L.append("ds_write_b128 v7, v[%d:%d] offset:%d" % (176 + n * 8 + 4 * J, 179 + n * 8 + 4 * J, n * 20480 + J * 1024))
    return L

def p0_code(f, sp, d, t, order):
    if order == 0:
        f.e("s_mul_i32 s%d, s%d, 5" % (d, sp)); f.e("s_lshl_b32 s%d, s%d, 2" % (t, sp)); f.e("s_add_u32 s%d, s%d, 12" % (t, t))
        f.e("s_cmp_lt_u32 s%d, 12" % sp); f.e("s_cselect_b32 s%d, s%d, s%d" % (d, d, t))
    else:
        f.e("s_mul_i32 s%d, s%d, 5" % (d, sp))
        f.e("s_cmp_ge_u32 s%d, 5" % sp); f.e("s_cselect_b32 s%d, 4, 0" % t); f.e("s_add_u32 s%d, s%d, s%d" % (d, d, t))
        f.e("s_cmp_ge_u32 s%d, 10" % sp); f.e("s_cselect_b32 s%d, 4, 0" % t); f.e("s_add_u32 s%d, s%d, s%d" % (d, d, t))
        f.e("s_cmp_eq_u32 s%d, 12" % sp); f.e("s_cselect_b32 s%d, 25, s%d" % (d, d))
        f.e("s_cmp_eq_u32 s%d, 13" % sp); f.e("s_cselect_b32 s%d, 54, s%d" % (d, d))
        f.e("s_cmp_eq_u32 s%d, 14" % sp); f.e("s_cselect_b32 s%d, 0x44, s%d" % (d, d))

def code_addr(s, va, vt, frm, to, ssel=None):
    if ssel:
        s.e("v_add_u32 v%d, s%d, v%d" % (va, ssel[0], vt)); s.e("v_min_u32 v%d, s%d, v%d" % (va, ssel[1], va))
    else:
        s.e("v_add_u32 v%d, %s-K2_pc, v%d" % (va, frm, vt)); s.e("v_min_u32 v%d, %s-K2_pc-4, v%d" % (va, to, va))
    s.e("v_add_co_u32 v%d, s[98:99], s96, v%d" % (va, va)); s.e("v_mov_b32 v%d, s97" % (va + 1))
    s.e("v_addc_co_u32 v%d, s[98:99], 0, v%d, s[98:99]" % (va + 1, va + 1))

def code_ld(vd, va): return "global_load_dword v%d, v[%d:%d], off ; pf" % (vd, va, va + 1)

class P1:
    def __init__(self, o): self.n = 0; self.o = o
    def phase(self, s, mat, epi, dmaf, extra_first=None, nextrd=None, last_barrier=True, first_c0=True, post=None):
        o = self.o
        if M16[0]: return self.phase16(s, mat, epi, dmaf, nextrd, last_barrier, post)
        acc = 16 if mat == 0 else 48
        per = (len(epi) + 5) // 6
        epi = list(epi)
        for i in range(6):
            gaps = [[] for _ in range(12)]
            mf = []
            for kp in range(6):
                n = self.n + kp
                f = nextrd if nextrd else rd1
                nn = n + PF
                if nextrd and (i * 6 + kp + PF) < 36: f = rd1
                gaps[2 * kp].append(f(nn, 0)); gaps[2 * kp + 1].append(f(nn, 1))
                kap = i * 6 + kp
                for t in range(2):
                    A = areg(n); D = acc + 16 * t
                    C = "0" if kap == 0 else "v[%d:%d]" % (D, D + 15)
                    mf.append(["v_mfma_f32_32x32x16_bf16 v[%d:%d], v[%d:%d], %s, %s" % (D, D + 15, A, A + 3, xreg(kap * 2 + t), C)])
            for g, ins in dmaf(i): gaps[g].append(ins)
            if i == 0:
                mine = epi[:per - o['first_less']]; epi = epi[len(mine):]
                spread(gaps, mine, o, start=o['epi_start'])
            else:
                rem = 6 - i
                cnt = (len(epi) + rem - 1) // rem
                mine = epi[:cnt]; epi = epi[cnt:]
                spread(gaps, mine, o)
            if post and i in post:
                for g, ins in post[i]: gaps[g].append(ins)
            if s.name == "ffn_loop":
                def keep(x):
                    if not isinstance(x, str): return True
                    if o['nords'] and x.startswith("ds_read"): return False
                    if o['noepi'] and (x.startswith("v_") or x.startswith("ds_write")) : return False
                    if o['nodma'] and x.startswith("buffer_load"): return False
                    return True
                gaps = [[x for x in g if keep(x)] for g in gaps]
            emit_gaps(s, mf, gaps)
            self.n += 6
            if i < 5 or last_barrier:
                s.waitmark("dma", 3)
                if not (s.name == "ffn_loop" and (o['nobar'] == 1 or (o['nobar'] == 2 and i % 2 == 0))): s.e("s_barrier")
        assert not epi

def g24(g):
    return 2 * g + 1

def phase16(self, s, mat, epi, dmaf, nextrd, last_barrier, post):
    o = self.o
    acc = 16 if mat == 0 else 48
    per = (len(epi) + 5) // 6
    epi = list(epi)
    la = LA[0]
    for i in range(6):
        gaps = [[] for _ in range(24)]
        mf = []
        for fh in range(2):
            G0 = self.n + 3 * fh
            k = 0
            for j in range(3):
                nn = G0 + la + j
                f = rd1
                if nextrd and (i * 6 + 3 * fh + la + j) >= 36: f = nextrd
                for h in range(2):
                    gaps[12 * fh + o['rdpos'] + o['rdstep'] * k].append(f(nn, h)); k += 1
            for tq in range(4):
                for kkl in range(3):
                    A = areg(G0 + kkl); D = acc + 8 * tq + 4 * fh
                    C = "0" if (i == 0 and kkl == 0) else "v[%d:%d]" % (D, D + 3)
                    mf.append(["v_mfma_f32_16x16x32_bf16 v[%d:%d], v[%d:%d], %s, %s" % (D, D + 3, A, A + 3, xreg((3 * i + kkl) * 4 + tq), C)])
        for g, ins in dmaf(i): gaps[g24(g)].append(ins)
        if post and i in post:
            for g, ins in post[i]: gaps[g24(g)].append(ins)
        if post and ('g24', i) in post:
            for g, ins in post[('g24', i)]: gaps[g].append(ins)
        if i == 0:
            mine = epi[:max(per - o['first_less'], 0)]; epi = epi[len(mine):]
            spread(gaps, mine, o, start=o['epi_start'])
        else:
            rem = 6 - i
            cnt = (len(epi) + rem - 1) // rem
            mine = epi[:cnt]; epi = epi[cnt:]
            spread(gaps, mine, o)
        if s.name == "ffn_loop":
            def keep(x):
                if not isinstance(x, str): return True
                if o['nords'] and x.startswith("ds_read"): return False
                if o['noepi'] and (x.startswith("v_") or x.startswith("ds_write")) : return False
                if o['nodma'] and x.startswith("buffer_load"): return False
                return True
            gaps = [[x for x in g if keep(x)] for g in gaps]
        emit_gaps(s, mf, gaps)
        self.n += 6
        if post and ('end', i) in post:
            for x in post[('end', i)]: put(s, x)
        if i < 5 or last_barrier:
            s.waitmark("dma", 3)
            if not (s.name == "ffn_loop" and (o['nobar'] == 1 or (o['nobar'] == 2 and i % 2 == 0))): s.e("s_barrier")
    assert not epi
P1.phase16 = phase16

def pf_loads():
    return ["buffer_load_dwordx4 v[%d:%d], v%d, s[20:23], 0 offen offset:%d" % (196 + 4 * (j % 4), 199 + 4 * (j % 4), 192 + j // 4, (j % 4) * 1024) + " ; pf" for j in range(12)]

def pf_post(mode):
    L = pf_loads(); post = {}
    if mode == 1:
        for i in range(4): post[1 + i] = [(4, L[3 * i]), (7, L[3 * i + 1]), (10, L[3 * i + 2])]
    elif mode == 5:
        for i in range(4): post[1 + i] = [(4, L[3 * i]), (7, L[3 * i + 1]), (10, L[3 * i + 2])]
    elif mode == 3:
        ar = [192, 193, 194, 195, 212, 213, 214]
        L = ["buffer_load_dwordx4 v[%d:%d], v%d, s[20:23], 0 offen offset:%d ; pf" % (196 + 4 * (j % 4), 199 + 4 * (j % 4), ar[j // 4], (j % 4) * 1024) for j in range(27)]
        pos = [2, 4, 5, 7, 8, 10]
        for i in range(6):
            mine = L[5 * i: 5 * i + 5] if i < 5 else L[25:]
            post[i] = [(pos[k], x) for k, x in enumerate(mine)]
    elif mode == 2:
        for i in range(6): post[i] = [(4, L[2 * i]), (10, L[2 * i + 1])]
    return post

def dma_gaps1(mat, kc, slot):
    su, ld = dma1(mat, kc, slot)
    return [(0, su[0]), (1, su[1]), (3, ld[0]), (6, ld[1]), (9, ld[2]), (9, ('mark', 'dma'))]

def dma_gaps2(st, K, pos=(1, 5, 9)):
    L = []
    for j, (su, ld) in enumerate(dma2(st, K)):
        g = pos[j]
        L += [(g - 1, su[0]), (g - 1, su[1]), (g, ld)]
    L.append((pos[2], ('mark', 'dma'))); L.append((pos[2], ('mark', 'w2_%d' % st)))
    return L

def phase2_16(s, o, n0, K, dft):
    nk = K // 32; NB = 9 * nk; nst = NB // 3; Q = 6 * nst; la = LA[0]
    NT = 5 if dft else 4
    def accof(seg, tq, dh):
        if tq == 4: return 208 + 8 * (seg % 2) + 4 * dh
        return (16 if seg % 2 == 0 else 48) + 8 * tq + 4 * dh
    stf = o['stf'].replace('+', ' ')
    def st_out(seg):
        L = ["s_add_u32 s37, s36, %d" % (seg * 8192)]
        for tq in range(4):
            r = accof(seg, tq, 0)
            for q in range(4): L.append("v_cvt_pk_bf16_f32 v%d, v%d, v%d" % (176 + 4 * tq + q, r + 2 * q, r + 2 * q + 1))
            if not (o['nostore'] and seg < 8):
                L.append("buffer_store_dwordx4 v[%d:%d], v11, s[8:11], s37 offen offset:%d %s" % (176 + 4 * tq, 179 + 4 * tq, tq * 1024, stf))
        if dft:
            r = accof(seg, 4, 0)
            L.append("s_add_u32 s39, s38, %d" % (seg * 8192))
            for q in range(4): L.append("v_cvt_pk_bf16_f32 v%d, v%d, v%d" % (192 + q, r + 2 * q, r + 2 * q + 1))
            L.append("buffer_store_dwordx4 v[192:195], v11, s[8:11], s39 offen %s" % stf)
        return L
    s.e("v_add_u32 v5, 0x10000, v8"); s.e("v_add_u32 v6, 0x10000, v9")
    if NS2[0] > 6: s.e("v_add_u32 v2, 0x20000, v8"); s.e("v_add_u32 v3, 0x20000, v9")
    pend = []; GP = 6 * NT
    for st in range(nst):
        gaps = [[] for _ in range(GP)]
        mf = []
        done = None
        for dh in range(2):
            G0 = n0 + 6 * st + 3 * dh
            k = 0
            for j in range(3):
                nn = G0 + la + j
                for h in range(2):
                    if nn - n0 < Q: gaps[3 * NT * dh + o['rdpos'] + o['rdstep'] * k].append(rd2(nn, h, n0))
                    k += 1
            for tq in range(NT):
                for bl in range(3):
                    b = 3 * st + bl; seg = b // nk; kk = b % nk
                    A = areg(G0 + bl); D = accof(seg, tq, dh)
                    C = "0" if kk == 0 else "v[%d:%d]" % (D, D + 3)
                    B = ("a[%d:%d]" % (4 * (kk * 4 + tq), 4 * (kk * 4 + tq) + 3)) if tq < 4 else ("v[%d:%d]" % (112 + 4 * kk, 115 + 4 * kk))
                    mf.append(["v_mfma_f32_16x16x32_bf16 v[%d:%d], v[%d:%d], %s, %s" % (D, D + 3, A, A + 3, B, C)])
                    if kk == nk - 1: done = seg
        if NS2[0] == 6: iss = [st + 5]
        elif st == 0: iss = [5]
        elif st <= 6: iss = [2 * st + 4, 2 * st + 5]
        else: iss = [st + 11]
        iss = [x for x in iss if x < nst]
        if len(iss) == 2:
            L = dma_gaps2(iss[0], K, (1, 3, 5)) + dma_gaps2(iss[1], K, (7, 9, 11))
        elif iss: L = dma_gaps2(iss[0], K)
        else: L = []
        def gm(g): return min(GP - 1, (2 * g + 1) * GP // 24)
        for g, ins in L: gaps[gm(g)].append(ins)
        if o['cpk3'] and st == nst - o['cpk3']: gaps[3].append(code_ld(222 if not dft else 254, 220 if not dft else 252))
        if pend:
            start = pend_start
            room = int((GP - start) * o['p2_rate16'])
            mine = pend[:room]; pend = pend[room:]
            spread(gaps, mine, o, start=start)
            pend_start = 0
        emit_gaps(s, mf, gaps)
        if done is not None and done < 8:
            assert not pend
            pend = st_out(done); pend_start = o['p2_delay16']
        if st + 2 <= nst - 1:
            s.waitmark("w2_%d" % (st + 2), 0); s.e("s_barrier")
    assert not pend
    for ins in st_out(8): s.e(ins)

def phase2(s, o, n0, K, dft):
    if M16[0]: return phase2_16(s, o, n0, K, dft)
    nk = K // 16; Q = 9 * nk; nst = Q // 6
    def st_out(seg):
        acc = 16 if seg % 2 == 0 else 48
        L = ["s_add_u32 s37, s36, %d" % (seg * 8192)]
        for n in range(2):
            for J in range(2):
                for q in range(4):
                    r = acc + 16 * n + 8 * J + 2 * q
                    L.append("v_cvt_pk_bf16_f32 v%d, v%d, v%d" % (176 + n * 8 + 4 * J + q, r, r + 1))
                if not (o['nostore'] and seg < 8):
                    L.append("buffer_store_dwordx4 v[%d:%d], v11, s[8:11], s37 offen offset:%d %s" % (176 + n * 8 + 4 * J, 179 + n * 8 + 4 * J, n * 2048 + J * 1024, o['stf'].replace('+', ' ')))
        if dft:
            x = 208 + 4 * (seg % 2)
            L += ["v_mov_b32 v%d, v%d" % (216 + i, x + i) for i in range(4)]
            L += ["s_add_u32 s39, s38, %d" % (seg * 8192)]
            L += ["v_permlane32_swap_b32 v%d, v%d" % (x + i, 216 + i) for i in range(4)]
            L += ["v_add_f32 v%d, v%d, v%d" % (216 + i, x + i, 216 + i) for i in range(4)]
            L += ["v_cvt_pk_bf16_f32 v216, v216, v217", "v_cvt_pk_bf16_f32 v217, v218, v219",
                  "buffer_store_dwordx2 v[216:217], v12, s[8:11], s39 offen"]
        return L
    def hx(kap, j):
        return (112 + 4 * kap + j) if kap < 16 else (192 + 4 * (kap - 16) + j)
    pend = []
    if NS2[0] > 6: s.e("v_add_u32 v5, 0x20000, v8")
    for st in range(nst):
        gaps = [[] for _ in range(12)]
        mf = []
        newseg = None
        for kp in range(6):
            q = st * 6 + kp; seg = q // nk; kap = q % nk
            n = n0 + q
            if q + PF < Q:
                gaps[2 * kp].append(rd2(n + PF, 0, n0)); gaps[2 * kp + 1].append(rd2(n + PF, 1, n0))
            acc = 16 if seg % 2 == 0 else 48
            for t in range(2):
                A = areg(n); D = acc + 16 * t
                C = "0" if kap == 0 else "v[%d:%d]" % (D, D + 15)
                j = kap * 2 + t
                mf.append(["v_mfma_f32_32x32x16_bf16 v[%d:%d], v[%d:%d], a[%d:%d], %s" % (D, D + 15, A, A + 3, 4 * j, 4 * j + 3, C)])
            if dft:
                x = 208 + 4 * (seg % 2); A = areg(n)
                for jj in range(2):
                    c = "0" if (kap == 0 and jj == 0) else "v[%d:%d]" % (x, x + 3)
                    gaps[2 * kp + jj].insert(0, "v_mfma_f32_4x4x4_16b_bf16 v[%d:%d], v[%d:%d], v[%d:%d], %s" % (x, x + 3, A + 2 * jj, A + 2 * jj + 1, hx(kap, 2 * jj), hx(kap, 2 * jj + 1), c))
            if kap == 0 and seg > 0:
                newseg = (kp, seg - 1)
        if NS2[0] == 6: iss = [st + 5]
        elif st == 0: iss = [5]
        elif st <= 6: iss = [2 * st + 4, 2 * st + 5]
        else: iss = [st + 11]
        iss = [x for x in iss if x < nst]
        if len(iss) == 2:
            L = dma_gaps2(iss[0], K, (1, 3, 5)) + dma_gaps2(iss[1], K, (7, 9, 11))
        elif iss: L = dma_gaps2(iss[0], K)
        else: L = []
        for g, ins in L: gaps[g].append(ins)
        if newseg is not None:
            kp, sg = newseg
            assert not pend
            pend = st_out(sg)
            start = 2 * kp + o['p2_epi_delay']
        else:
            start = 0
        if pend:
            if start < 12:
                room = (12 - start) * o['p2_epi_rate']
                mine = pend[:room]; pend = pend[room:]
                spread(gaps, mine, o, start=start)
        emit_gaps(s, mf, gaps)
        if st + 2 <= nst - 1:
            s.waitmark("w2_%d" % (st + 2), 0); s.e("s_barrier")
    assert not pend
    for ins in st_out(8): s.e(ins)

def gen_k2(Kern, srd, opts):
    o = dict(xo=0, xg=0, xl=0, xt=0, xil=0, xpre=2, xpf=0, xdm=2, pstamp=0, ord=0, slowpf=0, cpf=0, cpfst=1, cpk3=0, cpd1=18, m16=0, la=4, rdpos=0, rdstep=2, p2_rate16=1.0, p2_delay16=2, pfw=0, pfc=0, ns2=6, map=0, prof=0, nostore=0, stf='', nords=0, noepi=0, nodma=0, nobar=0, wtrans=2.0, wsalu=0.3, epi_start=4, first_less=4, p2_epi_delay=5, p2_epi_rate=2)
    for k, v in opts.items():
        if k in o: o[k] = type(o[k])(v)
    NS2[0] = o['ns2']; M16[0] = o['m16']; LA[0] = o['la']
    global stamp
    stamp_ = stamp
    pst = lambda seg, i: None
    if o['pstamp']:
        pst = stamp_
        stamp = lambda seg, i: (stamp_(seg, i) if i in (0, 6, 7) else None)
    NPRE = o['la'] if o['m16'] else PF
    K = Kern("main_kernel", (256, 1, 1), (256, 1, 1), 159744 if o['xl'] == 1 else LDS_BYTES, vgpr=512, accum=256)
    a = K.seg("head")
    a.e("s_cmp_ge_u32 s2, 256"); a.e("s_cbranch_scc1 K2_end")
    stamp(a, 0)
    a.e("s_load_dwordx2 s[4:5], s[0:1], 88")
    a.e("s_load_dwordx4 s[40:43], s[0:1], 48")
    a.e("s_load_dwordx2 s[44:45], s[0:1], 64")
    a.e("s_load_dwordx4 s[48:51], s[0:1], 8")
    a.e("s_load_dwordx4 s[52:55], s[0:1], 24")
    a.e("v_lshrrev_b32 v1, 6, v0"); a.e("v_and_b32 v0, 63, v0"); a.e("v_readfirstlane_b32 s24, v1")
    if o['map'] == 0:
        a.e("s_and_b32 s3, s2, 7"); a.e("s_lshr_b32 s28, s2, 3"); a.e("s_lshr_b32 s27, s28, 4"); a.e("s_lshl_b32 s3, s3, 1")
        a.e("s_add_u32 s27, s27, s3"); a.e("s_and_b32 s28, s28, 15")
    else:
        tb = {1: 3, 2: 2, 3: 3}[o['map']]
        a.e("s_and_b32 s3, s2, 7"); a.e("s_lshr_b32 s46, s2, 3")
        a.e("s_and_b32 s28, s3, %d" % ((16 >> tb) - 1)); a.e("s_lshl_b32 s28, s28, %d" % tb); a.e("s_and_b32 s47, s46, %d" % ((1 << tb) - 1)); a.e("s_add_u32 s28, s28, s47")
        a.e("s_lshr_b32 s27, s3, %d" % (4 - tb)); a.e("s_lshl_b32 s27, s27, %d" % (5 - tb)); a.e("s_lshr_b32 s47, s46, %d" % tb); a.e("s_add_u32 s27, s27, s47")
    if o['map'] == 3:
        a.e("s_lshr_b32 s46, s27, 2"); a.e("s_and_b32 s47, s27, 3"); a.e("s_mul_i32 s27, s46, 3"); a.e("s_add_u32 s27, s27, s47"); a.e("s_add_u32 s46, s46, 12")
        a.e("s_cmp_eq_u32 s47, 3"); a.e("s_cselect_b32 s27, s46, s27")
    a.e("s_lshr_b32 s25, s24, 1"); a.e("s_and_b32 s26, s24, 1")
    a.e("s_mov_b32 s%d, 0xbfb8aa3b" % CNEG)
    a.e("v_lshrrev_b32 v13, 4, v0"); a.e("v_bfe_u32 v14, v0, 2, 2"); a.e("v_and_b32 v15, 3, v0")
    a.e("v_lshlrev_b32 v11, 4, v0")
    if o['m16']:
        a.e("v_lshrrev_b32 v1, 1, v14"); a.e("v_lshlrev_b32 v1, 1, v1"); a.e("v_and_b32 v9, 1, v13"); a.e("v_lshlrev_b32 v9, 2, v9"); a.e("v_add_u32 v9, v9, v1")
        a.e("v_lshrrev_b32 v12, 1, v15"); a.e("s_lshl_b32 s3, s26, 2"); a.e("v_add_u32 v12, s3, v12"); a.e("v_xor_b32 v12, v12, v9"); a.e("v_lshlrev_b32 v12, 4, v12")
        a.e("v_and_b32 v1, 1, v15"); a.e("v_lshlrev_b32 v1, 3, v1"); a.e("v_add_u32 v12, v12, v1")
        a.e("v_lshlrev_b32 v8, 2, v13"); a.e("v_add_u32 v8, v8, v14"); a.e("v_lshlrev_b32 v8, 7, v8"); a.e("v_add_u32 v8, v8, v12"); a.e("v_xor_b32 v9, 32, v8")
        a.e("v_lshlrev_b32 v5, 3, v13"); a.e("v_add_u32 v5, v5, v14"); a.e("v_lshlrev_b32 v5, 7, v5"); a.e("v_add_u32 v5, v5, v12"); a.e("v_add_u32 v6, 0x10000, v5")
        a.e("v_lshrrev_b32 v13, 3, v0"); a.e("v_and_b32 v14, 7, v0")
        a.e("v_bfe_u32 v15, v13, 1, 2"); a.e("v_lshlrev_b32 v15, 1, v15"); a.e("v_xor_b32 v15, v14, v15"); a.e("v_lshlrev_b32 v15, 4, v15")
        a.e("s_movk_i32 s3, 1152"); a.e("v_mul_lo_u32 v10, v13, s3"); a.e("v_add_u32 v10, v10, v15")
        a.e("v_bfe_u32 v15, v13, 1, 1"); a.e("v_lshlrev_b32 v15, 1, v15"); a.e("v_xor_b32 v15, v14, v15"); a.e("v_lshlrev_b32 v15, 4, v15")
        a.e("s_and_b32 s3, s24, 1"); a.e("s_lshl_b32 s3, s3, 6"); a.e("v_xor_b32 v15, s3, v15")
        a.e("s_movk_i32 s3, 9216"); a.e("v_mul_lo_u32 v13, v13, s3")
        a.e("v_add_u32 v2, v13, v15"); a.e("v_add_u32 v4, %d, v2" % (16 * 9216 - 2048))
        a.e("v_xor_b32 v15, 64, v15"); a.e("v_add_u32 v3, v13, v15"); a.e("v_add_u32 v3, %d, v3" % (8 * 9216 - 1024))
        a.e("v_xor_b32 v13, 32, v5"); a.e("v_add_u32 v14, 0x10000, v13")
    else:
        a.e("v_lshrrev_b32 v1, 1, v13"); a.e("v_lshlrev_b32 v1, 2, v1"); a.e("v_add_u32 v1, v1, v14"); a.e("v_lshlrev_b32 v8, 7, v1")
        a.e("v_and_b32 v1, 1, v13"); a.e("v_lshlrev_b32 v1, 1, v1"); a.e("s_lshl_b32 s3, s26, 2"); a.e("v_add_u32 v1, s3, v1")
        a.e("v_bfe_u32 v9, v14, 1, 1"); a.e("v_lshlrev_b32 v9, 2, v9")
        a.e("v_and_b32 v12, 1, v15"); a.e("v_add_u32 v12, v1, v12"); a.e("v_xor_b32 v12, v12, v9"); a.e("v_lshlrev_b32 v12, 4, v12"); a.e("v_add_u32 v8, v8, v12")
        a.e("v_lshrrev_b32 v12, 1, v15"); a.e("v_lshlrev_b32 v12, 3, v12"); a.e("v_add_u32 v8, v8, v12")
        a.e("v_lshrrev_b32 v12, 1, v15"); a.e("v_add_u32 v12, v1, v12"); a.e("v_xor_b32 v12, v12, v9"); a.e("v_lshlrev_b32 v12, 4, v12")
        a.e("v_lshrrev_b32 v5, 1, v13"); a.e("v_lshlrev_b32 v5, 3, v5"); a.e("v_add_u32 v5, v5, v14"); a.e("v_lshlrev_b32 v5, 7, v5"); a.e("v_add_u32 v5, v5, v12")
        a.e("v_and_b32 v12, 1, v15"); a.e("v_lshlrev_b32 v12, 3, v12"); a.e("v_add_u32 v5, v5, v12")
        a.e("v_add_u32 v6, 0x10000, v5"); a.e("v_add_u32 v9, 0x10000, v8")
        a.e("v_lshrrev_b32 v13, 3, v0"); a.e("v_and_b32 v14, 7, v0"); a.e("v_bfe_u32 v15, v13, 1, 1"); a.e("v_lshlrev_b32 v15, 2, v15")
        a.e("v_xor_b32 v14, v14, v15"); a.e("v_lshlrev_b32 v14, 4, v14")
        a.e("s_movk_i32 s3, 1152"); a.e("v_mul_lo_u32 v10, v13, s3"); a.e("v_add_u32 v10, v10, v14")
        a.e("s_movk_i32 s3, 9216"); a.e("v_mul_lo_u32 v2, v13, s3"); a.e("v_add_u32 v2, v2, v14")
        a.e("v_add_u32 v3, %d, v2" % (8 * 9216 - 1024)); a.e("v_add_u32 v4, %d, v2" % (16 * 9216 - 2048))
    a.e("s_lshl_b32 s34, s24, 10")
    a.e("s_mul_i32 s36, s27, %d" % SLOTB); a.e("s_lshl_b32 s3, s28, 1"); a.e("s_add_u32 s3, s3, s25"); a.e("s_mul_i32 s3, s3, %d" % T64B)
    a.e("s_add_u32 s36, s36, s3"); a.e("s_lshl_b32 s46, s26, 12"); a.e("s_add_u32 s36, s36, s46"); a.e("s_add_u32 s36, s36, %d" % PART)
    if o['cpf']:
        a.e("s_getpc_b64 s[96:97]"); a.lab("K2_pc")
    a.waitlg(0)
    pst(a, 1)
    srd(a, 8, 4, WS_BYTES)
    if o['xt']:
        a.e("s_lshr_b32 s56, s2, 6"); a.e("s_and_b32 s56, s56, 3"); a.e("s_lshl_b32 s56, s56, 2"); a.e("s_add_u32 s56, s56, s24")
        a.e("s_lshr_b32 s57, s56, 3"); a.e("s_and_b32 s56, s56, 7"); a.e("s_mul_i32 s56, s56, 4608")
        a.e("s_lshl_b32 s58, s28, 1"); a.e("s_add_u32 s58, s58, s57"); a.e("s_mul_i32 s58, s58, %d" % T64B); a.e("s_add_u32 s56, s56, s58")
        if XN: a.e("s_add_u32 s56, s56, %d" % XN)
        a.e("s_add_u32 s57, s56, 36864")
        if o['xt'] == 1:
            a.e("v_min_u32 v216, 35, v0"); a.e("v_lshlrev_b32 v216, 7, v216")
            a.e("buffer_load_dword v218, v216, s[8:11], s56 offen ; pf"); a.e("buffer_load_dword v218, v216, s[8:11], s57 offen ; pf")
        else:
            a.e("v_lshlrev_b32 v216, 6, v0"); a.e("v_min_u32 v217, 7, v0"); a.e("v_lshlrev_b32 v217, 6, v217"); a.e("v_add_u32 v217, 4096, v217")
            for sb in (56, 57):
                a.e("buffer_load_dword v218, v216, s[8:11], s%d offen ; pf" % sb); a.e("buffer_load_dword v218, v217, s[8:11], s%d offen ; pf" % sb)
    a.e("s_cmp_eq_u32 s27, 15"); a.e("s_cbranch_scc1 K2_dft")
    f = K.seg("ffn_pro")
    srd(f, 12, 40, 576 * 9216); srd(f, 16, 42, 576 * 9216); srd(f, 20, 44, 4608 * 1152)
    if o['slowpf']:
        f.e("s_sub_u32 s46, s27, 12"); f.e("s_lshl_b32 s46, s46, 4"); f.e("s_add_u32 s46, s46, s28"); f.e("s_lshl_b32 s46, s46, 2"); f.e("s_add_u32 s46, s46, s24")
        f.e("s_lshl_b32 s46, s46, 1")
        f.e("v_lshrrev_b32 v216, 1, v0"); f.e("s_movk_i32 s47, 9216"); f.e("v_mul_lo_u32 v216, v216, s47"); f.e("v_and_b32 v217, 1, v0"); f.e("v_lshlrev_b32 v217, 6, v217")
        f.e("v_add_u32 v216, v216, v217")
        for i in range(2):
            f.e("s_add_u32 s56, s46, %d" % i)
            f.e("s_mul_i32 s47, s56, 3641"); f.e("s_lshr_b32 s47, s47, 16"); f.e("s_mul_i32 s57, s47, 18"); f.e("s_sub_u32 s57, s56, s57")
            f.e("s_and_b32 s58, s47, 1"); f.e("s_cmp_eq_u32 s58, 1"); f.e("s_cselect_b32 s60, s42, s40"); f.e("s_cselect_b32 s61, s43, s41")
            f.e("s_mov_b32 s62, 0x%x" % (576 * 9216)); f.e("s_mov_b32 s63, 0x00020000")
            f.e("s_lshr_b32 s58, s60, 7"); f.e("s_sub_u32 s58, 3, s58"); f.e("s_and_b32 s58, s58, 7")
            f.e("s_lshr_b32 s47, s47, 1"); f.e("s_lshl_b32 s47, s47, 3"); f.e("s_add_u32 s47, s47, s58"); f.e("s_lshl_b32 s47, s47, 7")
            f.e("s_mul_i32 s57, s57, %d" % (32 * 9216)); f.e("s_add_u32 s47, s47, s57")
            f.e("s_cmp_lt_u32 s56, 324"); f.e("s_cselect_b32 s47, s47, 0x7ff00000"); f.e("s_cmp_ge_u32 s27, 12"); f.e("s_cselect_b32 s47, s47, 0x7ff00000")
            f.e("v_add_u32 v217, s47, v216")
            f.e("buffer_load_dword v218, v217, s[60:63], 0 offen ; pf")
    p0_code(f, 27, 46, 47, o['ord'])
    f.e("s_cmp_lt_u32 s27, 12"); f.e("s_cselect_b32 s32, 4, 3")
    f.e("s_mul_i32 s30, s24, %d" % (24 * 9216)); f.e("s_lshl_b32 s47, s46, 7"); f.e("s_add_u32 s30, s30, s47")
    f.e("s_mul_i32 s29, s24, 3072")
    f.e("s_lshl_b32 s47, s46, 6"); f.e("s_lshl_b32 s56, s24, 3"); f.e("s_add_u32 s47, s47, s56"); f.e("s_mul_i32 s35, s47, 1152")
    def xdma(c):
        G = []
        for kkl in range(3):
            G.append(["s_add_u32 m0, s38, %d" % ((c % 3) * 24576 + kkl * 4096), "s_add_u32 s39, s37, %d" % ((3 * c + kkl) * 4096),
                      "buffer_load_dwordx4 v11, s[8:11], s39 offen offset:0 lds"])
            G.append(["buffer_load_dwordx4 v11, s[8:11], s39 offen offset:1024 lds"] + ([('mark', 'xc')] if kkl == 2 else []))
        return G
    def xrd(c):
        return ["ds_read_b128 %s, v48 offset:%d" % (xreg((3 * c + kkl) * 4 + tq), (c % 3) * 24576 + kkl * 4096 + tq * 1024) for tq in range(4) for kkl in range(3)]
    def xld(st):
        L = []
        for tq in range(4):
            for kkl in range(3):
                L.append("buffer_load_dwordx4 %s, v11, s[8:11], s%d offen offset:%d" % (xreg((3 * st + kkl) * 4 + tq), 37 + kkl, tq * 1024))
        return L, ["s_add_u32 s%d, s%d, 12288" % (37 + kkl, 37 + kkl) for kkl in range(3)]
    if o['xil']:
        f.e("s_lshl_b32 s37, s28, 1"); f.e("s_add_u32 s37, s37, s25"); f.e("s_mul_i32 s37, s37, %d" % T64B)
        if XN: f.e("s_add_u32 s37, s37, %d" % XN)
        f.e("s_add_u32 s38, s37, 4096"); f.e("s_add_u32 s39, s37, 8192")
        xdone = 0
        for st in range(5):
            su, ld = dma1(0, st, st)
            for x in su + ld: f.e(x)
            f.mark("dma")
            if st + 1 >= o['xdm'] and xdone < o['xpre']:
                L, U = xld(xdone); xdone += 1
                for x in L + U: f.e(x)
        while xdone < o['xpre']:
            L, U = xld(xdone); xdone += 1
            for x in L + U: f.e(x)
    elif o['xl'] == 1:
        su, ld = dma1(0, 0, 0)
        for x in su + ld: f.e(x)
        f.mark("dma")
    elif o['xl'] == 2:
        f.e("s_lshl_b32 s37, s28, 1"); f.e("s_add_u32 s37, s37, s25"); f.e("s_mul_i32 s37, s37, %d" % T64B)
        if XN: f.e("s_add_u32 s37, s37, %d" % XN)
        f.e("s_lshl_b32 s39, s26, 11"); f.e("s_add_u32 s37, s37, s39")
        f.e("s_mul_i32 s38, s25, 12288"); f.e("s_add_u32 s38, s38, s39"); f.e("s_add_u32 s38, s38, %d" % HB)
        for st in range(2):
            su, ld = dma1(0, st, st)
            for x in su + ld: f.e(x)
            f.mark("dma")
            for g in xdma(st):
                for x in g: put(f, x)
    else:
      for st in range(5):
        su, ld = dma1(0, st, st)
        for x in su + ld: f.e(x)
        f.mark("dma")
    if not o['xl']: pst(f, 2)
    if o['cpf']:
        f.e("v_lshlrev_b32 v219, 7, v0"); f.e("s_lshl_b32 s3, s24, 13"); f.e("v_add_u32 v219, s3, v219")
        if o['cpf'] & 2:
            code_addr(f, 216, 219, "K2_g0", "K2_tail320"); f.e(code_ld(218, 216))
        f.e("s_mov_b32 s100, K2_tail320-K2_pc"); f.e("s_mov_b32 s101, K2_ffn4-K2_pc-4"); f.e("s_cmp_ge_u32 s27, 12")
        f.e("s_cselect_b32 s100, K2_ffn4-K2_pc, s100"); f.e("s_cselect_b32 s101, K2_dft-K2_pc-4, s101")
        code_addr(f, 216, 219, None, None, ssel=(100, 101))
        if o['cpk3']:
            code_addr(f, 220, 219, "final_kernel", "K3_end")
    f.e("s_lshl_b32 s3, s28, 1"); f.e("s_add_u32 s3, s3, s25"); f.e("s_mul_i32 s3, s3, %d" % T64B)
    if XN: f.e("s_add_u32 s3, s3, %d" % XN)
    if o['xl'] == 2:
        if o['xo'] == 1:
            for g in xdma(2):
                for x in g: put(f, x)
        for st in range(2, 4):
            su, ld = dma1(0, st, st)
            for x in su + ld: f.e(x)
            f.mark("dma")
            if st == 2 and o['xo'] == 0:
                for g in xdma(2):
                    for x in g: put(f, x)
        f.e("s_mul_i32 s3, s25, 12288"); f.e("s_add_u32 s3, s3, %d" % HB); f.e("v_add_u32 v48, s3, v11")
    if o['xl'] == 1:
        f.e("s_lshl_b32 s37, s26, 11"); f.e("s_add_u32 s37, s37, s3")
        f.e("s_mul_i32 s38, s25, 12288"); f.e("s_lshl_b32 s39, s26, 11"); f.e("s_add_u32 s38, s38, s39"); f.e("s_add_u32 s38, s38, 12288")
        for c in range(6):
            for kkl in range(3):
                f.e("s_add_u32 m0, s38, %d" % (c * 24576 + kkl * 4096)); f.e("s_add_u32 s39, s37, %d" % ((3 * c + kkl) * 4096))
                for t in range(2): f.e("buffer_load_dwordx4 v11, s[8:11], s39 offen offset:%d lds" % (t * 1024))
            f.mark("xc")
        f.e("s_mul_i32 s3, s25, 12288"); f.e("s_add_u32 s3, s3, 12288"); f.e("v_add_u32 v16, s3, v11"); f.e("v_add_u32 v17, 73728, v16")
    for i in range(72 if not (o['xil'] or o['xl']) else 0):
        if i % 4 == 0 and i > 0: f.e("s_add_u32 s3, s3, 4096")
        f.e("buffer_load_dwordx4 %s, v11, s[8:11], s3 offen offset:%d" % (xreg(i), (i % 4) * 1024))
    pst(f, 2 if o['xl'] else 3)
    if o['pfw']:
        f.e("s_and_b32 s56, s28, 7"); f.e("s_lshl_b32 s56, s56, 2"); f.e("s_add_u32 s56, s56, s24"); f.e("s_add_u32 s57, s32, 1")
        f.e("s_mul_i32 s57, s57, 2304"); f.e("s_mul_i32 s56, s56, s57"); f.e("s_mul_i32 s57, s46, 73728"); f.e("s_add_u32 s56, s56, s57")
        if o['pfw'] in (3, 10):
            f.e("s_sub_u32 s56, s27, 12"); f.e("s_lshl_b32 s56, s56, 4"); f.e("s_add_u32 s56, s56, s28"); f.e("s_lshl_b32 s56, s56, 2"); f.e("s_add_u32 s56, s56, s24")
            f.e("s_mul_i32 s56, s56, 27648"); f.e("s_cmp_lt_u32 s27, 12"); f.e("s_cselect_b32 s56, 0x7ff00000, s56")
        f.e("v_add_u32 v192, s56, v11"); f.e("v_add_u32 v193, 4096, v192"); f.e("v_add_u32 v194, 8192, v192")
        if o['pfw'] in (3, 10):
            for j in range(3, 7): f.e("v_add_u32 v%d, %d, v192" % (192 + j + (0 if j < 4 else 16), 4096 * j))
        if o['pfw'] == 4:
            for x in pf_loads(): f.e(x)
        if o['pfw'] == 5:
            f.e("buffer_load_dword v196, v192, s[20:23], 0 offen ; pf")
        if o['pfw'] == 8:
            f.e("v_lshlrev_b32 v195, 6, v0"); f.e("v_add_u32 v192, s56, v195"); f.e("v_add_u32 v193, 4096, v192"); f.e("v_add_u32 v194, 8192, v192")
            for j in range(3): f.e("buffer_load_dword v%d, v%d, s[20:23], 0 offen ; pf" % (196 + j, 192 + j))
        if o['pfw'] == 9:
            f.e("v_lshlrev_b32 v195, 7, v0"); f.e("v_add_u32 v192, s56, v195"); f.e("v_add_u32 v193, 8192, v192")
            for j in range(2): f.e("buffer_load_dword v%d, v%d, s[20:23], 0 offen ; pf" % (196 + j, 192 + j))
    f.e("s_mul_i32 s3, s25, 40960"); f.e("s_lshl_b32 s46, s26, %d" % (10 if o['m16'] else 11)); f.e("s_add_u32 s3, s3, s46"); f.e("s_add_u32 s3, s3, %d" % HB)
    f.e("v_add_u32 v7, s3, v11")
    if o['xl'] == 1:
        for c in range(6):
            f.waitmark("xc", 5 - c)
            if c in (1, 2): f.waitlg(0)
            f.e("s_barrier")
            if c == 0: pst(f, 3)
            if c == 5: pst(f, 4)
            if c in (1, 2):
                for st in (2 * c - 1, 2 * c):
                    su, ld = dma1(0, st, st)
                    for x in su + ld: f.e(x)
                    f.mark("dma")
            for tq in range(4):
                for kkl in range(3):
                    f.e("ds_read_b128 %s, v%d offset:%d" % (xreg((3 * c + kkl) * 4 + tq), 16 + c // 3, (c % 3) * 24576 + kkl * 4096 + tq * 1024))
        f.waitlg(0)
    if o['xl'] == 2:
        f.waitmark("xc", 1); f.waitmark("dma", 2); pst(f, 3); f.e("s_barrier")
        for x in xrd(0): f.e(x)
        for n in range(NPRE):
            f.e(rd1(n, 0)); f.e(rd1(n, 1))
        f.waitlg(0); pst(f, 4); f.e("s_barrier")
        pst(f, 5)
        stamp(f, 1)
        if o['cpf']: f.lab("K2_g0")
    else:
        f.waitmark("dma", 3)
        if not o['xl']: pst(f, 4)
        f.e("s_barrier")
        pst(f, 5)
        stamp(f, 1)
        if o['cpf']: f.lab("K2_g0")
        for n in range(NPRE):
            f.e(rd1(n, 0)); f.e(rd1(n, 1))
    p1 = P1(o)
    def d_g0(i):
        return dma_gaps1(0, 5, 5) if i == 0 else dma_gaps1(1, i - 1, i - 1)
    post0 = None
    if o['pfw'] and o['pfw'] not in (4, 6, 7, 8, 9, 10):
        post0 = pf_post(o['pfw'])
    if o['xil']:
        post0 = dict(post0 or {})
        if o['xpf']:
            L = pf_loads(); post0 = {}
            if o['xpf'] == 1:
                for i in range(2): post0[4 + i] = [(g, L[6 * i + k]) for k, g in enumerate((1, 2, 4, 5, 7, 8))]
            elif o['xpf'] == 2:
                for i in range(3): post0[3 + i] = [(g, L[4 * i + k]) for k, g in enumerate((2, 4, 7, 10))]
        for st in range(o['xpre'], 6):
            L, U = xld(st)
            post0[('g24', st - o['xpre'])] = [(2 * k + 1, x) for k, x in enumerate(L)] + [(23, x) for x in U]
    if o['xl'] == 2:
        def late(mat, kc, slot, g):
            su, ld = dma1(mat, kc, slot)
            return [(g[0], su[0]), (g[0], su[1]), (g[1], ld[0]), (g[2], ld[1]), (g[3], ld[2]), (g[3], ('mark', 'dma'))]
        d_g0_base = d_g0
        def d_g0(i):
            if o['xg'] == 1:
                if i == 0: return late(0, 4, 4, (4, 4, 5, 6)) + late(0, 5, 5, (7, 8, 9, 10))
                if i in (1, 2): return late(1, i - 1, i - 1, (5, 6, 8, 10))
            if o['xg'] == 2:
                if i == 0: return late(0, 4, 4, (6, 6, 7, 8)) + late(0, 5, 5, (9, 9, 10, 11))
                if i in (1, 2): return late(1, i - 1, i - 1, (7, 8, 10, 11))
            if i == 0: return late(0, 4, 4, (3, 3, 4, 5)) + late(0, 5, 5, (6, 7, 9, 10))
            if i in (1, 2): return late(1, i - 1, i - 1, (3, 4, 7, 10))
            return d_g0_base(i)
        if o['xpf']:
            L = pf_loads(); post0 = {}
            if o['xpf'] == 1:
                for i in range(2): post0[4 + i] = [(g, L[6 * i + k]) for k, g in enumerate((1, 2, 4, 5, 7, 8))]
            elif o['xpf'] == 2:
                for i in range(3): post0[3 + i] = [(g, L[4 * i + k]) for k, g in enumerate((2, 4, 7, 10))]
        post0 = dict(post0 or {})
        for i in range(5):
            P = []
            if i < 3:
                for k, g in enumerate(xdma(3 + i)): P += [((k // 2 if o['xg'] else k), x) for x in g]
            R = xrd(i + 1)
            P += [(2 * (k // 2) + 1, x) for k, x in enumerate(R)]
            post0[('g24', i)] = P
            E = []
            if i < 2:
                last = xreg((3 * (i + 1) + 2) * 4 + 3)
                r0 = last[2:].split(':')[0]
                E.append(("v_accvgpr_read_b32 v49, a%s" % r0) if last[0] == 'a' else ("v_mov_b32 v49, v%s" % r0))
            if i < 4: E.append(('waitmark', 'xc', 1 if i < 3 else 0))
            post0[('end', i)] = E
    g0a = g0b = None
    if o['pfw'] == 10:
        f.e("s_cmp_ge_u32 s27, 12"); f.e("s_cbranch_scc1 K2_g0b")
        g0a = K.seg("g0a"); p1.phase(g0a, 0, [], d_g0); stamp(g0a, 2); g0a.e("s_branch K2_loop")
        g0b = K.seg("g0b"); g0b.lab("K2_g0b"); pb = P1(o); pb.phase(g0b, 0, [], d_g0, post=pf_post(3)); stamp(g0b, 2)
    else:
        p1.phase(f, 0, [], d_g0, post=post0)
        stamp(f, 2)
    lp = K.seg("ffn_loop"); lp.lab("K2_loop")
    def d_up(i):
        if i == 0: return dma_gaps1(1, 5, 5) + [(10, "s_add_u32 s30, s30, 128")]
        return dma_gaps1(0, i - 1, i - 1)
    def d_gate(i):
        return dma_gaps1(0, 5, 5) if i == 0 else dma_gaps1(1, i - 1, i - 1)
    postu = postg = None
    if o['pfw'] == 6:
        L = pf_loads()[:4]
        postu = {1 + j: [(4, L[j])] for j in range(4)}
        postu[5] = [(4, "v_add_u32 v192, 4096, v192")]
    if o['pfw'] == 7:
        L = pf_loads()[:4]
        postu = {1: [(4, L[0])], 4: [(4, L[1])]}
        postg = {1: [(4, L[2])], 4: [(4, L[3])], 5: [(4, "v_add_u32 v192, 4096, v192")]}
    if o['cpf'] & 1:
        postu = dict(postu or {}); postu.setdefault(o['cpfst'], []); postu[o['cpfst']] = postu[o['cpfst']] + [(5, code_ld(218, 216))]
    p1.phase(lp, 1, epi1(), d_up, post=postu)
    p1.phase(lp, 0, epi2() + ["v_add_u32 v7, %d, v7" % (2048 if o['m16'] else 4096)], d_gate, post=postg)
    lp.e("s_sub_u32 s32, s32, 1"); lp.e("s_cmp_lg_u32 s32, 0"); lp.e("s_cbranch_scc1 K2_loop")
    nloop = p1.n
    br = K.seg("ffn_br")
    stamp(br, 3)
    br.e("s_cmp_ge_u32 s27, 12"); br.e("s_cbranch_scc1 K2_ffn4")
    tails = {}
    for Kd, lab in ((320, None), (256, "K2_ffn4")):
        t = K.seg("ffn_tail%d" % Kd)
        if lab: t.lab(lab)
        elif o['cpf']: t.lab("K2_tail320")
        p = P1(o); p.n = nloop
        n0 = nloop + 36
        def d_last(i, Kd=Kd):
            return dma_gaps1(1, 5, 5) if i == 0 else dma_gaps2(i - 1, Kd)
        p.phase(t, 1, epi1(), d_last, nextrd=lambda n, h, n0=n0: rd2(n, h, n0), last_barrier=False)
        stamp(t, 4)
        t.e("s_nop 7")
        for x in epi2(): t.e(x)
        t.waitmark("dma", 3); t.waitlg(0); t.e("s_barrier")
        t.e("s_mul_i32 s3, s25, 40960"); t.e("s_add_u32 s3, s3, %d" % HB); t.e("v_add_u32 v1, s3, v11")
        if o['m16']:
            for kk, tq in sorted(((kk, tq) for kk in range(Kd // 32) for tq in range(4)), key=lambda z: (z[0] // 3, z[1], z[0])):
                    j = kk * 4 + tq
                    t.e("ds_read_b128 a[%d:%d], v1 offset:%d" % (4 * j, 4 * j + 3, (tq * 10 + kk) * 1024))
        else:
          for kap in range(Kd // 16):
            for n in range(2):
                j = kap * 2 + n
                t.e("ds_read_b128 a[%d:%d], v1 offset:%d" % (4 * j, 4 * j + 3, (n * 20 + kap) * 1024))
        stamp(t, 5)
        phase2(t, o, n0, Kd, False)
        stamp(t, 6)
        if o['prof']: t.waitall()
        stamp(t, 7); prof_store(t, 1, 8, 8, 24, 12, 60)
        t.e("s_endpgm")
        tails[Kd] = t
    d = K.seg("dft"); d.lab("K2_dft")
    gen_dft(d, o, srd)
    e = K.seg("end"); e.lab("K2_end"); e.e("s_endpgm")
    A_ = [g0a] if g0a else []; B_ = [g0b] if g0b else []
    K.paths = [[a, f] + A_ + [lp] * 4 + [br, tails[320]], [a, f] + B_ + [lp] * 3 + [br, tails[256]], [a, d]]
    return K

def gen_dft(d, o, srd):
    d.e("s_cmp_ge_u32 s28, 8"); d.e("s_cselect_b32 s46, s50, s48"); d.e("s_cselect_b32 s47, s51, s49")
    d.e("s_cselect_b32 s56, s54, s52"); d.e("s_cselect_b32 s57, s55, s53")
    d.e("s_mov_b32 s58, %d" % XEE); d.e("s_cselect_b32 s58, %d, s58" % XOO); d.e("s_cselect_b32 s59, 1536, 0"); d.e("s_cselect_b32 s60, 0, 0xbf803f80")
    srd(d, 12, 46, 2048 * 4096); srd(d, 20, 56, 576 * 1152)
    d.e("s_and_b32 s3, s28, 7"); d.e("s_lshl_b32 s3, s3, 6"); d.e("s_add_u32 s59, s59, s3"); d.e("s_lshl_b32 s59, s59, 1")
    d.e("s_mul_i32 s61, s24, %d" % (16 * 640)); d.e("s_add_u32 s61, s61, s58")
    d.e("s_lshl_b32 s62, s24, 16"); d.e("s_add_u32 s62, s62, s59")
    d.e("v_lshrrev_b32 v13, 3, v0"); d.e("v_and_b32 v14, 7, v0"); d.e("v_bfe_u32 v15, v13, 1, 2"); d.e("v_lshlrev_b32 v15, 1, v15")
    d.e("v_xor_b32 v14, v14, v15"); d.e("v_lshlrev_b32 v14, 4, v14")
    d.e("s_movk_i32 s3, 1280"); d.e("v_mul_lo_u32 v2, v13, s3"); d.e("v_add_u32 v2, v2, v14")
    d.e("v_lshlrev_b32 v3, 13, v13"); d.e("v_add_u32 v3, v3, v14")
    NSD = 33; SL = 24576
    def stage_rows(st):
        return (st % 2, st // 2)
    def dmad(st):
        par, ks = stage_rows(st); slot = st % 6
        L = []
        r0 = 64 * ks + par
        L.append(("s", "s_add_u32 s31, s61, %d" % (r0 * 640)))
        for b in range(5):
            L.append(("s", "s_add_u32 m0, s34, %d" % (slot * SL + b * 4096 - 128 * b)))
            L.append(("l", "buffer_load_dwordx4 v2, s[8:11], s31 offen offset:%d lds" % (128 * b)))
        L.append(("s", "s_add_u32 s63, s62, %d" % (r0 * 4096)))
        L.append(("s", "s_add_u32 m0, s34, %d" % (slot * SL + 5 * 4096)))
        L.append(("l", "buffer_load_dwordx4 v3, s[12:15], s63 offen lds"))
        return L
    for st in range(5):
        for _, x in dmad(st): d.e(x)
        d.mark("dma")
    if o['cpf']:
        d.e("v_lshlrev_b32 v255, 7, v0"); d.e("s_lshl_b32 s3, s24, 13"); d.e("v_add_u32 v255, s3, v255")
        code_addr(d, 252, 255, "K2_dft1", "K2_dft2"); d.e(code_ld(254, 252))
        code_addr(d, 250, 255, "K2_dft2", "K2_dft3")
    if o['pfc'] == 1:
        d.e("v_lshrrev_b32 v13, 3, v0"); d.e("v_and_b32 v14, 7, v0"); d.e("v_lshlrev_b32 v14, 4, v14"); d.e("v_lshlrev_b32 v13, 12, v13"); d.e("v_add_u32 v192, v13, v14")
        d.e("s_mul_i32 s3, s24, %d" % (240 * 4096)); d.e("s_add_u32 s3, s3, s59"); d.e("s_add_u32 s3, s3, %d" % (128 * 4096)); d.e("v_add_u32 v192, s3, v192")
        for j in range(30):
            d.e("buffer_load_dwordx4 v[%d:%d], v192, s[12:15], 0 offen ; pf" % (224 + 4 * (j % 4), 227 + 4 * (j % 4)))
            if j < 29: d.e("v_add_u32 v192, 0x8000, v192")
    if o['pfc']:
        d.e("s_and_b32 s3, s28, 7"); d.e("s_lshl_b32 s3, s3, 2"); d.e("s_add_u32 s3, s3, s24"); d.e("s_mul_i32 s3, s3, 11520")
        d.e("v_add_u32 v192, s3, v11"); d.e("v_add_u32 v193, 4096, v192"); d.e("v_add_u32 v194, 8192, v192")
        for j in range(12):
            d.e("buffer_load_dwordx4 v[%d:%d], v%d, s[20:23], 0 offen offset:%d ; pf" % (224 + 4 * (j % 4), 227 + 4 * (j % 4), 192 + j // 4, (j % 4) * 1024))
    d.e("v_lshrrev_b32 v13, 2, v0"); d.e("v_and_b32 v15, 3, v0"); d.e("v_bfe_u32 v14, v13, 1, 2"); d.e("v_lshlrev_b32 v14, 1, v14")
    d.e("v_lshlrev_b32 v13, 7, v13"); d.e("v_and_b32 v1, 1, v15"); d.e("v_lshlrev_b32 v1, 3, v1"); d.e("v_add_u32 v13, v13, v1")
    d.e("v_lshrrev_b32 v15, 1, v15")
    for u in range(4):
        d.e("v_add_u32 v1, %d, v15" % (2 * u)); d.e("v_xor_b32 v1, v1, v14"); d.e("v_lshlrev_b32 v1, 4, v1"); d.e("v_add_u32 v1, v1, v13")
        d.e("v_add_u32 v%d, %d, v1" % (196 + u, 5 * 4096))
    for i in range(5):
        d.e("s_mul_i32 s3, s24, 5"); d.e("s_add_u32 s3, s3, %d" % i)
        d.e("s_and_b32 s46, s3, 3"); d.e("s_lshl_b32 s46, s46, 1"); d.e("s_lshr_b32 s47, s3, 2"); d.e("s_lshl_b32 s47, s47, 12")
        d.e("v_add_u32 v1, s46, v15"); d.e("v_xor_b32 v1, v1, v14"); d.e("v_lshlrev_b32 v1, 4, v1"); d.e("v_add_u32 v1, v1, v13")
        d.e("v_add_u32 v%d, s47, v1" % (200 + i))
    for q in range(9): d.e("v_add_u32 v%d, %d, v%d" % (205 + q, 3 * SL, 196 + q))
    for q in range(4): d.e("v_mov_b32 v%d, s60" % (216 + q))
    def frag(st, q):
        return (st % 2) * 36 + 4 * q
    def rdd(st, q, half):
        slot = st % 6; base = 196 + q
        if slot >= 3: base += 9; slot -= 3
        r = frag(st, q) + 2 * half
        return "ds_read_b64_tr_b16 a[%d:%d], v%d offset:%d" % (r, r + 1, base, slot * SL + half * 2048)
    d.waitmark("dma", 3); d.e("s_barrier")
    stamp(d, 1); stamp(d, 2)
    if o['cpf']: d.lab("K2_dft1")
    order = [4, 0, 1, 2, 3, 5, 6, 7, 8]
    for q in order: d.e(rdd(0, q, 0)); d.e(rdd(0, q, 1))
    for st in range(NSD):
        par, ks = stage_rows(st)
        mf = []
        for i in range(5):
            A = frag(st, 4 + i)
            for u in range(4):
                B = frag(st, u); D = 16 + par * 80 + (i * 4 + u) * 4
                C = "0" if ks == 0 else "v[%d:%d]" % (D, D + 3)
                mf.append(["v_mfma_f32_16x16x32_bf16 v[%d:%d], a[%d:%d], a[%d:%d], %s" % (D, D + 3, A, A + 3, B, B + 3, C)])
            if par == 0:
                D = 176 + 4 * i; C = "0" if ks == 0 else "v[%d:%d]" % (D, D + 3)
                mf.append(["v_mfma_f32_16x16x32_bf16 v[%d:%d], a[%d:%d], v[216:219], %s" % (D, D + 3, A, A + 3, C)])
        G = len(mf)
        gaps = [[] for _ in range(G)]
        fill = []
        if st + 1 < NSD:
            for q in order: fill += [rdd(st + 1, q, 0), rdd(st + 1, q, 1)]
        dm = dmad(st + 5) if st + 5 < NSD else []
        for g, x in enumerate(fill): gaps[g].append(x)
        if dm:
            pos = [2, 5, 8, 11, 14, 17]; li = 0; pendS = []
            for kind, x in dm:
                if kind == "s": pendS.append(x)
                else:
                    g = pos[li]; li += 1
                    for y in pendS: gaps[g - 1].append(y)
                    pendS = []
                    gaps[g].append(x)
            gaps[17].append(('mark', 'dma'))
        if o['cpf'] and st == o['cpd1']: gaps[19].append(code_ld(254, 250))
        emit_gaps(d, mf, gaps)
        if st + 2 <= NSD - 1:
            last_issued = min(st + 5, NSD - 1)
            d.waitmark("dma", last_issued - (st + 2)); d.e("s_barrier")
    d.e("s_barrier")
    stamp(d, 3)
    if o['cpf']:
        d.lab("K2_dft2")
        if o['cpk3']: code_addr(d, 252, 255, "final_kernel", "K3_end")
    d.e("s_mul_i32 s35, s24, %d" % (8 * 1152))
    for st in range(5):
        for su, ld in dma2(st, 320):
            for x in su: d.e(x)
            d.e(ld)
        d.mark("dma"); d.mark("w2_%d" % st)
    if o['m16']:
        d.e("s_and_b32 s46, s24, 1"); d.e("s_mul_i32 s3, s24, 5"); d.e("s_sub_u32 s3, s3, s46"); d.e("s_lshr_b32 s3, s3, 1")
        d.e("s_lshl_b32 s47, s46, 3")
        d.e("s_cmp_eq_u32 s46, 1"); d.e("s_cselect_b32 s56, 1024, 8"); d.e("s_cselect_b32 s57, 64, 8")
        d.e("s_lshl_b32 s58, s3, 10"); d.e("s_add_u32 s58, s58, %d" % HB)
        d.e("s_add_u32 s59, s58, s47"); d.e("v_add_u32 v7, s59, v11"); d.e("v_add_u32 v6, 40960, v7")
        d.e("s_add_u32 s59, s58, s56"); d.e("v_add_u32 v4, s59, v11"); d.e("v_add_u32 v3, 40960, v4")
        d.e("v_lshrrev_b32 v15, 4, v0"); d.e("v_lshlrev_b32 v15, 4, v15")
        d.e("s_lshl_b32 s58, s3, 6"); d.e("s_add_u32 s58, s58, %d" % HX)
        d.e("s_add_u32 s59, s58, s47"); d.e("v_add_u32 v5, s59, v15"); d.e("s_add_u32 s59, s58, s57"); d.e("v_add_u32 v2, s59, v15")
    else:
        d.e("v_lshrrev_b32 v13, 4, v0"); d.e("v_and_b32 v14, 15, v0"); d.e("v_and_b32 v15, 1, v13"); d.e("v_lshlrev_b32 v15, 5, v15"); d.e("v_add_u32 v14, v14, v15")
        d.e("v_lshlrev_b32 v14, 4, v14"); d.e("v_lshrrev_b32 v13, 1, v13"); d.e("v_lshlrev_b32 v1, 3, v13"); d.e("v_add_u32 v14, v14, v1")
        d.e("s_mul_i32 s3, s24, 5120"); d.e("s_add_u32 s3, s3, %d" % HB); d.e("v_add_u32 v7, s3, v14")
        d.e("v_add_u32 v6, 40960, v7")
        d.e("v_lshlrev_b32 v15, 4, v0"); d.e("v_lshrrev_b32 v15, 8, v15"); d.e("v_and_b32 v15, 1, v15"); d.e("v_lshlrev_b32 v15, 4, v15"); d.e("v_add_u32 v15, v15, v1")
        d.e("s_mul_i32 s3, s24, 160"); d.e("s_add_u32 s3, s3, %d" % HX); d.e("v_add_u32 v5, s3, v15")
    k = 0
    for i in range(5):
        for u in range(4):
            E = 16 + (i * 4 + u) * 4; O = E + 80
            t = 220 + 8 * (k % 4); k += 1
            for j in range(4):
                d.e("v_add_f32 v%d, v%d, v%d" % (t + j, E + j, O + j)); d.e("v_sub_f32 v%d, v%d, v%d" % (t + 4 + j, E + j, O + j))
            d.e("v_cvt_pk_bf16_f32 v%d, v%d, v%d" % (t, t, t + 1)); d.e("v_cvt_pk_bf16_f32 v%d, v%d, v%d" % (t + 1, t + 2, t + 3))
            d.e("v_cvt_pk_bf16_f32 v%d, v%d, v%d" % (t + 4, t + 4, t + 5)); d.e("v_cvt_pk_bf16_f32 v%d, v%d, v%d" % (t + 5, t + 6, t + 7))
            if o['m16']:
                off = (i // 2) * 1024 + u * 10240; ra, rb = (7, 6) if i % 2 == 0 else (4, 3)
                d.e("ds_write_b64 v%d, v[%d:%d] offset:%d" % (ra, t, t + 1, off)); d.e("ds_write_b64 v%d, v[%d:%d] offset:%d" % (rb, t + 4, t + 5, off))
                continue
            off = i * 1024 + (u >> 1) * 20480 + (u & 1) * 256
            d.e("ds_write_b64 v7, v[%d:%d] offset:%d" % (t, t + 1, off)); d.e("ds_write_b64 v6, v[%d:%d] offset:%d" % (t + 4, t + 5, off))
        X = 176 + 4 * i
        d.e("v_cvt_pk_bf16_f32 v%d, v%d, v%d" % (X, X, X + 1)); d.e("v_cvt_pk_bf16_f32 v%d, v%d, v%d" % (X + 1, X + 2, X + 3))
        if o['m16']: d.e("ds_write_b64 v%d, v[%d:%d] offset:%d" % (5 if i % 2 == 0 else 2, X, X + 1, (i // 2) * 64))
        else: d.e("ds_write_b64 v5, v[%d:%d] offset:%d" % (X, X + 1, i * 32))
    d.e("v_and_b32 v13, 31, v0"); d.e("v_lshrrev_b32 v14, 4, v13"); d.e("v_lshlrev_b32 v12, 10, v14")
    d.e("v_bfe_u32 v14, v13, 2, 1"); d.e("v_lshlrev_b32 v14, 9, v14"); d.e("v_add_u32 v12, v12, v14")
    d.e("v_bfe_u32 v14, v13, 3, 1"); d.e("v_lshlrev_b32 v14, 3, v14"); d.e("v_add_u32 v12, v12, v14")
    d.e("s_add_u32 s38, s28, 32"); d.e("s_mul_i32 s38, s38, %d" % T64B); d.e("s_lshl_b32 s3, s26, 12"); d.e("s_add_u32 s38, s38, s3")
    d.e("s_add_u32 s38, s38, %d" % (PART + 15 * SLOTB))
    d.waitmark("dma", 3); d.waitlg(0); d.e("s_barrier")
    stamp(d, 4)
    d.e("s_mul_i32 s3, s25, 40960"); d.e("s_add_u32 s3, s3, %d" % HB); d.e("v_add_u32 v1, s3, v11")
    d.e("v_lshrrev_b32 v13, %d, v0" % (4 if o['m16'] else 5)); d.e("v_lshlrev_b32 v13, 4, v13"); d.e("v_add_u32 v13, %d, v13" % HX)
    n0 = 0
    for n in range(LA[0] if o['m16'] else PF):
        d.e(rd2(n, 0, n0)); d.e(rd2(n, 1, n0))
    for kk, tq in (sorted(((kk, tq) for kk in range(10) for tq in range(5)), key=lambda z: (z[0] // 3, z[1], z[0])) if o['m16'] else []):
        j = kk * 4 + tq
        if tq < 4: d.e("ds_read_b128 a[%d:%d], v1 offset:%d" % (4 * j, 4 * j + 3, (tq * 10 + kk) * 1024))
        else: d.e("ds_read_b128 v[%d:%d], v13 offset:%d" % (112 + 4 * kk, 115 + 4 * kk, kk * 64))
    for kap in ([] if o['m16'] else range(20)):
        for n in range(2):
            j = kap * 2 + n
            d.e("ds_read_b128 a[%d:%d], v1 offset:%d" % (4 * j, 4 * j + 3, (n * 20 + kap) * 1024))
        r = (112 + 4 * kap) if kap < 16 else (192 + 4 * (kap - 16))
        d.e("ds_read_b128 v[%d:%d], v13 offset:%d" % (r, r + 3, kap * 32))
    stamp(d, 5)
    phase2(d, o, n0, 320, True)
    stamp(d, 6)
    if o['prof']: d.waitall()
    stamp(d, 7); prof_store(d, 1, 8, 8, 24, 14, 60)
    if o['cpf']: d.lab("K2_dft3")
    d.e("s_endpgm")
```

```python
from emit import *
XN   = 0x0
XEE  = 0x240000
XOO  = 0x300000
PART = 0x400000
SLOTB = 2359296
T64B = 73728
WS_BYTES = 0x4000000
SLOT = 12288; NS = 6
HB = 73728
HX = HB + 81920
LDS_BYTES = HX + 1024
PF = 3
NF = 8
CNEG = 33
NS2 = [6]
M16 = [0]
LA = [4]
def stamp(seg, i): pass
def prof_store(*a): pass

def wt(ins, o):
    if ins.startswith("v_exp") or ins.startswith("v_rcp"): return o['wtrans']
    if ins.startswith("s_"): return o['wsalu']
    return 1.0

def spread(gaps, queue, o, start=0, end=None):
    if not queue: return
    G = len(gaps) if end is None else end
    idx = list(range(start, G))
    load = {g: sum(wt(i, o) for i in gaps[g] if isinstance(i, str)) for g in idx}
    tot = sum(load.values()) + sum(wt(i, o) for i in queue)
    p = 0; cum = load[idx[0]]
    for ins in queue:
        w = wt(ins, o)
        while p < len(idx) - 1 and cum + w * 0.5 > tot * (p + 1) / len(idx):
            p += 1; cum += load[idx[p]]
        gaps[idx[p]].append(ins); cum += w

def emit_gaps(s, mf, gaps):
    for m, g in zip(mf, gaps):
        for pre in m[:-1]: put(s, pre)
        s.e(m[-1])
        for x in g: put(s, x)

def put(s, x):
    if isinstance(x, str): s.e(x)
    elif x[0] == 'mark': s.mark(x[1])
    elif x[0] == 'waitmark': s.waitmark(x[1], x[2])
    elif x[0] == 'waitlg': s.waitlg(x[1])
    elif x[0] == 'c': s.c(x[1])
    else: raise ValueError(x)

def xreg(i):
    return ("a[%d:%d]" % (4 * i, 4 * i + 3)) if i < 64 else ("v[%d:%d]" % (224 + 4 * (i - 64), 227 + 4 * (i - 64)))

def areg(n): r = 80 + 4 * (n % NF); return r

def rd1(n, half):
    if M16[0]:
        st = n // 6; q = n % 6; fh = q // 3; kkl = q % 3
        r = areg(n) + 2 * half
        off = (st % NS) * SLOT + kkl * 4096 + half * 512; base = 5 if fh == 0 else 13
        if off >= 65536: off -= 65536; base += 1
        return "ds_read_b64_tr_b16 v[%d:%d], v%d offset:%d" % (r, r + 1, base, off)
    st = n // 6; kp = n % 6
    r = areg(n) + 2 * half
    off = (st % NS) * SLOT + kp * 2048 + half * 512; base = 5
    if off >= 65536: off -= 65536; base = 6
    return "ds_read_b64_tr_b16 v[%d:%d], v%d offset:%d" % (r, r + 1, base, off)

def rd2(n, half, n0):
    if M16[0]:
        q = n - n0; st = q // 6; qq = q % 6; dh = qq // 3; bl = qq % 3
        r = areg(n) + 2 * half
        off = (st % NS2[0]) * SLOT + bl * 4096 + half * 2048; base = 8
        if off >= 131072: off -= 131072; base = 2
        elif off >= 65536: off -= 65536; base = 5
        return "ds_read_b64_tr_b16 v[%d:%d], v%d offset:%d" % (r, r + 1, base + dh, off)
    q = n - n0; st = q // 6; kp = q % 6
    r = areg(n) + 2 * half
    off = (st % NS2[0]) * SLOT + kp * 2048 + half * 1024; base = 8
    if off >= 131072: off -= 131072; base = 5
    elif off >= 65536: off -= 65536; base = 9
    return "ds_read_b64_tr_b16 v[%d:%d], v%d offset:%d" % (r, r + 1, base, off)

def dma1(mat, kc, slot):
    sr = 12 if mat == 0 else 16
    su = ["s_add_u32 m0, s29, %d" % (slot * SLOT), "s_add_u32 s31, s30, %d" % (kc * 96 * 9216)]
    ld = ["buffer_load_dwordx4 v%d, s[%d:%d], s31 offen offset:%d lds" % (2 + j, sr, sr + 3, 1024 * j) for j in range(3)]
    return su, ld

def dma2(st, K):
    out = []
    for j in range(3):
        R = 96 * st + 32 * j; sg = R // K; row0 = R % K
        su = ["s_add_u32 m0, s34, %d" % ((st % NS2[0]) * SLOT + j * 4096), "s_add_u32 s31, s35, %d" % (sg * 128 + row0 * 1152)]
        out.append((su, "buffer_load_dwordx4 v10, s[20:23], s31 offen lds"))
    return out

def epi1():
    L = []
    for p0 in range(0, 32, 4):
        for j in range(4): L.append("v_mul_f32 v%d, s%d, v%d" % (112 + p0 + j, CNEG, 16 + p0 + j))
        for j in range(4): L.append("v_exp_f32 v%d, v%d" % (144 + p0 + j, 112 + p0 + j))
        for j in range(4): L.append("v_fma_f32 v%d, v%d, s%d, s%d" % (144 + p0 + j, 144 + p0 + j, CNEG, CNEG))
    return L

def epi2():
    L = []
    for p0 in range(0, 32, 4):
        for j in range(4): L.append("v_rcp_f32 v%d, v%d" % (144 + p0 + j, 144 + p0 + j))
        for j in range(4): L.append("v_mul_f32 v%d, v%d, v%d" % (112 + p0 + j, 112 + p0 + j, 48 + p0 + j))
        for j in range(4): L.append("v_mul_f32 v%d, v%d, v%d" % (112 + p0 + j, 112 + p0 + j, 144 + p0 + j))
        for j in range(0, 4, 2): L.append("v_cvt_pk_bf16_f32 v%d, v%d, v%d" % (176 + (p0 + j) // 2, 112 + p0 + j, 112 + p0 + j + 1))
        if p0 % 8 == 4 and M16[0]:
            tq = p0 // 8
            L.append("ds_write_b128 v7, v[%d:%d] offset:%d" % (176 + 4 * tq, 179 + 4 * tq, tq * 10240))
        elif p0 % 8 == 4:
            n = p0 // 16; J = (p0 // 8) % 2
            L.append("ds_write_b128 v7, v[%d:%d] offset:%d" % (176 + n * 8 + 4 * J, 179 + n * 8 + 4 * J, n * 20480 + J * 1024))
    return L

def p0_code(f, sp, d, t, order):
    if order == 0:
        f.e("s_mul_i32 s%d, s%d, 5" % (d, sp)); f.e("s_lshl_b32 s%d, s%d, 2" % (t, sp)); f.e("s_add_u32 s%d, s%d, 12" % (t, t))
        f.e("s_cmp_lt_u32 s%d, 12" % sp); f.e("s_cselect_b32 s%d, s%d, s%d" % (d, d, t))
    else:
        f.e("s_mul_i32 s%d, s%d, 5" % (d, sp))
        f.e("s_cmp_ge_u32 s%d, 5" % sp); f.e("s_cselect_b32 s%d, 4, 0" % t); f.e("s_add_u32 s%d, s%d, s%d" % (d, d, t))
        f.e("s_cmp_ge_u32 s%d, 10" % sp); f.e("s_cselect_b32 s%d, 4, 0" % t); f.e("s_add_u32 s%d, s%d, s%d" % (d, d, t))
        f.e("s_cmp_eq_u32 s%d, 12" % sp); f.e("s_cselect_b32 s%d, 25, s%d" % (d, d))
        f.e("s_cmp_eq_u32 s%d, 13" % sp); f.e("s_cselect_b32 s%d, 54, s%d" % (d, d))
        f.e("s_cmp_eq_u32 s%d, 14" % sp); f.e("s_cselect_b32 s%d, 0x44, s%d" % (d, d))

def code_addr(s, va, vt, frm, to, ssel=None):
    if ssel:
        s.e("v_add_u32 v%d, s%d, v%d" % (va, ssel[0], vt)); s.e("v_min_u32 v%d, s%d, v%d" % (va, ssel[1], va))
    else:
        s.e("v_add_u32 v%d, %s-K2_pc, v%d" % (va, frm, vt)); s.e("v_min_u32 v%d, %s-K2_pc-4, v%d" % (va, to, va))
    s.e("v_add_co_u32 v%d, s[98:99], s96, v%d" % (va, va)); s.e("v_mov_b32 v%d, s97" % (va + 1))
    s.e("v_addc_co_u32 v%d, s[98:99], 0, v%d, s[98:99]" % (va + 1, va + 1))

def code_ld(vd, va): return "global_load_dword v%d, v[%d:%d], off ; pf" % (vd, va, va + 1)

class P1:
    def __init__(self, o): self.n = 0; self.o = o
    def phase(self, s, mat, epi, dmaf, extra_first=None, nextrd=None, last_barrier=True, first_c0=True, post=None):
        o = self.o
        if M16[0]: return self.phase16(s, mat, epi, dmaf, nextrd, last_barrier, post)
        acc = 16 if mat == 0 else 48
        per = (len(epi) + 5) // 6
        epi = list(epi)
        for i in range(6):
            gaps = [[] for _ in range(12)]
            mf = []
            for kp in range(6):
                n = self.n + kp
                f = nextrd if nextrd else rd1
                nn = n + PF
                if nextrd and (i * 6 + kp + PF) < 36: f = rd1
                gaps[2 * kp].append(f(nn, 0)); gaps[2 * kp + 1].append(f(nn, 1))
                kap = i * 6 + kp
                for t in range(2):
                    A = areg(n); D = acc + 16 * t
                    C = "0" if kap == 0 else "v[%d:%d]" % (D, D + 15)
                    mf.append(["v_mfma_f32_32x32x16_bf16 v[%d:%d], v[%d:%d], %s, %s" % (D, D + 15, A, A + 3, xreg(kap * 2 + t), C)])
            for g, ins in dmaf(i): gaps[g].append(ins)
            if i == 0:
                mine = epi[:per - o['first_less']]; epi = epi[len(mine):]
                spread(gaps, mine, o, start=o['epi_start'])
            else:
                rem = 6 - i
                cnt = (len(epi) + rem - 1) // rem
                mine = epi[:cnt]; epi = epi[cnt:]
                spread(gaps, mine, o)
            if post and i in post:
                for g, ins in post[i]: gaps[g].append(ins)
            if s.name == "ffn_loop":
                def keep(x):
                    if not isinstance(x, str): return True
                    if o['nords'] and x.startswith("ds_read"): return False
                    if o['noepi'] and (x.startswith("v_") or x.startswith("ds_write")) : return False
                    if o['nodma'] and x.startswith("buffer_load"): return False
                    return True
                gaps = [[x for x in g if keep(x)] for g in gaps]
            emit_gaps(s, mf, gaps)
            self.n += 6
            if i < 5 or last_barrier:
                s.waitmark("dma", 3)
                if not (s.name == "ffn_loop" and (o['nobar'] == 1 or (o['nobar'] == 2 and i % 2 == 0))): s.e("s_barrier")
        assert not epi

def g24(g):
    return 2 * g + 1

def phase16(self, s, mat, epi, dmaf, nextrd, last_barrier, post):
    o = self.o
    acc = 16 if mat == 0 else 48
    per = (len(epi) + 5) // 6
    epi = list(epi)
    la = LA[0]
    for i in range(6):
        gaps = [[] for _ in range(24)]
        mf = []
        for fh in range(2):
            G0 = self.n + 3 * fh
            k = 0
            for j in range(3):
                nn = G0 + la + j
                f = rd1
                if nextrd and (i * 6 + 3 * fh + la + j) >= 36: f = nextrd
                for h in range(2):
                    gaps[12 * fh + o['rdpos'] + o['rdstep'] * k].append(f(nn, h)); k += 1
            for tq in range(4):
                for kkl in range(3):
                    A = areg(G0 + kkl); D = acc + 8 * tq + 4 * fh
                    C = "0" if (i == 0 and kkl == 0) else "v[%d:%d]" % (D, D + 3)
                    mf.append(["v_mfma_f32_16x16x32_bf16 v[%d:%d], v[%d:%d], %s, %s" % (D, D + 3, A, A + 3, xreg((3 * i + kkl) * 4 + tq), C)])
        for g, ins in dmaf(i): gaps[g24(g)].append(ins)
        if post and i in post:
            for g, ins in post[i]: gaps[g24(g)].append(ins)
        if post and ('g24', i) in post:
            for g, ins in post[('g24', i)]: gaps[g].append(ins)
        if i == 0:
            mine = epi[:max(per - o['first_less'], 0)]; epi = epi[len(mine):]
            spread(gaps, mine, o, start=o['epi_start'])
        else:
            rem = 6 - i
            cnt = (len(epi) + rem - 1) // rem
            mine = epi[:cnt]; epi = epi[cnt:]
            spread(gaps, mine, o)
        if s.name == "ffn_loop":
            def keep(x):
                if not isinstance(x, str): return True
                if o['nords'] and x.startswith("ds_read"): return False
                if o['noepi'] and (x.startswith("v_") or x.startswith("ds_write")) : return False
                if o['nodma'] and x.startswith("buffer_load"): return False
                return True
            gaps = [[x for x in g if keep(x)] for g in gaps]
        emit_gaps(s, mf, gaps)
        self.n += 6
        if post and ('end', i) in post:
            for x in post[('end', i)]: put(s, x)
        if i < 5 or last_barrier:
            s.waitmark("dma", 3)
            if not (s.name == "ffn_loop" and (o['nobar'] == 1 or (o['nobar'] == 2 and i % 2 == 0))): s.e("s_barrier")
    assert not epi
P1.phase16 = phase16

def pf_loads():
    return ["buffer_load_dwordx4 v[%d:%d], v%d, s[20:23], 0 offen offset:%d" % (196 + 4 * (j % 4), 199 + 4 * (j % 4), 192 + j // 4, (j % 4) * 1024) + " ; pf" for j in range(12)]

def pf_post(mode):
    L = pf_loads(); post = {}
    if mode == 1:
        for i in range(4): post[1 + i] = [(4, L[3 * i]), (7, L[3 * i + 1]), (10, L[3 * i + 2])]
    elif mode == 5:
        for i in range(4): post[1 + i] = [(4, L[3 * i]), (7, L[3 * i + 1]), (10, L[3 * i + 2])]
    elif mode == 3:
        ar = [192, 193, 194, 195, 212, 213, 214]
        L = ["buffer_load_dwordx4 v[%d:%d], v%d, s[20:23], 0 offen offset:%d ; pf" % (196 + 4 * (j % 4), 199 + 4 * (j % 4), ar[j // 4], (j % 4) * 1024) for j in range(27)]
        pos = [2, 4, 5, 7, 8, 10]
        for i in range(6):
            mine = L[5 * i: 5 * i + 5] if i < 5 else L[25:]
            post[i] = [(pos[k], x) for k, x in enumerate(mine)]
    elif mode == 2:
        for i in range(6): post[i] = [(4, L[2 * i]), (10, L[2 * i + 1])]
    return post

def dma_gaps1(mat, kc, slot):
    su, ld = dma1(mat, kc, slot)
    return [(0, su[0]), (1, su[1]), (3, ld[0]), (6, ld[1]), (9, ld[2]), (9, ('mark', 'dma'))]

def dma_gaps2(st, K, pos=(1, 5, 9)):
    L = []
    for j, (su, ld) in enumerate(dma2(st, K)):
        g = pos[j]
        L += [(g - 1, su[0]), (g - 1, su[1]), (g, ld)]
    L.append((pos[2], ('mark', 'dma'))); L.append((pos[2], ('mark', 'w2_%d' % st)))
    return L

def phase2_16(s, o, n0, K, dft):
    nk = K // 32; NB = 9 * nk; nst = NB // 3; Q = 6 * nst; la = LA[0]
    NT = 5 if dft else 4
    def accof(seg, tq, dh):
        if tq == 4: return 208 + 8 * (seg % 2) + 4 * dh
        return (16 if seg % 2 == 0 else 48) + 8 * tq + 4 * dh
    stf = o['stf'].replace('+', ' ')
    def st_out(seg):
        L = ["s_add_u32 s37, s36, %d" % (seg * 8192)]
        for tq in range(4):
            r = accof(seg, tq, 0)
            for q in range(4): L.append("v_cvt_pk_bf16_f32 v%d, v%d, v%d" % (176 + 4 * tq + q, r + 2 * q, r + 2 * q + 1))
            if not (o['nostore'] and seg < 8):
                L.append("buffer_store_dwordx4 v[%d:%d], v11, s[8:11], s37 offen offset:%d %s" % (176 + 4 * tq, 179 + 4 * tq, tq * 1024, stf))
        if dft:
            r = accof(seg, 4, 0)
            L.append("s_add_u32 s39, s38, %d" % (seg * 8192))
            for q in range(4): L.append("v_cvt_pk_bf16_f32 v%d, v%d, v%d" % (192 + q, r + 2 * q, r + 2 * q + 1))
            L.append("buffer_store_dwordx4 v[192:195], v11, s[8:11], s39 offen %s" % stf)
        return L
    s.e("v_add_u32 v5, 0x10000, v8"); s.e("v_add_u32 v6, 0x10000, v9")
    if NS2[0] > 6: s.e("v_add_u32 v2, 0x20000, v8"); s.e("v_add_u32 v3, 0x20000, v9")
    pend = []; GP = 6 * NT
    for st in range(nst):
        gaps = [[] for _ in range(GP)]
        mf = []
        done = None
        for dh in range(2):
            G0 = n0 + 6 * st + 3 * dh
            k = 0
            for j in range(3):
                nn = G0 + la + j
                for h in range(2):
                    if nn - n0 < Q: gaps[3 * NT * dh + o['rdpos'] + o['rdstep'] * k].append(rd2(nn, h, n0))
                    k += 1
            for tq in range(NT):
                for bl in range(3):
                    b = 3 * st + bl; seg = b // nk; kk = b % nk
                    A = areg(G0 + bl); D = accof(seg, tq, dh)
                    C = "0" if kk == 0 else "v[%d:%d]" % (D, D + 3)
                    B = ("a[%d:%d]" % (4 * (kk * 4 + tq), 4 * (kk * 4 + tq) + 3)) if tq < 4 else ("v[%d:%d]" % (112 + 4 * kk, 115 + 4 * kk))
                    mf.append(["v_mfma_f32_16x16x32_bf16 v[%d:%d], v[%d:%d], %s, %s" % (D, D + 3, A, A + 3, B, C)])
                    if kk == nk - 1: done = seg
        if NS2[0] == 6: iss = [st + 5]
        elif st == 0: iss = [5]
        elif st <= 6: iss = [2 * st + 4, 2 * st + 5]
        else: iss = [st + 11]
        iss = [x for x in iss if x < nst]
        if len(iss) == 2:
            L = dma_gaps2(iss[0], K, (1, 3, 5)) + dma_gaps2(iss[1], K, (7, 9, 11))
        elif iss: L = dma_gaps2(iss[0], K)
        else: L = []
        def gm(g): return min(GP - 1, (2 * g + 1) * GP // 24)
        for g, ins in L: gaps[gm(g)].append(ins)
        if o['cpk3'] and st == nst - o['cpk3']: gaps[3].append(code_ld(222 if not dft else 254, 220 if not dft else 252))
        if pend:
            start = pend_start
            room = int((GP - start) * o['p2_rate16'])
            mine = pend[:room]; pend = pend[room:]
            spread(gaps, mine, o, start=start)
            pend_start = 0
        emit_gaps(s, mf, gaps)
        if done is not None and done < 8:
            assert not pend
            pend = st_out(done); pend_start = o['p2_delay16']
        if st + 2 <= nst - 1:
            s.waitmark("w2_%d" % (st + 2), 0); s.e("s_barrier")
    assert not pend
    for ins in st_out(8): s.e(ins)

def phase2(s, o, n0, K, dft):
    if M16[0]: return phase2_16(s, o, n0, K, dft)
    nk = K // 16; Q = 9 * nk; nst = Q // 6
    def st_out(seg):
        acc = 16 if seg % 2 == 0 else 48
        L = ["s_add_u32 s37, s36, %d" % (seg * 8192)]
        for n in range(2):
            for J in range(2):
                for q in range(4):
                    r = acc + 16 * n + 8 * J + 2 * q
                    L.append("v_cvt_pk_bf16_f32 v%d, v%d, v%d" % (176 + n * 8 + 4 * J + q, r, r + 1))
                if not (o['nostore'] and seg < 8):
                    L.append("buffer_store_dwordx4 v[%d:%d], v11, s[8:11], s37 offen offset:%d %s" % (176 + n * 8 + 4 * J, 179 + n * 8 + 4 * J, n * 2048 + J * 1024, o['stf'].replace('+', ' ')))
        if dft:
            x = 208 + 4 * (seg % 2)
            L += ["v_mov_b32 v%d, v%d" % (216 + i, x + i) for i in range(4)]
            L += ["s_add_u32 s39, s38, %d" % (seg * 8192)]
            L += ["v_permlane32_swap_b32 v%d, v%d" % (x + i, 216 + i) for i in range(4)]
            L += ["v_add_f32 v%d, v%d, v%d" % (216 + i, x + i, 216 + i) for i in range(4)]
            L += ["v_cvt_pk_bf16_f32 v216, v216, v217", "v_cvt_pk_bf16_f32 v217, v218, v219",
                  "buffer_store_dwordx2 v[216:217], v12, s[8:11], s39 offen"]
        return L
    def hx(kap, j):
        return (112 + 4 * kap + j) if kap < 16 else (192 + 4 * (kap - 16) + j)
    pend = []
    if NS2[0] > 6: s.e("v_add_u32 v5, 0x20000, v8")
    for st in range(nst):
        gaps = [[] for _ in range(12)]
        mf = []
        newseg = None
        for kp in range(6):
            q = st * 6 + kp; seg = q // nk; kap = q % nk
            n = n0 + q
            if q + PF < Q:
                gaps[2 * kp].append(rd2(n + PF, 0, n0)); gaps[2 * kp + 1].append(rd2(n + PF, 1, n0))
            acc = 16 if seg % 2 == 0 else 48
            for t in range(2):
                A = areg(n); D = acc + 16 * t
                C = "0" if kap == 0 else "v[%d:%d]" % (D, D + 15)
                j = kap * 2 + t
                mf.append(["v_mfma_f32_32x32x16_bf16 v[%d:%d], v[%d:%d], a[%d:%d], %s" % (D, D + 15, A, A + 3, 4 * j, 4 * j + 3, C)])
            if dft:
                x = 208 + 4 * (seg % 2); A = areg(n)
                for jj in range(2):
                    c = "0" if (kap == 0 and jj == 0) else "v[%d:%d]" % (x, x + 3)
                    gaps[2 * kp + jj].insert(0, "v_mfma_f32_4x4x4_16b_bf16 v[%d:%d], v[%d:%d], v[%d:%d], %s" % (x, x + 3, A + 2 * jj, A + 2 * jj + 1, hx(kap, 2 * jj), hx(kap, 2 * jj + 1), c))
            if kap == 0 and seg > 0:
                newseg = (kp, seg - 1)
        if NS2[0] == 6: iss = [st + 5]
        elif st == 0: iss = [5]
        elif st <= 6: iss = [2 * st + 4, 2 * st + 5]
        else: iss = [st + 11]
        iss = [x for x in iss if x < nst]
        if len(iss) == 2:
            L = dma_gaps2(iss[0], K, (1, 3, 5)) + dma_gaps2(iss[1], K, (7, 9, 11))
        elif iss: L = dma_gaps2(iss[0], K)
        else: L = []
        for g, ins in L: gaps[g].append(ins)
        if newseg is not None:
            kp, sg = newseg
            assert not pend
            pend = st_out(sg)
            start = 2 * kp + o['p2_epi_delay']
        else:
            start = 0
        if pend:
            if start < 12:
                room = (12 - start) * o['p2_epi_rate']
                mine = pend[:room]; pend = pend[room:]
                spread(gaps, mine, o, start=start)
        emit_gaps(s, mf, gaps)
        if st + 2 <= nst - 1:
            s.waitmark("w2_%d" % (st + 2), 0); s.e("s_barrier")
    assert not pend
    for ins in st_out(8): s.e(ins)

def gen_k2(Kern, srd, opts):
    o = dict(xo=0, xg=0, xl=0, xt=0, xil=0, xpre=2, xpf=0, xdm=2, pstamp=0, ord=0, slowpf=0, cpf=0, cpfst=1, cpk3=0, cpd1=18, m16=0, la=4, rdpos=0, rdstep=2, p2_rate16=1.0, p2_delay16=2, pfw=0, pfc=0, ns2=6, map=0, prof=0, nostore=0, stf='', nords=0, noepi=0, nodma=0, nobar=0, wtrans=2.0, wsalu=0.3, epi_start=4, first_less=4, p2_epi_delay=5, p2_epi_rate=2)
    for k, v in opts.items():
        if k in o: o[k] = type(o[k])(v)
    NS2[0] = o['ns2']; M16[0] = o['m16']; LA[0] = o['la']
    global stamp
    stamp_ = stamp
    pst = lambda seg, i: None
    if o['pstamp']:
        pst = stamp_
        stamp = lambda seg, i: (stamp_(seg, i) if i in (0, 6, 7) else None)
    NPRE = o['la'] if o['m16'] else PF
    K = Kern("main_kernel", (256, 1, 1), (256, 1, 1), 159744 if o['xl'] == 1 else LDS_BYTES, vgpr=512, accum=256)
    a = K.seg("head")
    a.e("s_cmp_ge_u32 s2, 256"); a.e("s_cbranch_scc1 K2_end")
    stamp(a, 0)
    a.e("s_load_dwordx2 s[4:5], s[0:1], 88")
    a.e("s_load_dwordx4 s[40:43], s[0:1], 48")
    a.e("s_load_dwordx2 s[44:45], s[0:1], 64")
    a.e("s_load_dwordx4 s[48:51], s[0:1], 8")
    a.e("s_load_dwordx4 s[52:55], s[0:1], 24")
    a.e("v_lshrrev_b32 v1, 6, v0"); a.e("v_and_b32 v0, 63, v0"); a.e("v_readfirstlane_b32 s24, v1")
    if o['map'] == 0:
        a.e("s_and_b32 s3, s2, 7"); a.e("s_lshr_b32 s28, s2, 3"); a.e("s_lshr_b32 s27, s28, 4"); a.e("s_lshl_b32 s3, s3, 1")
        a.e("s_add_u32 s27, s27, s3"); a.e("s_and_b32 s28, s28, 15")
    else:
        tb = {1: 3, 2: 2, 3: 3}[o['map']]
        a.e("s_and_b32 s3, s2, 7"); a.e("s_lshr_b32 s46, s2, 3")
        a.e("s_and_b32 s28, s3, %d" % ((16 >> tb) - 1)); a.e("s_lshl_b32 s28, s28, %d" % tb); a.e("s_and_b32 s47, s46, %d" % ((1 << tb) - 1)); a.e("s_add_u32 s28, s28, s47")
        a.e("s_lshr_b32 s27, s3, %d" % (4 - tb)); a.e("s_lshl_b32 s27, s27, %d" % (5 - tb)); a.e("s_lshr_b32 s47, s46, %d" % tb); a.e("s_add_u32 s27, s27, s47")
    if o['map'] == 3:
        a.e("s_lshr_b32 s46, s27, 2"); a.e("s_and_b32 s47, s27, 3"); a.e("s_mul_i32 s27, s46, 3"); a.e("s_add_u32 s27, s27, s47"); a.e("s_add_u32 s46, s46, 12")
        a.e("s_cmp_eq_u32 s47, 3"); a.e("s_cselect_b32 s27, s46, s27")
    a.e("s_lshr_b32 s25, s24, 1"); a.e("s_and_b32 s26, s24, 1")
    a.e("s_mov_b32 s%d, 0xbfb8aa3b" % CNEG)
    a.e("v_lshrrev_b32 v13, 4, v0"); a.e("v_bfe_u32 v14, v0, 2, 2"); a.e("v_and_b32 v15, 3, v0")
    a.e("v_lshlrev_b32 v11, 4, v0")
    if o['m16']:
        a.e("v_lshrrev_b32 v1, 1, v14"); a.e("v_lshlrev_b32 v1, 1, v1"); a.e("v_and_b32 v9, 1, v13"); a.e("v_lshlrev_b32 v9, 2, v9"); a.e("v_add_u32 v9, v9, v1")
        a.e("v_lshrrev_b32 v12, 1, v15"); a.e("s_lshl_b32 s3, s26, 2"); a.e("v_add_u32 v12, s3, v12"); a.e("v_xor_b32 v12, v12, v9"); a.e("v_lshlrev_b32 v12, 4, v12")
        a.e("v_and_b32 v1, 1, v15"); a.e("v_lshlrev_b32 v1, 3, v1"); a.e("v_add_u32 v12, v12, v1")
        a.e("v_lshlrev_b32 v8, 2, v13"); a.e("v_add_u32 v8, v8, v14"); a.e("v_lshlrev_b32 v8, 7, v8"); a.e("v_add_u32 v8, v8, v12"); a.e("v_xor_b32 v9, 32, v8")
        a.e("v_lshlrev_b32 v5, 3, v13"); a.e("v_add_u32 v5, v5, v14"); a.e("v_lshlrev_b32 v5, 7, v5"); a.e("v_add_u32 v5, v5, v12"); a.e("v_add_u32 v6, 0x10000, v5")
        a.e("v_lshrrev_b32 v13, 3, v0"); a.e("v_and_b32 v14, 7, v0")
        a.e("v_bfe_u32 v15, v13, 1, 2"); a.e("v_lshlrev_b32 v15, 1, v15"); a.e("v_xor_b32 v15, v14, v15"); a.e("v_lshlrev_b32 v15, 4, v15")
        a.e("s_movk_i32 s3, 1152"); a.e("v_mul_lo_u32 v10, v13, s3"); a.e("v_add_u32 v10, v10, v15")
        a.e("v_bfe_u32 v15, v13, 1, 1"); a.e("v_lshlrev_b32 v15, 1, v15"); a.e("v_xor_b32 v15, v14, v15"); a.e("v_lshlrev_b32 v15, 4, v15")
        a.e("s_and_b32 s3, s24, 1"); a.e("s_lshl_b32 s3, s3, 6"); a.e("v_xor_b32 v15, s3, v15")
        a.e("s_movk_i32 s3, 9216"); a.e("v_mul_lo_u32 v13, v13, s3")
        a.e("v_add_u32 v2, v13, v15"); a.e("v_add_u32 v4, %d, v2" % (16 * 9216 - 2048))
        a.e("v_xor_b32 v15, 64, v15"); a.e("v_add_u32 v3, v13, v15"); a.e("v_add_u32 v3, %d, v3" % (8 * 9216 - 1024))
        a.e("v_xor_b32 v13, 32, v5"); a.e("v_add_u32 v14, 0x10000, v13")
    else:
        a.e("v_lshrrev_b32 v1, 1, v13"); a.e("v_lshlrev_b32 v1, 2, v1"); a.e("v_add_u32 v1, v1, v14"); a.e("v_lshlrev_b32 v8, 7, v1")
        a.e("v_and_b32 v1, 1, v13"); a.e("v_lshlrev_b32 v1, 1, v1"); a.e("s_lshl_b32 s3, s26, 2"); a.e("v_add_u32 v1, s3, v1")
        a.e("v_bfe_u32 v9, v14, 1, 1"); a.e("v_lshlrev_b32 v9, 2, v9")
        a.e("v_and_b32 v12, 1, v15"); a.e("v_add_u32 v12, v1, v12"); a.e("v_xor_b32 v12, v12, v9"); a.e("v_lshlrev_b32 v12, 4, v12"); a.e("v_add_u32 v8, v8, v12")
        a.e("v_lshrrev_b32 v12, 1, v15"); a.e("v_lshlrev_b32 v12, 3, v12"); a.e("v_add_u32 v8, v8, v12")
        a.e("v_lshrrev_b32 v12, 1, v15"); a.e("v_add_u32 v12, v1, v12"); a.e("v_xor_b32 v12, v12, v9"); a.e("v_lshlrev_b32 v12, 4, v12")
        a.e("v_lshrrev_b32 v5, 1, v13"); a.e("v_lshlrev_b32 v5, 3, v5"); a.e("v_add_u32 v5, v5, v14"); a.e("v_lshlrev_b32 v5, 7, v5"); a.e("v_add_u32 v5, v5, v12")
        a.e("v_and_b32 v12, 1, v15"); a.e("v_lshlrev_b32 v12, 3, v12"); a.e("v_add_u32 v5, v5, v12")
        a.e("v_add_u32 v6, 0x10000, v5"); a.e("v_add_u32 v9, 0x10000, v8")
        a.e("v_lshrrev_b32 v13, 3, v0"); a.e("v_and_b32 v14, 7, v0"); a.e("v_bfe_u32 v15, v13, 1, 1"); a.e("v_lshlrev_b32 v15, 2, v15")
        a.e("v_xor_b32 v14, v14, v15"); a.e("v_lshlrev_b32 v14, 4, v14")
        a.e("s_movk_i32 s3, 1152"); a.e("v_mul_lo_u32 v10, v13, s3"); a.e("v_add_u32 v10, v10, v14")
        a.e("s_movk_i32 s3, 9216"); a.e("v_mul_lo_u32 v2, v13, s3"); a.e("v_add_u32 v2, v2, v14")
        a.e("v_add_u32 v3, %d, v2" % (8 * 9216 - 1024)); a.e("v_add_u32 v4, %d, v2" % (16 * 9216 - 2048))
    a.e("s_lshl_b32 s34, s24, 10")
    a.e("s_mul_i32 s36, s27, %d" % SLOTB); a.e("s_lshl_b32 s3, s28, 1"); a.e("s_add_u32 s3, s3, s25"); a.e("s_mul_i32 s3, s3, %d" % T64B)
    a.e("s_add_u32 s36, s36, s3"); a.e("s_lshl_b32 s46, s26, 12"); a.e("s_add_u32 s36, s36, s46"); a.e("s_add_u32 s36, s36, %d" % PART)
    if o['cpf']:
        a.e("s_getpc_b64 s[96:97]"); a.lab("K2_pc")
    a.waitlg(0)
    pst(a, 1)
    srd(a, 8, 4, WS_BYTES)
    if o['xt']:
        a.e("s_lshr_b32 s56, s2, 6"); a.e("s_and_b32 s56, s56, 3"); a.e("s_lshl_b32 s56, s56, 2"); a.e("s_add_u32 s56, s56, s24")
        a.e("s_lshr_b32 s57, s56, 3"); a.e("s_and_b32 s56, s56, 7"); a.e("s_mul_i32 s56, s56, 4608")
        a.e("s_lshl_b32 s58, s28, 1"); a.e("s_add_u32 s58, s58, s57"); a.e("s_mul_i32 s58, s58, %d" % T64B); a.e("s_add_u32 s56, s56, s58")
        if XN: a.e("s_add_u32 s56, s56, %d" % XN)
        a.e("s_add_u32 s57, s56, 36864")
        if o['xt'] == 1:
            a.e("v_min_u32 v216, 35, v0"); a.e("v_lshlrev_b32 v216, 7, v216")
            a.e("buffer_load_dword v218, v216, s[8:11], s56 offen ; pf"); a.e("buffer_load_dword v218, v216, s[8:11], s57 offen ; pf")
        else:
            a.e("v_lshlrev_b32 v216, 6, v0"); a.e("v_min_u32 v217, 7, v0"); a.e("v_lshlrev_b32 v217, 6, v217"); a.e("v_add_u32 v217, 4096, v217")
            for sb in (56, 57):
                a.e("buffer_load_dword v218, v216, s[8:11], s%d offen ; pf" % sb); a.e("buffer_load_dword v218, v217, s[8:11], s%d offen ; pf" % sb)
    a.e("s_cmp_eq_u32 s27, 15"); a.e("s_cbranch_scc1 K2_dft")
    f = K.seg("ffn_pro")
    srd(f, 12, 40, 576 * 9216); srd(f, 16, 42, 576 * 9216); srd(f, 20, 44, 4608 * 1152)
    if o['slowpf']:
        f.e("s_sub_u32 s46, s27, 12"); f.e("s_lshl_b32 s46, s46, 4"); f.e("s_add_u32 s46, s46, s28"); f.e("s_lshl_b32 s46, s46, 2"); f.e("s_add_u32 s46, s46, s24")
        f.e("s_lshl_b32 s46, s46, 1")
        f.e("v_lshrrev_b32 v216, 1, v0"); f.e("s_movk_i32 s47, 9216"); f.e("v_mul_lo_u32 v216, v216, s47"); f.e("v_and_b32 v217, 1, v0"); f.e("v_lshlrev_b32 v217, 6, v217")
        f.e("v_add_u32 v216, v216, v217")
        for i in range(2):
            f.e("s_add_u32 s56, s46, %d" % i)
            f.e("s_mul_i32 s47, s56, 3641"); f.e("s_lshr_b32 s47, s47, 16"); f.e("s_mul_i32 s57, s47, 18"); f.e("s_sub_u32 s57, s56, s57")
            f.e("s_and_b32 s58, s47, 1"); f.e("s_cmp_eq_u32 s58, 1"); f.e("s_cselect_b32 s60, s42, s40"); f.e("s_cselect_b32 s61, s43, s41")
            f.e("s_mov_b32 s62, 0x%x" % (576 * 9216)); f.e("s_mov_b32 s63, 0x00020000")
            f.e("s_lshr_b32 s58, s60, 7"); f.e("s_sub_u32 s58, 3, s58"); f.e("s_and_b32 s58, s58, 7")
            f.e("s_lshr_b32 s47, s47, 1"); f.e("s_lshl_b32 s47, s47, 3"); f.e("s_add_u32 s47, s47, s58"); f.e("s_lshl_b32 s47, s47, 7")
            f.e("s_mul_i32 s57, s57, %d" % (32 * 9216)); f.e("s_add_u32 s47, s47, s57")
            f.e("s_cmp_lt_u32 s56, 324"); f.e("s_cselect_b32 s47, s47, 0x7ff00000"); f.e("s_cmp_ge_u32 s27, 12"); f.e("s_cselect_b32 s47, s47, 0x7ff00000")
            f.e("v_add_u32 v217, s47, v216")
            f.e("buffer_load_dword v218, v217, s[60:63], 0 offen ; pf")
    p0_code(f, 27, 46, 47, o['ord'])
    f.e("s_cmp_lt_u32 s27, 12"); f.e("s_cselect_b32 s32, 4, 3")
    f.e("s_mul_i32 s30, s24, %d" % (24 * 9216)); f.e("s_lshl_b32 s47, s46, 7"); f.e("s_add_u32 s30, s30, s47")
    f.e("s_mul_i32 s29, s24, 3072")
    f.e("s_lshl_b32 s47, s46, 6"); f.e("s_lshl_b32 s56, s24, 3"); f.e("s_add_u32 s47, s47, s56"); f.e("s_mul_i32 s35, s47, 1152")
    def xdma(c):
        G = []
        for kkl in range(3):
            G.append(["s_add_u32 m0, s38, %d" % ((c % 3) * 24576 + kkl * 4096), "s_add_u32 s39, s37, %d" % ((3 * c + kkl) * 4096),
                      "buffer_load_dwordx4 v11, s[8:11], s39 offen offset:0 lds"])
            G.append(["buffer_load_dwordx4 v11, s[8:11], s39 offen offset:1024 lds"] + ([('mark', 'xc')] if kkl == 2 else []))
        return G
    def xrd(c):
        return ["ds_read_b128 %s, v48 offset:%d" % (xreg((3 * c + kkl) * 4 + tq), (c % 3) * 24576 + kkl * 4096 + tq * 1024) for tq in range(4) for kkl in range(3)]
    def xld(st):
        L = []
        for tq in range(4):
            for kkl in range(3):
                L.append("buffer_load_dwordx4 %s, v11, s[8:11], s%d offen offset:%d" % (xreg((3 * st + kkl) * 4 + tq), 37 + kkl, tq * 1024))
        return L, ["s_add_u32 s%d, s%d, 12288" % (37 + kkl, 37 + kkl) for kkl in range(3)]
    def cpf_block():
        if o['cpf']:
            f.e("v_lshlrev_b32 v219, 7, v0"); f.e("s_lshl_b32 s3, s24, 13"); f.e("v_add_u32 v219, s3, v219")
            if o['cpf'] & 2:
                code_addr(f, 216, 219, "K2_g0", "K2_tail320"); f.e(code_ld(218, 216))
            f.e("s_mov_b32 s100, K2_tail320-K2_pc"); f.e("s_mov_b32 s101, K2_ffn4-K2_pc-4"); f.e("s_cmp_ge_u32 s27, 12")
            f.e("s_cselect_b32 s100, K2_ffn4-K2_pc, s100"); f.e("s_cselect_b32 s101, K2_dft-K2_pc-4, s101")
            code_addr(f, 216, 219, None, None, ssel=(100, 101))
            if o['cpk3']:
                code_addr(f, 220, 219, "final_kernel", "K3_end")
    if o['xo'] == 2: cpf_block()
    if o['xil']:
        f.e("s_lshl_b32 s37, s28, 1"); f.e("s_add_u32 s37, s37, s25"); f.e("s_mul_i32 s37, s37, %d" % T64B)
        if XN: f.e("s_add_u32 s37, s37, %d" % XN)
        f.e("s_add_u32 s38, s37, 4096"); f.e("s_add_u32 s39, s37, 8192")
        xdone = 0
        for st in range(5):
            su, ld = dma1(0, st, st)
            for x in su + ld: f.e(x)
            f.mark("dma")
            if st + 1 >= o['xdm'] and xdone < o['xpre']:
                L, U = xld(xdone); xdone += 1
                for x in L + U: f.e(x)
        while xdone < o['xpre']:
            L, U = xld(xdone); xdone += 1
            for x in L + U: f.e(x)
    elif o['xl'] == 1:
        su, ld = dma1(0, 0, 0)
        for x in su + ld: f.e(x)
        f.mark("dma")
    elif o['xl'] == 2:
        f.e("s_lshl_b32 s37, s28, 1"); f.e("s_add_u32 s37, s37, s25"); f.e("s_mul_i32 s37, s37, %d" % T64B)
        if XN: f.e("s_add_u32 s37, s37, %d" % XN)
        f.e("s_lshl_b32 s39, s26, 11"); f.e("s_add_u32 s37, s37, s39")
        f.e("s_mul_i32 s38, s25, 12288"); f.e("s_add_u32 s38, s38, s39"); f.e("s_add_u32 s38, s38, %d" % HB)
        for st in range(2):
            su, ld = dma1(0, st, st)
            for x in su + ld: f.e(x)
            f.mark("dma")
            for g in xdma(st):
                for x in g: put(f, x)
            if o['xo'] == 3 and st == 0: cpf_block()
    else:
      for st in range(5):
        su, ld = dma1(0, st, st)
        for x in su + ld: f.e(x)
        f.mark("dma")
    if not o['xl']: pst(f, 2)
    if o['xo'] < 2: cpf_block()
    f.e("s_lshl_b32 s3, s28, 1"); f.e("s_add_u32 s3, s3, s25"); f.e("s_mul_i32 s3, s3, %d" % T64B)
    if XN: f.e("s_add_u32 s3, s3, %d" % XN)
    if o['xl'] == 2:
        if o['xo'] >= 1:
            for g in xdma(2):
                for x in g: put(f, x)
        for st in range(2, 4):
            su, ld = dma1(0, st, st)
            for x in su + ld: f.e(x)
            f.mark("dma")
            if st == 2 and o['xo'] == 0:
                for g in xdma(2):
                    for x in g: put(f, x)
        f.e("s_mul_i32 s3, s25, 12288"); f.e("s_add_u32 s3, s3, %d" % HB); f.e("v_add_u32 v48, s3, v11")
    if o['xl'] == 1:
        f.e("s_lshl_b32 s37, s26, 11"); f.e("s_add_u32 s37, s37, s3")
        f.e("s_mul_i32 s38, s25, 12288"); f.e("s_lshl_b32 s39, s26, 11"); f.e("s_add_u32 s38, s38, s39"); f.e("s_add_u32 s38, s38, 12288")
        for c in range(6):
            for kkl in range(3):
                f.e("s_add_u32 m0, s38, %d" % (c * 24576 + kkl * 4096)); f.e("s_add_u32 s39, s37, %d" % ((3 * c + kkl) * 4096))
                for t in range(2): f.e("buffer_load_dwordx4 v11, s[8:11], s39 offen offset:%d lds" % (t * 1024))
            f.mark("xc")
        f.e("s_mul_i32 s3, s25, 12288"); f.e("s_add_u32 s3, s3, 12288"); f.e("v_add_u32 v16, s3, v11"); f.e("v_add_u32 v17, 73728, v16")
    for i in range(72 if not (o['xil'] or o['xl']) else 0):
        if i % 4 == 0 and i > 0: f.e("s_add_u32 s3, s3, 4096")
        f.e("buffer_load_dwordx4 %s, v11, s[8:11], s3 offen offset:%d" % (xreg(i), (i % 4) * 1024))
    pst(f, 2 if o['xl'] else 3)
    if o['pfw']:
        f.e("s_and_b32 s56, s28, 7"); f.e("s_lshl_b32 s56, s56, 2"); f.e("s_add_u32 s56, s56, s24"); f.e("s_add_u32 s57, s32, 1")
        f.e("s_mul_i32 s57, s57, 2304"); f.e("s_mul_i32 s56, s56, s57"); f.e("s_mul_i32 s57, s46, 73728"); f.e("s_add_u32 s56, s56, s57")
        if o['pfw'] in (3, 10):
            f.e("s_sub_u32 s56, s27, 12"); f.e("s_lshl_b32 s56, s56, 4"); f.e("s_add_u32 s56, s56, s28"); f.e("s_lshl_b32 s56, s56, 2"); f.e("s_add_u32 s56, s56, s24")
            f.e("s_mul_i32 s56, s56, 27648"); f.e("s_cmp_lt_u32 s27, 12"); f.e("s_cselect_b32 s56, 0x7ff00000, s56")
        f.e("v_add_u32 v192, s56, v11"); f.e("v_add_u32 v193, 4096, v192"); f.e("v_add_u32 v194, 8192, v192")
        if o['pfw'] in (3, 10):
            for j in range(3, 7): f.e("v_add_u32 v%d, %d, v192" % (192 + j + (0 if j < 4 else 16), 4096 * j))
        if o['pfw'] == 4:
            for x in pf_loads(): f.e(x)
        if o['pfw'] == 5:
            f.e("buffer_load_dword v196, v192, s[20:23], 0 offen ; pf")
        if o['pfw'] == 8:
            f.e("v_lshlrev_b32 v195, 6, v0"); f.e("v_add_u32 v192, s56, v195"); f.e("v_add_u32 v193, 4096, v192"); f.e("v_add_u32 v194, 8192, v192")
            for j in range(3): f.e("buffer_load_dword v%d, v%d, s[20:23], 0 offen ; pf" % (196 + j, 192 + j))
        if o['pfw'] == 9:
            f.e("v_lshlrev_b32 v195, 7, v0"); f.e("v_add_u32 v192, s56, v195"); f.e("v_add_u32 v193, 8192, v192")
            for j in range(2): f.e("buffer_load_dword v%d, v%d, s[20:23], 0 offen ; pf" % (196 + j, 192 + j))
    f.e("s_mul_i32 s3, s25, 40960"); f.e("s_lshl_b32 s46, s26, %d" % (10 if o['m16'] else 11)); f.e("s_add_u32 s3, s3, s46"); f.e("s_add_u32 s3, s3, %d" % HB)
    f.e("v_add_u32 v7, s3, v11")
    if o['xl'] == 1:
        for c in range(6):
            f.waitmark("xc", 5 - c)
            if c in (1, 2): f.waitlg(0)
            f.e("s_barrier")
            if c == 0: pst(f, 3)
            if c == 5: pst(f, 4)
            if c in (1, 2):
                for st in (2 * c - 1, 2 * c):
                    su, ld = dma1(0, st, st)
                    for x in su + ld: f.e(x)
                    f.mark("dma")
            for tq in range(4):
                for kkl in range(3):
                    f.e("ds_read_b128 %s, v%d offset:%d" % (xreg((3 * c + kkl) * 4 + tq), 16 + c // 3, (c % 3) * 24576 + kkl * 4096 + tq * 1024))
        f.waitlg(0)
    if o['xl'] == 2:
        f.waitmark("xc", 1); f.waitmark("dma", 2); pst(f, 3); f.e("s_barrier")
        for x in xrd(0): f.e(x)
        for n in range(NPRE):
            f.e(rd1(n, 0)); f.e(rd1(n, 1))
        f.waitlg(0); pst(f, 4); f.e("s_barrier")
        pst(f, 5)
        stamp(f, 1)
        if o['cpf']: f.lab("K2_g0")
    else:
        f.waitmark("dma", 3)
        if not o['xl']: pst(f, 4)
        f.e("s_barrier")
        pst(f, 5)
        stamp(f, 1)
        if o['cpf']: f.lab("K2_g0")
        for n in range(NPRE):
            f.e(rd1(n, 0)); f.e(rd1(n, 1))
    p1 = P1(o)
    def d_g0(i):
        return dma_gaps1(0, 5, 5) if i == 0 else dma_gaps1(1, i - 1, i - 1)
    post0 = None
    if o['pfw'] and o['pfw'] not in (4, 6, 7, 8, 9, 10):
        post0 = pf_post(o['pfw'])
    if o['xil']:
        post0 = dict(post0 or {})
        if o['xpf']:
            L = pf_loads(); post0 = {}
            if o['xpf'] == 1:
                for i in range(2): post0[4 + i] = [(g, L[6 * i + k]) for k, g in enumerate((1, 2, 4, 5, 7, 8))]
            elif o['xpf'] == 2:
                for i in range(3): post0[3 + i] = [(g, L[4 * i + k]) for k, g in enumerate((2, 4, 7, 10))]
        for st in range(o['xpre'], 6):
            L, U = xld(st)
            post0[('g24', st - o['xpre'])] = [(2 * k + 1, x) for k, x in enumerate(L)] + [(23, x) for x in U]
    if o['xl'] == 2:
        def late(mat, kc, slot, g):
            su, ld = dma1(mat, kc, slot)
            return [(g[0], su[0]), (g[0], su[1]), (g[1], ld[0]), (g[2], ld[1]), (g[3], ld[2]), (g[3], ('mark', 'dma'))]
        d_g0_base = d_g0
        def d_g0(i):
            if o['xg'] == 1:
                if i == 0: return late(0, 4, 4, (4, 4, 5, 6)) + late(0, 5, 5, (7, 8, 9, 10))
                if i in (1, 2): return late(1, i - 1, i - 1, (5, 6, 8, 10))
            if o['xg'] == 2:
                if i == 0: return late(0, 4, 4, (6, 6, 7, 8)) + late(0, 5, 5, (9, 9, 10, 11))
                if i in (1, 2): return late(1, i - 1, i - 1, (7, 8, 10, 11))
            if i == 0: return late(0, 4, 4, (3, 3, 4, 5)) + late(0, 5, 5, (6, 7, 9, 10))
            if i in (1, 2): return late(1, i - 1, i - 1, (3, 4, 7, 10))
            return d_g0_base(i)
        if o['xpf']:
            L = pf_loads(); post0 = {}
            if o['xpf'] == 1:
                for i in range(2): post0[4 + i] = [(g, L[6 * i + k]) for k, g in enumerate((1, 2, 4, 5, 7, 8))]
            elif o['xpf'] == 2:
                for i in range(3): post0[3 + i] = [(g, L[4 * i + k]) for k, g in enumerate((2, 4, 7, 10))]
        post0 = dict(post0 or {})
        for i in range(5):
            P = []
            if i < 3:
                for k, g in enumerate(xdma(3 + i)): P += [((k // 2 if o['xg'] else k), x) for x in g]
            R = xrd(i + 1)
            P += [(2 * (k // 2) + 1, x) for k, x in enumerate(R)]
            post0[('g24', i)] = P
            E = []
            if i < 2:
                last = xreg((3 * (i + 1) + 2) * 4 + 3)
                r0 = last[2:].split(':')[0]
                E.append(("v_accvgpr_read_b32 v49, a%s" % r0) if last[0] == 'a' else ("v_mov_b32 v49, v%s" % r0))
            if i < 4: E.append(('waitmark', 'xc', 1 if i < 3 else 0))
            post0[('end', i)] = E
    g0a = g0b = None
    if o['pfw'] == 10:
        f.e("s_cmp_ge_u32 s27, 12"); f.e("s_cbranch_scc1 K2_g0b")
        g0a = K.seg("g0a"); p1.phase(g0a, 0, [], d_g0); stamp(g0a, 2); g0a.e("s_branch K2_loop")
        g0b = K.seg("g0b"); g0b.lab("K2_g0b"); pb = P1(o); pb.phase(g0b, 0, [], d_g0, post=pf_post(3)); stamp(g0b, 2)
    else:
        p1.phase(f, 0, [], d_g0, post=post0)
        stamp(f, 2)
    lp = K.seg("ffn_loop"); lp.lab("K2_loop")
    def d_up(i):
        if i == 0: return dma_gaps1(1, 5, 5) + [(10, "s_add_u32 s30, s30, 128")]
        return dma_gaps1(0, i - 1, i - 1)
    def d_gate(i):
        return dma_gaps1(0, 5, 5) if i == 0 else dma_gaps1(1, i - 1, i - 1)
    postu = postg = None
    if o['pfw'] == 6:
        L = pf_loads()[:4]
        postu = {1 + j: [(4, L[j])] for j in range(4)}
        postu[5] = [(4, "v_add_u32 v192, 4096, v192")]
    if o['pfw'] == 7:
        L = pf_loads()[:4]
        postu = {1: [(4, L[0])], 4: [(4, L[1])]}
        postg = {1: [(4, L[2])], 4: [(4, L[3])], 5: [(4, "v_add_u32 v192, 4096, v192")]}
    if o['cpf'] & 1:
        postu = dict(postu or {}); postu.setdefault(o['cpfst'], []); postu[o['cpfst']] = postu[o['cpfst']] + [(5, code_ld(218, 216))]
    p1.phase(lp, 1, epi1(), d_up, post=postu)
    p1.phase(lp, 0, epi2() + ["v_add_u32 v7, %d, v7" % (2048 if o['m16'] else 4096)], d_gate, post=postg)
    lp.e("s_sub_u32 s32, s32, 1"); lp.e("s_cmp_lg_u32 s32, 0"); lp.e("s_cbranch_scc1 K2_loop")
    nloop = p1.n
    br = K.seg("ffn_br")
    stamp(br, 3)
    br.e("s_cmp_ge_u32 s27, 12"); br.e("s_cbranch_scc1 K2_ffn4")
    tails = {}
    for Kd, lab in ((320, None), (256, "K2_ffn4")):
        t = K.seg("ffn_tail%d" % Kd)
        if lab: t.lab(lab)
        elif o['cpf']: t.lab("K2_tail320")
        p = P1(o); p.n = nloop
        n0 = nloop + 36
        def d_last(i, Kd=Kd):
            return dma_gaps1(1, 5, 5) if i == 0 else dma_gaps2(i - 1, Kd)
        p.phase(t, 1, epi1(), d_last, nextrd=lambda n, h, n0=n0: rd2(n, h, n0), last_barrier=False)
        stamp(t, 4)
        t.e("s_nop 7")
        for x in epi2(): t.e(x)
        t.waitmark("dma", 3); t.waitlg(0); t.e("s_barrier")
        t.e("s_mul_i32 s3, s25, 40960"); t.e("s_add_u32 s3, s3, %d" % HB); t.e("v_add_u32 v1, s3, v11")
        if o['m16']:
            for kk, tq in sorted(((kk, tq) for kk in range(Kd // 32) for tq in range(4)), key=lambda z: (z[0] // 3, z[1], z[0])):
                    j = kk * 4 + tq
                    t.e("ds_read_b128 a[%d:%d], v1 offset:%d" % (4 * j, 4 * j + 3, (tq * 10 + kk) * 1024))
        else:
          for kap in range(Kd // 16):
            for n in range(2):
                j = kap * 2 + n
                t.e("ds_read_b128 a[%d:%d], v1 offset:%d" % (4 * j, 4 * j + 3, (n * 20 + kap) * 1024))
        stamp(t, 5)
        phase2(t, o, n0, Kd, False)
        stamp(t, 6)
        if o['prof']: t.waitall()
        stamp(t, 7); prof_store(t, 1, 8, 8, 24, 12, 60)
        t.e("s_endpgm")
        tails[Kd] = t
    d = K.seg("dft"); d.lab("K2_dft")
    gen_dft(d, o, srd)
    e = K.seg("end"); e.lab("K2_end"); e.e("s_endpgm")
    A_ = [g0a] if g0a else []; B_ = [g0b] if g0b else []
    K.paths = [[a, f] + A_ + [lp] * 4 + [br, tails[320]], [a, f] + B_ + [lp] * 3 + [br, tails[256]], [a, d]]
    return K

def gen_dft(d, o, srd):
    d.e("s_cmp_ge_u32 s28, 8"); d.e("s_cselect_b32 s46, s50, s48"); d.e("s_cselect_b32 s47, s51, s49")
    d.e("s_cselect_b32 s56, s54, s52"); d.e("s_cselect_b32 s57, s55, s53")
    d.e("s_mov_b32 s58, %d" % XEE); d.e("s_cselect_b32 s58, %d, s58" % XOO); d.e("s_cselect_b32 s59, 1536, 0"); d.e("s_cselect_b32 s60, 0, 0xbf803f80")
    srd(d, 12, 46, 2048 * 4096); srd(d, 20, 56, 576 * 1152)
    d.e("s_and_b32 s3, s28, 7"); d.e("s_lshl_b32 s3, s3, 6"); d.e("s_add_u32 s59, s59, s3"); d.e("s_lshl_b32 s59, s59, 1")
    d.e("s_mul_i32 s61, s24, %d" % (16 * 640)); d.e("s_add_u32 s61, s61, s58")
    d.e("s_lshl_b32 s62, s24, 16"); d.e("s_add_u32 s62, s62, s59")
    d.e("v_lshrrev_b32 v13, 3, v0"); d.e("v_and_b32 v14, 7, v0"); d.e("v_bfe_u32 v15, v13, 1, 2"); d.e("v_lshlrev_b32 v15, 1, v15")
    d.e("v_xor_b32 v14, v14, v15"); d.e("v_lshlrev_b32 v14, 4, v14")
    d.e("s_movk_i32 s3, 1280"); d.e("v_mul_lo_u32 v2, v13, s3"); d.e("v_add_u32 v2, v2, v14")
    d.e("v_lshlrev_b32 v3, 13, v13"); d.e("v_add_u32 v3, v3, v14")
    NSD = 33; SL = 24576
    def stage_rows(st):
        return (st % 2, st // 2)
    def dmad(st):
        par, ks = stage_rows(st); slot = st % 6
        L = []
        r0 = 64 * ks + par
        L.append(("s", "s_add_u32 s31, s61, %d" % (r0 * 640)))
        for b in range(5):
            L.append(("s", "s_add_u32 m0, s34, %d" % (slot * SL + b * 4096 - 128 * b)))
            L.append(("l", "buffer_load_dwordx4 v2, s[8:11], s31 offen offset:%d lds" % (128 * b)))
        L.append(("s", "s_add_u32 s63, s62, %d" % (r0 * 4096)))
        L.append(("s", "s_add_u32 m0, s34, %d" % (slot * SL + 5 * 4096)))
        L.append(("l", "buffer_load_dwordx4 v3, s[12:15], s63 offen lds"))
        return L
    for st in range(5):
        for _, x in dmad(st): d.e(x)
        d.mark("dma")
    if o['cpf']:
        d.e("v_lshlrev_b32 v255, 7, v0"); d.e("s_lshl_b32 s3, s24, 13"); d.e("v_add_u32 v255, s3, v255")
        code_addr(d, 252, 255, "K2_dft1", "K2_dft2"); d.e(code_ld(254, 252))
        code_addr(d, 250, 255, "K2_dft2", "K2_dft3")
    if o['pfc'] == 1:
        d.e("v_lshrrev_b32 v13, 3, v0"); d.e("v_and_b32 v14, 7, v0"); d.e("v_lshlrev_b32 v14, 4, v14"); d.e("v_lshlrev_b32 v13, 12, v13"); d.e("v_add_u32 v192, v13, v14")
        d.e("s_mul_i32 s3, s24, %d" % (240 * 4096)); d.e("s_add_u32 s3, s3, s59"); d.e("s_add_u32 s3, s3, %d" % (128 * 4096)); d.e("v_add_u32 v192, s3, v192")
        for j in range(30):
            d.e("buffer_load_dwordx4 v[%d:%d], v192, s[12:15], 0 offen ; pf" % (224 + 4 * (j % 4), 227 + 4 * (j % 4)))
            if j < 29: d.e("v_add_u32 v192, 0x8000, v192")
    if o['pfc']:
        d.e("s_and_b32 s3, s28, 7"); d.e("s_lshl_b32 s3, s3, 2"); d.e("s_add_u32 s3, s3, s24"); d.e("s_mul_i32 s3, s3, 11520")
        d.e("v_add_u32 v192, s3, v11"); d.e("v_add_u32 v193, 4096, v192"); d.e("v_add_u32 v194, 8192, v192")
        for j in range(12):
            d.e("buffer_load_dwordx4 v[%d:%d], v%d, s[20:23], 0 offen offset:%d ; pf" % (224 + 4 * (j % 4), 227 + 4 * (j % 4), 192 + j // 4, (j % 4) * 1024))
    d.e("v_lshrrev_b32 v13, 2, v0"); d.e("v_and_b32 v15, 3, v0"); d.e("v_bfe_u32 v14, v13, 1, 2"); d.e("v_lshlrev_b32 v14, 1, v14")
    d.e("v_lshlrev_b32 v13, 7, v13"); d.e("v_and_b32 v1, 1, v15"); d.e("v_lshlrev_b32 v1, 3, v1"); d.e("v_add_u32 v13, v13, v1")
    d.e("v_lshrrev_b32 v15, 1, v15")
    for u in range(4):
        d.e("v_add_u32 v1, %d, v15" % (2 * u)); d.e("v_xor_b32 v1, v1, v14"); d.e("v_lshlrev_b32 v1, 4, v1"); d.e("v_add_u32 v1, v1, v13")
        d.e("v_add_u32 v%d, %d, v1" % (196 + u, 5 * 4096))
    for i in range(5):
        d.e("s_mul_i32 s3, s24, 5"); d.e("s_add_u32 s3, s3, %d" % i)
        d.e("s_and_b32 s46, s3, 3"); d.e("s_lshl_b32 s46, s46, 1"); d.e("s_lshr_b32 s47, s3, 2"); d.e("s_lshl_b32 s47, s47, 12")
        d.e("v_add_u32 v1, s46, v15"); d.e("v_xor_b32 v1, v1, v14"); d.e("v_lshlrev_b32 v1, 4, v1"); d.e("v_add_u32 v1, v1, v13")
        d.e("v_add_u32 v%d, s47, v1" % (200 + i))
    for q in range(9): d.e("v_add_u32 v%d, %d, v%d" % (205 + q, 3 * SL, 196 + q))
    for q in range(4): d.e("v_mov_b32 v%d, s60" % (216 + q))
    def frag(st, q):
        return (st % 2) * 36 + 4 * q
    def rdd(st, q, half):
        slot = st % 6; base = 196 + q
        if slot >= 3: base += 9; slot -= 3
        r = frag(st, q) + 2 * half
        return "ds_read_b64_tr_b16 a[%d:%d], v%d offset:%d" % (r, r + 1, base, slot * SL + half * 2048)
    d.waitmark("dma", 3); d.e("s_barrier")
    stamp(d, 1); stamp(d, 2)
    if o['cpf']: d.lab("K2_dft1")
    order = [4, 0, 1, 2, 3, 5, 6, 7, 8]
    for q in order: d.e(rdd(0, q, 0)); d.e(rdd(0, q, 1))
    for st in range(NSD):
        par, ks = stage_rows(st)
        mf = []
        for i in range(5):
            A = frag(st, 4 + i)
            for u in range(4):
                B = frag(st, u); D = 16 + par * 80 + (i * 4 + u) * 4
                C = "0" if ks == 0 else "v[%d:%d]" % (D, D + 3)
                mf.append(["v_mfma_f32_16x16x32_bf16 v[%d:%d], a[%d:%d], a[%d:%d], %s" % (D, D + 3, A, A + 3, B, B + 3, C)])
            if par == 0:
                D = 176 + 4 * i; C = "0" if ks == 0 else "v[%d:%d]" % (D, D + 3)
                mf.append(["v_mfma_f32_16x16x32_bf16 v[%d:%d], a[%d:%d], v[216:219], %s" % (D, D + 3, A, A + 3, C)])
        G = len(mf)
        gaps = [[] for _ in range(G)]
        fill = []
        if st + 1 < NSD:
            for q in order: fill += [rdd(st + 1, q, 0), rdd(st + 1, q, 1)]
        dm = dmad(st + 5) if st + 5 < NSD else []
        for g, x in enumerate(fill): gaps[g].append(x)
        if dm:
            pos = [2, 5, 8, 11, 14, 17]; li = 0; pendS = []
            for kind, x in dm:
                if kind == "s": pendS.append(x)
                else:
                    g = pos[li]; li += 1
                    for y in pendS: gaps[g - 1].append(y)
                    pendS = []
                    gaps[g].append(x)
            gaps[17].append(('mark', 'dma'))
        if o['cpf'] and st == o['cpd1']: gaps[19].append(code_ld(254, 250))
        emit_gaps(d, mf, gaps)
        if st + 2 <= NSD - 1:
            last_issued = min(st + 5, NSD - 1)
            d.waitmark("dma", last_issued - (st + 2)); d.e("s_barrier")
    d.e("s_barrier")
    stamp(d, 3)
    if o['cpf']:
        d.lab("K2_dft2")
        if o['cpk3']: code_addr(d, 252, 255, "final_kernel", "K3_end")
    d.e("s_mul_i32 s35, s24, %d" % (8 * 1152))
    for st in range(5):
        for su, ld in dma2(st, 320):
            for x in su: d.e(x)
            d.e(ld)
        d.mark("dma"); d.mark("w2_%d" % st)
    if o['m16']:
        d.e("s_and_b32 s46, s24, 1"); d.e("s_mul_i32 s3, s24, 5"); d.e("s_sub_u32 s3, s3, s46"); d.e("s_lshr_b32 s3, s3, 1")
        d.e("s_lshl_b32 s47, s46, 3")
        d.e("s_cmp_eq_u32 s46, 1"); d.e("s_cselect_b32 s56, 1024, 8"); d.e("s_cselect_b32 s57, 64, 8")
        d.e("s_lshl_b32 s58, s3, 10"); d.e("s_add_u32 s58, s58, %d" % HB)
        d.e("s_add_u32 s59, s58, s47"); d.e("v_add_u32 v7, s59, v11"); d.e("v_add_u32 v6, 40960, v7")
        d.e("s_add_u32 s59, s58, s56"); d.e("v_add_u32 v4, s59, v11"); d.e("v_add_u32 v3, 40960, v4")
        d.e("v_lshrrev_b32 v15, 4, v0"); d.e("v_lshlrev_b32 v15, 4, v15")
        d.e("s_lshl_b32 s58, s3, 6"); d.e("s_add_u32 s58, s58, %d" % HX)
        d.e("s_add_u32 s59, s58, s47"); d.e("v_add_u32 v5, s59, v15"); d.e("s_add_u32 s59, s58, s57"); d.e("v_add_u32 v2, s59, v15")
    else:
        d.e("v_lshrrev_b32 v13, 4, v0"); d.e("v_and_b32 v14, 15, v0"); d.e("v_and_b32 v15, 1, v13"); d.e("v_lshlrev_b32 v15, 5, v15"); d.e("v_add_u32 v14, v14, v15")
        d.e("v_lshlrev_b32 v14, 4, v14"); d.e("v_lshrrev_b32 v13, 1, v13"); d.e("v_lshlrev_b32 v1, 3, v13"); d.e("v_add_u32 v14, v14, v1")
        d.e("s_mul_i32 s3, s24, 5120"); d.e("s_add_u32 s3, s3, %d" % HB); d.e("v_add_u32 v7, s3, v14")
        d.e("v_add_u32 v6, 40960, v7")
        d.e("v_lshlrev_b32 v15, 4, v0"); d.e("v_lshrrev_b32 v15, 8, v15"); d.e("v_and_b32 v15, 1, v15"); d.e("v_lshlrev_b32 v15, 4, v15"); d.e("v_add_u32 v15, v15, v1")
        d.e("s_mul_i32 s3, s24, 160"); d.e("s_add_u32 s3, s3, %d" % HX); d.e("v_add_u32 v5, s3, v15")
    k = 0
    for i in range(5):
        for u in range(4):
            E = 16 + (i * 4 + u) * 4; O = E + 80
            t = 220 + 8 * (k % 4); k += 1
            for j in range(4):
                d.e("v_add_f32 v%d, v%d, v%d" % (t + j, E + j, O + j)); d.e("v_sub_f32 v%d, v%d, v%d" % (t + 4 + j, E + j, O + j))
            d.e("v_cvt_pk_bf16_f32 v%d, v%d, v%d" % (t, t, t + 1)); d.e("v_cvt_pk_bf16_f32 v%d, v%d, v%d" % (t + 1, t + 2, t + 3))
            d.e("v_cvt_pk_bf16_f32 v%d, v%d, v%d" % (t + 4, t + 4, t + 5)); d.e("v_cvt_pk_bf16_f32 v%d, v%d, v%d" % (t + 5, t + 6, t + 7))
            if o['m16']:
                off = (i // 2) * 1024 + u * 10240; ra, rb = (7, 6) if i % 2 == 0 else (4, 3)
                d.e("ds_write_b64 v%d, v[%d:%d] offset:%d" % (ra, t, t + 1, off)); d.e("ds_write_b64 v%d, v[%d:%d] offset:%d" % (rb, t + 4, t + 5, off))
                continue
            off = i * 1024 + (u >> 1) * 20480 + (u & 1) * 256
            d.e("ds_write_b64 v7, v[%d:%d] offset:%d" % (t, t + 1, off)); d.e("ds_write_b64 v6, v[%d:%d] offset:%d" % (t + 4, t + 5, off))
        X = 176 + 4 * i
        d.e("v_cvt_pk_bf16_f32 v%d, v%d, v%d" % (X, X, X + 1)); d.e("v_cvt_pk_bf16_f32 v%d, v%d, v%d" % (X + 1, X + 2, X + 3))
        if o['m16']: d.e("ds_write_b64 v%d, v[%d:%d] offset:%d" % (5 if i % 2 == 0 else 2, X, X + 1, (i // 2) * 64))
        else: d.e("ds_write_b64 v5, v[%d:%d] offset:%d" % (X, X + 1, i * 32))
    d.e("v_and_b32 v13, 31, v0"); d.e("v_lshrrev_b32 v14, 4, v13"); d.e("v_lshlrev_b32 v12, 10, v14")
    d.e("v_bfe_u32 v14, v13, 2, 1"); d.e("v_lshlrev_b32 v14, 9, v14"); d.e("v_add_u32 v12, v12, v14")
    d.e("v_bfe_u32 v14, v13, 3, 1"); d.e("v_lshlrev_b32 v14, 3, v14"); d.e("v_add_u32 v12, v12, v14")
    d.e("s_add_u32 s38, s28, 32"); d.e("s_mul_i32 s38, s38, %d" % T64B); d.e("s_lshl_b32 s3, s26, 12"); d.e("s_add_u32 s38, s38, s3")
    d.e("s_add_u32 s38, s38, %d" % (PART + 15 * SLOTB))
    d.waitmark("dma", 3); d.waitlg(0); d.e("s_barrier")
    stamp(d, 4)
    d.e("s_mul_i32 s3, s25, 40960"); d.e("s_add_u32 s3, s3, %d" % HB); d.e("v_add_u32 v1, s3, v11")
    d.e("v_lshrrev_b32 v13, %d, v0" % (4 if o['m16'] else 5)); d.e("v_lshlrev_b32 v13, 4, v13"); d.e("v_add_u32 v13, %d, v13" % HX)
    n0 = 0
    for n in range(LA[0] if o['m16'] else PF):
        d.e(rd2(n, 0, n0)); d.e(rd2(n, 1, n0))
    for kk, tq in (sorted(((kk, tq) for kk in range(10) for tq in range(5)), key=lambda z: (z[0] // 3, z[1], z[0])) if o['m16'] else []):
        j = kk * 4 + tq
        if tq < 4: d.e("ds_read_b128 a[%d:%d], v1 offset:%d" % (4 * j, 4 * j + 3, (tq * 10 + kk) * 1024))
        else: d.e("ds_read_b128 v[%d:%d], v13 offset:%d" % (112 + 4 * kk, 115 + 4 * kk, kk * 64))
    for kap in ([] if o['m16'] else range(20)):
        for n in range(2):
            j = kap * 2 + n
            d.e("ds_read_b128 a[%d:%d], v1 offset:%d" % (4 * j, 4 * j + 3, (n * 20 + kap) * 1024))
        r = (112 + 4 * kap) if kap < 16 else (192 + 4 * (kap - 16))
        d.e("ds_read_b128 v[%d:%d], v13 offset:%d" % (r, r + 3, kap * 32))
    stamp(d, 5)
    phase2(d, o, n0, 320, True)
    stamp(d, 6)
    if o['prof']: d.waitall()
    stamp(d, 7); prof_store(d, 1, 8, 8, 24, 14, 60)
    if o['cpf']: d.lab("K2_dft3")
    d.e("s_endpgm")
```

```python
from emit import *
XN   = 0x0
XEE  = 0x240000
XOO  = 0x300000
PART = 0x400000
SLOTB = 2359296
T64B = 73728
WS_BYTES = 0x4000000
SLOT = 12288; NS = 6
HB = 73728
HX = HB + 81920
LDS_BYTES = HX + 1024
PF = 3
NF = 8
CNEG = 33
NS2 = [6]
M16 = [0]
LA = [4]
def stamp(seg, i): pass
def prof_store(*a): pass

def wt(ins, o):
    if ins.startswith("v_exp") or ins.startswith("v_rcp"): return o['wtrans']
    if ins.startswith("s_"): return o['wsalu']
    return 1.0

def spread(gaps, queue, o, start=0, end=None):
    if not queue: return
    G = len(gaps) if end is None else end
    idx = list(range(start, G))
    load = {g: sum(wt(i, o) for i in gaps[g] if isinstance(i, str)) for g in idx}
    tot = sum(load.values()) + sum(wt(i, o) for i in queue)
    p = 0; cum = load[idx[0]]
    for ins in queue:
        w = wt(ins, o)
        while p < len(idx) - 1 and cum + w * 0.5 > tot * (p + 1) / len(idx):
            p += 1; cum += load[idx[p]]
        gaps[idx[p]].append(ins); cum += w

def emit_gaps(s, mf, gaps):
    for m, g in zip(mf, gaps):
        for pre in m[:-1]: put(s, pre)
        s.e(m[-1])
        for x in g: put(s, x)

def put(s, x):
    if isinstance(x, str): s.e(x)
    elif x[0] == 'mark': s.mark(x[1])
    elif x[0] == 'waitmark': s.waitmark(x[1], x[2])
    elif x[0] == 'waitlg': s.waitlg(x[1])
    elif x[0] == 'c': s.c(x[1])
    else: raise ValueError(x)

def xreg(i):
    return ("a[%d:%d]" % (4 * i, 4 * i + 3)) if i < 64 else ("v[%d:%d]" % (224 + 4 * (i - 64), 227 + 4 * (i - 64)))

def areg(n): r = 80 + 4 * (n % NF); return r

def rd1(n, half):
    if M16[0]:
        st = n // 6; q = n % 6; fh = q // 3; kkl = q % 3
        r = areg(n) + 2 * half
        off = (st % NS) * SLOT + kkl * 4096 + half * 512; base = 5 if fh == 0 else 13
        if off >= 65536: off -= 65536; base += 1
        return "ds_read_b64_tr_b16 v[%d:%d], v%d offset:%d" % (r, r + 1, base, off)
    st = n // 6; kp = n % 6
    r = areg(n) + 2 * half
    off = (st % NS) * SLOT + kp * 2048 + half * 512; base = 5
    if off >= 65536: off -= 65536; base = 6
    return "ds_read_b64_tr_b16 v[%d:%d], v%d offset:%d" % (r, r + 1, base, off)

def rd2(n, half, n0):
    if M16[0]:
        q = n - n0; st = q // 6; qq = q % 6; dh = qq // 3; bl = qq % 3
        r = areg(n) + 2 * half
        off = (st % NS2[0]) * SLOT + bl * 4096 + half * 2048; base = 8
        if off >= 131072: off -= 131072; base = 2
        elif off >= 65536: off -= 65536; base = 5
        return "ds_read_b64_tr_b16 v[%d:%d], v%d offset:%d" % (r, r + 1, base + dh, off)
    q = n - n0; st = q // 6; kp = q % 6
    r = areg(n) + 2 * half
    off = (st % NS2[0]) * SLOT + kp * 2048 + half * 1024; base = 8
    if off >= 131072: off -= 131072; base = 5
    elif off >= 65536: off -= 65536; base = 9
    return "ds_read_b64_tr_b16 v[%d:%d], v%d offset:%d" % (r, r + 1, base, off)

def dma1(mat, kc, slot):
    sr = 12 if mat == 0 else 16
    su = ["s_add_u32 m0, s29, %d" % (slot * SLOT), "s_add_u32 s31, s30, %d" % (kc * 96 * 9216)]
    ld = ["buffer_load_dwordx4 v%d, s[%d:%d], s31 offen offset:%d lds" % (2 + j, sr, sr + 3, 1024 * j) for j in range(3)]
    return su, ld

def dma2(st, K):
    out = []
    for j in range(3):
        R = 96 * st + 32 * j; sg = R // K; row0 = R % K
        su = ["s_add_u32 m0, s34, %d" % ((st % NS2[0]) * SLOT + j * 4096), "s_add_u32 s31, s35, %d" % (sg * 128 + row0 * 1152)]
        out.append((su, "buffer_load_dwordx4 v10, s[20:23], s31 offen lds"))
    return out

def epi1():
    L = []
    for p0 in range(0, 32, 4):
        for j in range(4): L.append("v_mul_f32 v%d, s%d, v%d" % (112 + p0 + j, CNEG, 16 + p0 + j))
        for j in range(4): L.append("v_exp_f32 v%d, v%d" % (144 + p0 + j, 112 + p0 + j))
        for j in range(4): L.append("v_fma_f32 v%d, v%d, s%d, s%d" % (144 + p0 + j, 144 + p0 + j, CNEG, CNEG))
    return L

def epi2():
    L = []
    for p0 in range(0, 32, 4):
        for j in range(4): L.append("v_rcp_f32 v%d, v%d" % (144 + p0 + j, 144 + p0 + j))
        for j in range(4): L.append("v_mul_f32 v%d, v%d, v%d" % (112 + p0 + j, 112 + p0 + j, 48 + p0 + j))
        for j in range(4): L.append("v_mul_f32 v%d, v%d, v%d" % (112 + p0 + j, 112 + p0 + j, 144 + p0 + j))
        for j in range(0, 4, 2): L.append("v_cvt_pk_bf16_f32 v%d, v%d, v%d" % (176 + (p0 + j) // 2, 112 + p0 + j, 112 + p0 + j + 1))
        if p0 % 8 == 4 and M16[0]:
            tq = p0 // 8
            L.append("ds_write_b128 v7, v[%d:%d] offset:%d" % (176 + 4 * tq, 179 + 4 * tq, tq * 10240))
        elif p0 % 8 == 4:
            n = p0 // 16; J = (p0 // 8) % 2
            L.append("ds_write_b128 v7, v[%d:%d] offset:%d" % (176 + n * 8 + 4 * J, 179 + n * 8 + 4 * J, n * 20480 + J * 1024))
    return L

def p0_code(f, sp, d, t, order):
    if order == 0:
        f.e("s_mul_i32 s%d, s%d, 5" % (d, sp)); f.e("s_lshl_b32 s%d, s%d, 2" % (t, sp)); f.e("s_add_u32 s%d, s%d, 12" % (t, t))
        f.e("s_cmp_lt_u32 s%d, 12" % sp); f.e("s_cselect_b32 s%d, s%d, s%d" % (d, d, t))
    else:
        f.e("s_mul_i32 s%d, s%d, 5" % (d, sp))
        f.e("s_cmp_ge_u32 s%d, 5" % sp); f.e("s_cselect_b32 s%d, 4, 0" % t); f.e("s_add_u32 s%d, s%d, s%d" % (d, d, t))
        f.e("s_cmp_ge_u32 s%d, 10" % sp); f.e("s_cselect_b32 s%d, 4, 0" % t); f.e("s_add_u32 s%d, s%d, s%d" % (d, d, t))
        f.e("s_cmp_eq_u32 s%d, 12" % sp); f.e("s_cselect_b32 s%d, 25, s%d" % (d, d))
        f.e("s_cmp_eq_u32 s%d, 13" % sp); f.e("s_cselect_b32 s%d, 54, s%d" % (d, d))
        f.e("s_cmp_eq_u32 s%d, 14" % sp); f.e("s_cselect_b32 s%d, 0x44, s%d" % (d, d))

def code_addr(s, va, vt, frm, to, ssel=None):
    if ssel:
        s.e("v_add_u32 v%d, s%d, v%d" % (va, ssel[0], vt)); s.e("v_min_u32 v%d, s%d, v%d" % (va, ssel[1], va))
    else:
        s.e("v_add_u32 v%d, %s-K2_pc, v%d" % (va, frm, vt)); s.e("v_min_u32 v%d, %s-K2_pc-4, v%d" % (va, to, va))
    s.e("v_add_co_u32 v%d, s[98:99], s96, v%d" % (va, va)); s.e("v_mov_b32 v%d, s97" % (va + 1))
    s.e("v_addc_co_u32 v%d, s[98:99], 0, v%d, s[98:99]" % (va + 1, va + 1))

def code_ld(vd, va): return "global_load_dword v%d, v[%d:%d], off ; pf" % (vd, va, va + 1)

class P1:
    def __init__(self, o): self.n = 0; self.o = o
    def phase(self, s, mat, epi, dmaf, extra_first=None, nextrd=None, last_barrier=True, first_c0=True, post=None):
        o = self.o
        if M16[0]: return self.phase16(s, mat, epi, dmaf, nextrd, last_barrier, post)
        acc = 16 if mat == 0 else 48
        per = (len(epi) + 5) // 6
        epi = list(epi)
        for i in range(6):
            gaps = [[] for _ in range(12)]
            mf = []
            for kp in range(6):
                n = self.n + kp
                f = nextrd if nextrd else rd1
                nn = n + PF
                if nextrd and (i * 6 + kp + PF) < 36: f = rd1
                gaps[2 * kp].append(f(nn, 0)); gaps[2 * kp + 1].append(f(nn, 1))
                kap = i * 6 + kp
                for t in range(2):
                    A = areg(n); D = acc + 16 * t
                    C = "0" if kap == 0 else "v[%d:%d]" % (D, D + 15)
                    mf.append(["v_mfma_f32_32x32x16_bf16 v[%d:%d], v[%d:%d], %s, %s" % (D, D + 15, A, A + 3, xreg(kap * 2 + t), C)])
            for g, ins in dmaf(i): gaps[g].append(ins)
            if i == 0:
                mine = epi[:per - o['first_less']]; epi = epi[len(mine):]
                spread(gaps, mine, o, start=o['epi_start'])
            else:
                rem = 6 - i
                cnt = (len(epi) + rem - 1) // rem
                mine = epi[:cnt]; epi = epi[cnt:]
                spread(gaps, mine, o)
            if post and i in post:
                for g, ins in post[i]: gaps[g].append(ins)
            if s.name == "ffn_loop":
                def keep(x):
                    if not isinstance(x, str): return True
                    if o['nords'] and x.startswith("ds_read"): return False
                    if o['noepi'] and (x.startswith("v_") or x.startswith("ds_write")) : return False
                    if o['nodma'] and x.startswith("buffer_load"): return False
                    return True
                gaps = [[x for x in g if keep(x)] for g in gaps]
            emit_gaps(s, mf, gaps)
            self.n += 6
            if i < 5 or last_barrier:
                s.waitmark("dma", 3)
                if not (s.name == "ffn_loop" and (o['nobar'] == 1 or (o['nobar'] == 2 and i % 2 == 0))): s.e("s_barrier")
        assert not epi

def g24(g):
    return 2 * g + 1

def phase16(self, s, mat, epi, dmaf, nextrd, last_barrier, post):
    o = self.o
    acc = 16 if mat == 0 else 48
    per = (len(epi) + 5) // 6
    epi = list(epi)
    la = LA[0]
    for i in range(6):
        gaps = [[] for _ in range(24)]
        mf = []
        for fh in range(2):
            G0 = self.n + 3 * fh
            k = 0
            for j in range(3):
                nn = G0 + la + j
                f = rd1
                if nextrd and (i * 6 + 3 * fh + la + j) >= 36: f = nextrd
                for h in range(2):
                    gaps[12 * fh + o['rdpos'] + o['rdstep'] * k].append(f(nn, h)); k += 1
            for tq in range(4):
                for kkl in range(3):
                    A = areg(G0 + kkl); D = acc + 8 * tq + 4 * fh
                    C = "0" if (i == 0 and kkl == 0) else "v[%d:%d]" % (D, D + 3)
                    mf.append(["v_mfma_f32_16x16x32_bf16 v[%d:%d], v[%d:%d], %s, %s" % (D, D + 3, A, A + 3, xreg((3 * i + kkl) * 4 + tq), C)])
        for g, ins in dmaf(i): gaps[g24(g)].append(ins)
        if post and i in post:
            for g, ins in post[i]: gaps[g24(g)].append(ins)
        if post and ('g24', i) in post:
            for g, ins in post[('g24', i)]: gaps[g].append(ins)
        if i == 0:
            mine = epi[:max(per - o['first_less'], 0)]; epi = epi[len(mine):]
            spread(gaps, mine, o, start=o['epi_start'])
        else:
            rem = 6 - i
            cnt = (len(epi) + rem - 1) // rem
            mine = epi[:cnt]; epi = epi[cnt:]
            spread(gaps, mine, o)
        if s.name == "ffn_loop":
            def keep(x):
                if not isinstance(x, str): return True
                if o['nords'] and x.startswith("ds_read"): return False
                if o['noepi'] and (x.startswith("v_") or x.startswith("ds_write")) : return False
                if o['nodma'] and x.startswith("buffer_load"): return False
                return True
            gaps = [[x for x in g if keep(x)] for g in gaps]
        emit_gaps(s, mf, gaps)
        self.n += 6
        if post and ('end', i) in post:
            for x in post[('end', i)]: put(s, x)
        if i < 5 or last_barrier:
            s.waitmark("dma", 3)
            if not (s.name == "ffn_loop" and (o['nobar'] == 1 or (o['nobar'] == 2 and i % 2 == 0))): s.e("s_barrier")
        if post and ('aft', i) in post:
            for fn in post[('aft', i)]: fn(s)
    assert not epi
P1.phase16 = phase16

def pf_loads():
    return ["buffer_load_dwordx4 v[%d:%d], v%d, s[20:23], 0 offen offset:%d" % (196 + 4 * (j % 4), 199 + 4 * (j % 4), 192 + j // 4, (j % 4) * 1024) + " ; pf" for j in range(12)]

def pf_post(mode):
    L = pf_loads(); post = {}
    if mode == 1:
        for i in range(4): post[1 + i] = [(4, L[3 * i]), (7, L[3 * i + 1]), (10, L[3 * i + 2])]
    elif mode == 5:
        for i in range(4): post[1 + i] = [(4, L[3 * i]), (7, L[3 * i + 1]), (10, L[3 * i + 2])]
    elif mode == 3:
        ar = [192, 193, 194, 195, 212, 213, 214]
        L = ["buffer_load_dwordx4 v[%d:%d], v%d, s[20:23], 0 offen offset:%d ; pf" % (196 + 4 * (j % 4), 199 + 4 * (j % 4), ar[j // 4], (j % 4) * 1024) for j in range(27)]
        pos = [2, 4, 5, 7, 8, 10]
        for i in range(6):
            mine = L[5 * i: 5 * i + 5] if i < 5 else L[25:]
            post[i] = [(pos[k], x) for k, x in enumerate(mine)]
    elif mode == 2:
        for i in range(6): post[i] = [(4, L[2 * i]), (10, L[2 * i + 1])]
    return post

def dma_gaps1(mat, kc, slot):
    su, ld = dma1(mat, kc, slot)
    return [(0, su[0]), (1, su[1]), (3, ld[0]), (6, ld[1]), (9, ld[2]), (9, ('mark', 'dma'))]

def dma_gaps2(st, K, pos=(1, 5, 9)):
    L = []
    for j, (su, ld) in enumerate(dma2(st, K)):
        g = pos[j]
        L += [(g - 1, su[0]), (g - 1, su[1]), (g, ld)]
    L.append((pos[2], ('mark', 'dma'))); L.append((pos[2], ('mark', 'w2_%d' % st)))
    return L

def phase2_16(s, o, n0, K, dft):
    nk = K // 32; NB = 9 * nk; nst = NB // 3; Q = 6 * nst; la = LA[0]
    NT = 5 if dft else 4
    def accof(seg, tq, dh):
        if tq == 4: return 208 + 8 * (seg % 2) + 4 * dh
        return (16 if seg % 2 == 0 else 48) + 8 * tq + 4 * dh
    stf = o['stf'].replace('+', ' ')
    def st_out(seg):
        L = ["s_add_u32 s37, s36, %d" % (seg * 8192)]
        for tq in range(4):
            r = accof(seg, tq, 0)
            for q in range(4): L.append("v_cvt_pk_bf16_f32 v%d, v%d, v%d" % (176 + 4 * tq + q, r + 2 * q, r + 2 * q + 1))
            if not (o['nostore'] and seg < 8):
                L.append("buffer_store_dwordx4 v[%d:%d], v11, s[8:11], s37 offen offset:%d %s" % (176 + 4 * tq, 179 + 4 * tq, tq * 1024, stf))
        if dft:
            r = accof(seg, 4, 0)
            L.append("s_add_u32 s39, s38, %d" % (seg * 8192))
            for q in range(4): L.append("v_cvt_pk_bf16_f32 v%d, v%d, v%d" % (192 + q, r + 2 * q, r + 2 * q + 1))
            L.append("buffer_store_dwordx4 v[192:195], v11, s[8:11], s39 offen %s" % stf)
        return L
    s.e("v_add_u32 v5, 0x10000, v8"); s.e("v_add_u32 v6, 0x10000, v9")
    if NS2[0] > 6: s.e("v_add_u32 v2, 0x20000, v8"); s.e("v_add_u32 v3, 0x20000, v9")
    pend = []; GP = 6 * NT
    for st in range(nst):
        gaps = [[] for _ in range(GP)]
        mf = []
        done = None
        for dh in range(2):
            G0 = n0 + 6 * st + 3 * dh
            k = 0
            for j in range(3):
                nn = G0 + la + j
                for h in range(2):
                    if nn - n0 < Q: gaps[3 * NT * dh + o['rdpos'] + o['rdstep'] * k].append(rd2(nn, h, n0))
                    k += 1
            for tq in range(NT):
                for bl in range(3):
                    b = 3 * st + bl; seg = b // nk; kk = b % nk
                    A = areg(G0 + bl); D = accof(seg, tq, dh)
                    C = "0" if kk == 0 else "v[%d:%d]" % (D, D + 3)
                    B = ("a[%d:%d]" % (4 * (kk * 4 + tq), 4 * (kk * 4 + tq) + 3)) if tq < 4 else ("v[%d:%d]" % (112 + 4 * kk, 115 + 4 * kk))
                    mf.append(["v_mfma_f32_16x16x32_bf16 v[%d:%d], v[%d:%d], %s, %s" % (D, D + 3, A, A + 3, B, C)])
                    if kk == nk - 1: done = seg
        if NS2[0] == 6: iss = [st + 5]
        elif st == 0: iss = [5]
        elif st <= 6: iss = [2 * st + 4, 2 * st + 5]
        else: iss = [st + 11]
        iss = [x for x in iss if x < nst]
        if len(iss) == 2:
            L = dma_gaps2(iss[0], K, (1, 3, 5)) + dma_gaps2(iss[1], K, (7, 9, 11))
        elif iss: L = dma_gaps2(iss[0], K)
        else: L = []
        def gm(g): return min(GP - 1, (2 * g + 1) * GP // 24)
        for g, ins in L: gaps[gm(g)].append(ins)
        if o['cpk3'] and st == nst - o['cpk3']: gaps[3].append(code_ld(222 if not dft else 254, 220 if not dft else 252))
        if pend:
            start = pend_start
            room = int((GP - start) * o['p2_rate16'])
            mine = pend[:room]; pend = pend[room:]
            spread(gaps, mine, o, start=start)
            pend_start = 0
        emit_gaps(s, mf, gaps)
        if done is not None and done < 8:
            assert not pend
            pend = st_out(done); pend_start = o['p2_delay16']
        if st + 2 <= nst - 1:
            s.waitmark("w2_%d" % (st + 2), 0); s.e("s_barrier")
    assert not pend
    for ins in st_out(8): s.e(ins)

def phase2(s, o, n0, K, dft):
    if M16[0]: return phase2_16(s, o, n0, K, dft)
    nk = K // 16; Q = 9 * nk; nst = Q // 6
    def st_out(seg):
        acc = 16 if seg % 2 == 0 else 48
        L = ["s_add_u32 s37, s36, %d" % (seg * 8192)]
        for n in range(2):
            for J in range(2):
                for q in range(4):
                    r = acc + 16 * n + 8 * J + 2 * q
                    L.append("v_cvt_pk_bf16_f32 v%d, v%d, v%d" % (176 + n * 8 + 4 * J + q, r, r + 1))
                if not (o['nostore'] and seg < 8):
                    L.append("buffer_store_dwordx4 v[%d:%d], v11, s[8:11], s37 offen offset:%d %s" % (176 + n * 8 + 4 * J, 179 + n * 8 + 4 * J, n * 2048 + J * 1024, o['stf'].replace('+', ' ')))
        if dft:
            x = 208 + 4 * (seg % 2)
            L += ["v_mov_b32 v%d, v%d" % (216 + i, x + i) for i in range(4)]
            L += ["s_add_u32 s39, s38, %d" % (seg * 8192)]
            L += ["v_permlane32_swap_b32 v%d, v%d" % (x + i, 216 + i) for i in range(4)]
            L += ["v_add_f32 v%d, v%d, v%d" % (216 + i, x + i, 216 + i) for i in range(4)]
            L += ["v_cvt_pk_bf16_f32 v216, v216, v217", "v_cvt_pk_bf16_f32 v217, v218, v219",
                  "buffer_store_dwordx2 v[216:217], v12, s[8:11], s39 offen"]
        return L
    def hx(kap, j):
        return (112 + 4 * kap + j) if kap < 16 else (192 + 4 * (kap - 16) + j)
    pend = []
    if NS2[0] > 6: s.e("v_add_u32 v5, 0x20000, v8")
    for st in range(nst):
        gaps = [[] for _ in range(12)]
        mf = []
        newseg = None
        for kp in range(6):
            q = st * 6 + kp; seg = q // nk; kap = q % nk
            n = n0 + q
            if q + PF < Q:
                gaps[2 * kp].append(rd2(n + PF, 0, n0)); gaps[2 * kp + 1].append(rd2(n + PF, 1, n0))
            acc = 16 if seg % 2 == 0 else 48
            for t in range(2):
                A = areg(n); D = acc + 16 * t
                C = "0" if kap == 0 else "v[%d:%d]" % (D, D + 15)
                j = kap * 2 + t
                mf.append(["v_mfma_f32_32x32x16_bf16 v[%d:%d], v[%d:%d], a[%d:%d], %s" % (D, D + 15, A, A + 3, 4 * j, 4 * j + 3, C)])
            if dft:
                x = 208 + 4 * (seg % 2); A = areg(n)
                for jj in range(2):
                    c = "0" if (kap == 0 and jj == 0) else "v[%d:%d]" % (x, x + 3)
                    gaps[2 * kp + jj].insert(0, "v_mfma_f32_4x4x4_16b_bf16 v[%d:%d], v[%d:%d], v[%d:%d], %s" % (x, x + 3, A + 2 * jj, A + 2 * jj + 1, hx(kap, 2 * jj), hx(kap, 2 * jj + 1), c))
            if kap == 0 and seg > 0:
                newseg = (kp, seg - 1)
        if NS2[0] == 6: iss = [st + 5]
        elif st == 0: iss = [5]
        elif st <= 6: iss = [2 * st + 4, 2 * st + 5]
        else: iss = [st + 11]
        iss = [x for x in iss if x < nst]
        if len(iss) == 2:
            L = dma_gaps2(iss[0], K, (1, 3, 5)) + dma_gaps2(iss[1], K, (7, 9, 11))
        elif iss: L = dma_gaps2(iss[0], K)
        else: L = []
        for g, ins in L: gaps[g].append(ins)
        if newseg is not None:
            kp, sg = newseg
            assert not pend
            pend = st_out(sg)
            start = 2 * kp + o['p2_epi_delay']
        else:
            start = 0
        if pend:
            if start < 12:
                room = (12 - start) * o['p2_epi_rate']
                mine = pend[:room]; pend = pend[room:]
                spread(gaps, mine, o, start=start)
        emit_gaps(s, mf, gaps)
        if st + 2 <= nst - 1:
            s.waitmark("w2_%d" % (st + 2), 0); s.e("s_barrier")
    assert not pend
    for ins in st_out(8): s.e(ins)

def gen_k2(Kern, srd, opts):
    o = dict(xo=0, xg=0, xl=0, xt=0, xil=0, xpre=2, xpf=0, xdm=2, pstamp=0, ord=0, slowpf=0, cpf=0, cpfst=1, cpk3=0, cpd1=18, m16=0, la=4, rdpos=0, rdstep=2, p2_rate16=1.0, p2_delay16=2, pfw=0, pfc=0, ns2=6, map=0, prof=0, nostore=0, stf='', nords=0, noepi=0, nodma=0, nobar=0, wtrans=2.0, wsalu=0.3, epi_start=4, first_less=4, p2_epi_delay=5, p2_epi_rate=2)
    for k, v in opts.items():
        if k in o: o[k] = type(o[k])(v)
    NS2[0] = o['ns2']; M16[0] = o['m16']; LA[0] = o['la']
    global stamp
    stamp_ = stamp
    pst = lambda seg, i: None
    if o['pstamp'] == 2: stamp_ = stamp
    if o['pstamp']:
        pst = stamp_ if o['pstamp'] == 1 else pst
        stamp = lambda seg, i: (stamp_(seg, i) if i in ((0, 6, 7) if o['pstamp'] == 1 else (0, 1, 7)) else None)
    NPRE = o['la'] if o['m16'] else PF
    K = Kern("main_kernel", (256, 1, 1), (256, 1, 1), 159744 if o['xl'] == 1 else LDS_BYTES, vgpr=512, accum=256)
    a = K.seg("head")
    a.e("s_cmp_ge_u32 s2, 256"); a.e("s_cbranch_scc1 K2_end")
    stamp(a, 0)
    a.e("s_load_dwordx2 s[4:5], s[0:1], 88")
    a.e("s_load_dwordx4 s[40:43], s[0:1], 48")
    a.e("s_load_dwordx2 s[44:45], s[0:1], 64")
    a.e("s_load_dwordx4 s[48:51], s[0:1], 8")
    a.e("s_load_dwordx4 s[52:55], s[0:1], 24")
    a.e("v_lshrrev_b32 v1, 6, v0"); a.e("v_and_b32 v0, 63, v0"); a.e("v_readfirstlane_b32 s24, v1")
    if o['map'] == 0:
        a.e("s_and_b32 s3, s2, 7"); a.e("s_lshr_b32 s28, s2, 3"); a.e("s_lshr_b32 s27, s28, 4"); a.e("s_lshl_b32 s3, s3, 1")
        a.e("s_add_u32 s27, s27, s3"); a.e("s_and_b32 s28, s28, 15")
    else:
        tb = {1: 3, 2: 2, 3: 3}[o['map']]
        a.e("s_and_b32 s3, s2, 7"); a.e("s_lshr_b32 s46, s2, 3")
        a.e("s_and_b32 s28, s3, %d" % ((16 >> tb) - 1)); a.e("s_lshl_b32 s28, s28, %d" % tb); a.e("s_and_b32 s47, s46, %d" % ((1 << tb) - 1)); a.e("s_add_u32 s28, s28, s47")
        a.e("s_lshr_b32 s27, s3, %d" % (4 - tb)); a.e("s_lshl_b32 s27, s27, %d" % (5 - tb)); a.e("s_lshr_b32 s47, s46, %d" % tb); a.e("s_add_u32 s27, s27, s47")
    if o['map'] == 3:
        a.e("s_lshr_b32 s46, s27, 2"); a.e("s_and_b32 s47, s27, 3"); a.e("s_mul_i32 s27, s46, 3"); a.e("s_add_u32 s27, s27, s47"); a.e("s_add_u32 s46, s46, 12")
        a.e("s_cmp_eq_u32 s47, 3"); a.e("s_cselect_b32 s27, s46, s27")
    a.e("s_lshr_b32 s25, s24, 1"); a.e("s_and_b32 s26, s24, 1")
    a.e("s_mov_b32 s%d, 0xbfb8aa3b" % CNEG)
    a.e("v_lshrrev_b32 v13, 4, v0"); a.e("v_bfe_u32 v14, v0, 2, 2"); a.e("v_and_b32 v15, 3, v0")
    a.e("v_lshlrev_b32 v11, 4, v0")
    if o['m16']:
        a.e("v_lshrrev_b32 v1, 1, v14"); a.e("v_lshlrev_b32 v1, 1, v1"); a.e("v_and_b32 v9, 1, v13"); a.e("v_lshlrev_b32 v9, 2, v9"); a.e("v_add_u32 v9, v9, v1")
        a.e("v_lshrrev_b32 v12, 1, v15"); a.e("s_lshl_b32 s3, s26, 2"); a.e("v_add_u32 v12, s3, v12"); a.e("v_xor_b32 v12, v12, v9"); a.e("v_lshlrev_b32 v12, 4, v12")
        a.e("v_and_b32 v1, 1, v15"); a.e("v_lshlrev_b32 v1, 3, v1"); a.e("v_add_u32 v12, v12, v1")
        a.e("v_lshlrev_b32 v8, 2, v13"); a.e("v_add_u32 v8, v8, v14"); a.e("v_lshlrev_b32 v8, 7, v8"); a.e("v_add_u32 v8, v8, v12"); a.e("v_xor_b32 v9, 32, v8")
        a.e("v_lshlrev_b32 v5, 3, v13"); a.e("v_add_u32 v5, v5, v14"); a.e("v_lshlrev_b32 v5, 7, v5"); a.e("v_add_u32 v5, v5, v12"); a.e("v_add_u32 v6, 0x10000, v5")
        a.e("v_lshrrev_b32 v13, 3, v0"); a.e("v_and_b32 v14, 7, v0")
        a.e("v_bfe_u32 v15, v13, 1, 2"); a.e("v_lshlrev_b32 v15, 1, v15"); a.e("v_xor_b32 v15, v14, v15"); a.e("v_lshlrev_b32 v15, 4, v15")
        a.e("s_movk_i32 s3, 1152"); a.e("v_mul_lo_u32 v10, v13, s3"); a.e("v_add_u32 v10, v10, v15")
        a.e("v_bfe_u32 v15, v13, 1, 1"); a.e("v_lshlrev_b32 v15, 1, v15"); a.e("v_xor_b32 v15, v14, v15"); a.e("v_lshlrev_b32 v15, 4, v15")
        a.e("s_and_b32 s3, s24, 1"); a.e("s_lshl_b32 s3, s3, 6"); a.e("v_xor_b32 v15, s3, v15")
        a.e("s_movk_i32 s3, 9216"); a.e("v_mul_lo_u32 v13, v13, s3")
        a.e("v_add_u32 v2, v13, v15"); a.e("v_add_u32 v4, %d, v2" % (16 * 9216 - 2048))
        a.e("v_xor_b32 v15, 64, v15"); a.e("v_add_u32 v3, v13, v15"); a.e("v_add_u32 v3, %d, v3" % (8 * 9216 - 1024))
        a.e("v_xor_b32 v13, 32, v5"); a.e("v_add_u32 v14, 0x10000, v13")
    else:
        a.e("v_lshrrev_b32 v1, 1, v13"); a.e("v_lshlrev_b32 v1, 2, v1"); a.e("v_add_u32 v1, v1, v14"); a.e("v_lshlrev_b32 v8, 7, v1")
        a.e("v_and_b32 v1, 1, v13"); a.e("v_lshlrev_b32 v1, 1, v1"); a.e("s_lshl_b32 s3, s26, 2"); a.e("v_add_u32 v1, s3, v1")
        a.e("v_bfe_u32 v9, v14, 1, 1"); a.e("v_lshlrev_b32 v9, 2, v9")
        a.e("v_and_b32 v12, 1, v15"); a.e("v_add_u32 v12, v1, v12"); a.e("v_xor_b32 v12, v12, v9"); a.e("v_lshlrev_b32 v12, 4, v12"); a.e("v_add_u32 v8, v8, v12")
        a.e("v_lshrrev_b32 v12, 1, v15"); a.e("v_lshlrev_b32 v12, 3, v12"); a.e("v_add_u32 v8, v8, v12")
        a.e("v_lshrrev_b32 v12, 1, v15"); a.e("v_add_u32 v12, v1, v12"); a.e("v_xor_b32 v12, v12, v9"); a.e("v_lshlrev_b32 v12, 4, v12")
        a.e("v_lshrrev_b32 v5, 1, v13"); a.e("v_lshlrev_b32 v5, 3, v5"); a.e("v_add_u32 v5, v5, v14"); a.e("v_lshlrev_b32 v5, 7, v5"); a.e("v_add_u32 v5, v5, v12")
        a.e("v_and_b32 v12, 1, v15"); a.e("v_lshlrev_b32 v12, 3, v12"); a.e("v_add_u32 v5, v5, v12")
        a.e("v_add_u32 v6, 0x10000, v5"); a.e("v_add_u32 v9, 0x10000, v8")
        a.e("v_lshrrev_b32 v13, 3, v0"); a.e("v_and_b32 v14, 7, v0"); a.e("v_bfe_u32 v15, v13, 1, 1"); a.e("v_lshlrev_b32 v15, 2, v15")
        a.e("v_xor_b32 v14, v14, v15"); a.e("v_lshlrev_b32 v14, 4, v14")
        a.e("s_movk_i32 s3, 1152"); a.e("v_mul_lo_u32 v10, v13, s3"); a.e("v_add_u32 v10, v10, v14")
        a.e("s_movk_i32 s3, 9216"); a.e("v_mul_lo_u32 v2, v13, s3"); a.e("v_add_u32 v2, v2, v14")
        a.e("v_add_u32 v3, %d, v2" % (8 * 9216 - 1024)); a.e("v_add_u32 v4, %d, v2" % (16 * 9216 - 2048))
    a.e("s_lshl_b32 s34, s24, 10")
    a.e("s_mul_i32 s36, s27, %d" % SLOTB); a.e("s_lshl_b32 s3, s28, 1"); a.e("s_add_u32 s3, s3, s25"); a.e("s_mul_i32 s3, s3, %d" % T64B)
    a.e("s_add_u32 s36, s36, s3"); a.e("s_lshl_b32 s46, s26, 12"); a.e("s_add_u32 s36, s36, s46"); a.e("s_add_u32 s36, s36, %d" % PART)
    if o['cpf']:
        a.e("s_getpc_b64 s[96:97]"); a.lab("K2_pc")
    a.waitlg(0)
    pst(a, 1)
    srd(a, 8, 4, WS_BYTES)
    if o['xt']:
        a.e("s_lshr_b32 s56, s2, 6"); a.e("s_and_b32 s56, s56, 3"); a.e("s_lshl_b32 s56, s56, 2"); a.e("s_add_u32 s56, s56, s24")
        a.e("s_lshr_b32 s57, s56, 3"); a.e("s_and_b32 s56, s56, 7"); a.e("s_mul_i32 s56, s56, 4608")
        a.e("s_lshl_b32 s58, s28, 1"); a.e("s_add_u32 s58, s58, s57"); a.e("s_mul_i32 s58, s58, %d" % T64B); a.e("s_add_u32 s56, s56, s58")
        if XN: a.e("s_add_u32 s56, s56, %d" % XN)
        a.e("s_add_u32 s57, s56, 36864")
        if o['xt'] == 1:
            a.e("v_min_u32 v216, 35, v0"); a.e("v_lshlrev_b32 v216, 7, v216")
            a.e("buffer_load_dword v218, v216, s[8:11], s56 offen ; pf"); a.e("buffer_load_dword v218, v216, s[8:11], s57 offen ; pf")
        else:
            a.e("v_lshlrev_b32 v216, 6, v0"); a.e("v_min_u32 v217, 7, v0"); a.e("v_lshlrev_b32 v217, 6, v217"); a.e("v_add_u32 v217, 4096, v217")
            for sb in (56, 57):
                a.e("buffer_load_dword v218, v216, s[8:11], s%d offen ; pf" % sb); a.e("buffer_load_dword v218, v217, s[8:11], s%d offen ; pf" % sb)
    a.e("s_cmp_eq_u32 s27, 15"); a.e("s_cbranch_scc1 K2_dft")
    f = K.seg("ffn_pro")
    srd(f, 12, 40, 576 * 9216); srd(f, 16, 42, 576 * 9216); srd(f, 20, 44, 4608 * 1152)
    if o['slowpf']:
        f.e("s_sub_u32 s46, s27, 12"); f.e("s_lshl_b32 s46, s46, 4"); f.e("s_add_u32 s46, s46, s28"); f.e("s_lshl_b32 s46, s46, 2"); f.e("s_add_u32 s46, s46, s24")
        f.e("s_lshl_b32 s46, s46, 1")
        f.e("v_lshrrev_b32 v216, 1, v0"); f.e("s_movk_i32 s47, 9216"); f.e("v_mul_lo_u32 v216, v216, s47"); f.e("v_and_b32 v217, 1, v0"); f.e("v_lshlrev_b32 v217, 6, v217")
        f.e("v_add_u32 v216, v216, v217")
        for i in range(2):
            f.e("s_add_u32 s56, s46, %d" % i)
            f.e("s_mul_i32 s47, s56, 3641"); f.e("s_lshr_b32 s47, s47, 16"); f.e("s_mul_i32 s57, s47, 18"); f.e("s_sub_u32 s57, s56, s57")
            f.e("s_and_b32 s58, s47, 1"); f.e("s_cmp_eq_u32 s58, 1"); f.e("s_cselect_b32 s60, s42, s40"); f.e("s_cselect_b32 s61, s43, s41")
            f.e("s_mov_b32 s62, 0x%x" % (576 * 9216)); f.e("s_mov_b32 s63, 0x00020000")
            f.e("s_lshr_b32 s58, s60, 7"); f.e("s_sub_u32 s58, 3, s58"); f.e("s_and_b32 s58, s58, 7")
            f.e("s_lshr_b32 s47, s47, 1"); f.e("s_lshl_b32 s47, s47, 3"); f.e("s_add_u32 s47, s47, s58"); f.e("s_lshl_b32 s47, s47, 7")
            f.e("s_mul_i32 s57, s57, %d" % (32 * 9216)); f.e("s_add_u32 s47, s47, s57")
            f.e("s_cmp_lt_u32 s56, 324"); f.e("s_cselect_b32 s47, s47, 0x7ff00000"); f.e("s_cmp_ge_u32 s27, 12"); f.e("s_cselect_b32 s47, s47, 0x7ff00000")
            f.e("v_add_u32 v217, s47, v216")
            f.e("buffer_load_dword v218, v217, s[60:63], 0 offen ; pf")
    p0_code(f, 27, 46, 47, o['ord'])
    f.e("s_cmp_lt_u32 s27, 12"); f.e("s_cselect_b32 s32, 4, 3")
    f.e("s_mul_i32 s30, s24, %d" % (24 * 9216)); f.e("s_lshl_b32 s47, s46, 7"); f.e("s_add_u32 s30, s30, s47")
    f.e("s_mul_i32 s29, s24, 3072")
    f.e("s_lshl_b32 s47, s46, 6"); f.e("s_lshl_b32 s56, s24, 3"); f.e("s_add_u32 s47, s47, s56"); f.e("s_mul_i32 s35, s47, 1152")
    def xdma(c):
        G = []
        for kkl in range(3):
            G.append(["s_add_u32 m0, s38, %d" % ((c % 3) * 24576 + kkl * 4096), "s_add_u32 s39, s37, %d" % ((3 * c + kkl) * 4096),
                      "buffer_load_dwordx4 v11, s[8:11], s39 offen offset:0 lds"])
            G.append(["buffer_load_dwordx4 v11, s[8:11], s39 offen offset:1024 lds"] + ([('mark', 'xc')] if kkl == 2 else []))
        return G
    def xrd(c):
        return ["ds_read_b128 %s, v48 offset:%d" % (xreg((3 * c + kkl) * 4 + tq), (c % 3) * 24576 + kkl * 4096 + tq * 1024) for tq in range(4) for kkl in range(3)]
    def xld(st):
        L = []
        for tq in range(4):
            for kkl in range(3):
                L.append("buffer_load_dwordx4 %s, v11, s[8:11], s%d offen offset:%d" % (xreg((3 * st + kkl) * 4 + tq), 37 + kkl, tq * 1024))
        return L, ["s_add_u32 s%d, s%d, 12288" % (37 + kkl, 37 + kkl) for kkl in range(3)]
    def cpf_block():
        if o['cpf']:
            f.e("v_lshlrev_b32 v219, 7, v0"); f.e("s_lshl_b32 s3, s24, 13"); f.e("v_add_u32 v219, s3, v219")
            if o['cpf'] & 2:
                code_addr(f, 216, 219, "K2_g0", "K2_tail320"); f.e(code_ld(218, 216))
            f.e("s_mov_b32 s100, K2_tail320-K2_pc"); f.e("s_mov_b32 s101, K2_ffn4-K2_pc-4"); f.e("s_cmp_ge_u32 s27, 12")
            f.e("s_cselect_b32 s100, K2_ffn4-K2_pc, s100"); f.e("s_cselect_b32 s101, K2_dft-K2_pc-4, s101")
            code_addr(f, 216, 219, None, None, ssel=(100, 101))
            if o['cpk3']:
                code_addr(f, 220, 219, "final_kernel", "K3_end")
    if o['xo'] == 2: cpf_block()
    if o['xil']:
        f.e("s_lshl_b32 s37, s28, 1"); f.e("s_add_u32 s37, s37, s25"); f.e("s_mul_i32 s37, s37, %d" % T64B)
        if XN: f.e("s_add_u32 s37, s37, %d" % XN)
        f.e("s_add_u32 s38, s37, 4096"); f.e("s_add_u32 s39, s37, 8192")
        xdone = 0
        for st in range(5):
            su, ld = dma1(0, st, st)
            for x in su + ld: f.e(x)
            f.mark("dma")
            if st + 1 >= o['xdm'] and xdone < o['xpre']:
                L, U = xld(xdone); xdone += 1
                for x in L + U: f.e(x)
        while xdone < o['xpre']:
            L, U = xld(xdone); xdone += 1
            for x in L + U: f.e(x)
    elif o['xl'] == 1:
        su, ld = dma1(0, 0, 0)
        for x in su + ld: f.e(x)
        f.mark("dma")
    elif o['xl'] == 2:
        f.e("s_lshl_b32 s37, s28, 1"); f.e("s_add_u32 s37, s37, s25"); f.e("s_mul_i32 s37, s37, %d" % T64B)
        if XN: f.e("s_add_u32 s37, s37, %d" % XN)
        f.e("s_lshl_b32 s39, s26, 11"); f.e("s_add_u32 s37, s37, s39")
        f.e("s_mul_i32 s38, s25, 12288"); f.e("s_add_u32 s38, s38, s39"); f.e("s_add_u32 s38, s38, %d" % HB)
        for st in range(2):
            su, ld = dma1(0, st, st)
            for x in su + ld: f.e(x)
            f.mark("dma")
            for g in xdma(st):
                for x in g: put(f, x)
            if o['xo'] == 3 and st == 0: cpf_block()
    else:
      for st in range(5):
        su, ld = dma1(0, st, st)
        for x in su + ld: f.e(x)
        f.mark("dma")
    if not o['xl']: pst(f, 2)
    if o['xo'] < 2: cpf_block()
    f.e("s_lshl_b32 s3, s28, 1"); f.e("s_add_u32 s3, s3, s25"); f.e("s_mul_i32 s3, s3, %d" % T64B)
    if XN: f.e("s_add_u32 s3, s3, %d" % XN)
    if o['xl'] == 2:
        if o['xo'] >= 1:
            for g in xdma(2):
                for x in g: put(f, x)
        for st in range(2, 4):
            su, ld = dma1(0, st, st)
            for x in su + ld: f.e(x)
            f.mark("dma")
            if st == 2 and o['xo'] == 0:
                for g in xdma(2):
                    for x in g: put(f, x)
        f.e("s_mul_i32 s3, s25, 12288"); f.e("s_add_u32 s3, s3, %d" % HB); f.e("v_add_u32 v48, s3, v11")
    if o['xl'] == 1:
        f.e("s_lshl_b32 s37, s26, 11"); f.e("s_add_u32 s37, s37, s3")
        f.e("s_mul_i32 s38, s25, 12288"); f.e("s_lshl_b32 s39, s26, 11"); f.e("s_add_u32 s38, s38, s39"); f.e("s_add_u32 s38, s38, 12288")
        for c in range(6):
            for kkl in range(3):
                f.e("s_add_u32 m0, s38, %d" % (c * 24576 + kkl * 4096)); f.e("s_add_u32 s39, s37, %d" % ((3 * c + kkl) * 4096))
                for t in range(2): f.e("buffer_load_dwordx4 v11, s[8:11], s39 offen offset:%d lds" % (t * 1024))
            f.mark("xc")
        f.e("s_mul_i32 s3, s25, 12288"); f.e("s_add_u32 s3, s3, 12288"); f.e("v_add_u32 v16, s3, v11"); f.e("v_add_u32 v17, 73728, v16")
    for i in range(72 if not (o['xil'] or o['xl']) else 0):
        if i % 4 == 0 and i > 0: f.e("s_add_u32 s3, s3, 4096")
        f.e("buffer_load_dwordx4 %s, v11, s[8:11], s3 offen offset:%d" % (xreg(i), (i % 4) * 1024))
    pst(f, 2 if o['xl'] else 3)
    if o['pfw']:
        f.e("s_and_b32 s56, s28, 7"); f.e("s_lshl_b32 s56, s56, 2"); f.e("s_add_u32 s56, s56, s24"); f.e("s_add_u32 s57, s32, 1")
        f.e("s_mul_i32 s57, s57, 2304"); f.e("s_mul_i32 s56, s56, s57"); f.e("s_mul_i32 s57, s46, 73728"); f.e("s_add_u32 s56, s56, s57")
        if o['pfw'] in (3, 10):
            f.e("s_sub_u32 s56, s27, 12"); f.e("s_lshl_b32 s56, s56, 4"); f.e("s_add_u32 s56, s56, s28"); f.e("s_lshl_b32 s56, s56, 2"); f.e("s_add_u32 s56, s56, s24")
            f.e("s_mul_i32 s56, s56, 27648"); f.e("s_cmp_lt_u32 s27, 12"); f.e("s_cselect_b32 s56, 0x7ff00000, s56")
        f.e("v_add_u32 v192, s56, v11"); f.e("v_add_u32 v193, 4096, v192"); f.e("v_add_u32 v194, 8192, v192")
        if o['pfw'] in (3, 10):
            for j in range(3, 7): f.e("v_add_u32 v%d, %d, v192" % (192 + j + (0 if j < 4 else 16), 4096 * j))
        if o['pfw'] == 4:
            for x in pf_loads(): f.e(x)
        if o['pfw'] == 5:
            f.e("buffer_load_dword v196, v192, s[20:23], 0 offen ; pf")
        if o['pfw'] == 8:
            f.e("v_lshlrev_b32 v195, 6, v0"); f.e("v_add_u32 v192, s56, v195"); f.e("v_add_u32 v193, 4096, v192"); f.e("v_add_u32 v194, 8192, v192")
            for j in range(3): f.e("buffer_load_dword v%d, v%d, s[20:23], 0 offen ; pf" % (196 + j, 192 + j))
        if o['pfw'] == 9:
            f.e("v_lshlrev_b32 v195, 7, v0"); f.e("v_add_u32 v192, s56, v195"); f.e("v_add_u32 v193, 8192, v192")
            for j in range(2): f.e("buffer_load_dword v%d, v%d, s[20:23], 0 offen ; pf" % (196 + j, 192 + j))
    f.e("s_mul_i32 s3, s25, 40960"); f.e("s_lshl_b32 s46, s26, %d" % (10 if o['m16'] else 11)); f.e("s_add_u32 s3, s3, s46"); f.e("s_add_u32 s3, s3, %d" % HB)
    f.e("v_add_u32 v7, s3, v11")
    if o['xl'] == 1:
        for c in range(6):
            f.waitmark("xc", 5 - c)
            if c in (1, 2): f.waitlg(0)
            f.e("s_barrier")
            if c == 0: pst(f, 3)
            if c == 5: pst(f, 4)
            if c in (1, 2):
                for st in (2 * c - 1, 2 * c):
                    su, ld = dma1(0, st, st)
                    for x in su + ld: f.e(x)
                    f.mark("dma")
            for tq in range(4):
                for kkl in range(3):
                    f.e("ds_read_b128 %s, v%d offset:%d" % (xreg((3 * c + kkl) * 4 + tq), 16 + c // 3, (c % 3) * 24576 + kkl * 4096 + tq * 1024))
        f.waitlg(0)
    if o['xl'] == 2:
        f.waitmark("xc", 1); f.waitmark("dma", 2); pst(f, 3); f.e("s_barrier")
        for x in xrd(0): f.e(x)
        for n in range(NPRE):
            f.e(rd1(n, 0)); f.e(rd1(n, 1))
        f.waitlg(0); pst(f, 4); f.e("s_barrier")
        pst(f, 5)
        stamp(f, 1)
        if o['cpf']: f.lab("K2_g0")
    else:
        f.waitmark("dma", 3)
        if not o['xl']: pst(f, 4)
        f.e("s_barrier")
        pst(f, 5)
        stamp(f, 1)
        if o['cpf']: f.lab("K2_g0")
        for n in range(NPRE):
            f.e(rd1(n, 0)); f.e(rd1(n, 1))
    p1 = P1(o)
    def d_g0(i):
        return dma_gaps1(0, 5, 5) if i == 0 else dma_gaps1(1, i - 1, i - 1)
    post0 = None
    if o['pfw'] and o['pfw'] not in (4, 6, 7, 8, 9, 10):
        post0 = pf_post(o['pfw'])
    if o['xil']:
        post0 = dict(post0 or {})
        if o['xpf']:
            L = pf_loads(); post0 = {}
            if o['xpf'] == 1:
                for i in range(2): post0[4 + i] = [(g, L[6 * i + k]) for k, g in enumerate((1, 2, 4, 5, 7, 8))]
            elif o['xpf'] == 2:
                for i in range(3): post0[3 + i] = [(g, L[4 * i + k]) for k, g in enumerate((2, 4, 7, 10))]
        for st in range(o['xpre'], 6):
            L, U = xld(st)
            post0[('g24', st - o['xpre'])] = [(2 * k + 1, x) for k, x in enumerate(L)] + [(23, x) for x in U]
    if o['xl'] == 2:
        def late(mat, kc, slot, g):
            su, ld = dma1(mat, kc, slot)
            return [(g[0], su[0]), (g[0], su[1]), (g[1], ld[0]), (g[2], ld[1]), (g[3], ld[2]), (g[3], ('mark', 'dma'))]
        d_g0_base = d_g0
        def d_g0(i):
            if o['xg'] == 1:
                if i == 0: return late(0, 4, 4, (4, 4, 5, 6)) + late(0, 5, 5, (7, 8, 9, 10))
                if i in (1, 2): return late(1, i - 1, i - 1, (5, 6, 8, 10))
            if o['xg'] == 2:
                if i == 0: return late(0, 4, 4, (6, 6, 7, 8)) + late(0, 5, 5, (9, 9, 10, 11))
                if i in (1, 2): return late(1, i - 1, i - 1, (7, 8, 10, 11))
            if i == 0: return late(0, 4, 4, (3, 3, 4, 5)) + late(0, 5, 5, (6, 7, 9, 10))
            if i in (1, 2): return late(1, i - 1, i - 1, (3, 4, 7, 10))
            return d_g0_base(i)
        if o['xpf']:
            L = pf_loads(); post0 = {}
            if o['xpf'] == 1:
                for i in range(2): post0[4 + i] = [(g, L[6 * i + k]) for k, g in enumerate((1, 2, 4, 5, 7, 8))]
            elif o['xpf'] == 2:
                for i in range(3): post0[3 + i] = [(g, L[4 * i + k]) for k, g in enumerate((2, 4, 7, 10))]
            elif o['xpf'] == 4:
                for i in range(6): post0[i] = [(g, L[2 * i + k]) for k, g in enumerate((5, 10))]
            elif o['xpf'] == 5:
                for i in range(3): post0[3 + i] = [(g, L[2 * i + k]) for k, g in enumerate((4, 10))]
        post0 = dict(post0 or {})
        for i in range(5):
            P = []
            if i < 3:
                for k, g in enumerate(xdma(3 + i)): P += [((k // 2 if o['xg'] else k), x) for x in g]
            R = xrd(i + 1)
            P += [(2 * (k // 2) + 1, x) for k, x in enumerate(R)]
            post0[('g24', i)] = P
            E = []
            if i < 2:
                last = xreg((3 * (i + 1) + 2) * 4 + 3)
                r0 = last[2:].split(':')[0]
                E.append(("v_accvgpr_read_b32 v49, a%s" % r0) if last[0] == 'a' else ("v_mov_b32 v49, v%s" % r0))
            if i < 4: E.append(('waitmark', 'xc', 1 if i < 3 else 0))
            post0[('end', i)] = E
            if o['pstamp'] == 2: post0[('aft', i)] = [lambda sg, i=i: stamp_(sg, i + 2)]
    g0a = g0b = None
    if o['pfw'] == 10:
        f.e("s_cmp_ge_u32 s27, 12"); f.e("s_cbranch_scc1 K2_g0b")
        g0a = K.seg("g0a"); p1.phase(g0a, 0, [], d_g0); stamp(g0a, 2); g0a.e("s_branch K2_loop")
        g0b = K.seg("g0b"); g0b.lab("K2_g0b"); pb = P1(o); pb.phase(g0b, 0, [], d_g0, post=pf_post(3)); stamp(g0b, 2)
    else:
        p1.phase(f, 0, [], d_g0, post=post0)
        stamp(f, 2)
    lp = K.seg("ffn_loop"); lp.lab("K2_loop")
    def d_up(i):
        if i == 0: return dma_gaps1(1, 5, 5) + [(10, "s_add_u32 s30, s30, 128")]
        return dma_gaps1(0, i - 1, i - 1)
    def d_gate(i):
        return dma_gaps1(0, 5, 5) if i == 0 else dma_gaps1(1, i - 1, i - 1)
    postu = postg = None
    if o['pfw'] == 6:
        L = pf_loads()[:4]
        postu = {1 + j: [(4, L[j])] for j in range(4)}
        postu[5] = [(4, "v_add_u32 v192, 4096, v192")]
    if o['pfw'] == 7:
        L = pf_loads()[:4]
        postu = {1: [(4, L[0])], 4: [(4, L[1])]}
        postg = {1: [(4, L[2])], 4: [(4, L[3])], 5: [(4, "v_add_u32 v192, 4096, v192")]}
    if o['cpf'] & 1:
        postu = dict(postu or {}); postu.setdefault(o['cpfst'], []); postu[o['cpfst']] = postu[o['cpfst']] + [(5, code_ld(218, 216))]
    p1.phase(lp, 1, epi1(), d_up, post=postu)
    p1.phase(lp, 0, epi2() + ["v_add_u32 v7, %d, v7" % (2048 if o['m16'] else 4096)], d_gate, post=postg)
    lp.e("s_sub_u32 s32, s32, 1"); lp.e("s_cmp_lg_u32 s32, 0"); lp.e("s_cbranch_scc1 K2_loop")
    nloop = p1.n
    br = K.seg("ffn_br")
    stamp(br, 3)
    br.e("s_cmp_ge_u32 s27, 12"); br.e("s_cbranch_scc1 K2_ffn4")
    tails = {}
    for Kd, lab in ((320, None), (256, "K2_ffn4")):
        t = K.seg("ffn_tail%d" % Kd)
        if lab: t.lab(lab)
        elif o['cpf']: t.lab("K2_tail320")
        p = P1(o); p.n = nloop
        n0 = nloop + 36
        def d_last(i, Kd=Kd):
            return dma_gaps1(1, 5, 5) if i == 0 else dma_gaps2(i - 1, Kd)
        p.phase(t, 1, epi1(), d_last, nextrd=lambda n, h, n0=n0: rd2(n, h, n0), last_barrier=False)
        stamp(t, 4)
        t.e("s_nop 7")
        for x in epi2(): t.e(x)
        t.waitmark("dma", 3); t.waitlg(0); t.e("s_barrier")
        t.e("s_mul_i32 s3, s25, 40960"); t.e("s_add_u32 s3, s3, %d" % HB); t.e("v_add_u32 v1, s3, v11")
        if o['m16']:
            for kk, tq in sorted(((kk, tq) for kk in range(Kd // 32) for tq in range(4)), key=lambda z: (z[0] // 3, z[1], z[0])):
                    j = kk * 4 + tq
                    t.e("ds_read_b128 a[%d:%d], v1 offset:%d" % (4 * j, 4 * j + 3, (tq * 10 + kk) * 1024))
        else:
          for kap in range(Kd // 16):
            for n in range(2):
                j = kap * 2 + n
                t.e("ds_read_b128 a[%d:%d], v1 offset:%d" % (4 * j, 4 * j + 3, (n * 20 + kap) * 1024))
        stamp(t, 5)
        phase2(t, o, n0, Kd, False)
        stamp(t, 6)
        if o['prof']: t.waitall()
        stamp(t, 7); prof_store(t, 1, 8, 8, 24, 12, 60)
        t.e("s_endpgm")
        tails[Kd] = t
    d = K.seg("dft"); d.lab("K2_dft")
    gen_dft(d, o, srd)
    e = K.seg("end"); e.lab("K2_end"); e.e("s_endpgm")
    A_ = [g0a] if g0a else []; B_ = [g0b] if g0b else []
    K.paths = [[a, f] + A_ + [lp] * 4 + [br, tails[320]], [a, f] + B_ + [lp] * 3 + [br, tails[256]], [a, d]]
    return K

def gen_dft(d, o, srd):
    d.e("s_cmp_ge_u32 s28, 8"); d.e("s_cselect_b32 s46, s50, s48"); d.e("s_cselect_b32 s47, s51, s49")
    d.e("s_cselect_b32 s56, s54, s52"); d.e("s_cselect_b32 s57, s55, s53")
    d.e("s_mov_b32 s58, %d" % XEE); d.e("s_cselect_b32 s58, %d, s58" % XOO); d.e("s_cselect_b32 s59, 1536, 0"); d.e("s_cselect_b32 s60, 0, 0xbf803f80")
    srd(d, 12, 46, 2048 * 4096); srd(d, 20, 56, 576 * 1152)
    d.e("s_and_b32 s3, s28, 7"); d.e("s_lshl_b32 s3, s3, 6"); d.e("s_add_u32 s59, s59, s3"); d.e("s_lshl_b32 s59, s59, 1")
    d.e("s_mul_i32 s61, s24, %d" % (16 * 640)); d.e("s_add_u32 s61, s61, s58")
    d.e("s_lshl_b32 s62, s24, 16"); d.e("s_add_u32 s62, s62, s59")
    d.e("v_lshrrev_b32 v13, 3, v0"); d.e("v_and_b32 v14, 7, v0"); d.e("v_bfe_u32 v15, v13, 1, 2"); d.e("v_lshlrev_b32 v15, 1, v15")
    d.e("v_xor_b32 v14, v14, v15"); d.e("v_lshlrev_b32 v14, 4, v14")
    d.e("s_movk_i32 s3, 1280"); d.e("v_mul_lo_u32 v2, v13, s3"); d.e("v_add_u32 v2, v2, v14")
    d.e("v_lshlrev_b32 v3, 13, v13"); d.e("v_add_u32 v3, v3, v14")
    NSD = 33; SL = 24576
    def stage_rows(st):
        return (st % 2, st // 2)
    def dmad(st):
        par, ks = stage_rows(st); slot = st % 6
        L = []
        r0 = 64 * ks + par
        L.append(("s", "s_add_u32 s31, s61, %d" % (r0 * 640)))
        for b in range(5):
            L.append(("s", "s_add_u32 m0, s34, %d" % (slot * SL + b * 4096 - 128 * b)))
            L.append(("l", "buffer_load_dwordx4 v2, s[8:11], s31 offen offset:%d lds" % (128 * b)))
        L.append(("s", "s_add_u32 s63, s62, %d" % (r0 * 4096)))
        L.append(("s", "s_add_u32 m0, s34, %d" % (slot * SL + 5 * 4096)))
        L.append(("l", "buffer_load_dwordx4 v3, s[12:15], s63 offen lds"))
        return L
    for st in range(5):
        for _, x in dmad(st): d.e(x)
        d.mark("dma")
    if o['cpf']:
        d.e("v_lshlrev_b32 v255, 7, v0"); d.e("s_lshl_b32 s3, s24, 13"); d.e("v_add_u32 v255, s3, v255")
        code_addr(d, 252, 255, "K2_dft1", "K2_dft2"); d.e(code_ld(254, 252))
        code_addr(d, 250, 255, "K2_dft2", "K2_dft3")
    if o['pfc'] == 1:
        d.e("v_lshrrev_b32 v13, 3, v0"); d.e("v_and_b32 v14, 7, v0"); d.e("v_lshlrev_b32 v14, 4, v14"); d.e("v_lshlrev_b32 v13, 12, v13"); d.e("v_add_u32 v192, v13, v14")
        d.e("s_mul_i32 s3, s24, %d" % (240 * 4096)); d.e("s_add_u32 s3, s3, s59"); d.e("s_add_u32 s3, s3, %d" % (128 * 4096)); d.e("v_add_u32 v192, s3, v192")
        for j in range(30):
            d.e("buffer_load_dwordx4 v[%d:%d], v192, s[12:15], 0 offen ; pf" % (224 + 4 * (j % 4), 227 + 4 * (j % 4)))
            if j < 29: d.e("v_add_u32 v192, 0x8000, v192")
    if o['pfc']:
        d.e("s_and_b32 s3, s28, 7"); d.e("s_lshl_b32 s3, s3, 2"); d.e("s_add_u32 s3, s3, s24"); d.e("s_mul_i32 s3, s3, 11520")
        d.e("v_add_u32 v192, s3, v11"); d.e("v_add_u32 v193, 4096, v192"); d.e("v_add_u32 v194, 8192, v192")
        for j in range(12):
            d.e("buffer_load_dwordx4 v[%d:%d], v%d, s[20:23], 0 offen offset:%d ; pf" % (224 + 4 * (j % 4), 227 + 4 * (j % 4), 192 + j // 4, (j % 4) * 1024))
    d.e("v_lshrrev_b32 v13, 2, v0"); d.e("v_and_b32 v15, 3, v0"); d.e("v_bfe_u32 v14, v13, 1, 2"); d.e("v_lshlrev_b32 v14, 1, v14")
    d.e("v_lshlrev_b32 v13, 7, v13"); d.e("v_and_b32 v1, 1, v15"); d.e("v_lshlrev_b32 v1, 3, v1"); d.e("v_add_u32 v13, v13, v1")
    d.e("v_lshrrev_b32 v15, 1, v15")
    for u in range(4):
        d.e("v_add_u32 v1, %d, v15" % (2 * u)); d.e("v_xor_b32 v1, v1, v14"); d.e("v_lshlrev_b32 v1, 4, v1"); d.e("v_add_u32 v1, v1, v13")
        d.e("v_add_u32 v%d, %d, v1" % (196 + u, 5 * 4096))
    for i in range(5):
        d.e("s_mul_i32 s3, s24, 5"); d.e("s_add_u32 s3, s3, %d" % i)
        d.e("s_and_b32 s46, s3, 3"); d.e("s_lshl_b32 s46, s46, 1"); d.e("s_lshr_b32 s47, s3, 2"); d.e("s_lshl_b32 s47, s47, 12")
        d.e("v_add_u32 v1, s46, v15"); d.e("v_xor_b32 v1, v1, v14"); d.e("v_lshlrev_b32 v1, 4, v1"); d.e("v_add_u32 v1, v1, v13")
        d.e("v_add_u32 v%d, s47, v1" % (200 + i))
    for q in range(9): d.e("v_add_u32 v%d, %d, v%d" % (205 + q, 3 * SL, 196 + q))
    for q in range(4): d.e("v_mov_b32 v%d, s60" % (216 + q))
    def frag(st, q):
        return (st % 2) * 36 + 4 * q
    def rdd(st, q, half):
        slot = st % 6; base = 196 + q
        if slot >= 3: base += 9; slot -= 3
        r = frag(st, q) + 2 * half
        return "ds_read_b64_tr_b16 a[%d:%d], v%d offset:%d" % (r, r + 1, base, slot * SL + half * 2048)
    d.waitmark("dma", 3); d.e("s_barrier")
    stamp(d, 1); stamp(d, 2)
    if o['cpf']: d.lab("K2_dft1")
    order = [4, 0, 1, 2, 3, 5, 6, 7, 8]
    for q in order: d.e(rdd(0, q, 0)); d.e(rdd(0, q, 1))
    for st in range(NSD):
        par, ks = stage_rows(st)
        mf = []
        for i in range(5):
            A = frag(st, 4 + i)
            for u in range(4):
                B = frag(st, u); D = 16 + par * 80 + (i * 4 + u) * 4
                C = "0" if ks == 0 else "v[%d:%d]" % (D, D + 3)
                mf.append(["v_mfma_f32_16x16x32_bf16 v[%d:%d], a[%d:%d], a[%d:%d], %s" % (D, D + 3, A, A + 3, B, B + 3, C)])
            if par == 0:
                D = 176 + 4 * i; C = "0" if ks == 0 else "v[%d:%d]" % (D, D + 3)
                mf.append(["v_mfma_f32_16x16x32_bf16 v[%d:%d], a[%d:%d], v[216:219], %s" % (D, D + 3, A, A + 3, C)])
        G = len(mf)
        gaps = [[] for _ in range(G)]
        fill = []
        if st + 1 < NSD:
            for q in order: fill += [rdd(st + 1, q, 0), rdd(st + 1, q, 1)]
        dm = dmad(st + 5) if st + 5 < NSD else []
        for g, x in enumerate(fill): gaps[g].append(x)
        if dm:
            pos = [2, 5, 8, 11, 14, 17]; li = 0; pendS = []
            for kind, x in dm:
                if kind == "s": pendS.append(x)
                else:
                    g = pos[li]; li += 1
                    for y in pendS: gaps[g - 1].append(y)
                    pendS = []
                    gaps[g].append(x)
            gaps[17].append(('mark', 'dma'))
        if o['cpf'] and st == o['cpd1']: gaps[19].append(code_ld(254, 250))
        emit_gaps(d, mf, gaps)
        if st + 2 <= NSD - 1:
            last_issued = min(st + 5, NSD - 1)
            d.waitmark("dma", last_issued - (st + 2)); d.e("s_barrier")
    d.e("s_barrier")
    stamp(d, 3)
    if o['cpf']:
        d.lab("K2_dft2")
        if o['cpk3']: code_addr(d, 252, 255, "final_kernel", "K3_end")
    d.e("s_mul_i32 s35, s24, %d" % (8 * 1152))
    for st in range(5):
        for su, ld in dma2(st, 320):
            for x in su: d.e(x)
            d.e(ld)
        d.mark("dma"); d.mark("w2_%d" % st)
    if o['m16']:
        d.e("s_and_b32 s46, s24, 1"); d.e("s_mul_i32 s3, s24, 5"); d.e("s_sub_u32 s3, s3, s46"); d.e("s_lshr_b32 s3, s3, 1")
        d.e("s_lshl_b32 s47, s46, 3")
        d.e("s_cmp_eq_u32 s46, 1"); d.e("s_cselect_b32 s56, 1024, 8"); d.e("s_cselect_b32 s57, 64, 8")
        d.e("s_lshl_b32 s58, s3, 10"); d.e("s_add_u32 s58, s58, %d" % HB)
        d.e("s_add_u32 s59, s58, s47"); d.e("v_add_u32 v7, s59, v11"); d.e("v_add_u32 v6, 40960, v7")
        d.e("s_add_u32 s59, s58, s56"); d.e("v_add_u32 v4, s59, v11"); d.e("v_add_u32 v3, 40960, v4")
        d.e("v_lshrrev_b32 v15, 4, v0"); d.e("v_lshlrev_b32 v15, 4, v15")
        d.e("s_lshl_b32 s58, s3, 6"); d.e("s_add_u32 s58, s58, %d" % HX)
        d.e("s_add_u32 s59, s58, s47"); d.e("v_add_u32 v5, s59, v15"); d.e("s_add_u32 s59, s58, s57"); d.e("v_add_u32 v2, s59, v15")
    else:
        d.e("v_lshrrev_b32 v13, 4, v0"); d.e("v_and_b32 v14, 15, v0"); d.e("v_and_b32 v15, 1, v13"); d.e("v_lshlrev_b32 v15, 5, v15"); d.e("v_add_u32 v14, v14, v15")
        d.e("v_lshlrev_b32 v14, 4, v14"); d.e("v_lshrrev_b32 v13, 1, v13"); d.e("v_lshlrev_b32 v1, 3, v13"); d.e("v_add_u32 v14, v14, v1")
        d.e("s_mul_i32 s3, s24, 5120"); d.e("s_add_u32 s3, s3, %d" % HB); d.e("v_add_u32 v7, s3, v14")
        d.e("v_add_u32 v6, 40960, v7")
        d.e("v_lshlrev_b32 v15, 4, v0"); d.e("v_lshrrev_b32 v15, 8, v15"); d.e("v_and_b32 v15, 1, v15"); d.e("v_lshlrev_b32 v15, 4, v15"); d.e("v_add_u32 v15, v15, v1")
        d.e("s_mul_i32 s3, s24, 160"); d.e("s_add_u32 s3, s3, %d" % HX); d.e("v_add_u32 v5, s3, v15")
    k = 0
    for i in range(5):
        for u in range(4):
            E = 16 + (i * 4 + u) * 4; O = E + 80
            t = 220 + 8 * (k % 4); k += 1
            for j in range(4):
                d.e("v_add_f32 v%d, v%d, v%d" % (t + j, E + j, O + j)); d.e("v_sub_f32 v%d, v%d, v%d" % (t + 4 + j, E + j, O + j))
            d.e("v_cvt_pk_bf16_f32 v%d, v%d, v%d" % (t, t, t + 1)); d.e("v_cvt_pk_bf16_f32 v%d, v%d, v%d" % (t + 1, t + 2, t + 3))
            d.e("v_cvt_pk_bf16_f32 v%d, v%d, v%d" % (t + 4, t + 4, t + 5)); d.e("v_cvt_pk_bf16_f32 v%d, v%d, v%d" % (t + 5, t + 6, t + 7))
            if o['m16']:
                off = (i // 2) * 1024 + u * 10240; ra, rb = (7, 6) if i % 2 == 0 else (4, 3)
                d.e("ds_write_b64 v%d, v[%d:%d] offset:%d" % (ra, t, t + 1, off)); d.e("ds_write_b64 v%d, v[%d:%d] offset:%d" % (rb, t + 4, t + 5, off))
                continue
            off = i * 1024 + (u >> 1) * 20480 + (u & 1) * 256
            d.e("ds_write_b64 v7, v[%d:%d] offset:%d" % (t, t + 1, off)); d.e("ds_write_b64 v6, v[%d:%d] offset:%d" % (t + 4, t + 5, off))
        X = 176 + 4 * i
        d.e("v_cvt_pk_bf16_f32 v%d, v%d, v%d" % (X, X, X + 1)); d.e("v_cvt_pk_bf16_f32 v%d, v%d, v%d" % (X + 1, X + 2, X + 3))
        if o['m16']: d.e("ds_write_b64 v%d, v[%d:%d] offset:%d" % (5 if i % 2 == 0 else 2, X, X + 1, (i // 2) * 64))
        else: d.e("ds_write_b64 v5, v[%d:%d] offset:%d" % (X, X + 1, i * 32))
    d.e("v_and_b32 v13, 31, v0"); d.e("v_lshrrev_b32 v14, 4, v13"); d.e("v_lshlrev_b32 v12, 10, v14")
    d.e("v_bfe_u32 v14, v13, 2, 1"); d.e("v_lshlrev_b32 v14, 9, v14"); d.e("v_add_u32 v12, v12, v14")
    d.e("v_bfe_u32 v14, v13, 3, 1"); d.e("v_lshlrev_b32 v14, 3, v14"); d.e("v_add_u32 v12, v12, v14")
    d.e("s_add_u32 s38, s28, 32"); d.e("s_mul_i32 s38, s38, %d" % T64B); d.e("s_lshl_b32 s3, s26, 12"); d.e("s_add_u32 s38, s38, s3")
    d.e("s_add_u32 s38, s38, %d" % (PART + 15 * SLOTB))
    d.waitmark("dma", 3); d.waitlg(0); d.e("s_barrier")
    stamp(d, 4)
    d.e("s_mul_i32 s3, s25, 40960"); d.e("s_add_u32 s3, s3, %d" % HB); d.e("v_add_u32 v1, s3, v11")
    d.e("v_lshrrev_b32 v13, %d, v0" % (4 if o['m16'] else 5)); d.e("v_lshlrev_b32 v13, 4, v13"); d.e("v_add_u32 v13, %d, v13" % HX)
    n0 = 0
    for n in range(LA[0] if o['m16'] else PF):
        d.e(rd2(n, 0, n0)); d.e(rd2(n, 1, n0))
    for kk, tq in (sorted(((kk, tq) for kk in range(10) for tq in range(5)), key=lambda z: (z[0] // 3, z[1], z[0])) if o['m16'] else []):
        j = kk * 4 + tq
        if tq < 4: d.e("ds_read_b128 a[%d:%d], v1 offset:%d" % (4 * j, 4 * j + 3, (tq * 10 + kk) * 1024))
        else: d.e("ds_read_b128 v[%d:%d], v13 offset:%d" % (112 + 4 * kk, 115 + 4 * kk, kk * 64))
    for kap in ([] if o['m16'] else range(20)):
        for n in range(2):
            j = kap * 2 + n
            d.e("ds_read_b128 a[%d:%d], v1 offset:%d" % (4 * j, 4 * j + 3, (n * 20 + kap) * 1024))
        r = (112 + 4 * kap) if kap < 16 else (192 + 4 * (kap - 16))
        d.e("ds_read_b128 v[%d:%d], v13 offset:%d" % (r, r + 3, kap * 32))
    stamp(d, 5)
    phase2(d, o, n0, 320, True)
    stamp(d, 6)
    if o['prof']: d.waitall()
    stamp(d, 7); prof_store(d, 1, 8, 8, 24, 14, 60)
    if o['cpf']: d.lab("K2_dft3")
    d.e("s_endpgm")
```

```python
from emit import *
XN   = 0x0
XEE  = 0x240000
XOO  = 0x300000
PART = 0x400000
SLOTB = 2359296
T64B = 73728
WS_BYTES = 0x4000000
SLOT = 12288; NS = 6
HB = 73728
HX = HB + 81920
LDS_BYTES = HX + 1024
PF = 3
NF = 8
CNEG = 33
NS2 = [6]
M16 = [0]
LA = [4]
def stamp(seg, i): pass
def prof_store(*a): pass

def wt(ins, o):
    if ins.startswith("v_exp") or ins.startswith("v_rcp"): return o['wtrans']
    if ins.startswith("s_"): return o['wsalu']
    return 1.0

def spread(gaps, queue, o, start=0, end=None):
    if not queue: return
    G = len(gaps) if end is None else end
    idx = list(range(start, G))
    load = {g: sum(wt(i, o) for i in gaps[g] if isinstance(i, str)) for g in idx}
    tot = sum(load.values()) + sum(wt(i, o) for i in queue)
    p = 0; cum = load[idx[0]]
    for ins in queue:
        w = wt(ins, o)
        while p < len(idx) - 1 and cum + w * 0.5 > tot * (p + 1) / len(idx):
            p += 1; cum += load[idx[p]]
        gaps[idx[p]].append(ins); cum += w

def emit_gaps(s, mf, gaps):
    for m, g in zip(mf, gaps):
        for pre in m[:-1]: put(s, pre)
        s.e(m[-1])
        for x in g: put(s, x)

def put(s, x):
    if isinstance(x, str): s.e(x)
    elif x[0] == 'mark': s.mark(x[1])
    elif x[0] == 'waitmark': s.waitmark(x[1], x[2])
    elif x[0] == 'waitlg': s.waitlg(x[1])
    elif x[0] == 'c': s.c(x[1])
    else: raise ValueError(x)

def xreg(i):
    return ("a[%d:%d]" % (4 * i, 4 * i + 3)) if i < 64 else ("v[%d:%d]" % (224 + 4 * (i - 64), 227 + 4 * (i - 64)))

def areg(n): r = 80 + 4 * (n % NF); return r

def rd1(n, half):
    if M16[0]:
        st = n // 6; q = n % 6; fh = q // 3; kkl = q % 3
        r = areg(n) + 2 * half
        off = (st % NS) * SLOT + kkl * 4096 + half * 512; base = 5 if fh == 0 else 13
        if off >= 65536: off -= 65536; base += 1
        return "ds_read_b64_tr_b16 v[%d:%d], v%d offset:%d" % (r, r + 1, base, off)
    st = n // 6; kp = n % 6
    r = areg(n) + 2 * half
    off = (st % NS) * SLOT + kp * 2048 + half * 512; base = 5
    if off >= 65536: off -= 65536; base = 6
    return "ds_read_b64_tr_b16 v[%d:%d], v%d offset:%d" % (r, r + 1, base, off)

def rd2(n, half, n0):
    if M16[0]:
        q = n - n0; st = q // 6; qq = q % 6; dh = qq // 3; bl = qq % 3
        r = areg(n) + 2 * half
        off = (st % NS2[0]) * SLOT + bl * 4096 + half * 2048; base = 8
        if off >= 131072: off -= 131072; base = 2
        elif off >= 65536: off -= 65536; base = 5
        return "ds_read_b64_tr_b16 v[%d:%d], v%d offset:%d" % (r, r + 1, base + dh, off)
    q = n - n0; st = q // 6; kp = q % 6
    r = areg(n) + 2 * half
    off = (st % NS2[0]) * SLOT + kp * 2048 + half * 1024; base = 8
    if off >= 131072: off -= 131072; base = 5
    elif off >= 65536: off -= 65536; base = 9
    return "ds_read_b64_tr_b16 v[%d:%d], v%d offset:%d" % (r, r + 1, base, off)

def dma1(mat, kc, slot):
    sr = 12 if mat == 0 else 16
    su = ["s_add_u32 m0, s29, %d" % (slot * SLOT), "s_add_u32 s31, s30, %d" % (kc * 96 * 9216)]
    ld = ["buffer_load_dwordx4 v%d, s[%d:%d], s31 offen offset:%d lds" % (2 + j, sr, sr + 3, 1024 * j) for j in range(3)]
    return su, ld

def dma2(st, K):
    out = []
    for j in range(3):
        R = 96 * st + 32 * j; sg = R // K; row0 = R % K
        su = ["s_add_u32 m0, s34, %d" % ((st % NS2[0]) * SLOT + j * 4096), "s_add_u32 s31, s35, %d" % (sg * 128 + row0 * 1152)]
        out.append((su, "buffer_load_dwordx4 v10, s[20:23], s31 offen lds"))
    return out

def epi1():
    L = []
    for p0 in range(0, 32, 4):
        for j in range(4): L.append("v_mul_f32 v%d, s%d, v%d" % (112 + p0 + j, CNEG, 16 + p0 + j))
        for j in range(4): L.append("v_exp_f32 v%d, v%d" % (144 + p0 + j, 112 + p0 + j))
        for j in range(4): L.append("v_fma_f32 v%d, v%d, s%d, s%d" % (144 + p0 + j, 144 + p0 + j, CNEG, CNEG))
    return L

def epi2():
    L = []
    for p0 in range(0, 32, 4):
        for j in range(4): L.append("v_rcp_f32 v%d, v%d" % (144 + p0 + j, 144 + p0 + j))
        for j in range(4): L.append("v_mul_f32 v%d, v%d, v%d" % (112 + p0 + j, 112 + p0 + j, 48 + p0 + j))
        for j in range(4): L.append("v_mul_f32 v%d, v%d, v%d" % (112 + p0 + j, 112 + p0 + j, 144 + p0 + j))
        for j in range(0, 4, 2): L.append("v_cvt_pk_bf16_f32 v%d, v%d, v%d" % (176 + (p0 + j) // 2, 112 + p0 + j, 112 + p0 + j + 1))
        if p0 % 8 == 4 and M16[0]:
            tq = p0 // 8
            L.append("ds_write_b128 v7, v[%d:%d] offset:%d" % (176 + 4 * tq, 179 + 4 * tq, tq * 10240))
        elif p0 % 8 == 4:
            n = p0 // 16; J = (p0 // 8) % 2
            L.append("ds_write_b128 v7, v[%d:%d] offset:%d" % (176 + n * 8 + 4 * J, 179 + n * 8 + 4 * J, n * 20480 + J * 1024))
    return L

def p0_code(f, sp, d, t, order):
    if order == 0:
        f.e("s_mul_i32 s%d, s%d, 5" % (d, sp)); f.e("s_lshl_b32 s%d, s%d, 2" % (t, sp)); f.e("s_add_u32 s%d, s%d, 12" % (t, t))
        f.e("s_cmp_lt_u32 s%d, 12" % sp); f.e("s_cselect_b32 s%d, s%d, s%d" % (d, d, t))
    else:
        f.e("s_mul_i32 s%d, s%d, 5" % (d, sp))
        f.e("s_cmp_ge_u32 s%d, 5" % sp); f.e("s_cselect_b32 s%d, 4, 0" % t); f.e("s_add_u32 s%d, s%d, s%d" % (d, d, t))
        f.e("s_cmp_ge_u32 s%d, 10" % sp); f.e("s_cselect_b32 s%d, 4, 0" % t); f.e("s_add_u32 s%d, s%d, s%d" % (d, d, t))
        f.e("s_cmp_eq_u32 s%d, 12" % sp); f.e("s_cselect_b32 s%d, 25, s%d" % (d, d))
        f.e("s_cmp_eq_u32 s%d, 13" % sp); f.e("s_cselect_b32 s%d, 54, s%d" % (d, d))
        f.e("s_cmp_eq_u32 s%d, 14" % sp); f.e("s_cselect_b32 s%d, 0x44, s%d" % (d, d))

def code_addr(s, va, vt, frm, to, ssel=None):
    if ssel:
        s.e("v_add_u32 v%d, s%d, v%d" % (va, ssel[0], vt)); s.e("v_min_u32 v%d, s%d, v%d" % (va, ssel[1], va))
    else:
        s.e("v_add_u32 v%d, %s-K2_pc, v%d" % (va, frm, vt)); s.e("v_min_u32 v%d, %s-K2_pc-4, v%d" % (va, to, va))
    s.e("v_add_co_u32 v%d, s[98:99], s96, v%d" % (va, va)); s.e("v_mov_b32 v%d, s97" % (va + 1))
    s.e("v_addc_co_u32 v%d, s[98:99], 0, v%d, s[98:99]" % (va + 1, va + 1))

def code_ld(vd, va): return "global_load_dword v%d, v[%d:%d], off ; pf" % (vd, va, va + 1)

class P1:
    def __init__(self, o): self.n = 0; self.o = o
    def phase(self, s, mat, epi, dmaf, extra_first=None, nextrd=None, last_barrier=True, first_c0=True, post=None):
        o = self.o
        if M16[0]: return self.phase16(s, mat, epi, dmaf, nextrd, last_barrier, post)
        acc = 16 if mat == 0 else 48
        per = (len(epi) + 5) // 6
        epi = list(epi)
        for i in range(6):
            gaps = [[] for _ in range(12)]
            mf = []
            for kp in range(6):
                n = self.n + kp
                f = nextrd if nextrd else rd1
                nn = n + PF
                if nextrd and (i * 6 + kp + PF) < 36: f = rd1
                gaps[2 * kp].append(f(nn, 0)); gaps[2 * kp + 1].append(f(nn, 1))
                kap = i * 6 + kp
                for t in range(2):
                    A = areg(n); D = acc + 16 * t
                    C = "0" if kap == 0 else "v[%d:%d]" % (D, D + 15)
                    mf.append(["v_mfma_f32_32x32x16_bf16 v[%d:%d], v[%d:%d], %s, %s" % (D, D + 15, A, A + 3, xreg(kap * 2 + t), C)])
            for g, ins in dmaf(i): gaps[g].append(ins)
            if i == 0:
                mine = epi[:per - o['first_less']]; epi = epi[len(mine):]
                spread(gaps, mine, o, start=o['epi_start'])
            else:
                rem = 6 - i
                cnt = (len(epi) + rem - 1) // rem
                mine = epi[:cnt]; epi = epi[cnt:]
                spread(gaps, mine, o)
            if post and i in post:
                for g, ins in post[i]: gaps[g].append(ins)
            if s.name == "ffn_loop":
                def keep(x):
                    if not isinstance(x, str): return True
                    if o['nords'] and x.startswith("ds_read"): return False
                    if o['noepi'] and (x.startswith("v_") or x.startswith("ds_write")) : return False
                    if o['nodma'] and x.startswith("buffer_load"): return False
                    return True
                gaps = [[x for x in g if keep(x)] for g in gaps]
            emit_gaps(s, mf, gaps)
            self.n += 6
            if i < 5 or last_barrier:
                s.waitmark("dma", 3)
                if not (s.name == "ffn_loop" and (o['nobar'] == 1 or (o['nobar'] == 2 and i % 2 == 0))): s.e("s_barrier")
        assert not epi

def g24(g):
    return 2 * g + 1

def phase16(self, s, mat, epi, dmaf, nextrd, last_barrier, post):
    o = self.o
    acc = 16 if mat == 0 else 48
    per = (len(epi) + 5) // 6
    epi = list(epi)
    la = LA[0]
    for i in range(6):
        gaps = [[] for _ in range(24)]
        mf = []
        for fh in range(2):
            G0 = self.n + 3 * fh
            k = 0
            for j in range(3):
                nn = G0 + la + j
                f = rd1
                if nextrd and (i * 6 + 3 * fh + la + j) >= 36: f = nextrd
                for h in range(2):
                    gaps[12 * fh + o['rdpos'] + o['rdstep'] * k].append(f(nn, h)); k += 1
            for tq in range(4):
                for kkl in range(3):
                    A = areg(G0 + kkl); D = acc + 8 * tq + 4 * fh
                    C = "0" if (i == 0 and kkl == 0) else "v[%d:%d]" % (D, D + 3)
                    mf.append(["v_mfma_f32_16x16x32_bf16 v[%d:%d], v[%d:%d], %s, %s" % (D, D + 3, A, A + 3, xreg((3 * i + kkl) * 4 + tq), C)])
        for g, ins in dmaf(i): gaps[g24(g)].append(ins)
        if post and i in post:
            for g, ins in post[i]: gaps[g24(g)].append(ins)
        if post and ('g24', i) in post:
            for g, ins in post[('g24', i)]: gaps[g].append(ins)
        if i == 0:
            mine = epi[:max(per - o['first_less'], 0)]; epi = epi[len(mine):]
            spread(gaps, mine, o, start=o['epi_start'])
        else:
            rem = 6 - i
            cnt = (len(epi) + rem - 1) // rem
            mine = epi[:cnt]; epi = epi[cnt:]
            spread(gaps, mine, o)
        if s.name == "ffn_loop":
            def keep(x):
                if not isinstance(x, str): return True
                if o['nords'] and x.startswith("ds_read"): return False
                if o['noepi'] and (x.startswith("v_") or x.startswith("ds_write")) : return False
                if o['nodma'] and x.startswith("buffer_load"): return False
                return True
            gaps = [[x for x in g if keep(x)] for g in gaps]
        emit_gaps(s, mf, gaps)
        self.n += 6
        if post and ('end', i) in post:
            for x in post[('end', i)]: put(s, x)
        if i < 5 or last_barrier:
            s.waitmark("dma", 3)
            if not (s.name == "ffn_loop" and (o['nobar'] == 1 or (o['nobar'] == 2 and i % 2 == 0))): s.e("s_barrier")
        if post and ('aft', i) in post:
            for fn in post[('aft', i)]: fn(s)
    assert not epi
P1.phase16 = phase16

def pf_loads():
    return ["buffer_load_dwordx4 v[%d:%d], v%d, s[20:23], 0 offen offset:%d" % (196 + 4 * (j % 4), 199 + 4 * (j % 4), 192 + j // 4, (j % 4) * 1024) + " ; pf" for j in range(12)]

def pf_post(mode):
    L = pf_loads(); post = {}
    if mode == 1:
        for i in range(4): post[1 + i] = [(4, L[3 * i]), (7, L[3 * i + 1]), (10, L[3 * i + 2])]
    elif mode == 5:
        for i in range(4): post[1 + i] = [(4, L[3 * i]), (7, L[3 * i + 1]), (10, L[3 * i + 2])]
    elif mode == 3:
        ar = [192, 193, 194, 195, 212, 213, 214]
        L = ["buffer_load_dwordx4 v[%d:%d], v%d, s[20:23], 0 offen offset:%d ; pf" % (196 + 4 * (j % 4), 199 + 4 * (j % 4), ar[j // 4], (j % 4) * 1024) for j in range(27)]
        pos = [2, 4, 5, 7, 8, 10]
        for i in range(6):
            mine = L[5 * i: 5 * i + 5] if i < 5 else L[25:]
            post[i] = [(pos[k], x) for k, x in enumerate(mine)]
    elif mode == 2:
        for i in range(6): post[i] = [(4, L[2 * i]), (10, L[2 * i + 1])]
    return post

def dma_gaps1(mat, kc, slot):
    su, ld = dma1(mat, kc, slot)
    return [(0, su[0]), (1, su[1]), (3, ld[0]), (6, ld[1]), (9, ld[2]), (9, ('mark', 'dma'))]

def dma_gaps2(st, K, pos=(1, 5, 9)):
    L = []
    for j, (su, ld) in enumerate(dma2(st, K)):
        g = pos[j]
        L += [(g - 1, su[0]), (g - 1, su[1]), (g, ld)]
    L.append((pos[2], ('mark', 'dma'))); L.append((pos[2], ('mark', 'w2_%d' % st)))
    return L

def phase2_16(s, o, n0, K, dft):
    nk = K // 32; NB = 9 * nk; nst = NB // 3; Q = 6 * nst; la = LA[0]
    NT = 5 if dft else 4
    def accof(seg, tq, dh):
        if tq == 4: return 208 + 8 * (seg % 2) + 4 * dh
        return (16 if seg % 2 == 0 else 48) + 8 * tq + 4 * dh
    stf = o['stf'].replace('+', ' ')
    def st_out(seg):
        L = ["s_add_u32 s37, s36, %d" % (seg * 8192)]
        for tq in range(4):
            r = accof(seg, tq, 0)
            for q in range(4): L.append("v_cvt_pk_bf16_f32 v%d, v%d, v%d" % (176 + 4 * tq + q, r + 2 * q, r + 2 * q + 1))
            if not (o['nostore'] and seg < 8):
                L.append("buffer_store_dwordx4 v[%d:%d], v11, s[8:11], s37 offen offset:%d %s" % (176 + 4 * tq, 179 + 4 * tq, tq * 1024, stf))
        if dft:
            r = accof(seg, 4, 0)
            L.append("s_add_u32 s39, s38, %d" % (seg * 8192))
            for q in range(4): L.append("v_cvt_pk_bf16_f32 v%d, v%d, v%d" % (192 + q, r + 2 * q, r + 2 * q + 1))
            L.append("buffer_store_dwordx4 v[192:195], v11, s[8:11], s39 offen %s" % stf)
        return L
    s.e("v_add_u32 v5, 0x10000, v8"); s.e("v_add_u32 v6, 0x10000, v9")
    if NS2[0] > 6: s.e("v_add_u32 v2, 0x20000, v8"); s.e("v_add_u32 v3, 0x20000, v9")
    pend = []; GP = 6 * NT
    for st in range(nst):
        gaps = [[] for _ in range(GP)]
        mf = []
        done = None
        for dh in range(2):
            G0 = n0 + 6 * st + 3 * dh
            k = 0
            for j in range(3):
                nn = G0 + la + j
                for h in range(2):
                    if nn - n0 < Q: gaps[3 * NT * dh + o['rdpos'] + o['rdstep'] * k].append(rd2(nn, h, n0))
                    k += 1
            for tq in range(NT):
                for bl in range(3):
                    b = 3 * st + bl; seg = b // nk; kk = b % nk
                    A = areg(G0 + bl); D = accof(seg, tq, dh)
                    C = "0" if kk == 0 else "v[%d:%d]" % (D, D + 3)
                    B = ("a[%d:%d]" % (4 * (kk * 4 + tq), 4 * (kk * 4 + tq) + 3)) if tq < 4 else ("v[%d:%d]" % (112 + 4 * kk, 115 + 4 * kk))
                    mf.append(["v_mfma_f32_16x16x32_bf16 v[%d:%d], v[%d:%d], %s, %s" % (D, D + 3, A, A + 3, B, C)])
                    if kk == nk - 1: done = seg
        if NS2[0] == 6: iss = [st + 5]
        elif st == 0: iss = [5]
        elif st <= 6: iss = [2 * st + 4, 2 * st + 5]
        else: iss = [st + 11]
        iss = [x for x in iss if x < nst]
        if len(iss) == 2:
            L = dma_gaps2(iss[0], K, (1, 3, 5)) + dma_gaps2(iss[1], K, (7, 9, 11))
        elif iss: L = dma_gaps2(iss[0], K)
        else: L = []
        def gm(g): return min(GP - 1, (2 * g + 1) * GP // 24)
        for g, ins in L: gaps[gm(g)].append(ins)
        if o['cpk3'] and st == nst - o['cpk3']: gaps[3].append(code_ld(222 if not dft else 254, 220 if not dft else 252))
        if pend:
            start = pend_start
            room = int((GP - start) * o['p2_rate16'])
            mine = pend[:room]; pend = pend[room:]
            spread(gaps, mine, o, start=start)
            pend_start = 0
        emit_gaps(s, mf, gaps)
        if done is not None and done < 8:
            assert not pend
            pend = st_out(done); pend_start = o['p2_delay16']
        if st + 2 <= nst - 1:
            s.waitmark("w2_%d" % (st + 2), 0); s.e("s_barrier")
    assert not pend
    for ins in st_out(8): s.e(ins)

def phase2(s, o, n0, K, dft):
    if M16[0]: return phase2_16(s, o, n0, K, dft)
    nk = K // 16; Q = 9 * nk; nst = Q // 6
    def st_out(seg):
        acc = 16 if seg % 2 == 0 else 48
        L = ["s_add_u32 s37, s36, %d" % (seg * 8192)]
        for n in range(2):
            for J in range(2):
                for q in range(4):
                    r = acc + 16 * n + 8 * J + 2 * q
                    L.append("v_cvt_pk_bf16_f32 v%d, v%d, v%d" % (176 + n * 8 + 4 * J + q, r, r + 1))
                if not (o['nostore'] and seg < 8):
                    L.append("buffer_store_dwordx4 v[%d:%d], v11, s[8:11], s37 offen offset:%d %s" % (176 + n * 8 + 4 * J, 179 + n * 8 + 4 * J, n * 2048 + J * 1024, o['stf'].replace('+', ' ')))
        if dft:
            x = 208 + 4 * (seg % 2)
            L += ["v_mov_b32 v%d, v%d" % (216 + i, x + i) for i in range(4)]
            L += ["s_add_u32 s39, s38, %d" % (seg * 8192)]
            L += ["v_permlane32_swap_b32 v%d, v%d" % (x + i, 216 + i) for i in range(4)]
            L += ["v_add_f32 v%d, v%d, v%d" % (216 + i, x + i, 216 + i) for i in range(4)]
            L += ["v_cvt_pk_bf16_f32 v216, v216, v217", "v_cvt_pk_bf16_f32 v217, v218, v219",
                  "buffer_store_dwordx2 v[216:217], v12, s[8:11], s39 offen"]
        return L
    def hx(kap, j):
        return (112 + 4 * kap + j) if kap < 16 else (192 + 4 * (kap - 16) + j)
    pend = []
    if NS2[0] > 6: s.e("v_add_u32 v5, 0x20000, v8")
    for st in range(nst):
        gaps = [[] for _ in range(12)]
        mf = []
        newseg = None
        for kp in range(6):
            q = st * 6 + kp; seg = q // nk; kap = q % nk
            n = n0 + q
            if q + PF < Q:
                gaps[2 * kp].append(rd2(n + PF, 0, n0)); gaps[2 * kp + 1].append(rd2(n + PF, 1, n0))
            acc = 16 if seg % 2 == 0 else 48
            for t in range(2):
                A = areg(n); D = acc + 16 * t
                C = "0" if kap == 0 else "v[%d:%d]" % (D, D + 15)
                j = kap * 2 + t
                mf.append(["v_mfma_f32_32x32x16_bf16 v[%d:%d], v[%d:%d], a[%d:%d], %s" % (D, D + 15, A, A + 3, 4 * j, 4 * j + 3, C)])
            if dft:
                x = 208 + 4 * (seg % 2); A = areg(n)
                for jj in range(2):
                    c = "0" if (kap == 0 and jj == 0) else "v[%d:%d]" % (x, x + 3)
                    gaps[2 * kp + jj].insert(0, "v_mfma_f32_4x4x4_16b_bf16 v[%d:%d], v[%d:%d], v[%d:%d], %s" % (x, x + 3, A + 2 * jj, A + 2 * jj + 1, hx(kap, 2 * jj), hx(kap, 2 * jj + 1), c))
            if kap == 0 and seg > 0:
                newseg = (kp, seg - 1)
        if NS2[0] == 6: iss = [st + 5]
        elif st == 0: iss = [5]
        elif st <= 6: iss = [2 * st + 4, 2 * st + 5]
        else: iss = [st + 11]
        iss = [x for x in iss if x < nst]
        if len(iss) == 2:
            L = dma_gaps2(iss[0], K, (1, 3, 5)) + dma_gaps2(iss[1], K, (7, 9, 11))
        elif iss: L = dma_gaps2(iss[0], K)
        else: L = []
        for g, ins in L: gaps[g].append(ins)
        if newseg is not None:
            kp, sg = newseg
            assert not pend
            pend = st_out(sg)
            start = 2 * kp + o['p2_epi_delay']
        else:
            start = 0
        if pend:
            if start < 12:
                room = (12 - start) * o['p2_epi_rate']
                mine = pend[:room]; pend = pend[room:]
                spread(gaps, mine, o, start=start)
        emit_gaps(s, mf, gaps)
        if st + 2 <= nst - 1:
            s.waitmark("w2_%d" % (st + 2), 0); s.e("s_barrier")
    assert not pend
    for ins in st_out(8): s.e(ins)

def gen_k2(Kern, srd, opts):
    o = dict(xps=2, xo=0, xg=0, xl=0, xt=0, xil=0, xpre=2, xpf=0, xdm=2, pstamp=0, ord=0, slowpf=0, cpf=0, cpfst=1, cpk3=0, cpd1=18, m16=0, la=4, rdpos=0, rdstep=2, p2_rate16=1.0, p2_delay16=2, pfw=0, pfc=0, ns2=6, map=0, prof=0, nostore=0, stf='', nords=0, noepi=0, nodma=0, nobar=0, wtrans=2.0, wsalu=0.3, epi_start=4, first_less=4, p2_epi_delay=5, p2_epi_rate=2)
    for k, v in opts.items():
        if k in o: o[k] = type(o[k])(v)
    NS2[0] = o['ns2']; M16[0] = o['m16']; LA[0] = o['la']
    global stamp
    stamp_ = stamp
    pst = lambda seg, i: None
    if o['pstamp'] == 2: stamp_ = stamp
    if o['pstamp']:
        pst = stamp_ if o['pstamp'] == 1 else pst
        stamp = lambda seg, i: (stamp_(seg, i) if i in ((0, 6, 7) if o['pstamp'] == 1 else (0, 1, 7)) else None)
    NPRE = o['la'] if o['m16'] else PF
    K = Kern("main_kernel", (256, 1, 1), (256, 1, 1), 159744 if o['xl'] == 1 else LDS_BYTES, vgpr=512, accum=256)
    a = K.seg("head")
    a.e("s_cmp_ge_u32 s2, 256"); a.e("s_cbranch_scc1 K2_end")
    stamp(a, 0)
    a.e("s_load_dwordx2 s[4:5], s[0:1], 88")
    a.e("s_load_dwordx4 s[40:43], s[0:1], 48")
    a.e("s_load_dwordx2 s[44:45], s[0:1], 64")
    a.e("s_load_dwordx4 s[48:51], s[0:1], 8")
    a.e("s_load_dwordx4 s[52:55], s[0:1], 24")
    a.e("v_lshrrev_b32 v1, 6, v0"); a.e("v_and_b32 v0, 63, v0"); a.e("v_readfirstlane_b32 s24, v1")
    if o['map'] == 0:
        a.e("s_and_b32 s3, s2, 7"); a.e("s_lshr_b32 s28, s2, 3"); a.e("s_lshr_b32 s27, s28, 4"); a.e("s_lshl_b32 s3, s3, 1")
        a.e("s_add_u32 s27, s27, s3"); a.e("s_and_b32 s28, s28, 15")
    else:
        tb = {1: 3, 2: 2, 3: 3}[o['map']]
        a.e("s_and_b32 s3, s2, 7"); a.e("s_lshr_b32 s46, s2, 3")
        a.e("s_and_b32 s28, s3, %d" % ((16 >> tb) - 1)); a.e("s_lshl_b32 s28, s28, %d" % tb); a.e("s_and_b32 s47, s46, %d" % ((1 << tb) - 1)); a.e("s_add_u32 s28, s28, s47")
        a.e("s_lshr_b32 s27, s3, %d" % (4 - tb)); a.e("s_lshl_b32 s27, s27, %d" % (5 - tb)); a.e("s_lshr_b32 s47, s46, %d" % tb); a.e("s_add_u32 s27, s27, s47")
    if o['map'] == 3:
        a.e("s_lshr_b32 s46, s27, 2"); a.e("s_and_b32 s47, s27, 3"); a.e("s_mul_i32 s27, s46, 3"); a.e("s_add_u32 s27, s27, s47"); a.e("s_add_u32 s46, s46, 12")
        a.e("s_cmp_eq_u32 s47, 3"); a.e("s_cselect_b32 s27, s46, s27")
    a.e("s_lshr_b32 s25, s24, 1"); a.e("s_and_b32 s26, s24, 1")
    a.e("s_mov_b32 s%d, 0xbfb8aa3b" % CNEG)
    a.e("v_lshrrev_b32 v13, 4, v0"); a.e("v_bfe_u32 v14, v0, 2, 2"); a.e("v_and_b32 v15, 3, v0")
    a.e("v_lshlrev_b32 v11, 4, v0")
    if o['m16']:
        a.e("v_lshrrev_b32 v1, 1, v14"); a.e("v_lshlrev_b32 v1, 1, v1"); a.e("v_and_b32 v9, 1, v13"); a.e("v_lshlrev_b32 v9, 2, v9"); a.e("v_add_u32 v9, v9, v1")
        a.e("v_lshrrev_b32 v12, 1, v15"); a.e("s_lshl_b32 s3, s26, 2"); a.e("v_add_u32 v12, s3, v12"); a.e("v_xor_b32 v12, v12, v9"); a.e("v_lshlrev_b32 v12, 4, v12")
        a.e("v_and_b32 v1, 1, v15"); a.e("v_lshlrev_b32 v1, 3, v1"); a.e("v_add_u32 v12, v12, v1")
        a.e("v_lshlrev_b32 v8, 2, v13"); a.e("v_add_u32 v8, v8, v14"); a.e("v_lshlrev_b32 v8, 7, v8"); a.e("v_add_u32 v8, v8, v12"); a.e("v_xor_b32 v9, 32, v8")
        a.e("v_lshlrev_b32 v5, 3, v13"); a.e("v_add_u32 v5, v5, v14"); a.e("v_lshlrev_b32 v5, 7, v5"); a.e("v_add_u32 v5, v5, v12"); a.e("v_add_u32 v6, 0x10000, v5")
        a.e("v_lshrrev_b32 v13, 3, v0"); a.e("v_and_b32 v14, 7, v0")
        a.e("v_bfe_u32 v15, v13, 1, 2"); a.e("v_lshlrev_b32 v15, 1, v15"); a.e("v_xor_b32 v15, v14, v15"); a.e("v_lshlrev_b32 v15, 4, v15")
        a.e("s_movk_i32 s3, 1152"); a.e("v_mul_lo_u32 v10, v13, s3"); a.e("v_add_u32 v10, v10, v15")
        a.e("v_bfe_u32 v15, v13, 1, 1"); a.e("v_lshlrev_b32 v15, 1, v15"); a.e("v_xor_b32 v15, v14, v15"); a.e("v_lshlrev_b32 v15, 4, v15")
        a.e("s_and_b32 s3, s24, 1"); a.e("s_lshl_b32 s3, s3, 6"); a.e("v_xor_b32 v15, s3, v15")
        a.e("s_movk_i32 s3, 9216"); a.e("v_mul_lo_u32 v13, v13, s3")
        a.e("v_add_u32 v2, v13, v15"); a.e("v_add_u32 v4, %d, v2" % (16 * 9216 - 2048))
        a.e("v_xor_b32 v15, 64, v15"); a.e("v_add_u32 v3, v13, v15"); a.e("v_add_u32 v3, %d, v3" % (8 * 9216 - 1024))
        a.e("v_xor_b32 v13, 32, v5"); a.e("v_add_u32 v14, 0x10000, v13")
    else:
        a.e("v_lshrrev_b32 v1, 1, v13"); a.e("v_lshlrev_b32 v1, 2, v1"); a.e("v_add_u32 v1, v1, v14"); a.e("v_lshlrev_b32 v8, 7, v1")
        a.e("v_and_b32 v1, 1, v13"); a.e("v_lshlrev_b32 v1, 1, v1"); a.e("s_lshl_b32 s3, s26, 2"); a.e("v_add_u32 v1, s3, v1")
        a.e("v_bfe_u32 v9, v14, 1, 1"); a.e("v_lshlrev_b32 v9, 2, v9")
        a.e("v_and_b32 v12, 1, v15"); a.e("v_add_u32 v12, v1, v12"); a.e("v_xor_b32 v12, v12, v9"); a.e("v_lshlrev_b32 v12, 4, v12"); a.e("v_add_u32 v8, v8, v12")
        a.e("v_lshrrev_b32 v12, 1, v15"); a.e("v_lshlrev_b32 v12, 3, v12"); a.e("v_add_u32 v8, v8, v12")
        a.e("v_lshrrev_b32 v12, 1, v15"); a.e("v_add_u32 v12, v1, v12"); a.e("v_xor_b32 v12, v12, v9"); a.e("v_lshlrev_b32 v12, 4, v12")
        a.e("v_lshrrev_b32 v5, 1, v13"); a.e("v_lshlrev_b32 v5, 3, v5"); a.e("v_add_u32 v5, v5, v14"); a.e("v_lshlrev_b32 v5, 7, v5"); a.e("v_add_u32 v5, v5, v12")
        a.e("v_and_b32 v12, 1, v15"); a.e("v_lshlrev_b32 v12, 3, v12"); a.e("v_add_u32 v5, v5, v12")
        a.e("v_add_u32 v6, 0x10000, v5"); a.e("v_add_u32 v9, 0x10000, v8")
        a.e("v_lshrrev_b32 v13, 3, v0"); a.e("v_and_b32 v14, 7, v0"); a.e("v_bfe_u32 v15, v13, 1, 1"); a.e("v_lshlrev_b32 v15, 2, v15")
        a.e("v_xor_b32 v14, v14, v15"); a.e("v_lshlrev_b32 v14, 4, v14")
        a.e("s_movk_i32 s3, 1152"); a.e("v_mul_lo_u32 v10, v13, s3"); a.e("v_add_u32 v10, v10, v14")
        a.e("s_movk_i32 s3, 9216"); a.e("v_mul_lo_u32 v2, v13, s3"); a.e("v_add_u32 v2, v2, v14")
        a.e("v_add_u32 v3, %d, v2" % (8 * 9216 - 1024)); a.e("v_add_u32 v4, %d, v2" % (16 * 9216 - 2048))
    a.e("s_lshl_b32 s34, s24, 10")
    a.e("s_mul_i32 s36, s27, %d" % SLOTB); a.e("s_lshl_b32 s3, s28, 1"); a.e("s_add_u32 s3, s3, s25"); a.e("s_mul_i32 s3, s3, %d" % T64B)
    a.e("s_add_u32 s36, s36, s3"); a.e("s_lshl_b32 s46, s26, 12"); a.e("s_add_u32 s36, s36, s46"); a.e("s_add_u32 s36, s36, %d" % PART)
    if o['cpf']:
        a.e("s_getpc_b64 s[96:97]"); a.lab("K2_pc")
    a.waitlg(0)
    pst(a, 1)
    srd(a, 8, 4, WS_BYTES)
    if o['xt']:
        a.e("s_lshr_b32 s56, s2, 6"); a.e("s_and_b32 s56, s56, 3"); a.e("s_lshl_b32 s56, s56, 2"); a.e("s_add_u32 s56, s56, s24")
        a.e("s_lshr_b32 s57, s56, 3"); a.e("s_and_b32 s56, s56, 7"); a.e("s_mul_i32 s56, s56, 4608")
        a.e("s_lshl_b32 s58, s28, 1"); a.e("s_add_u32 s58, s58, s57"); a.e("s_mul_i32 s58, s58, %d" % T64B); a.e("s_add_u32 s56, s56, s58")
        if XN: a.e("s_add_u32 s56, s56, %d" % XN)
        a.e("s_add_u32 s57, s56, 36864")
        if o['xt'] == 1:
            a.e("v_min_u32 v216, 35, v0"); a.e("v_lshlrev_b32 v216, 7, v216")
            a.e("buffer_load_dword v218, v216, s[8:11], s56 offen ; pf"); a.e("buffer_load_dword v218, v216, s[8:11], s57 offen ; pf")
        else:
            a.e("v_lshlrev_b32 v216, 6, v0"); a.e("v_min_u32 v217, 7, v0"); a.e("v_lshlrev_b32 v217, 6, v217"); a.e("v_add_u32 v217, 4096, v217")
            for sb in (56, 57):
                a.e("buffer_load_dword v218, v216, s[8:11], s%d offen ; pf" % sb); a.e("buffer_load_dword v218, v217, s[8:11], s%d offen ; pf" % sb)
    a.e("s_cmp_eq_u32 s27, 15"); a.e("s_cbranch_scc1 K2_dft")
    f = K.seg("ffn_pro")
    srd(f, 12, 40, 576 * 9216); srd(f, 16, 42, 576 * 9216); srd(f, 20, 44, 4608 * 1152)
    if o['slowpf']:
        f.e("s_sub_u32 s46, s27, 12"); f.e("s_lshl_b32 s46, s46, 4"); f.e("s_add_u32 s46, s46, s28"); f.e("s_lshl_b32 s46, s46, 2"); f.e("s_add_u32 s46, s46, s24")
        f.e("s_lshl_b32 s46, s46, 1")
        f.e("v_lshrrev_b32 v216, 1, v0"); f.e("s_movk_i32 s47, 9216"); f.e("v_mul_lo_u32 v216, v216, s47"); f.e("v_and_b32 v217, 1, v0"); f.e("v_lshlrev_b32 v217, 6, v217")
        f.e("v_add_u32 v216, v216, v217")
        for i in range(2):
            f.e("s_add_u32 s56, s46, %d" % i)
            f.e("s_mul_i32 s47, s56, 3641"); f.e("s_lshr_b32 s47, s47, 16"); f.e("s_mul_i32 s57, s47, 18"); f.e("s_sub_u32 s57, s56, s57")
            f.e("s_and_b32 s58, s47, 1"); f.e("s_cmp_eq_u32 s58, 1"); f.e("s_cselect_b32 s60, s42, s40"); f.e("s_cselect_b32 s61, s43, s41")
            f.e("s_mov_b32 s62, 0x%x" % (576 * 9216)); f.e("s_mov_b32 s63, 0x00020000")
            f.e("s_lshr_b32 s58, s60, 7"); f.e("s_sub_u32 s58, 3, s58"); f.e("s_and_b32 s58, s58, 7")
            f.e("s_lshr_b32 s47, s47, 1"); f.e("s_lshl_b32 s47, s47, 3"); f.e("s_add_u32 s47, s47, s58"); f.e("s_lshl_b32 s47, s47, 7")
            f.e("s_mul_i32 s57, s57, %d" % (32 * 9216)); f.e("s_add_u32 s47, s47, s57")
            f.e("s_cmp_lt_u32 s56, 324"); f.e("s_cselect_b32 s47, s47, 0x7ff00000"); f.e("s_cmp_ge_u32 s27, 12"); f.e("s_cselect_b32 s47, s47, 0x7ff00000")
            f.e("v_add_u32 v217, s47, v216")
            f.e("buffer_load_dword v218, v217, s[60:63], 0 offen ; pf")
    p0_code(f, 27, 46, 47, o['ord'])
    f.e("s_cmp_lt_u32 s27, 12"); f.e("s_cselect_b32 s32, 4, 3")
    f.e("s_mul_i32 s30, s24, %d" % (24 * 9216)); f.e("s_lshl_b32 s47, s46, 7"); f.e("s_add_u32 s30, s30, s47")
    f.e("s_mul_i32 s29, s24, 3072")
    f.e("s_lshl_b32 s47, s46, 6"); f.e("s_lshl_b32 s56, s24, 3"); f.e("s_add_u32 s47, s47, s56"); f.e("s_mul_i32 s35, s47, 1152")
    def xdma(c):
        G = []
        for kkl in range(3):
            G.append(["s_add_u32 m0, s38, %d" % ((c % 3) * 24576 + kkl * 4096), "s_add_u32 s39, s37, %d" % ((3 * c + kkl) * 4096),
                      "buffer_load_dwordx4 v11, s[8:11], s39 offen offset:0 lds"])
            G.append(["buffer_load_dwordx4 v11, s[8:11], s39 offen offset:1024 lds"] + ([('mark', 'xc')] if kkl == 2 else []))
        return G
    def xrd(c):
        return ["ds_read_b128 %s, v48 offset:%d" % (xreg((3 * c + kkl) * 4 + tq), (c % 3) * 24576 + kkl * 4096 + tq * 1024) for tq in range(4) for kkl in range(3)]
    def xld(st):
        L = []
        for tq in range(4):
            for kkl in range(3):
                L.append("buffer_load_dwordx4 %s, v11, s[8:11], s%d offen offset:%d" % (xreg((3 * st + kkl) * 4 + tq), 37 + kkl, tq * 1024))
        return L, ["s_add_u32 s%d, s%d, 12288" % (37 + kkl, 37 + kkl) for kkl in range(3)]
    def cpf_block():
        if o['cpf']:
            f.e("v_lshlrev_b32 v219, 7, v0"); f.e("s_lshl_b32 s3, s24, 13"); f.e("v_add_u32 v219, s3, v219")
            if o['cpf'] & 2:
                code_addr(f, 216, 219, "K2_g0", "K2_tail320"); f.e(code_ld(218, 216))
            f.e("s_mov_b32 s100, K2_tail320-K2_pc"); f.e("s_mov_b32 s101, K2_ffn4-K2_pc-4"); f.e("s_cmp_ge_u32 s27, 12")
            f.e("s_cselect_b32 s100, K2_ffn4-K2_pc, s100"); f.e("s_cselect_b32 s101, K2_dft-K2_pc-4, s101")
            code_addr(f, 216, 219, None, None, ssel=(100, 101))
            if o['cpk3']:
                code_addr(f, 220, 219, "final_kernel", "K3_end")
    if o['xo'] == 2: cpf_block()
    if o['xil']:
        f.e("s_lshl_b32 s37, s28, 1"); f.e("s_add_u32 s37, s37, s25"); f.e("s_mul_i32 s37, s37, %d" % T64B)
        if XN: f.e("s_add_u32 s37, s37, %d" % XN)
        f.e("s_add_u32 s38, s37, 4096"); f.e("s_add_u32 s39, s37, 8192")
        xdone = 0
        for st in range(5):
            su, ld = dma1(0, st, st)
            for x in su + ld: f.e(x)
            f.mark("dma")
            if st + 1 >= o['xdm'] and xdone < o['xpre']:
                L, U = xld(xdone); xdone += 1
                for x in L + U: f.e(x)
        while xdone < o['xpre']:
            L, U = xld(xdone); xdone += 1
            for x in L + U: f.e(x)
    elif o['xl'] == 1:
        su, ld = dma1(0, 0, 0)
        for x in su + ld: f.e(x)
        f.mark("dma")
    elif o['xl'] == 2:
        f.e("s_lshl_b32 s37, s28, 1"); f.e("s_add_u32 s37, s37, s25"); f.e("s_mul_i32 s37, s37, %d" % T64B)
        if XN: f.e("s_add_u32 s37, s37, %d" % XN)
        f.e("s_lshl_b32 s39, s26, 11"); f.e("s_add_u32 s37, s37, s39")
        f.e("s_mul_i32 s38, s25, 12288"); f.e("s_add_u32 s38, s38, s39"); f.e("s_add_u32 s38, s38, %d" % HB)
        for st in range(2):
            su, ld = dma1(0, st, st)
            for x in su + ld: f.e(x)
            f.mark("dma")
            for g in xdma(st):
                for x in g: put(f, x)
            if o['xo'] == 3 and st == 0: cpf_block()
    else:
      for st in range(5):
        su, ld = dma1(0, st, st)
        for x in su + ld: f.e(x)
        f.mark("dma")
    if not o['xl']: pst(f, 2)
    if o['xo'] < 2: cpf_block()
    f.e("s_lshl_b32 s3, s28, 1"); f.e("s_add_u32 s3, s3, s25"); f.e("s_mul_i32 s3, s3, %d" % T64B)
    if XN: f.e("s_add_u32 s3, s3, %d" % XN)
    if o['xl'] == 2:
        if o['xo'] >= 1:
            for g in xdma(2):
                for x in g: put(f, x)
        for st in range(2, 4):
            su, ld = dma1(0, st, st)
            for x in su + ld: f.e(x)
            f.mark("dma")
            if st == 2 and o['xo'] == 0:
                for g in xdma(2):
                    for x in g: put(f, x)
        f.e("s_mul_i32 s3, s25, 12288"); f.e("s_add_u32 s3, s3, %d" % HB); f.e("v_add_u32 v48, s3, v11")
    if o['xl'] == 1:
        f.e("s_lshl_b32 s37, s26, 11"); f.e("s_add_u32 s37, s37, s3")
        f.e("s_mul_i32 s38, s25, 12288"); f.e("s_lshl_b32 s39, s26, 11"); f.e("s_add_u32 s38, s38, s39"); f.e("s_add_u32 s38, s38, 12288")
        for c in range(6):
            for kkl in range(3):
                f.e("s_add_u32 m0, s38, %d" % (c * 24576 + kkl * 4096)); f.e("s_add_u32 s39, s37, %d" % ((3 * c + kkl) * 4096))
                for t in range(2): f.e("buffer_load_dwordx4 v11, s[8:11], s39 offen offset:%d lds" % (t * 1024))
            f.mark("xc")
        f.e("s_mul_i32 s3, s25, 12288"); f.e("s_add_u32 s3, s3, 12288"); f.e("v_add_u32 v16, s3, v11"); f.e("v_add_u32 v17, 73728, v16")
    for i in range(72 if not (o['xil'] or o['xl']) else 0):
        if i % 4 == 0 and i > 0: f.e("s_add_u32 s3, s3, 4096")
        f.e("buffer_load_dwordx4 %s, v11, s[8:11], s3 offen offset:%d" % (xreg(i), (i % 4) * 1024))
    pst(f, 2 if o['xl'] else 3)
    if o['pfw']:
        f.e("s_and_b32 s56, s28, 7"); f.e("s_lshl_b32 s56, s56, 2"); f.e("s_add_u32 s56, s56, s24"); f.e("s_add_u32 s57, s32, 1")
        f.e("s_mul_i32 s57, s57, 2304"); f.e("s_mul_i32 s56, s56, s57"); f.e("s_mul_i32 s57, s46, 73728"); f.e("s_add_u32 s56, s56, s57")
        if o['pfw'] in (3, 10):
            f.e("s_sub_u32 s56, s27, 12"); f.e("s_lshl_b32 s56, s56, 4"); f.e("s_add_u32 s56, s56, s28"); f.e("s_lshl_b32 s56, s56, 2"); f.e("s_add_u32 s56, s56, s24")
            f.e("s_mul_i32 s56, s56, 27648"); f.e("s_cmp_lt_u32 s27, 12"); f.e("s_cselect_b32 s56, 0x7ff00000, s56")
        f.e("v_add_u32 v192, s56, v11"); f.e("v_add_u32 v193, 4096, v192"); f.e("v_add_u32 v194, 8192, v192")
        if o['pfw'] in (3, 10):
            for j in range(3, 7): f.e("v_add_u32 v%d, %d, v192" % (192 + j + (0 if j < 4 else 16), 4096 * j))
        if o['xpf'] in (7, 8, 9, 10):
            f.e("v_lshlrev_b32 v195, 6, v0"); f.e("v_add_u32 v192, s56, v195"); f.e("v_add_u32 v193, 4096, v192"); f.e("v_add_u32 v194, 8192, v192")
        if o['pfw'] == 4:
            for x in pf_loads(): f.e(x)
        if o['pfw'] == 5:
            f.e("buffer_load_dword v196, v192, s[20:23], 0 offen ; pf")
        if o['pfw'] == 8:
            f.e("v_lshlrev_b32 v195, 6, v0"); f.e("v_add_u32 v192, s56, v195"); f.e("v_add_u32 v193, 4096, v192"); f.e("v_add_u32 v194, 8192, v192")
            for j in range(3): f.e("buffer_load_dword v%d, v%d, s[20:23], 0 offen ; pf" % (196 + j, 192 + j))
        if o['pfw'] == 9:
            f.e("v_lshlrev_b32 v195, 7, v0"); f.e("v_add_u32 v192, s56, v195"); f.e("v_add_u32 v193, 8192, v192")
            for j in range(2): f.e("buffer_load_dword v%d, v%d, s[20:23], 0 offen ; pf" % (196 + j, 192 + j))
    f.e("s_mul_i32 s3, s25, 40960"); f.e("s_lshl_b32 s46, s26, %d" % (10 if o['m16'] else 11)); f.e("s_add_u32 s3, s3, s46"); f.e("s_add_u32 s3, s3, %d" % HB)
    f.e("v_add_u32 v7, s3, v11")
    if o['xl'] == 1:
        for c in range(6):
            f.waitmark("xc", 5 - c)
            if c in (1, 2): f.waitlg(0)
            f.e("s_barrier")
            if c == 0: pst(f, 3)
            if c == 5: pst(f, 4)
            if c in (1, 2):
                for st in (2 * c - 1, 2 * c):
                    su, ld = dma1(0, st, st)
                    for x in su + ld: f.e(x)
                    f.mark("dma")
            for tq in range(4):
                for kkl in range(3):
                    f.e("ds_read_b128 %s, v%d offset:%d" % (xreg((3 * c + kkl) * 4 + tq), 16 + c // 3, (c % 3) * 24576 + kkl * 4096 + tq * 1024))
        f.waitlg(0)
    if o['xl'] == 2:
        f.waitmark("xc", 1); f.waitmark("dma", 2); pst(f, 3); f.e("s_barrier")
        for x in xrd(0): f.e(x)
        for n in range(NPRE):
            f.e(rd1(n, 0)); f.e(rd1(n, 1))
        f.waitlg(0); pst(f, 4); f.e("s_barrier")
        pst(f, 5)
        stamp(f, 1)
        if o['cpf']: f.lab("K2_g0")
    else:
        f.waitmark("dma", 3)
        if not o['xl']: pst(f, 4)
        f.e("s_barrier")
        pst(f, 5)
        stamp(f, 1)
        if o['cpf']: f.lab("K2_g0")
        for n in range(NPRE):
            f.e(rd1(n, 0)); f.e(rd1(n, 1))
    p1 = P1(o)
    def d_g0(i):
        return dma_gaps1(0, 5, 5) if i == 0 else dma_gaps1(1, i - 1, i - 1)
    post0 = None
    if o['pfw'] and o['pfw'] not in (4, 6, 7, 8, 9, 10):
        post0 = pf_post(o['pfw'])
    if o['xil']:
        post0 = dict(post0 or {})
        if o['xpf']:
            L = pf_loads(); post0 = {}
            if o['xpf'] == 1:
                for i in range(2): post0[4 + i] = [(g, L[6 * i + k]) for k, g in enumerate((1, 2, 4, 5, 7, 8))]
            elif o['xpf'] == 2:
                for i in range(3): post0[3 + i] = [(g, L[4 * i + k]) for k, g in enumerate((2, 4, 7, 10))]
        for st in range(o['xpre'], 6):
            L, U = xld(st)
            post0[('g24', st - o['xpre'])] = [(2 * k + 1, x) for k, x in enumerate(L)] + [(23, x) for x in U]
    if o['xl'] == 2:
        def late(mat, kc, slot, g):
            su, ld = dma1(mat, kc, slot)
            return [(g[0], su[0]), (g[0], su[1]), (g[1], ld[0]), (g[2], ld[1]), (g[3], ld[2]), (g[3], ('mark', 'dma'))]
        d_g0_base = d_g0
        def d_g0(i):
            if o['xg'] == 1:
                if i == 0: return late(0, 4, 4, (4, 4, 5, 6)) + late(0, 5, 5, (7, 8, 9, 10))
                if i in (1, 2): return late(1, i - 1, i - 1, (5, 6, 8, 10))
            if o['xg'] == 2:
                if i == 0: return late(0, 4, 4, (6, 6, 7, 8)) + late(0, 5, 5, (9, 9, 10, 11))
                if i in (1, 2): return late(1, i - 1, i - 1, (7, 8, 10, 11))
            if i == 0: return late(0, 4, 4, (3, 3, 4, 5)) + late(0, 5, 5, (6, 7, 9, 10))
            if i in (1, 2): return late(1, i - 1, i - 1, (3, 4, 7, 10))
            return d_g0_base(i)
        if o['xpf']:
            L = pf_loads(); post0 = {}
            if o['xpf'] == 1:
                for i in range(2): post0[4 + i] = [(g, L[6 * i + k]) for k, g in enumerate((1, 2, 4, 5, 7, 8))]
            elif o['xpf'] == 2:
                for i in range(3): post0[3 + i] = [(g, L[4 * i + k]) for k, g in enumerate((2, 4, 7, 10))]
            elif o['xpf'] == 4:
                for i in range(6): post0[i] = [(g, L[2 * i + k]) for k, g in enumerate((5, 10))]
            elif o['xpf'] == 7:
                for i in range(3): post0[3 + i] = [(7, "buffer_load_dword v%d, v%d, s[20:23], 0 offen ; pf" % (196 + i, 192 + i))]
            elif o['xpf'] == 10:
                post0[3] = [(7, "buffer_load_dword v196, v192, s[20:23], 0 offen ; pf")]
            elif o['xpf'] == 8:
                post0[5] = [((2, 6, 10)[i], "buffer_load_dword v%d, v%d, s[20:23], 0 offen ; pf" % (196 + i, 192 + i)) for i in range(3)]
            elif o['xpf'] == 5:
                for i in range(3): post0[3 + i] = [(g, L[2 * i + k]) for k, g in enumerate((4, 10))]
        post0 = dict(post0 or {})
        for i in range(5):
            P = []
            if i < 3:
                for k, g in enumerate(xdma(3 + i)): P += [((k // 2 if o['xg'] else k), x) for x in g]
            R = xrd(i + 1)
            P += [(2 * (k // 2) + 1, x) for k, x in enumerate(R)]
            post0[('g24', i)] = P
            E = []
            if i < 2:
                last = xreg((3 * (i + 1) + 2) * 4 + 3)
                r0 = last[2:].split(':')[0]
                E.append(("v_accvgpr_read_b32 v49, a%s" % r0) if last[0] == 'a' else ("v_mov_b32 v49, v%s" % r0))
            if i < 4: E.append(('waitmark', 'xc', 1 if i < 3 else 0))
            post0[('end', i)] = E
            if o['pstamp'] == 2: post0[('aft', i)] = [lambda sg, i=i: stamp_(sg, i + 2)]
    g0a = g0b = None
    if o['pfw'] == 10:
        f.e("s_cmp_ge_u32 s27, 12"); f.e("s_cbranch_scc1 K2_g0b")
        g0a = K.seg("g0a"); p1.phase(g0a, 0, [], d_g0); stamp(g0a, 2); g0a.e("s_branch K2_loop")
        g0b = K.seg("g0b"); g0b.lab("K2_g0b"); pb = P1(o); pb.phase(g0b, 0, [], d_g0, post=pf_post(3)); stamp(g0b, 2)
    else:
        p1.phase(f, 0, [], d_g0, post=post0)
        stamp(f, 2)
    lp = K.seg("ffn_loop"); lp.lab("K2_loop")
    def d_up(i):
        if i == 0: return dma_gaps1(1, 5, 5) + [(10, "s_add_u32 s30, s30, 128")]
        return dma_gaps1(0, i - 1, i - 1)
    def d_gate(i):
        return dma_gaps1(0, 5, 5) if i == 0 else dma_gaps1(1, i - 1, i - 1)
    postu = postg = None
    if o['pfw'] == 6:
        L = pf_loads()[:4]
        postu = {1 + j: [(4, L[j])] for j in range(4)}
        postu[5] = [(4, "v_add_u32 v192, 4096, v192")]
    if o['pfw'] == 7:
        L = pf_loads()[:4]
        postu = {1: [(4, L[0])], 4: [(4, L[1])]}
        postg = {1: [(4, L[2])], 4: [(4, L[3])], 5: [(4, "v_add_u32 v192, 4096, v192")]}
    if o['xpf'] == 9:
        postg = {o['xps']: [(4, "buffer_load_dword v196, v192, s[20:23], 0 offen ; pf"), (7, "v_add_u32 v192, 4096, v192")]}
    if o['xpf'] == 10:
        postg = {o['xps']: [(4, "buffer_load_dword v196, v193, s[20:23], 0 offen ; pf"), (7, "v_add_u32 v193, 4096, v193")]}
    if o['cpf'] & 1:
        postu = dict(postu or {}); postu.setdefault(o['cpfst'], []); postu[o['cpfst']] = postu[o['cpfst']] + [(5, code_ld(218, 216))]
    p1.phase(lp, 1, epi1(), d_up, post=postu)
    p1.phase(lp, 0, epi2() + ["v_add_u32 v7, %d, v7" % (2048 if o['m16'] else 4096)], d_gate, post=postg)
    lp.e("s_sub_u32 s32, s32, 1"); lp.e("s_cmp_lg_u32 s32, 0"); lp.e("s_cbranch_scc1 K2_loop")
    nloop = p1.n
    br = K.seg("ffn_br")
    stamp(br, 3)
    br.e("s_cmp_ge_u32 s27, 12"); br.e("s_cbranch_scc1 K2_ffn4")
    tails = {}
    for Kd, lab in ((320, None), (256, "K2_ffn4")):
        t = K.seg("ffn_tail%d" % Kd)
        if lab: t.lab(lab)
        elif o['cpf']: t.lab("K2_tail320")
        p = P1(o); p.n = nloop
        n0 = nloop + 36
        def d_last(i, Kd=Kd):
            return dma_gaps1(1, 5, 5) if i == 0 else dma_gaps2(i - 1, Kd)
        p.phase(t, 1, epi1(), d_last, nextrd=lambda n, h, n0=n0: rd2(n, h, n0), last_barrier=False)
        stamp(t, 4)
        t.e("s_nop 7")
        for x in epi2(): t.e(x)
        t.waitmark("dma", 3); t.waitlg(0); t.e("s_barrier")
        t.e("s_mul_i32 s3, s25, 40960"); t.e("s_add_u32 s3, s3, %d" % HB); t.e("v_add_u32 v1, s3, v11")
        if o['m16']:
            for kk, tq in sorted(((kk, tq) for kk in range(Kd // 32) for tq in range(4)), key=lambda z: (z[0] // 3, z[1], z[0])):
                    j = kk * 4 + tq
                    t.e("ds_read_b128 a[%d:%d], v1 offset:%d" % (4 * j, 4 * j + 3, (tq * 10 + kk) * 1024))
        else:
          for kap in range(Kd // 16):
            for n in range(2):
                j = kap * 2 + n
                t.e("ds_read_b128 a[%d:%d], v1 offset:%d" % (4 * j, 4 * j + 3, (n * 20 + kap) * 1024))
        stamp(t, 5)
        phase2(t, o, n0, Kd, False)
        stamp(t, 6)
        if o['prof']: t.waitall()
        stamp(t, 7); prof_store(t, 1, 8, 8, 24, 12, 60)
        t.e("s_endpgm")
        tails[Kd] = t
    d = K.seg("dft"); d.lab("K2_dft")
    gen_dft(d, o, srd)
    e = K.seg("end"); e.lab("K2_end"); e.e("s_endpgm")
    A_ = [g0a] if g0a else []; B_ = [g0b] if g0b else []
    K.paths = [[a, f] + A_ + [lp] * 4 + [br, tails[320]], [a, f] + B_ + [lp] * 3 + [br, tails[256]], [a, d]]
    return K

def gen_dft(d, o, srd):
    d.e("s_cmp_ge_u32 s28, 8"); d.e("s_cselect_b32 s46, s50, s48"); d.e("s_cselect_b32 s47, s51, s49")
    d.e("s_cselect_b32 s56, s54, s52"); d.e("s_cselect_b32 s57, s55, s53")
    d.e("s_mov_b32 s58, %d" % XEE); d.e("s_cselect_b32 s58, %d, s58" % XOO); d.e("s_cselect_b32 s59, 1536, 0"); d.e("s_cselect_b32 s60, 0, 0xbf803f80")
    srd(d, 12, 46, 2048 * 4096); srd(d, 20, 56, 576 * 1152)
    d.e("s_and_b32 s3, s28, 7"); d.e("s_lshl_b32 s3, s3, 6"); d.e("s_add_u32 s59, s59, s3"); d.e("s_lshl_b32 s59, s59, 1")
    d.e("s_mul_i32 s61, s24, %d" % (16 * 640)); d.e("s_add_u32 s61, s61, s58")
    d.e("s_lshl_b32 s62, s24, 16"); d.e("s_add_u32 s62, s62, s59")
    d.e("v_lshrrev_b32 v13, 3, v0"); d.e("v_and_b32 v14, 7, v0"); d.e("v_bfe_u32 v15, v13, 1, 2"); d.e("v_lshlrev_b32 v15, 1, v15")
    d.e("v_xor_b32 v14, v14, v15"); d.e("v_lshlrev_b32 v14, 4, v14")
    d.e("s_movk_i32 s3, 1280"); d.e("v_mul_lo_u32 v2, v13, s3"); d.e("v_add_u32 v2, v2, v14")
    d.e("v_lshlrev_b32 v3, 13, v13"); d.e("v_add_u32 v3, v3, v14")
    NSD = 33; SL = 24576
    def stage_rows(st):
        return (st % 2, st // 2)
    def dmad(st):
        par, ks = stage_rows(st); slot = st % 6
        L = []
        r0 = 64 * ks + par
        L.append(("s", "s_add_u32 s31, s61, %d" % (r0 * 640)))
        for b in range(5):
            L.append(("s", "s_add_u32 m0, s34, %d" % (slot * SL + b * 4096 - 128 * b)))
            L.append(("l", "buffer_load_dwordx4 v2, s[8:11], s31 offen offset:%d lds" % (128 * b)))
        L.append(("s", "s_add_u32 s63, s62, %d" % (r0 * 4096)))
        L.append(("s", "s_add_u32 m0, s34, %d" % (slot * SL + 5 * 4096)))
        L.append(("l", "buffer_load_dwordx4 v3, s[12:15], s63 offen lds"))
        return L
    for st in range(5):
        for _, x in dmad(st): d.e(x)
        d.mark("dma")
    if o['cpf']:
        d.e("v_lshlrev_b32 v255, 7, v0"); d.e("s_lshl_b32 s3, s24, 13"); d.e("v_add_u32 v255, s3, v255")
        code_addr(d, 252, 255, "K2_dft1", "K2_dft2"); d.e(code_ld(254, 252))
        code_addr(d, 250, 255, "K2_dft2", "K2_dft3")
    if o['pfc'] == 1:
        d.e("v_lshrrev_b32 v13, 3, v0"); d.e("v_and_b32 v14, 7, v0"); d.e("v_lshlrev_b32 v14, 4, v14"); d.e("v_lshlrev_b32 v13, 12, v13"); d.e("v_add_u32 v192, v13, v14")
        d.e("s_mul_i32 s3, s24, %d" % (240 * 4096)); d.e("s_add_u32 s3, s3, s59"); d.e("s_add_u32 s3, s3, %d" % (128 * 4096)); d.e("v_add_u32 v192, s3, v192")
        for j in range(30):
            d.e("buffer_load_dwordx4 v[%d:%d], v192, s[12:15], 0 offen ; pf" % (224 + 4 * (j % 4), 227 + 4 * (j % 4)))
            if j < 29: d.e("v_add_u32 v192, 0x8000, v192")
    if o['pfc']:
        d.e("s_and_b32 s3, s28, 7"); d.e("s_lshl_b32 s3, s3, 2"); d.e("s_add_u32 s3, s3, s24"); d.e("s_mul_i32 s3, s3, 11520")
        d.e("v_add_u32 v192, s3, v11"); d.e("v_add_u32 v193, 4096, v192"); d.e("v_add_u32 v194, 8192, v192")
        for j in range(12):
            d.e("buffer_load_dwordx4 v[%d:%d], v%d, s[20:23], 0 offen offset:%d ; pf" % (224 + 4 * (j % 4), 227 + 4 * (j % 4), 192 + j // 4, (j % 4) * 1024))
    d.e("v_lshrrev_b32 v13, 2, v0"); d.e("v_and_b32 v15, 3, v0"); d.e("v_bfe_u32 v14, v13, 1, 2"); d.e("v_lshlrev_b32 v14, 1, v14")
    d.e("v_lshlrev_b32 v13, 7, v13"); d.e("v_and_b32 v1, 1, v15"); d.e("v_lshlrev_b32 v1, 3, v1"); d.e("v_add_u32 v13, v13, v1")
    d.e("v_lshrrev_b32 v15, 1, v15")
    for u in range(4):
        d.e("v_add_u32 v1, %d, v15" % (2 * u)); d.e("v_xor_b32 v1, v1, v14"); d.e("v_lshlrev_b32 v1, 4, v1"); d.e("v_add_u32 v1, v1, v13")
        d.e("v_add_u32 v%d, %d, v1" % (196 + u, 5 * 4096))
    for i in range(5):
        d.e("s_mul_i32 s3, s24, 5"); d.e("s_add_u32 s3, s3, %d" % i)
        d.e("s_and_b32 s46, s3, 3"); d.e("s_lshl_b32 s46, s46, 1"); d.e("s_lshr_b32 s47, s3, 2"); d.e("s_lshl_b32 s47, s47, 12")
        d.e("v_add_u32 v1, s46, v15"); d.e("v_xor_b32 v1, v1, v14"); d.e("v_lshlrev_b32 v1, 4, v1"); d.e("v_add_u32 v1, v1, v13")
        d.e("v_add_u32 v%d, s47, v1" % (200 + i))
    for q in range(9): d.e("v_add_u32 v%d, %d, v%d" % (205 + q, 3 * SL, 196 + q))
    for q in range(4): d.e("v_mov_b32 v%d, s60" % (216 + q))
    def frag(st, q):
        return (st % 2) * 36 + 4 * q
    def rdd(st, q, half):
        slot = st % 6; base = 196 + q
        if slot >= 3: base += 9; slot -= 3
        r = frag(st, q) + 2 * half
        return "ds_read_b64_tr_b16 a[%d:%d], v%d offset:%d" % (r, r + 1, base, slot * SL + half * 2048)
    d.waitmark("dma", 3); d.e("s_barrier")
    stamp(d, 1); stamp(d, 2)
    if o['cpf']: d.lab("K2_dft1")
    order = [4, 0, 1, 2, 3, 5, 6, 7, 8]
    for q in order: d.e(rdd(0, q, 0)); d.e(rdd(0, q, 1))
    for st in range(NSD):
        par, ks = stage_rows(st)
        mf = []
        for i in range(5):
            A = frag(st, 4 + i)
            for u in range(4):
                B = frag(st, u); D = 16 + par * 80 + (i * 4 + u) * 4
                C = "0" if ks == 0 else "v[%d:%d]" % (D, D + 3)
                mf.append(["v_mfma_f32_16x16x32_bf16 v[%d:%d], a[%d:%d], a[%d:%d], %s" % (D, D + 3, A, A + 3, B, B + 3, C)])
            if par == 0:
                D = 176 + 4 * i; C = "0" if ks == 0 else "v[%d:%d]" % (D, D + 3)
                mf.append(["v_mfma_f32_16x16x32_bf16 v[%d:%d], a[%d:%d], v[216:219], %s" % (D, D + 3, A, A + 3, C)])
        G = len(mf)
        gaps = [[] for _ in range(G)]
        fill = []
        if st + 1 < NSD:
            for q in order: fill += [rdd(st + 1, q, 0), rdd(st + 1, q, 1)]
        dm = dmad(st + 5) if st + 5 < NSD else []
        for g, x in enumerate(fill): gaps[g].append(x)
        if dm:
            pos = [2, 5, 8, 11, 14, 17]; li = 0; pendS = []
            for kind, x in dm:
                if kind == "s": pendS.append(x)
                else:
                    g = pos[li]; li += 1
                    for y in pendS: gaps[g - 1].append(y)
                    pendS = []
                    gaps[g].append(x)
            gaps[17].append(('mark', 'dma'))
        if o['cpf'] and st == o['cpd1']: gaps[19].append(code_ld(254, 250))
        emit_gaps(d, mf, gaps)
        if st + 2 <= NSD - 1:
            last_issued = min(st + 5, NSD - 1)
            d.waitmark("dma", last_issued - (st + 2)); d.e("s_barrier")
    d.e("s_barrier")
    stamp(d, 3)
    if o['cpf']:
        d.lab("K2_dft2")
        if o['cpk3']: code_addr(d, 252, 255, "final_kernel", "K3_end")
    d.e("s_mul_i32 s35, s24, %d" % (8 * 1152))
    for st in range(5):
        for su, ld in dma2(st, 320):
            for x in su: d.e(x)
            d.e(ld)
        d.mark("dma"); d.mark("w2_%d" % st)
    if o['m16']:
        d.e("s_and_b32 s46, s24, 1"); d.e("s_mul_i32 s3, s24, 5"); d.e("s_sub_u32 s3, s3, s46"); d.e("s_lshr_b32 s3, s3, 1")
        d.e("s_lshl_b32 s47, s46, 3")
        d.e("s_cmp_eq_u32 s46, 1"); d.e("s_cselect_b32 s56, 1024, 8"); d.e("s_cselect_b32 s57, 64, 8")
        d.e("s_lshl_b32 s58, s3, 10"); d.e("s_add_u32 s58, s58, %d" % HB)
        d.e("s_add_u32 s59, s58, s47"); d.e("v_add_u32 v7, s59, v11"); d.e("v_add_u32 v6, 40960, v7")
        d.e("s_add_u32 s59, s58, s56"); d.e("v_add_u32 v4, s59, v11"); d.e("v_add_u32 v3, 40960, v4")
        d.e("v_lshrrev_b32 v15, 4, v0"); d.e("v_lshlrev_b32 v15, 4, v15")
        d.e("s_lshl_b32 s58, s3, 6"); d.e("s_add_u32 s58, s58, %d" % HX)
        d.e("s_add_u32 s59, s58, s47"); d.e("v_add_u32 v5, s59, v15"); d.e("s_add_u32 s59, s58, s57"); d.e("v_add_u32 v2, s59, v15")
    else:
        d.e("v_lshrrev_b32 v13, 4, v0"); d.e("v_and_b32 v14, 15, v0"); d.e("v_and_b32 v15, 1, v13"); d.e("v_lshlrev_b32 v15, 5, v15"); d.e("v_add_u32 v14, v14, v15")
        d.e("v_lshlrev_b32 v14, 4, v14"); d.e("v_lshrrev_b32 v13, 1, v13"); d.e("v_lshlrev_b32 v1, 3, v13"); d.e("v_add_u32 v14, v14, v1")
        d.e("s_mul_i32 s3, s24, 5120"); d.e("s_add_u32 s3, s3, %d" % HB); d.e("v_add_u32 v7, s3, v14")
        d.e("v_add_u32 v6, 40960, v7")
        d.e("v_lshlrev_b32 v15, 4, v0"); d.e("v_lshrrev_b32 v15, 8, v15"); d.e("v_and_b32 v15, 1, v15"); d.e("v_lshlrev_b32 v15, 4, v15"); d.e("v_add_u32 v15, v15, v1")
        d.e("s_mul_i32 s3, s24, 160"); d.e("s_add_u32 s3, s3, %d" % HX); d.e("v_add_u32 v5, s3, v15")
    k = 0
    for i in range(5):
        for u in range(4):
            E = 16 + (i * 4 + u) * 4; O = E + 80
            t = 220 + 8 * (k % 4); k += 1
            for j in range(4):
                d.e("v_add_f32 v%d, v%d, v%d" % (t + j, E + j, O + j)); d.e("v_sub_f32 v%d, v%d, v%d" % (t + 4 + j, E + j, O + j))
            d.e("v_cvt_pk_bf16_f32 v%d, v%d, v%d" % (t, t, t + 1)); d.e("v_cvt_pk_bf16_f32 v%d, v%d, v%d" % (t + 1, t + 2, t + 3))
            d.e("v_cvt_pk_bf16_f32 v%d, v%d, v%d" % (t + 4, t + 4, t + 5)); d.e("v_cvt_pk_bf16_f32 v%d, v%d, v%d" % (t + 5, t + 6, t + 7))
            if o['m16']:
                off = (i // 2) * 1024 + u * 10240; ra, rb = (7, 6) if i % 2 == 0 else (4, 3)
                d.e("ds_write_b64 v%d, v[%d:%d] offset:%d" % (ra, t, t + 1, off)); d.e("ds_write_b64 v%d, v[%d:%d] offset:%d" % (rb, t + 4, t + 5, off))
                continue
            off = i * 1024 + (u >> 1) * 20480 + (u & 1) * 256
            d.e("ds_write_b64 v7, v[%d:%d] offset:%d" % (t, t + 1, off)); d.e("ds_write_b64 v6, v[%d:%d] offset:%d" % (t + 4, t + 5, off))
        X = 176 + 4 * i
        d.e("v_cvt_pk_bf16_f32 v%d, v%d, v%d" % (X, X, X + 1)); d.e("v_cvt_pk_bf16_f32 v%d, v%d, v%d" % (X + 1, X + 2, X + 3))
        if o['m16']: d.e("ds_write_b64 v%d, v[%d:%d] offset:%d" % (5 if i % 2 == 0 else 2, X, X + 1, (i // 2) * 64))
        else: d.e("ds_write_b64 v5, v[%d:%d] offset:%d" % (X, X + 1, i * 32))
    d.e("v_and_b32 v13, 31, v0"); d.e("v_lshrrev_b32 v14, 4, v13"); d.e("v_lshlrev_b32 v12, 10, v14")
    d.e("v_bfe_u32 v14, v13, 2, 1"); d.e("v_lshlrev_b32 v14, 9, v14"); d.e("v_add_u32 v12, v12, v14")
    d.e("v_bfe_u32 v14, v13, 3, 1"); d.e("v_lshlrev_b32 v14, 3, v14"); d.e("v_add_u32 v12, v12, v14")
    d.e("s_add_u32 s38, s28, 32"); d.e("s_mul_i32 s38, s38, %d" % T64B); d.e("s_lshl_b32 s3, s26, 12"); d.e("s_add_u32 s38, s38, s3")
    d.e("s_add_u32 s38, s38, %d" % (PART + 15 * SLOTB))
    d.waitmark("dma", 3); d.waitlg(0); d.e("s_barrier")
    stamp(d, 4)
    d.e("s_mul_i32 s3, s25, 40960"); d.e("s_add_u32 s3, s3, %d" % HB); d.e("v_add_u32 v1, s3, v11")
    d.e("v_lshrrev_b32 v13, %d, v0" % (4 if o['m16'] else 5)); d.e("v_lshlrev_b32 v13, 4, v13"); d.e("v_add_u32 v13, %d, v13" % HX)
    n0 = 0
    for n in range(LA[0] if o['m16'] else PF):
        d.e(rd2(n, 0, n0)); d.e(rd2(n, 1, n0))
    for kk, tq in (sorted(((kk, tq) for kk in range(10) for tq in range(5)), key=lambda z: (z[0] // 3, z[1], z[0])) if o['m16'] else []):
        j = kk * 4 + tq
        if tq < 4: d.e("ds_read_b128 a[%d:%d], v1 offset:%d" % (4 * j, 4 * j + 3, (tq * 10 + kk) * 1024))
        else: d.e("ds_read_b128 v[%d:%d], v13 offset:%d" % (112 + 4 * kk, 115 + 4 * kk, kk * 64))
    for kap in ([] if o['m16'] else range(20)):
        for n in range(2):
            j = kap * 2 + n
            d.e("ds_read_b128 a[%d:%d], v1 offset:%d" % (4 * j, 4 * j + 3, (n * 20 + kap) * 1024))
        r = (112 + 4 * kap) if kap < 16 else (192 + 4 * (kap - 16))
        d.e("ds_read_b128 v[%d:%d], v13 offset:%d" % (r, r + 3, kap * 32))
    stamp(d, 5)
    phase2(d, o, n0, 320, True)
    stamp(d, 6)
    if o['prof']: d.waitall()
    stamp(d, 7); prof_store(d, 1, 8, 8, 24, 14, 60)
    if o['cpf']: d.lab("K2_dft3")
    d.e("s_endpgm")
```

```python
import sys, argparse
from emit import *
import gen2
NAME = "recurrent_scan__spectral_fnet__swiglu_ffn__prompt"
XN   = 0x0
XEE  = 0x240000
XOO  = 0x300000
PART = 0x400000
SLOTB = 2359296
T64B = 73728
WS_BYTES = 0x4000000

class Kern:
    def __init__(self, label, grid, block, lds, vgpr, accum=None, sgpr=102):
        self.label = label; self.grid = grid; self.block = block; self.lds = lds
        self.vgpr = vgpr; self.accum = accum if accum else min(256, (vgpr + 3) // 4 * 4); self.sgpr = sgpr
        self.order = []
        self.paths = []
    def seg(self, name):
        s = Seg(name); self.order.append(s); return s
    def build(self, verbose=True):
        probs = resolve(self.paths)
        if probs:
            for p in probs[:20]: print("PROBLEM", self.label, p, file=sys.stderr)
            raise SystemExit("unresolved hazards")
        stats = []
        L = []
        for s in self.order: L += render(s, stats)
        if verbose:
            tot = sum(x[1] for x in stats)
            print("%s: %d lines, auto nops %d at %d places" % (self.label, len(L), tot, len(stats)), file=sys.stderr)
            if verbose > 1:
                for x in stats: print("   nop", x, file=sys.stderr)
        out = [".globl %s" % self.label, ".p2align 8", ".type %s,@function" % self.label, "%s:" % self.label]
        for l in L:
            out.append(l if l.endswith(':') else l)
        return "\n".join(out) + "\n"
    def desc(self):
        return (".amdhsa_kernel %s\n  .amdhsa_next_free_vgpr %d\n  .amdhsa_next_free_sgpr %d\n  .amdhsa_accum_offset %d\n"
                "  .amdhsa_group_segment_fixed_size 0\n  .amdhsa_kernarg_size 96\n  .amdhsa_user_sgpr_count 2\n"
                "  .amdhsa_user_sgpr_kernarg_segment_ptr 1\n  .amdhsa_system_sgpr_workgroup_id_x 1\n.end_amdhsa_kernel\n") % (
                self.label, self.vgpr, self.sgpr, self.accum)

PROF = 0x3800000
PROFON = [False]
def stamp(seg, i):
    if PROFON[0] == 3:
        seg.e("s_memrealtime s[%d:%d]" % (64 + 2 * i, 65 + 2 * i)); seg.e("s_memtime s[%d:%d]" % (80 + 2 * i, 81 + 2 * i))
    elif PROFON[0]: seg.e("%s s[%d:%d]" % ("s_memtime" if PROFON[0] == 2 else "s_memrealtime", 64 + 2 * i, 65 + 2 * i))
def prof_store(seg, kidx, n, wsrd, wave_s, va, tmp_s):
    if not PROFON[0]: return
    seg.waitall()
    seg.e("s_lshl_b32 s%d, s2, 2" % tmp_s); seg.e("s_add_u32 s%d, s%d, s%d" % (tmp_s, tmp_s, wave_s)); seg.e("s_lshl_b32 s%d, s%d, 7" % (tmp_s, tmp_s))
    seg.e("s_add_u32 s%d, s%d, %d" % (tmp_s, tmp_s, PROF + kidx * 0x80000))
    seg.e("s_mov_b64 exec, 1"); seg.e("v_mov_b32 v%d, 0" % (va + 2))
    for i in (list(range(n)) + (list(range(8, 8 + n)) if PROFON[0] == 3 else [])):
        seg.e("v_mov_b32 v%d, s%d" % (va, 64 + 2 * i)); seg.e("v_mov_b32 v%d, s%d" % (va + 1, 65 + 2 * i))
        seg.e("buffer_store_dwordx2 v[%d:%d], v%d, s[%d:%d], s%d offen offset:%d" % (va, va + 1, va + 2, wsrd, wsrd + 3, tmp_s, 8 * i))

def srd(k, d, lo, nbytes):
    k.e("s_mov_b32 s%d, s%d" % (d, lo)); k.e("s_mov_b32 s%d, s%d" % (d + 1, lo + 1))
    k.e("s_mov_b32 s%d, 0x%x" % (d + 2, nbytes)); k.e("s_mov_b32 s%d, 0x00020000" % (d + 3))

def gen_k1(o=None):
    o = o or {}
    k1pf = int(o.get('k1pf', 0))
    K = Kern("prep_kernel", (528, 1, 1), (256, 1, 1), 4 * 2304 + 1280, vgpr=104)
    k1s = int(o.get('k1s', 0)); k1u = int(o.get('k1u', 0))
    a = K.seg("k1_head")
    a.e("s_cmp_ge_u32 s2, 528"); a.e("s_cbranch_scc1 K1_end")
    stamp(a, 0)
    a.e("s_load_dwordx2 s[4:5], s[0:1], 0"); a.e("s_load_dwordx2 s[6:7], s[0:1], 88")
    if k1pf:
        a.e("s_load_dwordx4 s[40:43], s[0:1], 8"); a.e("s_load_dwordx2 s[44:45], s[0:1], 48")
        a.e("s_load_dwordx2 s[60:61], s[0:1], 56")
        if int(o.get('k1d', 0)): a.e("s_load_dwordx2 s[94:95], s[0:1], 64")
    a.e("v_lshrrev_b32 v1, 6, v0"); a.e("v_and_b32 v0, 63, v0"); a.e("v_readfirstlane_b32 s20, v1")
    a.e("v_and_b32 v2, 31, v0")
    a.e("v_lshrrev_b32 v3, 5, v0")
    a.waitlg(0)
    srd(a, 8, 4, 2359296); srd(a, 12, 6, WS_BYTES)
    a.e("s_cmp_ge_u32 s2, 256"); a.e("s_cbranch_scc1 K1_typeB_rows")
    k1m = int(o.get('k1m', 0))
    if k1m:
        a.e("s_and_b32 s21, s2, 1")
        if k1m == 2: a.e("s_xor_b32 s21, s21, 1")
        a.e("s_lshl_b32 s21, s21, 7"); a.e("s_lshr_b32 s22, s2, 1"); a.e("s_add_u32 s21, s21, s22"); a.e("s_lshl_b32 s21, s21, 3")
    else:
        a.e("s_lshl_b32 s21, s2, 3")
    a.e("s_lshl_b32 s22, s20, 1"); a.e("s_add_u32 s21, s21, s22"); a.e("s_add_u32 s22, s21, 1")
    a.e("s_branch K1_rows_done")
    b = K.seg("k1_brows"); b.lab("K1_typeB_rows")
    b.e("s_sub_u32 s23, s2, 256"); b.e("s_lshl_b32 s23, s23, 2"); b.e("s_add_u32 s23, s23, s20")
    b.e("s_cmp_gt_u32 s23, 1024"); b.e("s_cbranch_scc1 K1_zero")
    b.e("s_mov_b32 s21, s23"); b.e("s_sub_u32 s22, 2048, s23"); b.e("s_and_b32 s22, s22, 2047")
    c = K.seg("k1_ln"); c.lab("K1_rows_done")
    c.e("v_mov_b32 v4, s21"); c.e("v_mov_b32 v5, s22"); c.e("v_cmp_eq_u32 vcc, 1, v3"); c.e("v_cndmask_b32 v4, v4, v5, vcc")
    c.e("s_movk_i32 s24, 1152"); c.e("v_mul_lo_u32 v5, v4, s24"); c.e("v_lshlrev_b32 v6, 4, v2"); c.e("v_add_u32 v5, v5, v6")
    c.e("v_cmp_gt_u32 s[26:27], 8, v2")
    c.e("v_add_u32 v7, 1024, v5"); c.e("v_mov_b32 v8, 0x7fffffff"); c.e("v_cndmask_b32 v7, v8, v7, s[26:27]")
    c.e("buffer_load_dwordx4 v[8:11], v5, s[8:11], 0 offen")
    c.e("buffer_load_dwordx4 v[12:15], v5, s[8:11], 0 offen offset:512")
    c.e("buffer_load_dwordx4 v[16:19], v7, s[8:11], 0 offen")
    if k1pf:
        c.e("s_lshl_b32 s46, s2, 2"); c.e("s_add_u32 s46, s46, s20")
        c.e("s_sub_u32 s47, s46, 1088"); c.e("s_lshl_b32 s47, s47, 12"); c.e("s_add_u32 s47, s47, 3072"); c.e("s_lshl_b32 s48, s46, 12")
        c.e("s_cmp_lt_u32 s46, 1088"); c.e("s_cselect_b32 s47, s48, s47"); c.e("s_cselect_b32 s52, s40, s42"); c.e("s_cselect_b32 s53, s41, s43")
        c.e("s_mov_b32 s54, 0x%x" % (2048 * 4096)); c.e("s_mov_b32 s55, 0x00020000")
        c.e("v_lshlrev_b32 v84, 4, v0"); c.e("v_add_u32 v85, s47, v84")
        c.e("buffer_load_dwordx4 v[88:91], v85, s[52:55], 0 offen ; pf")
        if k1pf >= 2:
            c.e("s_mul_i32 s47, s46, 911"); c.e("s_lshr_b32 s47, s47, 16"); c.e("s_mul_i32 s48, s47, 72"); c.e("s_sub_u32 s48, s46, s48")
            gen2.p0_code(c, 47, 49, 50, int(o.get('ord', 0)))
            c.e("s_lshl_b32 s49, s49, 7"); c.e("s_mul_i32 s48, s48, %d" % (8 * 9216)); c.e("s_add_u32 s49, s49, s48")
            c.e("s_sub_u32 s50, s46, 119"); c.e("s_lshl_b32 s50, s50, 12"); c.e("s_add_u32 s50, s50, 3072")
            c.e("s_cmp_lt_u32 s46, 1207"); c.e("s_cselect_b32 s50, s50, 0x7ff00000")
            c.e("v_lshrrev_b32 v86, 3, v0"); c.e("v_and_b32 v87, 7, v0"); c.e("s_movk_i32 s48, 9216"); c.e("v_mul_lo_u32 v86, v86, s48"); c.e("v_lshlrev_b32 v87, 4, v87"); c.e("v_add_u32 v86, v86, v87")
            c.e("s_cmp_lt_u32 s46, 1080"); c.e("s_cselect_b32 s49, s49, s50"); c.e("s_cselect_b32 s56, s44, s42"); c.e("s_cselect_b32 s57, s45, s43")
            c.e("s_cselect_b32 s58, 0x%x, s54" % (576 * 9216)); c.e("s_mov_b32 s59, 0x00020000"); c.e("s_cselect_b64 vcc, -1, 0")
            c.e("v_cndmask_b32 v86, v84, v86, vcc"); c.e("v_add_u32 v86, s49, v86")
            c.e("buffer_load_dwordx4 v[92:95], v86, s[56:59], 0 offen ; pf")
        if k1s:
            G0 = int(o.get('k1sg', 0))
            c.e("s_sub_u32 s62, s46, %d" % G0)
            c.e("s_mul_i32 s47, s62, 3641"); c.e("s_lshr_b32 s47, s47, 16"); c.e("s_mul_i32 s48, s47, 18"); c.e("s_sub_u32 s48, s62, s48")
            c.e("s_and_b32 s49, s47, 1"); c.e("s_cmp_eq_u32 s49, 1"); c.e("s_cselect_b32 s72, s60, s44"); c.e("s_cselect_b32 s73, s61, s45")
            c.e("s_mov_b32 s74, 0x%x" % (576 * 9216)); c.e("s_mov_b32 s75, 0x00020000")
            c.e("s_lshr_b32 s49, s72, 7"); c.e("s_sub_u32 s49, 3, s49"); c.e("s_and_b32 s49, s49, 7")
            c.e("s_lshr_b32 s47, s47, 1"); c.e("s_lshl_b32 s47, s47, 3"); c.e("s_add_u32 s47, s47, s49"); c.e("s_lshl_b32 s47, s47, 7")
            c.e("s_mul_i32 s48, s48, %d" % (32 * 9216)); c.e("s_add_u32 s47, s47, s48")
            c.e("s_cmp_lt_u32 s62, 324"); c.e("s_cselect_b32 s47, s47, 0x7ff00000")
            c.e("v_lshrrev_b32 v96, 1, v0"); c.e("s_movk_i32 s48, 9216"); c.e("v_mul_lo_u32 v96, v96, s48"); c.e("v_and_b32 v97, 1, v0"); c.e("v_lshlrev_b32 v97, 6, v97")
            c.e("v_add_u32 v96, v96, v97"); c.e("v_add_u32 v96, s47, v96")
            c.e("buffer_load_dword v98, v96, s[72:75], 0 offen ; pf")
        if k1u:
            c.e("s_sub_u32 s62, s46, 1032")
            c.e("s_mul_i32 s47, s62, 911"); c.e("s_lshr_b32 s47, s47, 16"); c.e("s_mul_i32 s48, s47, 72"); c.e("s_sub_u32 s48, s62, s48")
            gen2.p0_code(c, 47, 49, 50, int(o.get('ord', 0)))
            c.e("s_lshl_b32 s49, s49, 7"); c.e("s_mul_i32 s48, s48, %d" % (8 * 9216)); c.e("s_add_u32 s49, s49, s48")
            c.e("s_cmp_lt_u32 s62, 1080"); c.e("s_cselect_b32 s49, s49, 0x7ff00000")
            c.e("s_mov_b32 s76, s60"); c.e("s_mov_b32 s77, s61"); c.e("s_mov_b32 s78, 0x%x" % (576 * 9216)); c.e("s_mov_b32 s79, 0x00020000")
            c.e("v_lshrrev_b32 v96, 3, v0"); c.e("v_and_b32 v97, 7, v0"); c.e("s_movk_i32 s48, 9216"); c.e("v_mul_lo_u32 v96, v96, s48"); c.e("v_lshlrev_b32 v97, 4, v97"); c.e("v_add_u32 v96, v96, v97")
            c.e("v_add_u32 v96, s49, v96")
            c.e("buffer_load_dwordx4 v[100:103], v96, s[76:79], 0 offen ; pf")
    k1d = int(o.get('k1d', 0))
    if k1d:
        c.e("s_lshr_b32 s47, s2, 3"); c.e("s_lshl_b32 s47, s47, 2"); c.e("s_add_u32 s47, s47, s20")
        c.e("s_mul_i32 s48, s47, 3121"); c.e("s_lshr_b32 s48, s48, 16"); c.e("s_mul_i32 s49, s48, 21"); c.e("s_sub_u32 s49, s47, s49")
        c.e("s_lshl_b32 s49, s49, 18"); c.e("s_cmp_lt_u32 s47, %d" % (21 * k1d)); c.e("s_cselect_b32 s49, s49, 0x7ff00000")
        c.e("s_cmp_eq_u32 s48, 1"); c.e("s_cselect_b32 s68, s60, s94"); c.e("s_cselect_b32 s69, s61, s95")
        c.e("s_cmp_eq_u32 s48, 2"); c.e("s_cselect_b32 s68, s44, s68"); c.e("s_cselect_b32 s69, s45, s69")
        c.e("s_mov_b32 s70, 0x%x" % (576 * 9216)); c.e("s_mov_b32 s71, 0x00020000")
        c.e("v_lshlrev_b32 v98, 12, v0"); c.e("v_add_u32 v98, s49, v98")
        c.e("buffer_load_dword v99, v98, s[68:71], 0 offen ; pf")
    if int(o.get('cpk1', 0)):
        nw = int(o.get('cpk1', 0))
        c.e("s_getpc_b64 s[86:87]"); c.lab("K1_pc")
        c.e("s_mov_b32 s88, main_kernel-K1_pc"); c.e("s_mov_b32 s89, K2_tail320-K1_pc-4"); c.e("s_bitcmp1_b32 s2, 3")
        c.e("s_cselect_b32 s88, K2_dft-K1_pc, s88"); c.e("s_cselect_b32 s89, K2_dft2-K1_pc-4, s89")
        c.e("v_lshlrev_b32 v80, 7, v0"); c.e("s_lshl_b32 s90, s20, 13"); c.e("s_add_u32 s88, s88, s90")
        c.e("s_cmp_ge_u32 s2, %d" % (16 * nw)); c.e("s_cselect_b32 s89, 0, s89")
        c.e("v_add_u32 v80, s88, v80"); c.e("v_min_u32 v80, s89, v80")
        c.e("v_add_co_u32 v80, s[90:91], s86, v80"); c.e("v_mov_b32 v81, s87"); c.e("v_addc_co_u32 v81, s[90:91], 0, v81, s[90:91]")
        c.e("global_load_dword v82, v[80:81], off ; pf")
    for i in range(60, 80): c.e("v_mov_b32 v%d, 0" % i)
    for q in range(12):
        c.e("v_lshlrev_b32 v%d, 16, v%d" % (20 + 2 * q, 8 + q)); c.e("v_and_b32 v%d, 0xffff0000, v%d" % (21 + 2 * q, 8 + q))
    c.e("v_add_f32 v44, v20, v21"); c.e("v_add_f32 v45, v22, v23"); c.e("v_add_f32 v46, v24, v25"); c.e("v_add_f32 v47, v26, v27")
    for q in range(8, 24, 4):
        for r in range(4): c.e("v_add_f32 v%d, v%d, v%d" % (44 + r, 44 + r, 20 + q + r))
    c.e("v_add_f32 v44, v44, v45"); c.e("v_add_f32 v46, v46, v47"); c.e("v_add_f32 v44, v44, v46")
    def reduce32(r, t):
        c.e("v_add_f32_dpp v%d, v%d, v%d quad_perm:[1,0,3,2] row_mask:0xf bank_mask:0xf" % (r, r, r))
        c.e("v_add_f32_dpp v%d, v%d, v%d quad_perm:[2,3,0,1] row_mask:0xf bank_mask:0xf" % (r, r, r))
        c.e("v_add_f32_dpp v%d, v%d, v%d row_half_mirror row_mask:0xf bank_mask:0xf" % (r, r, r))
        c.e("v_add_f32_dpp v%d, v%d, v%d row_mirror row_mask:0xf bank_mask:0xf" % (r, r, r))
        c.e("v_mov_b32 v%d, v%d" % (t, r))
        c.e("v_permlane16_swap_b32 v%d, v%d" % (r, t))
        c.e("v_add_f32 v%d, v%d, v%d" % (r, r, t))
    reduce32(44, 45)
    c.e("s_mov_b32 s25, 0x3ae38e39")
    c.e("v_mul_f32 v44, s25, v44")
    c.e("v_mov_b32 v46, 0"); c.e("v_mov_b32 v47, 0")
    for q in range(16):
        c.e("v_sub_f32 v%d, v%d, v44" % (48 + (q % 4), 20 + q)); c.e("v_fmac_f32 v%d, v%d, v%d" % (46 + (q % 2), 48 + (q % 4), 48 + (q % 4)))
    c.e("s_mov_b64 exec, s[26:27]")
    for q in range(16, 24):
        c.e("v_sub_f32 v%d, v%d, v44" % (48 + (q % 4), 20 + q)); c.e("v_fmac_f32 v%d, v%d, v%d" % (46 + (q % 2), 48 + (q % 4), 48 + (q % 4)))
    c.e("s_mov_b64 exec, -1")
    c.e("v_add_f32 v46, v46, v47")
    reduce32(46, 47)
    c.e("v_mul_f32 v46, s25, v46")
    c.e("v_cvt_pk_bf16_f32 v46, v46, v44")
    c.e("v_and_b32 v44, 0xffff0000, v46")
    c.e("v_lshlrev_b32 v46, 16, v46")
    c.e("v_add_f32 v46, 0x3727c5ac, v46")
    c.e("v_cvt_pk_bf16_f32 v46, v46, v46"); c.e("v_lshlrev_b32 v46, 16, v46")
    c.e("v_sqrt_f32 v46, v46")
    c.e("v_cvt_pk_bf16_f32 v46, v46, v46"); c.e("v_lshlrev_b32 v46, 16, v46")
    c.e("v_rcp_f32 v46, v46")
    for q in range(24): c.e("v_sub_f32 v%d, v%d, v44" % (20 + q, 20 + q))
    for q in range(12): c.e("v_cvt_pk_bf16_f32 v%d, v%d, v%d" % (8 + q, 20 + 2 * q, 21 + 2 * q))
    for q in range(12):
        c.e("v_lshlrev_b32 v%d, 16, v%d" % (20 + 2 * q, 8 + q)); c.e("v_and_b32 v%d, 0xffff0000, v%d" % (21 + 2 * q, 8 + q))
    for q in range(24): c.e("v_mul_f32 v%d, v%d, v46" % (20 + q, 20 + q))
    for q in range(12): c.e("v_cvt_pk_bf16_f32 v%d, v%d, v%d" % (8 + q, 20 + 2 * q, 21 + 2 * q))
    c.e("s_cmp_ge_u32 s2, 256"); c.e("s_cbranch_scc1 K1_typeB")
    d = K.seg("k1_storeA")
    d.e("v_lshrrev_b32 v20, 6, v4"); d.e("s_mov_b32 s24, %d" % T64B); d.e("v_mul_lo_u32 v20, v20, s24")
    if int(o.get('m16', 0)):
        d.e("v_lshrrev_b32 v21, 2, v2"); d.e("v_lshlrev_b32 v21, 12, v21"); d.e("v_add_u32 v20, v20, v21")
        d.e("v_bfe_u32 v21, v4, 4, 2"); d.e("v_lshlrev_b32 v21, 10, v21"); d.e("v_add_u32 v20, v20, v21")
        d.e("v_and_b32 v21, 3, v2"); d.e("v_lshlrev_b32 v21, 8, v21"); d.e("v_add_u32 v20, v20, v21")
        d.e("v_and_b32 v21, 15, v4"); d.e("v_lshlrev_b32 v21, 4, v21"); d.e("v_add_u32 v20, v20, v21")
    else:
        d.e("v_lshrrev_b32 v21, 1, v2"); d.e("v_lshlrev_b32 v21, 11, v21"); d.e("v_add_u32 v20, v20, v21")
        d.e("v_bfe_u32 v21, v4, 5, 1"); d.e("v_lshlrev_b32 v21, 10, v21"); d.e("v_add_u32 v20, v20, v21")
        d.e("v_and_b32 v21, 1, v2"); d.e("v_lshlrev_b32 v21, 9, v21"); d.e("v_add_u32 v20, v20, v21")
        d.e("v_and_b32 v21, 31, v4"); d.e("v_lshlrev_b32 v21, 4, v21"); d.e("v_add_u32 v20, v20, v21")
    d.e("s_mov_b32 s28, %d" % (XN + 32768)); d.e("s_mov_b32 s29, %d" % (XN + 65536)); d.e("s_mov_b32 s30, %d" % XN)
    k1st = o.get('k1st', '').replace('+', ' ')
    d.e("buffer_store_dwordx4 v[8:11], v20, s[12:15], s30 offen %s" % k1st)
    d.e("buffer_store_dwordx4 v[12:15], v20, s[12:15], s28 offen %s" % k1st)
    d.e("s_mov_b64 exec, s[26:27]")
    d.e("buffer_store_dwordx4 v[16:19], v20, s[12:15], s29 offen %s" % k1st)
    if PROFON[0]: d.waitall()
    stamp(d, 1); prof_store(d, 0, 2, 12, 20, 44, 40)
    d.e("s_endpgm")
    f = K.seg("k1_typeB"); f.lab("K1_typeB")
    f.e("s_mul_i32 s28, s20, 2304")
    f.e("s_movk_i32 s24, 1152"); f.e("v_mul_lo_u32 v20, v3, s24"); f.e("v_lshlrev_b32 v21, 4, v2"); f.e("v_add_u32 v20, v20, v21"); f.e("v_add_u32 v20, s28, v20")
    f.e("ds_write_b128 v20, v[8:11]"); f.e("ds_write_b128 v20, v[12:15] offset:512")
    f.e("s_mov_b64 exec, s[26:27]"); f.e("ds_write_b128 v20, v[16:19] offset:1024"); f.e("s_mov_b64 exec, -1")
    f.e("v_lshlrev_b32 v21, 1, v0"); f.e("v_add_u32 v22, s28, v21")
    f.e("v_sub_u32 v23, 640, v21"); f.e("v_add_u32 v23, s28, v23")
    f.waitlg(0)
    for i in range(5):
        f.e("ds_read_u16_d16_hi v%d, v22 offset:%d" % (60 + i, 128 * i))
        f.e("ds_read_u16_d16_hi v%d, v22 offset:%d" % (65 + i, 1152 + 128 * i))
        f.e("ds_read_u16_d16_hi v%d, v23 offset:%d" % (70 + i, 512 - 128 * i))
        f.e("ds_read_u16_d16_hi v%d, v23 offset:%d" % (75 + i, 1152 + 512 - 128 * i))
    f.e("s_and_b32 s29, s23, 1023"); f.e("s_cmp_lg_u32 s29, 0"); f.e("s_cselect_b32 s29, 1.0, 0")
    f.e("v_cmp_ne_u32 s[30:31], 0, v0")
    f.e("v_cmp_gt_u32 s[32:33], 32, v0")
    f.e("v_cmp_ge_u32 s[34:35], 32, v0")
    f.e("s_mul_i32 s36, s23, 640"); f.e("s_add_u32 s37, s36, %d" % XOO); f.e("s_add_u32 s36, s36, %d" % XEE)
    for i in range(5):
        A, B, A2, B2 = 60 + i, 65 + i, 70 + i, 75 + i
        t0, t1, o0, o1 = 20 + 4 * i + 4, 21 + 4 * i + 4, 22 + 4 * i + 4, 23 + 4 * i + 4
        f.e("v_fma_f32 v%d, v%d, s29, v%d" % (t0, B, A))
        f.e("v_fma_f32 v%d, v%d, s29, v%d" % (t1, B2, A2))
        f.e("v_sub_f32 v%d, v%d, v%d" % (o0, A, B)); f.e("v_sub_f32 v%d, v%d, v%d" % (o1, A2, B2))
        if i == 0:
            f.e("v_cndmask_b32 v%d, 0, v%d, s[30:31]" % (t1, t1))
        if i == 4:
            f.e("v_cndmask_b32 v%d, 0, v%d, s[32:33]" % (t1, t1))
        f.e("v_add_f32 v%d, v%d, v%d" % (t0, t0, t1)); f.e("v_sub_f32 v%d, v%d, v%d" % (o0, o0, o1))
        if i == 0:
            f.e("v_cndmask_b32 v%d, 0, v%d, s[30:31]" % (o0, o0))
        if i == 4:
            f.e("v_cndmask_b32 v%d, 0, v%d, s[34:35]" % (t0, t0)); f.e("v_cndmask_b32 v%d, 0, v%d, s[32:33]" % (o0, o0))
        f.e("v_cvt_pk_bf16_f32 v%d, v%d, v%d" % (t0, t0, o0))
        f.e("buffer_store_short v%d, v21, s[12:15], s36 offen offset:%d" % (t0, 128 * i))
        f.e("buffer_store_short_d16_hi v%d, v21, s[12:15], s37 offen offset:%d" % (t0, 128 * i))
    if PROFON[0]: f.waitall()
    stamp(f, 1); prof_store(f, 0, 2, 12, 20, 44, 40)
    f.e("s_endpgm")
    z = K.seg("k1_zero"); z.lab("K1_zero")
    z.e("v_mov_b32 v20, 0"); z.e("v_lshlrev_b32 v21, 1, v0")
    z.e("s_mul_i32 s36, s23, 640"); z.e("s_add_u32 s37, s36, %d" % XOO); z.e("s_add_u32 s36, s36, %d" % XEE)
    for i in range(5):
        z.e("buffer_store_short v20, v21, s[12:15], s36 offen offset:%d" % (128 * i))
        z.e("buffer_store_short v20, v21, s[12:15], s37 offen offset:%d" % (128 * i))
    z.lab("K1_end"); z.e("s_endpgm")
    K.paths = [[a, c, d], [a, b, c, f], [a, b, z]]
    return K

def gen_k3(o=None):
    o = o or {}
    nodot = int(o.get('k3nodot', 0))
    K = Kern("final_kernel", (256, 1, 1), (576, 1, 1), 0, vgpr=128)
    a = K.seg("k3")
    a.e("s_cmp_ge_u32 s2, 256"); a.e("s_cbranch_scc1 K3_end")
    stamp(a, 0)
    a.e("s_load_dwordx2 s[6:7], s[0:1], 88"); a.e("s_load_dwordx2 s[4:5], s[0:1], 0"); a.e("s_load_dwordx2 s[16:17], s[0:1], 72")
    a.e("v_lshrrev_b32 v1, 6, v0"); a.e("v_and_b32 v0, 63, v0"); a.e("v_readfirstlane_b32 s20, v1")
    m16 = int(o.get('m16', 0))
    if m16:
        a.e("s_lshr_b32 s21, s2, 3"); a.e("s_bfe_u32 s22, s2, 0x20001"); a.e("s_and_b32 s23, s2, 1"); a.e("s_mul_i32 s23, s23, 9"); a.e("s_add_u32 s23, s23, s20")
        a.e("s_lshl_b32 s24, s23, 12")
        a.e("s_mul_i32 s26, s21, %d" % T64B); a.e("s_lshl_b32 s25, s22, 10"); a.e("s_add_u32 s26, s26, s25"); a.e("s_add_u32 s26, s26, s24"); a.e("s_add_u32 s26, s26, %d" % PART)
    else:
        a.e("s_lshr_b32 s21, s2, 3"); a.e("s_bfe_u32 s22, s2, 0x10002"); a.e("s_and_b32 s23, s2, 3"); a.e("s_mul_i32 s23, s23, 9"); a.e("s_add_u32 s23, s23, s20")
        a.e("s_lshr_b32 s24, s23, 1"); a.e("s_lshl_b32 s24, s24, 12"); a.e("s_and_b32 s25, s23, 1"); a.e("s_lshl_b32 s25, s25, 10"); a.e("s_add_u32 s24, s24, s25")
        a.e("s_mul_i32 s26, s21, %d" % T64B); a.e("s_lshl_b32 s25, s22, 11"); a.e("s_add_u32 s26, s26, s25"); a.e("s_add_u32 s26, s26, s24"); a.e("s_add_u32 s26, s26, %d" % PART)
    a.e("v_lshlrev_b32 v5, 4, v0")
    for i in range(15):
        a.e("s_add_u32 s%d, s26, %d" % (40 + i, i * SLOTB))
    a.waitlg(0)
    srd(a, 12, 6, WS_BYTES)
    for i in range(15):
        a.e("buffer_load_dwordx4 v[%d:%d], v5, s[12:15], s%d offen" % (32 + 4 * i, 35 + 4 * i, 40 + i))
    srd(a, 8, 4, 2359296); srd(a, 28, 16, 2359296)
    if m16:
        a.e("v_and_b32 v3, 15, v0"); a.e("v_lshrrev_b32 v4, 4, v0")
        a.e("s_lshl_b32 s25, s21, 6"); a.e("s_lshl_b32 s27, s22, 4"); a.e("s_add_u32 s25, s25, s27"); a.e("v_add_u32 v2, s25, v3")
        a.e("s_movk_i32 s27, 1152"); a.e("v_mul_lo_u32 v8, v2, s27"); a.e("v_lshlrev_b32 v9, 4, v4"); a.e("v_add_u32 v8, v8, v9"); a.e("s_lshl_b32 s27, s23, 6"); a.e("v_add_u32 v8, s27, v8")
        a.e("v_lshlrev_b32 v4, 8, v4"); a.e("v_add_u32 v4, s24, v4")
    else:
        a.e("v_and_b32 v3, 31, v0"); a.e("v_lshrrev_b32 v4, 5, v0")
        a.e("s_lshl_b32 s25, s21, 6"); a.e("s_lshl_b32 s27, s22, 5"); a.e("s_add_u32 s25, s25, s27"); a.e("v_add_u32 v2, s25, v3")
        a.e("s_movk_i32 s27, 1152"); a.e("v_mul_lo_u32 v8, v2, s27"); a.e("v_lshlrev_b32 v9, 4, v4"); a.e("v_add_u32 v8, v8, v9"); a.e("s_lshl_b32 s27, s23, 5"); a.e("v_add_u32 v8, s27, v8")
        a.e("v_lshlrev_b32 v4, 9, v4"); a.e("v_add_u32 v4, s24, v4")
    a.e("s_mov_b32 s26, %d" % T64B)
    def fragaddr(dst, T64, tok, tmp):
        a.e("v_mul_lo_u32 v%d, v%d, s26" % (dst, T64))
        if m16:
            a.e("v_bfe_u32 v%d, v%d, 4, 2" % (tmp, tok)); a.e("v_lshlrev_b32 v%d, 10, v%d" % (tmp, tmp)); a.e("v_add_u32 v%d, v%d, v%d" % (dst, dst, tmp))
            a.e("v_and_b32 v%d, 15, v%d" % (tmp, tok)); a.e("v_lshlrev_b32 v%d, 4, v%d" % (tmp, tmp)); a.e("v_add_u32 v%d, v%d, v%d" % (dst, dst, tmp))
        else:
            a.e("v_bfe_u32 v%d, v%d, 5, 1" % (tmp, tok)); a.e("v_lshlrev_b32 v%d, 11, v%d" % (tmp, tmp)); a.e("v_add_u32 v%d, v%d, v%d" % (dst, dst, tmp))
            a.e("v_and_b32 v%d, 31, v%d" % (tmp, tok)); a.e("v_lshlrev_b32 v%d, 4, v%d" % (tmp, tmp)); a.e("v_add_u32 v%d, v%d, v%d" % (dst, dst, tmp))
        a.e("v_add_u32 v%d, v%d, v4" % (dst, dst))
    a.e("v_sub_u32 v9, 2048, v2"); a.e("v_cmp_ge_u32 vcc, 1024, v2"); a.e("v_cndmask_b32 v9, v9, v2, vcc")
    a.e("v_mov_b32 v10, -1.0"); a.e("v_mov_b32 v11, 1.0"); a.e("v_cndmask_b32 v10, v10, v11, vcc")
    a.e("v_sub_u32 v11, 1024, v9"); a.e("v_cmp_gt_u32 vcc, 512, v9")
    a.e("v_cndmask_b32 v12, v11, v9, vcc")
    a.e("v_cndmask_b32 v13, 1, 0, vcc")
    a.e("v_lshrrev_b32 v14, 6, v12"); a.e("v_lshlrev_b32 v14, 1, v14"); a.e("v_add_u32 v14, v14, v13")
    a.e("v_and_b32 v12, 63, v12")
    a.e("v_cmp_eq_u32 vcc, 512, v9"); a.e("v_cndmask_b32 v14, v14, 32, vcc"); a.e("v_cndmask_b32 v12, v12, 0, vcc")
    fragaddr(15, 14, 12, 7)
    a.e("s_mov_b32 s55, %d" % (PART + 15 * SLOTB))
    a.e("buffer_load_dwordx4 v[92:95], v15, s[12:15], s55 offen")
    a.e("v_sub_u32 v11, 512, v9"); a.e("v_subrev_u32 v12, 512, v9"); a.e("v_cmp_ge_u32 vcc, 512, v9")
    a.e("v_cndmask_b32 v12, v12, v11, vcc"); a.e("v_cndmask_b32 v13, 1, 0, vcc")
    a.e("v_mov_b32 v11, -1.0"); a.e("v_cndmask_b32 v11, v11, 1.0, vcc"); a.e("v_mul_f32 v10, v10, v11")
    a.e("v_lshrrev_b32 v14, 6, v12"); a.e("v_lshlrev_b32 v14, 1, v14"); a.e("v_add_u32 v14, v14, v13"); a.e("v_add_u32 v14, 16, v14")
    a.e("v_and_b32 v12, 63, v12")
    a.e("v_and_b32 v11, 1023, v9"); a.e("v_cmp_eq_u32 vcc, 0, v11"); a.e("v_cndmask_b32 v14, v14, 40, vcc"); a.e("v_cndmask_b32 v12, v12, 0, vcc")
    fragaddr(16, 14, 12, 7)
    a.e("buffer_load_dwordx4 v[96:99], v16, s[12:15], s55 offen")
    a.e("buffer_load_dwordx4 v[100:103], v8, s[8:11], 0 offen")
    a.e("s_mov_b32 s56, 0x00003f80"); a.e("s_mov_b32 s57, 0x3f800000")
    for q in range(4):
        a.e("v_lshlrev_b32 v%d, 16, v%d" % (20 + 2 * q, 32 + q)); a.e("v_and_b32 v%d, 0xffff0000, v%d" % (21 + 2 * q, 32 + q))
    for i in range(1, 15):
        if nodot:
            for q in range(4):
                a.e("v_lshlrev_b32 v%d, 16, v%d" % (104 + 2 * q, 32 + 4 * i + q)); a.e("v_and_b32 v%d, 0xffff0000, v%d" % (105 + 2 * q, 32 + 4 * i + q))
            for q in range(8): a.e("v_add_f32 v%d, v%d, v%d" % (20 + q, 20 + q, 104 + q))
        else:
            for q in range(4):
                a.e("v_dot2_f32_bf16 v%d, v%d, s56, v%d" % (20 + 2 * q, 32 + 4 * i + q, 20 + 2 * q))
                a.e("v_dot2_f32_bf16 v%d, v%d, s57, v%d" % (21 + 2 * q, 32 + 4 * i + q, 21 + 2 * q))
    for q in range(4): a.e("v_cvt_pk_bf16_f32 v%d, v%d, v%d" % (32 + q, 20 + 2 * q, 21 + 2 * q))
    for q in range(4):
        a.e("v_lshlrev_b32 v%d, 16, v%d" % (20 + 2 * q, 32 + q)); a.e("v_and_b32 v%d, 0xffff0000, v%d" % (21 + 2 * q, 32 + q))
    a.e("s_mov_b32 s58, 0xbfb8aa3b")
    for q in range(8): a.e("v_mul_f32 v%d, s58, v%d" % (40 + q, 20 + q))
    for q in range(8): a.e("v_exp_f32 v%d, v%d" % (40 + q, 40 + q))
    for q in range(8): a.e("v_add_f32 v%d, 1.0, v%d" % (40 + q, 40 + q))
    for q in range(8): a.e("v_rcp_f32 v%d, v%d" % (40 + q, 40 + q))
    for q in range(8): a.e("v_mul_f32 v%d, v%d, v%d" % (20 + q, 20 + q, 40 + q))
    for q in range(4): a.e("v_cvt_pk_bf16_f32 v%d, v%d, v%d" % (32 + q, 20 + 2 * q, 21 + 2 * q))
    for q in range(4):
        a.e("v_lshlrev_b32 v%d, 16, v%d" % (20 + 2 * q, 32 + q)); a.e("v_and_b32 v%d, 0xffff0000, v%d" % (21 + 2 * q, 32 + q))
    for q in range(4):
        a.e("v_lshlrev_b32 v%d, 16, v%d" % (40 + 2 * q, 92 + q)); a.e("v_and_b32 v%d, 0xffff0000, v%d" % (41 + 2 * q, 92 + q))
        a.e("v_lshlrev_b32 v%d, 16, v%d" % (48 + 2 * q, 96 + q)); a.e("v_and_b32 v%d, 0xffff0000, v%d" % (49 + 2 * q, 96 + q))
    for q in range(8): a.e("v_fma_f32 v%d, v%d, v10, v%d" % (40 + q, 48 + q, 40 + q))
    for q in range(4): a.e("v_cvt_pk_bf16_f32 v%d, v%d, v%d" % (36 + q, 40 + 2 * q, 41 + 2 * q))
    for q in range(4):
        a.e("v_lshlrev_b32 v%d, 16, v%d" % (40 + 2 * q, 36 + q)); a.e("v_and_b32 v%d, 0xffff0000, v%d" % (41 + 2 * q, 36 + q))
    for q in range(8): a.e("v_mul_f32 v%d, v%d, v%d" % (40 + q, 40 + q, 20 + q))
    for q in range(4): a.e("v_cvt_pk_bf16_f32 v%d, v%d, v%d" % (36 + q, 40 + 2 * q, 41 + 2 * q))
    if m16:
        a.e("v_permlane32_swap_b32 v36, v38"); a.e("v_permlane32_swap_b32 v37, v39")
        a.e("v_permlane16_swap_b32 v36, v38"); a.e("v_permlane16_swap_b32 v37, v39")
    for q in range(4):
        a.e("v_lshlrev_b32 v%d, 16, v%d" % (40 + 2 * q, 36 + q)); a.e("v_and_b32 v%d, 0xffff0000, v%d" % (41 + 2 * q, 36 + q))
        a.e("v_lshlrev_b32 v%d, 16, v%d" % (48 + 2 * q, 100 + q)); a.e("v_and_b32 v%d, 0xffff0000, v%d" % (49 + 2 * q, 100 + q))
    for q in range(8): a.e("v_add_f32 v%d, v%d, v%d" % (40 + q, 40 + q, 48 + q))
    for q in range(4): a.e("v_cvt_pk_bf16_f32 v%d, v%d, v%d" % (36 + q, 40 + 2 * q, 41 + 2 * q))
    a.e("buffer_store_dwordx4 v[36:39], v8, s[28:31], 0 offen")
    if PROFON[0]: a.waitall()
    stamp(a, 1)
    if PROFON[0]:
        a.e("s_cmp_ge_u32 s20, 4"); a.e("s_cbranch_scc1 K3_end")
    prof_store(a, 2, 2, 12, 20, 44, 60)
    a.lab("K3_end"); a.e("s_endpgm")
    K.paths = [[a]]
    return K

OPTS = ['']
def write_file(path, kernels, launches=None):
    s = ("; Kernarg layout (96 bytes, ptrs only, base s[0:1]):\n"
         ";   0 A_x (2048x576 bf16)  8 dft_seq_re (2048x2048)  16 dft_seq_im  24 dft_hid_re (576x576)  32 dft_hid_im\n"
         ";   40 B_x (unused)  48 w_gate (576x4608)  56 w_up  64 w_down (4608x576)  72 d_out  80 d_debug  88 d_ws\n")
    for k in (launches or kernels):
        s += "; @launch kernel=%s grid=(%d,%d,%d) block=(%d,%d,%d) lds=%d\n" % ((k.label,) + k.grid + k.block + (k.lds,))
    s += "; opts: %s\n" % OPTS[0]
    s += '.amdgcn_target "amdgcn-amd-amdhsa--gfx950"\n.text\n'
    for k in kernels: s += k.text_out
    s += '.section .rodata,"a"\n'
    for k in kernels: s += ".p2align 6\n" + k.desc()
    open(path, "w").write(s)
    print("wrote", path, len(s), "bytes", file=sys.stderr)

if __name__ == "__main__":
    ap = argparse.ArgumentParser()
    ap.add_argument("out"); ap.add_argument("-v", type=int, default=1); ap.add_argument("--only", default="123")
    ap.add_argument("--opt", default="")
    args = ap.parse_args()
    opts = dict(x.split("=") for x in args.opt.split(",") if x)
    OPTS[0] = args.opt
    import gen2
    if opts.get("wsb"):
        b = int(opts["wsb"], 0)
        XN += b; XEE += b; XOO += b; PART += b; WS_BYTES = 0x10000000
        gen2.XN += b; gen2.XEE += b; gen2.XOO += b; gen2.PART += b; gen2.WS_BYTES = WS_BYTES
    if opts.get("prof"): PROFON[0] = int(opts["prof"])
    ks = []
    if "1" in args.only: ks.append(gen_k1(opts))
    if "2" in args.only:
        import gen2
        gen2.stamp = stamp; gen2.prof_store = prof_store
        ks.append(gen2.gen_k2(Kern, srd, opts))
    if "3" in args.only: ks.append(gen_k3(opts))
    for k in ks: k.text_out = k.build(args.v)
    write_file(args.out, ks)
```

```python
from emit import *
XN   = 0x0
XEE  = 0x240000
XOO  = 0x300000
PART = 0x400000
SLOTB = 2359296
T64B = 73728
WS_BYTES = 0x4000000
SLOT = 12288; NS = 6
HB = 73728
HX = HB + 81920
LDS_BYTES = HX + 1024
PF = 3
NF = 8
CNEG = 33
NS2 = [6]
M16 = [0]
LA = [4]
def stamp(seg, i): pass
def prof_store(*a): pass

def wt(ins, o):
    if ins.startswith("v_exp") or ins.startswith("v_rcp"): return o['wtrans']
    if ins.startswith("s_"): return o['wsalu']
    return 1.0

def spread(gaps, queue, o, start=0, end=None):
    if not queue: return
    G = len(gaps) if end is None else end
    idx = list(range(start, G))
    load = {g: sum(wt(i, o) for i in gaps[g] if isinstance(i, str)) for g in idx}
    tot = sum(load.values()) + sum(wt(i, o) for i in queue)
    p = 0; cum = load[idx[0]]
    for ins in queue:
        w = wt(ins, o)
        while p < len(idx) - 1 and cum + w * 0.5 > tot * (p + 1) / len(idx):
            p += 1; cum += load[idx[p]]
        gaps[idx[p]].append(ins); cum += w

def emit_gaps(s, mf, gaps):
    for m, g in zip(mf, gaps):
        for pre in m[:-1]: put(s, pre)
        s.e(m[-1])
        for x in g: put(s, x)

def put(s, x):
    if isinstance(x, str): s.e(x)
    elif x[0] == 'mark': s.mark(x[1])
    elif x[0] == 'waitmark': s.waitmark(x[1], x[2])
    elif x[0] == 'waitlg': s.waitlg(x[1])
    elif x[0] == 'c': s.c(x[1])
    else: raise ValueError(x)

def xreg(i):
    return ("a[%d:%d]" % (4 * i, 4 * i + 3)) if i < 64 else ("v[%d:%d]" % (224 + 4 * (i - 64), 227 + 4 * (i - 64)))

def areg(n): r = 80 + 4 * (n % NF); return r

def rd1(n, half):
    if M16[0]:
        st = n // 6; q = n % 6; fh = q // 3; kkl = q % 3
        r = areg(n) + 2 * half
        off = (st % NS) * SLOT + kkl * 4096 + half * 512; base = 5 if fh == 0 else 13
        if off >= 65536: off -= 65536; base += 1
        return "ds_read_b64_tr_b16 v[%d:%d], v%d offset:%d" % (r, r + 1, base, off)
    st = n // 6; kp = n % 6
    r = areg(n) + 2 * half
    off = (st % NS) * SLOT + kp * 2048 + half * 512; base = 5
    if off >= 65536: off -= 65536; base = 6
    return "ds_read_b64_tr_b16 v[%d:%d], v%d offset:%d" % (r, r + 1, base, off)

def rd2(n, half, n0):
    if M16[0]:
        q = n - n0; st = q // 6; qq = q % 6; dh = qq // 3; bl = qq % 3
        r = areg(n) + 2 * half
        off = (st % NS2[0]) * SLOT + bl * 4096 + half * 2048; base = 8
        if off >= 131072: off -= 131072; base = 2
        elif off >= 65536: off -= 65536; base = 5
        return "ds_read_b64_tr_b16 v[%d:%d], v%d offset:%d" % (r, r + 1, base + dh, off)
    q = n - n0; st = q // 6; kp = q % 6
    r = areg(n) + 2 * half
    off = (st % NS2[0]) * SLOT + kp * 2048 + half * 1024; base = 8
    if off >= 131072: off -= 131072; base = 5
    elif off >= 65536: off -= 65536; base = 9
    return "ds_read_b64_tr_b16 v[%d:%d], v%d offset:%d" % (r, r + 1, base, off)

def dma1(mat, kc, slot):
    sr = 12 if mat == 0 else 16
    su = ["s_add_u32 m0, s29, %d" % (slot * SLOT), "s_add_u32 s31, s30, %d" % (kc * 96 * 9216)]
    ld = ["buffer_load_dwordx4 v%d, s[%d:%d], s31 offen offset:%d lds" % (2 + j, sr, sr + 3, 1024 * j) for j in range(3)]
    return su, ld

def dma2(st, K):
    out = []
    for j in range(3):
        R = 96 * st + 32 * j; sg = R // K; row0 = R % K
        su = ["s_add_u32 m0, s34, %d" % ((st % NS2[0]) * SLOT + j * 4096), "s_add_u32 s31, s35, %d" % (sg * 128 + row0 * 1152)]
        out.append((su, "buffer_load_dwordx4 v10, s[20:23], s31 offen lds"))
    return out

def epi1():
    L = []
    for p0 in range(0, 32, 4):
        for j in range(4): L.append("v_mul_f32 v%d, s%d, v%d" % (112 + p0 + j, CNEG, 16 + p0 + j))
        for j in range(4): L.append("v_exp_f32 v%d, v%d" % (144 + p0 + j, 112 + p0 + j))
        for j in range(4): L.append("v_fma_f32 v%d, v%d, s%d, s%d" % (144 + p0 + j, 144 + p0 + j, CNEG, CNEG))
    return L

def epi2():
    L = []
    for p0 in range(0, 32, 4):
        for j in range(4): L.append("v_rcp_f32 v%d, v%d" % (144 + p0 + j, 144 + p0 + j))
        for j in range(4): L.append("v_mul_f32 v%d, v%d, v%d" % (112 + p0 + j, 112 + p0 + j, 48 + p0 + j))
        for j in range(4): L.append("v_mul_f32 v%d, v%d, v%d" % (112 + p0 + j, 112 + p0 + j, 144 + p0 + j))
        for j in range(0, 4, 2): L.append("v_cvt_pk_bf16_f32 v%d, v%d, v%d" % (176 + (p0 + j) // 2, 112 + p0 + j, 112 + p0 + j + 1))
        if p0 % 8 == 4 and M16[0]:
            tq = p0 // 8
            L.append("ds_write_b128 v7, v[%d:%d] offset:%d" % (176 + 4 * tq, 179 + 4 * tq, tq * 10240))
        elif p0 % 8 == 4:
            n = p0 // 16; J = (p0 // 8) % 2
            L.append("ds_write_b128 v7, v[%d:%d] offset:%d" % (176 + n * 8 + 4 * J, 179 + n * 8 + 4 * J, n * 20480 + J * 1024))
    return L

def p0_code(f, sp, d, t, order):
    if order == 0:
        f.e("s_mul_i32 s%d, s%d, 5" % (d, sp)); f.e("s_lshl_b32 s%d, s%d, 2" % (t, sp)); f.e("s_add_u32 s%d, s%d, 12" % (t, t))
        f.e("s_cmp_lt_u32 s%d, 12" % sp); f.e("s_cselect_b32 s%d, s%d, s%d" % (d, d, t))
    else:
        f.e("s_mul_i32 s%d, s%d, 5" % (d, sp))
        f.e("s_cmp_ge_u32 s%d, 5" % sp); f.e("s_cselect_b32 s%d, 4, 0" % t); f.e("s_add_u32 s%d, s%d, s%d" % (d, d, t))
        f.e("s_cmp_ge_u32 s%d, 10" % sp); f.e("s_cselect_b32 s%d, 4, 0" % t); f.e("s_add_u32 s%d, s%d, s%d" % (d, d, t))
        f.e("s_cmp_eq_u32 s%d, 12" % sp); f.e("s_cselect_b32 s%d, 25, s%d" % (d, d))
        f.e("s_cmp_eq_u32 s%d, 13" % sp); f.e("s_cselect_b32 s%d, 54, s%d" % (d, d))
        f.e("s_cmp_eq_u32 s%d, 14" % sp); f.e("s_cselect_b32 s%d, 0x44, s%d" % (d, d))

def code_addr(s, va, vt, frm, to, ssel=None):
    if ssel:
        s.e("v_add_u32 v%d, s%d, v%d" % (va, ssel[0], vt)); s.e("v_min_u32 v%d, s%d, v%d" % (va, ssel[1], va))
    else:
        s.e("v_add_u32 v%d, %s-K2_pc, v%d" % (va, frm, vt)); s.e("v_min_u32 v%d, %s-K2_pc-4, v%d" % (va, to, va))
    s.e("v_add_co_u32 v%d, s[98:99], s96, v%d" % (va, va)); s.e("v_mov_b32 v%d, s97" % (va + 1))
    s.e("v_addc_co_u32 v%d, s[98:99], 0, v%d, s[98:99]" % (va + 1, va + 1))

def code_ld(vd, va): return "global_load_dword v%d, v[%d:%d], off ; pf" % (vd, va, va + 1)

class P1:
    def __init__(self, o): self.n = 0; self.o = o
    def phase(self, s, mat, epi, dmaf, extra_first=None, nextrd=None, last_barrier=True, first_c0=True, post=None):
        o = self.o
        if M16[0]: return self.phase16(s, mat, epi, dmaf, nextrd, last_barrier, post)
        acc = 16 if mat == 0 else 48
        per = (len(epi) + 5) // 6
        epi = list(epi)
        for i in range(6):
            gaps = [[] for _ in range(12)]
            mf = []
            for kp in range(6):
                n = self.n + kp
                f = nextrd if nextrd else rd1
                nn = n + PF
                if nextrd and (i * 6 + kp + PF) < 36: f = rd1
                gaps[2 * kp].append(f(nn, 0)); gaps[2 * kp + 1].append(f(nn, 1))
                kap = i * 6 + kp
                for t in range(2):
                    A = areg(n); D = acc + 16 * t
                    C = "0" if kap == 0 else "v[%d:%d]" % (D, D + 15)
                    mf.append(["v_mfma_f32_32x32x16_bf16 v[%d:%d], v[%d:%d], %s, %s" % (D, D + 15, A, A + 3, xreg(kap * 2 + t), C)])
            for g, ins in dmaf(i): gaps[g].append(ins)
            if i == 0:
                mine = epi[:per - o['first_less']]; epi = epi[len(mine):]
                spread(gaps, mine, o, start=o['epi_start'])
            else:
                rem = 6 - i
                cnt = (len(epi) + rem - 1) // rem
                mine = epi[:cnt]; epi = epi[cnt:]
                spread(gaps, mine, o)
            if post and i in post:
                for g, ins in post[i]: gaps[g].append(ins)
            if s.name == "ffn_loop":
                def keep(x):
                    if not isinstance(x, str): return True
                    if o['nords'] and x.startswith("ds_read"): return False
                    if o['noepi'] and (x.startswith("v_") or x.startswith("ds_write")) : return False
                    if o['nodma'] and x.startswith("buffer_load"): return False
                    return True
                gaps = [[x for x in g if keep(x)] for g in gaps]
            emit_gaps(s, mf, gaps)
            self.n += 6
            if i < 5 or last_barrier:
                s.waitmark("dma", 3)
                if not (s.name == "ffn_loop" and (o['nobar'] == 1 or (o['nobar'] == 2 and i % 2 == 0))): s.e("s_barrier")
        assert not epi

def g24(g):
    return 2 * g + 1

def phase16(self, s, mat, epi, dmaf, nextrd, last_barrier, post):
    o = self.o
    acc = 16 if mat == 0 else 48
    per = (len(epi) + 5) // 6
    epi = list(epi)
    la = LA[0]
    for i in range(6):
        gaps = [[] for _ in range(24)]
        mf = []
        for fh in range(2):
            G0 = self.n + 3 * fh
            k = 0
            for j in range(3):
                nn = G0 + la + j
                f = rd1
                if nextrd and (i * 6 + 3 * fh + la + j) >= 36: f = nextrd
                for h in range(2):
                    gaps[12 * fh + o['rdpos'] + o['rdstep'] * k].append(f(nn, h)); k += 1
            for tq in range(4):
                for kkl in range(3):
                    A = areg(G0 + kkl); D = acc + 8 * tq + 4 * fh
                    C = "0" if (i == 0 and kkl == 0) else "v[%d:%d]" % (D, D + 3)
                    mf.append(["v_mfma_f32_16x16x32_bf16 v[%d:%d], v[%d:%d], %s, %s" % (D, D + 3, A, A + 3, xreg((3 * i + kkl) * 4 + tq), C)])
        for g, ins in dmaf(i): gaps[g24(g)].append(ins)
        if post and i in post:
            for g, ins in post[i]: gaps[g24(g)].append(ins)
        if post and ('g24', i) in post:
            for g, ins in post[('g24', i)]: gaps[g].append(ins)
        if i == 0:
            mine = epi[:max(per - o['first_less'], 0)]; epi = epi[len(mine):]
            spread(gaps, mine, o, start=o['epi_start'])
        else:
            rem = 6 - i
            cnt = (len(epi) + rem - 1) // rem
            mine = epi[:cnt]; epi = epi[cnt:]
            spread(gaps, mine, o)
        if s.name == "ffn_loop":
            def keep(x):
                if not isinstance(x, str): return True
                if o['nords'] and x.startswith("ds_read"): return False
                if o['noepi'] and (x.startswith("v_") or x.startswith("ds_write")) : return False
                if o['nodma'] and x.startswith("buffer_load"): return False
                return True
            gaps = [[x for x in g if keep(x)] for g in gaps]
        emit_gaps(s, mf, gaps)
        self.n += 6
        if post and ('end', i) in post:
            for x in post[('end', i)]: put(s, x)
        if i < 5 or last_barrier:
            s.waitmark("dma", 3)
            if not (s.name == "ffn_loop" and (o['nobar'] == 1 or (o['nobar'] == 2 and i % 2 == 0))): s.e("s_barrier")
        if post and ('aft', i) in post:
            for fn in post[('aft', i)]: fn(s)
    assert not epi
P1.phase16 = phase16

def pf_loads():
    return ["buffer_load_dwordx4 v[%d:%d], v%d, s[20:23], 0 offen offset:%d" % (196 + 4 * (j % 4), 199 + 4 * (j % 4), 192 + j // 4, (j % 4) * 1024) + " ; pf" for j in range(12)]

def pf_post(mode):
    L = pf_loads(); post = {}
    if mode == 1:
        for i in range(4): post[1 + i] = [(4, L[3 * i]), (7, L[3 * i + 1]), (10, L[3 * i + 2])]
    elif mode == 5:
        for i in range(4): post[1 + i] = [(4, L[3 * i]), (7, L[3 * i + 1]), (10, L[3 * i + 2])]
    elif mode == 3:
        ar = [192, 193, 194, 195, 212, 213, 214]
        L = ["buffer_load_dwordx4 v[%d:%d], v%d, s[20:23], 0 offen offset:%d ; pf" % (196 + 4 * (j % 4), 199 + 4 * (j % 4), ar[j // 4], (j % 4) * 1024) for j in range(27)]
        pos = [2, 4, 5, 7, 8, 10]
        for i in range(6):
            mine = L[5 * i: 5 * i + 5] if i < 5 else L[25:]
            post[i] = [(pos[k], x) for k, x in enumerate(mine)]
    elif mode == 2:
        for i in range(6): post[i] = [(4, L[2 * i]), (10, L[2 * i + 1])]
    return post

def dma_gaps1(mat, kc, slot):
    su, ld = dma1(mat, kc, slot)
    return [(0, su[0]), (1, su[1]), (3, ld[0]), (6, ld[1]), (9, ld[2]), (9, ('mark', 'dma'))]

def dma_gaps2(st, K, pos=(1, 5, 9)):
    L = []
    for j, (su, ld) in enumerate(dma2(st, K)):
        g = pos[j]
        L += [(g - 1, su[0]), (g - 1, su[1]), (g, ld)]
    L.append((pos[2], ('mark', 'dma'))); L.append((pos[2], ('mark', 'w2_%d' % st)))
    return L

def phase2_16(s, o, n0, K, dft):
    nk = K // 32; NB = 9 * nk; nst = NB // 3; Q = 6 * nst; la = LA[0]
    NT = 5 if dft else 4
    def accof(seg, tq, dh):
        if tq == 4: return 208 + 8 * (seg % 2) + 4 * dh
        return (16 if seg % 2 == 0 else 48) + 8 * tq + 4 * dh
    stf = o['stf'].replace('+', ' ')
    def st_out(seg):
        L = ["s_add_u32 s37, s36, %d" % (seg * 8192)]
        for tq in range(4):
            r = accof(seg, tq, 0)
            for q in range(4): L.append("v_cvt_pk_bf16_f32 v%d, v%d, v%d" % (176 + 4 * tq + q, r + 2 * q, r + 2 * q + 1))
            if not (o['nostore'] and seg < 8):
                L.append("buffer_store_dwordx4 v[%d:%d], v11, s[8:11], s37 offen offset:%d %s" % (176 + 4 * tq, 179 + 4 * tq, tq * 1024, stf))
        if dft:
            r = accof(seg, 4, 0)
            L.append("s_add_u32 s39, s38, %d" % (seg * 8192))
            for q in range(4): L.append("v_cvt_pk_bf16_f32 v%d, v%d, v%d" % (192 + q, r + 2 * q, r + 2 * q + 1))
            L.append("buffer_store_dwordx4 v[192:195], v11, s[8:11], s39 offen %s" % stf)
        return L
    s.e("v_add_u32 v5, 0x10000, v8"); s.e("v_add_u32 v6, 0x10000, v9")
    if NS2[0] > 6: s.e("v_add_u32 v2, 0x20000, v8"); s.e("v_add_u32 v3, 0x20000, v9")
    pend = []; GP = 6 * NT
    for st in range(nst):
        gaps = [[] for _ in range(GP)]
        mf = []
        done = None
        for dh in range(2):
            G0 = n0 + 6 * st + 3 * dh
            k = 0
            for j in range(3):
                nn = G0 + la + j
                for h in range(2):
                    if nn - n0 < Q: gaps[3 * NT * dh + o['rdpos'] + o['rdstep'] * k].append(rd2(nn, h, n0))
                    k += 1
            for tq in range(NT):
                for bl in range(3):
                    b = 3 * st + bl; seg = b // nk; kk = b % nk
                    A = areg(G0 + bl); D = accof(seg, tq, dh)
                    C = "0" if kk == 0 else "v[%d:%d]" % (D, D + 3)
                    B = ("a[%d:%d]" % (4 * (kk * 4 + tq), 4 * (kk * 4 + tq) + 3)) if tq < 4 else ("v[%d:%d]" % (112 + 4 * kk, 115 + 4 * kk))
                    mf.append(["v_mfma_f32_16x16x32_bf16 v[%d:%d], v[%d:%d], %s, %s" % (D, D + 3, A, A + 3, B, C)])
                    if kk == nk - 1: done = seg
        if NS2[0] == 6: iss = [st + 5]
        elif st == 0: iss = [5]
        elif st <= 6: iss = [2 * st + 4, 2 * st + 5]
        else: iss = [st + 11]
        iss = [x for x in iss if x < nst]
        if len(iss) == 2:
            L = dma_gaps2(iss[0], K, (1, 3, 5)) + dma_gaps2(iss[1], K, (7, 9, 11))
        elif iss: L = dma_gaps2(iss[0], K)
        else: L = []
        def gm(g): return min(GP - 1, (2 * g + 1) * GP // 24)
        for g, ins in L: gaps[gm(g)].append(ins)
        if o['cpk3'] and st == nst - o['cpk3']: gaps[3].append(code_ld(222 if not dft else 254, 220 if not dft else 252))
        if pend:
            start = pend_start
            room = int((GP - start) * o['p2_rate16'])
            mine = pend[:room]; pend = pend[room:]
            spread(gaps, mine, o, start=start)
            pend_start = 0
        emit_gaps(s, mf, gaps)
        if done is not None and done < 8:
            assert not pend
            pend = st_out(done); pend_start = o['p2_delay16']
        if st + 2 <= nst - 1:
            s.waitmark("w2_%d" % (st + 2), 0); s.e("s_barrier")
    assert not pend
    for ins in st_out(8): s.e(ins)

def phase2(s, o, n0, K, dft):
    if M16[0]: return phase2_16(s, o, n0, K, dft)
    nk = K // 16; Q = 9 * nk; nst = Q // 6
    def st_out(seg):
        acc = 16 if seg % 2 == 0 else 48
        L = ["s_add_u32 s37, s36, %d" % (seg * 8192)]
        for n in range(2):
            for J in range(2):
                for q in range(4):
                    r = acc + 16 * n + 8 * J + 2 * q
                    L.append("v_cvt_pk_bf16_f32 v%d, v%d, v%d" % (176 + n * 8 + 4 * J + q, r, r + 1))
                if not (o['nostore'] and seg < 8):
                    L.append("buffer_store_dwordx4 v[%d:%d], v11, s[8:11], s37 offen offset:%d %s" % (176 + n * 8 + 4 * J, 179 + n * 8 + 4 * J, n * 2048 + J * 1024, o['stf'].replace('+', ' ')))
        if dft:
            x = 208 + 4 * (seg % 2)
            L += ["v_mov_b32 v%d, v%d" % (216 + i, x + i) for i in range(4)]
            L += ["s_add_u32 s39, s38, %d" % (seg * 8192)]
            L += ["v_permlane32_swap_b32 v%d, v%d" % (x + i, 216 + i) for i in range(4)]
            L += ["v_add_f32 v%d, v%d, v%d" % (216 + i, x + i, 216 + i) for i in range(4)]
            L += ["v_cvt_pk_bf16_f32 v216, v216, v217", "v_cvt_pk_bf16_f32 v217, v218, v219",
                  "buffer_store_dwordx2 v[216:217], v12, s[8:11], s39 offen"]
        return L
    def hx(kap, j):
        return (112 + 4 * kap + j) if kap < 16 else (192 + 4 * (kap - 16) + j)
    pend = []
    if NS2[0] > 6: s.e("v_add_u32 v5, 0x20000, v8")
    for st in range(nst):
        gaps = [[] for _ in range(12)]
        mf = []
        newseg = None
        for kp in range(6):
            q = st * 6 + kp; seg = q // nk; kap = q % nk
            n = n0 + q
            if q + PF < Q:
                gaps[2 * kp].append(rd2(n + PF, 0, n0)); gaps[2 * kp + 1].append(rd2(n + PF, 1, n0))
            acc = 16 if seg % 2 == 0 else 48
            for t in range(2):
                A = areg(n); D = acc + 16 * t
                C = "0" if kap == 0 else "v[%d:%d]" % (D, D + 15)
                j = kap * 2 + t
                mf.append(["v_mfma_f32_32x32x16_bf16 v[%d:%d], v[%d:%d], a[%d:%d], %s" % (D, D + 15, A, A + 3, 4 * j, 4 * j + 3, C)])
            if dft:
                x = 208 + 4 * (seg % 2); A = areg(n)
                for jj in range(2):
                    c = "0" if (kap == 0 and jj == 0) else "v[%d:%d]" % (x, x + 3)
                    gaps[2 * kp + jj].insert(0, "v_mfma_f32_4x4x4_16b_bf16 v[%d:%d], v[%d:%d], v[%d:%d], %s" % (x, x + 3, A + 2 * jj, A + 2 * jj + 1, hx(kap, 2 * jj), hx(kap, 2 * jj + 1), c))
            if kap == 0 and seg > 0:
                newseg = (kp, seg - 1)
        if NS2[0] == 6: iss = [st + 5]
        elif st == 0: iss = [5]
        elif st <= 6: iss = [2 * st + 4, 2 * st + 5]
        else: iss = [st + 11]
        iss = [x for x in iss if x < nst]
        if len(iss) == 2:
            L = dma_gaps2(iss[0], K, (1, 3, 5)) + dma_gaps2(iss[1], K, (7, 9, 11))
        elif iss: L = dma_gaps2(iss[0], K)
        else: L = []
        for g, ins in L: gaps[g].append(ins)
        if newseg is not None:
            kp, sg = newseg
            assert not pend
            pend = st_out(sg)
            start = 2 * kp + o['p2_epi_delay']
        else:
            start = 0
        if pend:
            if start < 12:
                room = (12 - start) * o['p2_epi_rate']
                mine = pend[:room]; pend = pend[room:]
                spread(gaps, mine, o, start=start)
        emit_gaps(s, mf, gaps)
        if st + 2 <= nst - 1:
            s.waitmark("w2_%d" % (st + 2), 0); s.e("s_barrier")
    assert not pend
    for ins in st_out(8): s.e(ins)

def gen_k2(Kern, srd, opts):
    o = dict(dpf=0, xps=2, xo=0, xg=0, xl=0, xt=0, xil=0, xpre=2, xpf=0, xdm=2, pstamp=0, ord=0, slowpf=0, cpf=0, cpfst=1, cpk3=0, cpd1=18, m16=0, la=4, rdpos=0, rdstep=2, p2_rate16=1.0, p2_delay16=2, pfw=0, pfc=0, ns2=6, map=0, prof=0, nostore=0, stf='', nords=0, noepi=0, nodma=0, nobar=0, wtrans=2.0, wsalu=0.3, epi_start=4, first_less=4, p2_epi_delay=5, p2_epi_rate=2)
    for k, v in opts.items():
        if k in o: o[k] = type(o[k])(v)
    NS2[0] = o['ns2']; M16[0] = o['m16']; LA[0] = o['la']
    global stamp
    stamp_ = stamp
    pst = lambda seg, i: None
    if o['pstamp'] == 2: stamp_ = stamp
    if o['pstamp']:
        pst = stamp_ if o['pstamp'] == 1 else pst
        stamp = lambda seg, i: (stamp_(seg, i) if i in ((0, 6, 7) if o['pstamp'] == 1 else (0, 1, 7)) else None)
    NPRE = o['la'] if o['m16'] else PF
    K = Kern("main_kernel", (256, 1, 1), (256, 1, 1), 159744 if o['xl'] == 1 else LDS_BYTES, vgpr=512, accum=256)
    a = K.seg("head")
    a.e("s_cmp_ge_u32 s2, 256"); a.e("s_cbranch_scc1 K2_end")
    stamp(a, 0)
    a.e("s_load_dwordx2 s[4:5], s[0:1], 88")
    a.e("s_load_dwordx4 s[40:43], s[0:1], 48")
    a.e("s_load_dwordx2 s[44:45], s[0:1], 64")
    a.e("s_load_dwordx4 s[48:51], s[0:1], 8")
    a.e("s_load_dwordx4 s[52:55], s[0:1], 24")
    a.e("v_lshrrev_b32 v1, 6, v0"); a.e("v_and_b32 v0, 63, v0"); a.e("v_readfirstlane_b32 s24, v1")
    if o['map'] == 0:
        a.e("s_and_b32 s3, s2, 7"); a.e("s_lshr_b32 s28, s2, 3"); a.e("s_lshr_b32 s27, s28, 4"); a.e("s_lshl_b32 s3, s3, 1")
        a.e("s_add_u32 s27, s27, s3"); a.e("s_and_b32 s28, s28, 15")
    else:
        tb = {1: 3, 2: 2, 3: 3}[o['map']]
        a.e("s_and_b32 s3, s2, 7"); a.e("s_lshr_b32 s46, s2, 3")
        a.e("s_and_b32 s28, s3, %d" % ((16 >> tb) - 1)); a.e("s_lshl_b32 s28, s28, %d" % tb); a.e("s_and_b32 s47, s46, %d" % ((1 << tb) - 1)); a.e("s_add_u32 s28, s28, s47")
        a.e("s_lshr_b32 s27, s3, %d" % (4 - tb)); a.e("s_lshl_b32 s27, s27, %d" % (5 - tb)); a.e("s_lshr_b32 s47, s46, %d" % tb); a.e("s_add_u32 s27, s27, s47")
    if o['map'] == 3:
        a.e("s_lshr_b32 s46, s27, 2"); a.e("s_and_b32 s47, s27, 3"); a.e("s_mul_i32 s27, s46, 3"); a.e("s_add_u32 s27, s27, s47"); a.e("s_add_u32 s46, s46, 12")
        a.e("s_cmp_eq_u32 s47, 3"); a.e("s_cselect_b32 s27, s46, s27")
    a.e("s_lshr_b32 s25, s24, 1"); a.e("s_and_b32 s26, s24, 1")
    a.e("s_mov_b32 s%d, 0xbfb8aa3b" % CNEG)
    a.e("v_lshrrev_b32 v13, 4, v0"); a.e("v_bfe_u32 v14, v0, 2, 2"); a.e("v_and_b32 v15, 3, v0")
    a.e("v_lshlrev_b32 v11, 4, v0")
    if o['m16']:
        a.e("v_lshrrev_b32 v1, 1, v14"); a.e("v_lshlrev_b32 v1, 1, v1"); a.e("v_and_b32 v9, 1, v13"); a.e("v_lshlrev_b32 v9, 2, v9"); a.e("v_add_u32 v9, v9, v1")
        a.e("v_lshrrev_b32 v12, 1, v15"); a.e("s_lshl_b32 s3, s26, 2"); a.e("v_add_u32 v12, s3, v12"); a.e("v_xor_b32 v12, v12, v9"); a.e("v_lshlrev_b32 v12, 4, v12")
        a.e("v_and_b32 v1, 1, v15"); a.e("v_lshlrev_b32 v1, 3, v1"); a.e("v_add_u32 v12, v12, v1")
        a.e("v_lshlrev_b32 v8, 2, v13"); a.e("v_add_u32 v8, v8, v14"); a.e("v_lshlrev_b32 v8, 7, v8"); a.e("v_add_u32 v8, v8, v12"); a.e("v_xor_b32 v9, 32, v8")
        a.e("v_lshlrev_b32 v5, 3, v13"); a.e("v_add_u32 v5, v5, v14"); a.e("v_lshlrev_b32 v5, 7, v5"); a.e("v_add_u32 v5, v5, v12"); a.e("v_add_u32 v6, 0x10000, v5")
        a.e("v_lshrrev_b32 v13, 3, v0"); a.e("v_and_b32 v14, 7, v0")
        a.e("v_bfe_u32 v15, v13, 1, 2"); a.e("v_lshlrev_b32 v15, 1, v15"); a.e("v_xor_b32 v15, v14, v15"); a.e("v_lshlrev_b32 v15, 4, v15")
        a.e("s_movk_i32 s3, 1152"); a.e("v_mul_lo_u32 v10, v13, s3"); a.e("v_add_u32 v10, v10, v15")
        a.e("v_bfe_u32 v15, v13, 1, 1"); a.e("v_lshlrev_b32 v15, 1, v15"); a.e("v_xor_b32 v15, v14, v15"); a.e("v_lshlrev_b32 v15, 4, v15")
        a.e("s_and_b32 s3, s24, 1"); a.e("s_lshl_b32 s3, s3, 6"); a.e("v_xor_b32 v15, s3, v15")
        a.e("s_movk_i32 s3, 9216"); a.e("v_mul_lo_u32 v13, v13, s3")
        a.e("v_add_u32 v2, v13, v15"); a.e("v_add_u32 v4, %d, v2" % (16 * 9216 - 2048))
        a.e("v_xor_b32 v15, 64, v15"); a.e("v_add_u32 v3, v13, v15"); a.e("v_add_u32 v3, %d, v3" % (8 * 9216 - 1024))
        a.e("v_xor_b32 v13, 32, v5"); a.e("v_add_u32 v14, 0x10000, v13")
    else:
        a.e("v_lshrrev_b32 v1, 1, v13"); a.e("v_lshlrev_b32 v1, 2, v1"); a.e("v_add_u32 v1, v1, v14"); a.e("v_lshlrev_b32 v8, 7, v1")
        a.e("v_and_b32 v1, 1, v13"); a.e("v_lshlrev_b32 v1, 1, v1"); a.e("s_lshl_b32 s3, s26, 2"); a.e("v_add_u32 v1, s3, v1")
        a.e("v_bfe_u32 v9, v14, 1, 1"); a.e("v_lshlrev_b32 v9, 2, v9")
        a.e("v_and_b32 v12, 1, v15"); a.e("v_add_u32 v12, v1, v12"); a.e("v_xor_b32 v12, v12, v9"); a.e("v_lshlrev_b32 v12, 4, v12"); a.e("v_add_u32 v8, v8, v12")
        a.e("v_lshrrev_b32 v12, 1, v15"); a.e("v_lshlrev_b32 v12, 3, v12"); a.e("v_add_u32 v8, v8, v12")
        a.e("v_lshrrev_b32 v12, 1, v15"); a.e("v_add_u32 v12, v1, v12"); a.e("v_xor_b32 v12, v12, v9"); a.e("v_lshlrev_b32 v12, 4, v12")
        a.e("v_lshrrev_b32 v5, 1, v13"); a.e("v_lshlrev_b32 v5, 3, v5"); a.e("v_add_u32 v5, v5, v14"); a.e("v_lshlrev_b32 v5, 7, v5"); a.e("v_add_u32 v5, v5, v12")
        a.e("v_and_b32 v12, 1, v15"); a.e("v_lshlrev_b32 v12, 3, v12"); a.e("v_add_u32 v5, v5, v12")
        a.e("v_add_u32 v6, 0x10000, v5"); a.e("v_add_u32 v9, 0x10000, v8")
        a.e("v_lshrrev_b32 v13, 3, v0"); a.e("v_and_b32 v14, 7, v0"); a.e("v_bfe_u32 v15, v13, 1, 1"); a.e("v_lshlrev_b32 v15, 2, v15")
        a.e("v_xor_b32 v14, v14, v15"); a.e("v_lshlrev_b32 v14, 4, v14")
        a.e("s_movk_i32 s3, 1152"); a.e("v_mul_lo_u32 v10, v13, s3"); a.e("v_add_u32 v10, v10, v14")
        a.e("s_movk_i32 s3, 9216"); a.e("v_mul_lo_u32 v2, v13, s3"); a.e("v_add_u32 v2, v2, v14")
        a.e("v_add_u32 v3, %d, v2" % (8 * 9216 - 1024)); a.e("v_add_u32 v4, %d, v2" % (16 * 9216 - 2048))
    a.e("s_lshl_b32 s34, s24, 10")
    a.e("s_mul_i32 s36, s27, %d" % SLOTB); a.e("s_lshl_b32 s3, s28, 1"); a.e("s_add_u32 s3, s3, s25"); a.e("s_mul_i32 s3, s3, %d" % T64B)
    a.e("s_add_u32 s36, s36, s3"); a.e("s_lshl_b32 s46, s26, 12"); a.e("s_add_u32 s36, s36, s46"); a.e("s_add_u32 s36, s36, %d" % PART)
    if o['cpf']:
        a.e("s_getpc_b64 s[96:97]"); a.lab("K2_pc")
    a.waitlg(0)
    pst(a, 1)
    srd(a, 8, 4, WS_BYTES)
    if o['xt']:
        a.e("s_lshr_b32 s56, s2, 6"); a.e("s_and_b32 s56, s56, 3"); a.e("s_lshl_b32 s56, s56, 2"); a.e("s_add_u32 s56, s56, s24")
        a.e("s_lshr_b32 s57, s56, 3"); a.e("s_and_b32 s56, s56, 7"); a.e("s_mul_i32 s56, s56, 4608")
        a.e("s_lshl_b32 s58, s28, 1"); a.e("s_add_u32 s58, s58, s57"); a.e("s_mul_i32 s58, s58, %d" % T64B); a.e("s_add_u32 s56, s56, s58")
        if XN: a.e("s_add_u32 s56, s56, %d" % XN)
        a.e("s_add_u32 s57, s56, 36864")
        if o['xt'] == 1:
            a.e("v_min_u32 v216, 35, v0"); a.e("v_lshlrev_b32 v216, 7, v216")
            a.e("buffer_load_dword v218, v216, s[8:11], s56 offen ; pf"); a.e("buffer_load_dword v218, v216, s[8:11], s57 offen ; pf")
        else:
            a.e("v_lshlrev_b32 v216, 6, v0"); a.e("v_min_u32 v217, 7, v0"); a.e("v_lshlrev_b32 v217, 6, v217"); a.e("v_add_u32 v217, 4096, v217")
            for sb in (56, 57):
                a.e("buffer_load_dword v218, v216, s[8:11], s%d offen ; pf" % sb); a.e("buffer_load_dword v218, v217, s[8:11], s%d offen ; pf" % sb)
    a.e("s_cmp_eq_u32 s27, 15"); a.e("s_cbranch_scc1 K2_dft")
    f = K.seg("ffn_pro")
    srd(f, 12, 40, 576 * 9216); srd(f, 16, 42, 576 * 9216); srd(f, 20, 44, 4608 * 1152)
    if o['slowpf']:
        f.e("s_sub_u32 s46, s27, 12"); f.e("s_lshl_b32 s46, s46, 4"); f.e("s_add_u32 s46, s46, s28"); f.e("s_lshl_b32 s46, s46, 2"); f.e("s_add_u32 s46, s46, s24")
        f.e("s_lshl_b32 s46, s46, 1")
        f.e("v_lshrrev_b32 v216, 1, v0"); f.e("s_movk_i32 s47, 9216"); f.e("v_mul_lo_u32 v216, v216, s47"); f.e("v_and_b32 v217, 1, v0"); f.e("v_lshlrev_b32 v217, 6, v217")
        f.e("v_add_u32 v216, v216, v217")
        for i in range(2):
            f.e("s_add_u32 s56, s46, %d" % i)
            f.e("s_mul_i32 s47, s56, 3641"); f.e("s_lshr_b32 s47, s47, 16"); f.e("s_mul_i32 s57, s47, 18"); f.e("s_sub_u32 s57, s56, s57")
            f.e("s_and_b32 s58, s47, 1"); f.e("s_cmp_eq_u32 s58, 1"); f.e("s_cselect_b32 s60, s42, s40"); f.e("s_cselect_b32 s61, s43, s41")
            f.e("s_mov_b32 s62, 0x%x" % (576 * 9216)); f.e("s_mov_b32 s63, 0x00020000")
            f.e("s_lshr_b32 s58, s60, 7"); f.e("s_sub_u32 s58, 3, s58"); f.e("s_and_b32 s58, s58, 7")
            f.e("s_lshr_b32 s47, s47, 1"); f.e("s_lshl_b32 s47, s47, 3"); f.e("s_add_u32 s47, s47, s58"); f.e("s_lshl_b32 s47, s47, 7")
            f.e("s_mul_i32 s57, s57, %d" % (32 * 9216)); f.e("s_add_u32 s47, s47, s57")
            f.e("s_cmp_lt_u32 s56, 324"); f.e("s_cselect_b32 s47, s47, 0x7ff00000"); f.e("s_cmp_ge_u32 s27, 12"); f.e("s_cselect_b32 s47, s47, 0x7ff00000")
            f.e("v_add_u32 v217, s47, v216")
            f.e("buffer_load_dword v218, v217, s[60:63], 0 offen ; pf")
    p0_code(f, 27, 46, 47, o['ord'])
    f.e("s_cmp_lt_u32 s27, 12"); f.e("s_cselect_b32 s32, 4, 3")
    f.e("s_mul_i32 s30, s24, %d" % (24 * 9216)); f.e("s_lshl_b32 s47, s46, 7"); f.e("s_add_u32 s30, s30, s47")
    f.e("s_mul_i32 s29, s24, 3072")
    f.e("s_lshl_b32 s47, s46, 6"); f.e("s_lshl_b32 s56, s24, 3"); f.e("s_add_u32 s47, s47, s56"); f.e("s_mul_i32 s35, s47, 1152")
    def xdma(c):
        G = []
        for kkl in range(3):
            G.append(["s_add_u32 m0, s38, %d" % ((c % 3) * 24576 + kkl * 4096), "s_add_u32 s39, s37, %d" % ((3 * c + kkl) * 4096),
                      "buffer_load_dwordx4 v11, s[8:11], s39 offen offset:0 lds"])
            G.append(["buffer_load_dwordx4 v11, s[8:11], s39 offen offset:1024 lds"] + ([('mark', 'xc')] if kkl == 2 else []))
        return G
    def xrd(c):
        return ["ds_read_b128 %s, v48 offset:%d" % (xreg((3 * c + kkl) * 4 + tq), (c % 3) * 24576 + kkl * 4096 + tq * 1024) for tq in range(4) for kkl in range(3)]
    def xld(st):
        L = []
        for tq in range(4):
            for kkl in range(3):
                L.append("buffer_load_dwordx4 %s, v11, s[8:11], s%d offen offset:%d" % (xreg((3 * st + kkl) * 4 + tq), 37 + kkl, tq * 1024))
        return L, ["s_add_u32 s%d, s%d, 12288" % (37 + kkl, 37 + kkl) for kkl in range(3)]
    def cpf_block():
        if o['cpf']:
            f.e("v_lshlrev_b32 v219, 7, v0"); f.e("s_lshl_b32 s3, s24, 13"); f.e("v_add_u32 v219, s3, v219")
            if o['cpf'] & 2:
                code_addr(f, 216, 219, "K2_g0", "K2_tail320"); f.e(code_ld(218, 216))
            f.e("s_mov_b32 s100, K2_tail320-K2_pc"); f.e("s_mov_b32 s101, K2_ffn4-K2_pc-4"); f.e("s_cmp_ge_u32 s27, 12")
            f.e("s_cselect_b32 s100, K2_ffn4-K2_pc, s100"); f.e("s_cselect_b32 s101, K2_dft-K2_pc-4, s101")
            code_addr(f, 216, 219, None, None, ssel=(100, 101))
            if o['cpk3']:
                code_addr(f, 220, 219, "final_kernel", "K3_end")
    if o['xo'] == 2: cpf_block()
    if o['xil']:
        f.e("s_lshl_b32 s37, s28, 1"); f.e("s_add_u32 s37, s37, s25"); f.e("s_mul_i32 s37, s37, %d" % T64B)
        if XN: f.e("s_add_u32 s37, s37, %d" % XN)
        f.e("s_add_u32 s38, s37, 4096"); f.e("s_add_u32 s39, s37, 8192")
        xdone = 0
        for st in range(5):
            su, ld = dma1(0, st, st)
            for x in su + ld: f.e(x)
            f.mark("dma")
            if st + 1 >= o['xdm'] and xdone < o['xpre']:
                L, U = xld(xdone); xdone += 1
                for x in L + U: f.e(x)
        while xdone < o['xpre']:
            L, U = xld(xdone); xdone += 1
            for x in L + U: f.e(x)
    elif o['xl'] == 1:
        su, ld = dma1(0, 0, 0)
        for x in su + ld: f.e(x)
        f.mark("dma")
    elif o['xl'] == 2:
        f.e("s_lshl_b32 s37, s28, 1"); f.e("s_add_u32 s37, s37, s25"); f.e("s_mul_i32 s37, s37, %d" % T64B)
        if XN: f.e("s_add_u32 s37, s37, %d" % XN)
        f.e("s_lshl_b32 s39, s26, 11"); f.e("s_add_u32 s37, s37, s39")
        f.e("s_mul_i32 s38, s25, 12288"); f.e("s_add_u32 s38, s38, s39"); f.e("s_add_u32 s38, s38, %d" % HB)
        for st in range(2):
            su, ld = dma1(0, st, st)
            for x in su + ld: f.e(x)
            f.mark("dma")
            for g in xdma(st):
                for x in g: put(f, x)
            if o['xo'] == 3 and st == 0: cpf_block()
    else:
      for st in range(5):
        su, ld = dma1(0, st, st)
        for x in su + ld: f.e(x)
        f.mark("dma")
    if not o['xl']: pst(f, 2)
    if o['xo'] < 2: cpf_block()
    f.e("s_lshl_b32 s3, s28, 1"); f.e("s_add_u32 s3, s3, s25"); f.e("s_mul_i32 s3, s3, %d" % T64B)
    if XN: f.e("s_add_u32 s3, s3, %d" % XN)
    if o['xl'] == 2:
        if o['xo'] >= 1:
            for g in xdma(2):
                for x in g: put(f, x)
        for st in range(2, 4):
            su, ld = dma1(0, st, st)
            for x in su + ld: f.e(x)
            f.mark("dma")
            if st == 2 and o['xo'] == 0:
                for g in xdma(2):
                    for x in g: put(f, x)
        f.e("s_mul_i32 s3, s25, 12288"); f.e("s_add_u32 s3, s3, %d" % HB); f.e("v_add_u32 v48, s3, v11")
    if o['xl'] == 1:
        f.e("s_lshl_b32 s37, s26, 11"); f.e("s_add_u32 s37, s37, s3")
        f.e("s_mul_i32 s38, s25, 12288"); f.e("s_lshl_b32 s39, s26, 11"); f.e("s_add_u32 s38, s38, s39"); f.e("s_add_u32 s38, s38, 12288")
        for c in range(6):
            for kkl in range(3):
                f.e("s_add_u32 m0, s38, %d" % (c * 24576 + kkl * 4096)); f.e("s_add_u32 s39, s37, %d" % ((3 * c + kkl) * 4096))
                for t in range(2): f.e("buffer_load_dwordx4 v11, s[8:11], s39 offen offset:%d lds" % (t * 1024))
            f.mark("xc")
        f.e("s_mul_i32 s3, s25, 12288"); f.e("s_add_u32 s3, s3, 12288"); f.e("v_add_u32 v16, s3, v11"); f.e("v_add_u32 v17, 73728, v16")
    for i in range(72 if not (o['xil'] or o['xl']) else 0):
        if i % 4 == 0 and i > 0: f.e("s_add_u32 s3, s3, 4096")
        f.e("buffer_load_dwordx4 %s, v11, s[8:11], s3 offen offset:%d" % (xreg(i), (i % 4) * 1024))
    pst(f, 2 if o['xl'] else 3)
    if o['pfw']:
        f.e("s_and_b32 s56, s28, 7"); f.e("s_lshl_b32 s56, s56, 2"); f.e("s_add_u32 s56, s56, s24"); f.e("s_add_u32 s57, s32, 1")
        f.e("s_mul_i32 s57, s57, 2304"); f.e("s_mul_i32 s56, s56, s57"); f.e("s_mul_i32 s57, s46, 73728"); f.e("s_add_u32 s56, s56, s57")
        if o['pfw'] in (3, 10):
            f.e("s_sub_u32 s56, s27, 12"); f.e("s_lshl_b32 s56, s56, 4"); f.e("s_add_u32 s56, s56, s28"); f.e("s_lshl_b32 s56, s56, 2"); f.e("s_add_u32 s56, s56, s24")
            f.e("s_mul_i32 s56, s56, 27648"); f.e("s_cmp_lt_u32 s27, 12"); f.e("s_cselect_b32 s56, 0x7ff00000, s56")
        f.e("v_add_u32 v192, s56, v11"); f.e("v_add_u32 v193, 4096, v192"); f.e("v_add_u32 v194, 8192, v192")
        if o['pfw'] in (3, 10):
            for j in range(3, 7): f.e("v_add_u32 v%d, %d, v192" % (192 + j + (0 if j < 4 else 16), 4096 * j))
        if o['xpf'] == 11:
            f.e("v_lshlrev_b32 v195, 7, v0"); f.e("v_add_u32 v192, s56, v195"); f.e("v_add_u32 v193, 8192, v192")
        if o['xpf'] in (7, 8, 9, 10):
            f.e("v_lshlrev_b32 v195, 6, v0"); f.e("v_add_u32 v192, s56, v195"); f.e("v_add_u32 v193, 4096, v192"); f.e("v_add_u32 v194, 8192, v192")
        if o['pfw'] == 4:
            for x in pf_loads(): f.e(x)
        if o['pfw'] == 5:
            f.e("buffer_load_dword v196, v192, s[20:23], 0 offen ; pf")
        if o['pfw'] == 8:
            f.e("v_lshlrev_b32 v195, 6, v0"); f.e("v_add_u32 v192, s56, v195"); f.e("v_add_u32 v193, 4096, v192"); f.e("v_add_u32 v194, 8192, v192")
            for j in range(3): f.e("buffer_load_dword v%d, v%d, s[20:23], 0 offen ; pf" % (196 + j, 192 + j))
        if o['pfw'] == 9:
            f.e("v_lshlrev_b32 v195, 7, v0"); f.e("v_add_u32 v192, s56, v195"); f.e("v_add_u32 v193, 8192, v192")
            for j in range(2): f.e("buffer_load_dword v%d, v%d, s[20:23], 0 offen ; pf" % (196 + j, 192 + j))
    f.e("s_mul_i32 s3, s25, 40960"); f.e("s_lshl_b32 s46, s26, %d" % (10 if o['m16'] else 11)); f.e("s_add_u32 s3, s3, s46"); f.e("s_add_u32 s3, s3, %d" % HB)
    f.e("v_add_u32 v7, s3, v11")
    if o['xl'] == 1:
        for c in range(6):
            f.waitmark("xc", 5 - c)
            if c in (1, 2): f.waitlg(0)
            f.e("s_barrier")
            if c == 0: pst(f, 3)
            if c == 5: pst(f, 4)
            if c in (1, 2):
                for st in (2 * c - 1, 2 * c):
                    su, ld = dma1(0, st, st)
                    for x in su + ld: f.e(x)
                    f.mark("dma")
            for tq in range(4):
                for kkl in range(3):
                    f.e("ds_read_b128 %s, v%d offset:%d" % (xreg((3 * c + kkl) * 4 + tq), 16 + c // 3, (c % 3) * 24576 + kkl * 4096 + tq * 1024))
        f.waitlg(0)
    if o['xl'] == 2:
        f.waitmark("xc", 1); f.waitmark("dma", 2); pst(f, 3); f.e("s_barrier")
        for x in xrd(0): f.e(x)
        for n in range(NPRE):
            f.e(rd1(n, 0)); f.e(rd1(n, 1))
        f.waitlg(0); pst(f, 4); f.e("s_barrier")
        pst(f, 5)
        stamp(f, 1)
        if o['cpf']: f.lab("K2_g0")
    else:
        f.waitmark("dma", 3)
        if not o['xl']: pst(f, 4)
        f.e("s_barrier")
        pst(f, 5)
        stamp(f, 1)
        if o['cpf']: f.lab("K2_g0")
        for n in range(NPRE):
            f.e(rd1(n, 0)); f.e(rd1(n, 1))
    p1 = P1(o)
    def d_g0(i):
        return dma_gaps1(0, 5, 5) if i == 0 else dma_gaps1(1, i - 1, i - 1)
    post0 = None
    if o['pfw'] and o['pfw'] not in (4, 6, 7, 8, 9, 10):
        post0 = pf_post(o['pfw'])
    if o['xil']:
        post0 = dict(post0 or {})
        if o['xpf']:
            L = pf_loads(); post0 = {}
            if o['xpf'] == 1:
                for i in range(2): post0[4 + i] = [(g, L[6 * i + k]) for k, g in enumerate((1, 2, 4, 5, 7, 8))]
            elif o['xpf'] == 2:
                for i in range(3): post0[3 + i] = [(g, L[4 * i + k]) for k, g in enumerate((2, 4, 7, 10))]
        for st in range(o['xpre'], 6):
            L, U = xld(st)
            post0[('g24', st - o['xpre'])] = [(2 * k + 1, x) for k, x in enumerate(L)] + [(23, x) for x in U]
    if o['xl'] == 2:
        def late(mat, kc, slot, g):
            su, ld = dma1(mat, kc, slot)
            return [(g[0], su[0]), (g[0], su[1]), (g[1], ld[0]), (g[2], ld[1]), (g[3], ld[2]), (g[3], ('mark', 'dma'))]
        d_g0_base = d_g0
        def d_g0(i):
            if o['xg'] == 1:
                if i == 0: return late(0, 4, 4, (4, 4, 5, 6)) + late(0, 5, 5, (7, 8, 9, 10))
                if i in (1, 2): return late(1, i - 1, i - 1, (5, 6, 8, 10))
            if o['xg'] == 2:
                if i == 0: return late(0, 4, 4, (6, 6, 7, 8)) + late(0, 5, 5, (9, 9, 10, 11))
                if i in (1, 2): return late(1, i - 1, i - 1, (7, 8, 10, 11))
            if i == 0: return late(0, 4, 4, (3, 3, 4, 5)) + late(0, 5, 5, (6, 7, 9, 10))
            if i in (1, 2): return late(1, i - 1, i - 1, (3, 4, 7, 10))
            return d_g0_base(i)
        if o['xpf']:
            L = pf_loads(); post0 = {}
            if o['xpf'] == 1:
                for i in range(2): post0[4 + i] = [(g, L[6 * i + k]) for k, g in enumerate((1, 2, 4, 5, 7, 8))]
            elif o['xpf'] == 2:
                for i in range(3): post0[3 + i] = [(g, L[4 * i + k]) for k, g in enumerate((2, 4, 7, 10))]
            elif o['xpf'] == 4:
                for i in range(6): post0[i] = [(g, L[2 * i + k]) for k, g in enumerate((5, 10))]
            elif o['xpf'] == 7:
                for i in range(3): post0[3 + i] = [(7, "buffer_load_dword v%d, v%d, s[20:23], 0 offen ; pf" % (196 + i, 192 + i))]
            elif o['xpf'] in (10, 11):
                post0[3] = [(7, "buffer_load_dword v196, v192, s[20:23], 0 offen ; pf")]
            elif o['xpf'] == 8:
                post0[5] = [((2, 6, 10)[i], "buffer_load_dword v%d, v%d, s[20:23], 0 offen ; pf" % (196 + i, 192 + i)) for i in range(3)]
            elif o['xpf'] == 5:
                for i in range(3): post0[3 + i] = [(g, L[2 * i + k]) for k, g in enumerate((4, 10))]
        post0 = dict(post0 or {})
        for i in range(5):
            P = []
            if i < 3:
                for k, g in enumerate(xdma(3 + i)): P += [((k // 2 if o['xg'] else k), x) for x in g]
            R = xrd(i + 1)
            P += [(2 * (k // 2) + 1, x) for k, x in enumerate(R)]
            post0[('g24', i)] = P
            E = []
            if i < 2:
                last = xreg((3 * (i + 1) + 2) * 4 + 3)
                r0 = last[2:].split(':')[0]
                E.append(("v_accvgpr_read_b32 v49, a%s" % r0) if last[0] == 'a' else ("v_mov_b32 v49, v%s" % r0))
            if i < 4: E.append(('waitmark', 'xc', 1 if i < 3 else 0))
            post0[('end', i)] = E
            if o['pstamp'] == 2: post0[('aft', i)] = [lambda sg, i=i: stamp_(sg, i + 2)]
    g0a = g0b = None
    if o['pfw'] == 10:
        f.e("s_cmp_ge_u32 s27, 12"); f.e("s_cbranch_scc1 K2_g0b")
        g0a = K.seg("g0a"); p1.phase(g0a, 0, [], d_g0); stamp(g0a, 2); g0a.e("s_branch K2_loop")
        g0b = K.seg("g0b"); g0b.lab("K2_g0b"); pb = P1(o); pb.phase(g0b, 0, [], d_g0, post=pf_post(3)); stamp(g0b, 2)
    else:
        p1.phase(f, 0, [], d_g0, post=post0)
        stamp(f, 2)
    lp = K.seg("ffn_loop"); lp.lab("K2_loop")
    def d_up(i):
        if i == 0: return dma_gaps1(1, 5, 5) + [(10, "s_add_u32 s30, s30, 128")]
        return dma_gaps1(0, i - 1, i - 1)
    def d_gate(i):
        return dma_gaps1(0, 5, 5) if i == 0 else dma_gaps1(1, i - 1, i - 1)
    postu = postg = None
    if o['pfw'] == 6:
        L = pf_loads()[:4]
        postu = {1 + j: [(4, L[j])] for j in range(4)}
        postu[5] = [(4, "v_add_u32 v192, 4096, v192")]
    if o['pfw'] == 7:
        L = pf_loads()[:4]
        postu = {1: [(4, L[0])], 4: [(4, L[1])]}
        postg = {1: [(4, L[2])], 4: [(4, L[3])], 5: [(4, "v_add_u32 v192, 4096, v192")]}
    if o['xpf'] == 9:
        postg = {o['xps']: [(4, "buffer_load_dword v196, v192, s[20:23], 0 offen ; pf"), (7, "v_add_u32 v192, 4096, v192")]}
    if o['xpf'] == 11:
        postg = {o['xps']: [(4, "buffer_load_dword v196, v193, s[20:23], 0 offen ; pf"), (7, "v_add_u32 v193, 8192, v193")]}
    if o['xpf'] == 10:
        postg = {o['xps']: [(4, "buffer_load_dword v196, v193, s[20:23], 0 offen ; pf"), (7, "v_add_u32 v193, 4096, v193")]}
    if o['cpf'] & 1:
        postu = dict(postu or {}); postu.setdefault(o['cpfst'], []); postu[o['cpfst']] = postu[o['cpfst']] + [(5, code_ld(218, 216))]
    p1.phase(lp, 1, epi1(), d_up, post=postu)
    p1.phase(lp, 0, epi2() + ["v_add_u32 v7, %d, v7" % (2048 if o['m16'] else 4096)], d_gate, post=postg)
    lp.e("s_sub_u32 s32, s32, 1"); lp.e("s_cmp_lg_u32 s32, 0"); lp.e("s_cbranch_scc1 K2_loop")
    nloop = p1.n
    br = K.seg("ffn_br")
    stamp(br, 3)
    br.e("s_cmp_ge_u32 s27, 12"); br.e("s_cbranch_scc1 K2_ffn4")
    tails = {}
    for Kd, lab in ((320, None), (256, "K2_ffn4")):
        t = K.seg("ffn_tail%d" % Kd)
        if lab: t.lab(lab)
        elif o['cpf']: t.lab("K2_tail320")
        p = P1(o); p.n = nloop
        n0 = nloop + 36
        def d_last(i, Kd=Kd):
            return dma_gaps1(1, 5, 5) if i == 0 else dma_gaps2(i - 1, Kd)
        p.phase(t, 1, epi1(), d_last, nextrd=lambda n, h, n0=n0: rd2(n, h, n0), last_barrier=False)
        stamp(t, 4)
        t.e("s_nop 7")
        for x in epi2(): t.e(x)
        t.waitmark("dma", 3); t.waitlg(0); t.e("s_barrier")
        t.e("s_mul_i32 s3, s25, 40960"); t.e("s_add_u32 s3, s3, %d" % HB); t.e("v_add_u32 v1, s3, v11")
        if o['m16']:
            for kk, tq in sorted(((kk, tq) for kk in range(Kd // 32) for tq in range(4)), key=lambda z: (z[0] // 3, z[1], z[0])):
                    j = kk * 4 + tq
                    t.e("ds_read_b128 a[%d:%d], v1 offset:%d" % (4 * j, 4 * j + 3, (tq * 10 + kk) * 1024))
        else:
          for kap in range(Kd // 16):
            for n in range(2):
                j = kap * 2 + n
                t.e("ds_read_b128 a[%d:%d], v1 offset:%d" % (4 * j, 4 * j + 3, (n * 20 + kap) * 1024))
        stamp(t, 5)
        phase2(t, o, n0, Kd, False)
        stamp(t, 6)
        if o['prof']: t.waitall()
        stamp(t, 7); prof_store(t, 1, 8, 8, 24, 12, 60)
        t.e("s_endpgm")
        tails[Kd] = t
    d = K.seg("dft"); d.lab("K2_dft")
    gen_dft(d, o, srd)
    e = K.seg("end"); e.lab("K2_end"); e.e("s_endpgm")
    A_ = [g0a] if g0a else []; B_ = [g0b] if g0b else []
    K.paths = [[a, f] + A_ + [lp] * 4 + [br, tails[320]], [a, f] + B_ + [lp] * 3 + [br, tails[256]], [a, d]]
    return K

def gen_dft(d, o, srd):
    if o['dpf']:
        srd(d, 16, 44, 4608 * 1152)
        d.e("s_lshl_b32 s3, s28, 2"); d.e("s_add_u32 s3, s3, s24"); d.e("s_mul_i32 s3, s3, 82944")
        d.e("v_lshlrev_b32 v225, 6, v0"); d.e("v_add_u32 v225, s3, v225")
        for j in range(21):
            d.e("buffer_load_dword v224, v225, s[16:19], 0 offen ; pf")
            if j < 20: d.e("v_add_u32 v225, 4096, v225")
    d.e("s_cmp_ge_u32 s28, 8"); d.e("s_cselect_b32 s46, s50, s48"); d.e("s_cselect_b32 s47, s51, s49")
    d.e("s_cselect_b32 s56, s54, s52"); d.e("s_cselect_b32 s57, s55, s53")
    d.e("s_mov_b32 s58, %d" % XEE); d.e("s_cselect_b32 s58, %d, s58" % XOO); d.e("s_cselect_b32 s59, 1536, 0"); d.e("s_cselect_b32 s60, 0, 0xbf803f80")
    srd(d, 12, 46, 2048 * 4096); srd(d, 20, 56, 576 * 1152)
    d.e("s_and_b32 s3, s28, 7"); d.e("s_lshl_b32 s3, s3, 6"); d.e("s_add_u32 s59, s59, s3"); d.e("s_lshl_b32 s59, s59, 1")
    d.e("s_mul_i32 s61, s24, %d" % (16 * 640)); d.e("s_add_u32 s61, s61, s58")
    d.e("s_lshl_b32 s62, s24, 16"); d.e("s_add_u32 s62, s62, s59")
    d.e("v_lshrrev_b32 v13, 3, v0"); d.e("v_and_b32 v14, 7, v0"); d.e("v_bfe_u32 v15, v13, 1, 2"); d.e("v_lshlrev_b32 v15, 1, v15")
    d.e("v_xor_b32 v14, v14, v15"); d.e("v_lshlrev_b32 v14, 4, v14")
    d.e("s_movk_i32 s3, 1280"); d.e("v_mul_lo_u32 v2, v13, s3"); d.e("v_add_u32 v2, v2, v14")
    d.e("v_lshlrev_b32 v3, 13, v13"); d.e("v_add_u32 v3, v3, v14")
    NSD = 33; SL = 24576
    def stage_rows(st):
        return (st % 2, st // 2)
    def dmad(st):
        par, ks = stage_rows(st); slot = st % 6
        L = []
        r0 = 64 * ks + par
        L.append(("s", "s_add_u32 s31, s61, %d" % (r0 * 640)))
        for b in range(5):
            L.append(("s", "s_add_u32 m0, s34, %d" % (slot * SL + b * 4096 - 128 * b)))
            L.append(("l", "buffer_load_dwordx4 v2, s[8:11], s31 offen offset:%d lds" % (128 * b)))
        L.append(("s", "s_add_u32 s63, s62, %d" % (r0 * 4096)))
        L.append(("s", "s_add_u32 m0, s34, %d" % (slot * SL + 5 * 4096)))
        L.append(("l", "buffer_load_dwordx4 v3, s[12:15], s63 offen lds"))
        return L
    for st in range(5):
        for _, x in dmad(st): d.e(x)
        d.mark("dma")
    if o['cpf']:
        d.e("v_lshlrev_b32 v255, 7, v0"); d.e("s_lshl_b32 s3, s24, 13"); d.e("v_add_u32 v255, s3, v255")
        code_addr(d, 252, 255, "K2_dft1", "K2_dft2"); d.e(code_ld(254, 252))
        code_addr(d, 250, 255, "K2_dft2", "K2_dft3")
    if o['pfc'] == 1:
        d.e("v_lshrrev_b32 v13, 3, v0"); d.e("v_and_b32 v14, 7, v0"); d.e("v_lshlrev_b32 v14, 4, v14"); d.e("v_lshlrev_b32 v13, 12, v13"); d.e("v_add_u32 v192, v13, v14")
        d.e("s_mul_i32 s3, s24, %d" % (240 * 4096)); d.e("s_add_u32 s3, s3, s59"); d.e("s_add_u32 s3, s3, %d" % (128 * 4096)); d.e("v_add_u32 v192, s3, v192")
        for j in range(30):
            d.e("buffer_load_dwordx4 v[%d:%d], v192, s[12:15], 0 offen ; pf" % (224 + 4 * (j % 4), 227 + 4 * (j % 4)))
            if j < 29: d.e("v_add_u32 v192, 0x8000, v192")
    if o['pfc']:
        d.e("s_and_b32 s3, s28, 7"); d.e("s_lshl_b32 s3, s3, 2"); d.e("s_add_u32 s3, s3, s24"); d.e("s_mul_i32 s3, s3, 11520")
        d.e("v_add_u32 v192, s3, v11"); d.e("v_add_u32 v193, 4096, v192"); d.e("v_add_u32 v194, 8192, v192")
        for j in range(12):
            d.e("buffer_load_dwordx4 v[%d:%d], v%d, s[20:23], 0 offen offset:%d ; pf" % (224 + 4 * (j % 4), 227 + 4 * (j % 4), 192 + j // 4, (j % 4) * 1024))
    d.e("v_lshrrev_b32 v13, 2, v0"); d.e("v_and_b32 v15, 3, v0"); d.e("v_bfe_u32 v14, v13, 1, 2"); d.e("v_lshlrev_b32 v14, 1, v14")
    d.e("v_lshlrev_b32 v13, 7, v13"); d.e("v_and_b32 v1, 1, v15"); d.e("v_lshlrev_b32 v1, 3, v1"); d.e("v_add_u32 v13, v13, v1")
    d.e("v_lshrrev_b32 v15, 1, v15")
    for u in range(4):
        d.e("v_add_u32 v1, %d, v15" % (2 * u)); d.e("v_xor_b32 v1, v1, v14"); d.e("v_lshlrev_b32 v1, 4, v1"); d.e("v_add_u32 v1, v1, v13")
        d.e("v_add_u32 v%d, %d, v1" % (196 + u, 5 * 4096))
    for i in range(5):
        d.e("s_mul_i32 s3, s24, 5"); d.e("s_add_u32 s3, s3, %d" % i)
        d.e("s_and_b32 s46, s3, 3"); d.e("s_lshl_b32 s46, s46, 1"); d.e("s_lshr_b32 s47, s3, 2"); d.e("s_lshl_b32 s47, s47, 12")
        d.e("v_add_u32 v1, s46, v15"); d.e("v_xor_b32 v1, v1, v14"); d.e("v_lshlrev_b32 v1, 4, v1"); d.e("v_add_u32 v1, v1, v13")
        d.e("v_add_u32 v%d, s47, v1" % (200 + i))
    for q in range(9): d.e("v_add_u32 v%d, %d, v%d" % (205 + q, 3 * SL, 196 + q))
    for q in range(4): d.e("v_mov_b32 v%d, s60" % (216 + q))
    def frag(st, q):
        return (st % 2) * 36 + 4 * q
    def rdd(st, q, half):
        slot = st % 6; base = 196 + q
        if slot >= 3: base += 9; slot -= 3
        r = frag(st, q) + 2 * half
        return "ds_read_b64_tr_b16 a[%d:%d], v%d offset:%d" % (r, r + 1, base, slot * SL + half * 2048)
    d.waitmark("dma", 3); d.e("s_barrier")
    stamp(d, 1); stamp(d, 2)
    if o['cpf']: d.lab("K2_dft1")
    order = [4, 0, 1, 2, 3, 5, 6, 7, 8]
    for q in order: d.e(rdd(0, q, 0)); d.e(rdd(0, q, 1))
    for st in range(NSD):
        par, ks = stage_rows(st)
        mf = []
        for i in range(5):
            A = frag(st, 4 + i)
            for u in range(4):
                B = frag(st, u); D = 16 + par * 80 + (i * 4 + u) * 4
                C = "0" if ks == 0 else "v[%d:%d]" % (D, D + 3)
                mf.append(["v_mfma_f32_16x16x32_bf16 v[%d:%d], a[%d:%d], a[%d:%d], %s" % (D, D + 3, A, A + 3, B, B + 3, C)])
            if par == 0:
                D = 176 + 4 * i; C = "0" if ks == 0 else "v[%d:%d]" % (D, D + 3)
                mf.append(["v_mfma_f32_16x16x32_bf16 v[%d:%d], a[%d:%d], v[216:219], %s" % (D, D + 3, A, A + 3, C)])
        G = len(mf)
        gaps = [[] for _ in range(G)]
        fill = []
        if st + 1 < NSD:
            for q in order: fill += [rdd(st + 1, q, 0), rdd(st + 1, q, 1)]
        dm = dmad(st + 5) if st + 5 < NSD else []
        for g, x in enumerate(fill): gaps[g].append(x)
        if dm:
            pos = [2, 5, 8, 11, 14, 17]; li = 0; pendS = []
            for kind, x in dm:
                if kind == "s": pendS.append(x)
                else:
                    g = pos[li]; li += 1
                    for y in pendS: gaps[g - 1].append(y)
                    pendS = []
                    gaps[g].append(x)
            gaps[17].append(('mark', 'dma'))
        if o['cpf'] and st == o['cpd1']: gaps[19].append(code_ld(254, 250))
        emit_gaps(d, mf, gaps)
        if st + 2 <= NSD - 1:
            last_issued = min(st + 5, NSD - 1)
            d.waitmark("dma", last_issued - (st + 2)); d.e("s_barrier")
    d.e("s_barrier")
    stamp(d, 3)
    if o['cpf']:
        d.lab("K2_dft2")
        if o['cpk3']: code_addr(d, 252, 255, "final_kernel", "K3_end")
    d.e("s_mul_i32 s35, s24, %d" % (8 * 1152))
    for st in range(5):
        for su, ld in dma2(st, 320):
            for x in su: d.e(x)
            d.e(ld)
        d.mark("dma"); d.mark("w2_%d" % st)
    if o['m16']:
        d.e("s_and_b32 s46, s24, 1"); d.e("s_mul_i32 s3, s24, 5"); d.e("s_sub_u32 s3, s3, s46"); d.e("s_lshr_b32 s3, s3, 1")
        d.e("s_lshl_b32 s47, s46, 3")
        d.e("s_cmp_eq_u32 s46, 1"); d.e("s_cselect_b32 s56, 1024, 8"); d.e("s_cselect_b32 s57, 64, 8")
        d.e("s_lshl_b32 s58, s3, 10"); d.e("s_add_u32 s58, s58, %d" % HB)
        d.e("s_add_u32 s59, s58, s47"); d.e("v_add_u32 v7, s59, v11"); d.e("v_add_u32 v6, 40960, v7")
        d.e("s_add_u32 s59, s58, s56"); d.e("v_add_u32 v4, s59, v11"); d.e("v_add_u32 v3, 40960, v4")
        d.e("v_lshrrev_b32 v15, 4, v0"); d.e("v_lshlrev_b32 v15, 4, v15")
        d.e("s_lshl_b32 s58, s3, 6"); d.e("s_add_u32 s58, s58, %d" % HX)
        d.e("s_add_u32 s59, s58, s47"); d.e("v_add_u32 v5, s59, v15"); d.e("s_add_u32 s59, s58, s57"); d.e("v_add_u32 v2, s59, v15")
    else:
        d.e("v_lshrrev_b32 v13, 4, v0"); d.e("v_and_b32 v14, 15, v0"); d.e("v_and_b32 v15, 1, v13"); d.e("v_lshlrev_b32 v15, 5, v15"); d.e("v_add_u32 v14, v14, v15")
        d.e("v_lshlrev_b32 v14, 4, v14"); d.e("v_lshrrev_b32 v13, 1, v13"); d.e("v_lshlrev_b32 v1, 3, v13"); d.e("v_add_u32 v14, v14, v1")
        d.e("s_mul_i32 s3, s24, 5120"); d.e("s_add_u32 s3, s3, %d" % HB); d.e("v_add_u32 v7, s3, v14")
        d.e("v_add_u32 v6, 40960, v7")
        d.e("v_lshlrev_b32 v15, 4, v0"); d.e("v_lshrrev_b32 v15, 8, v15"); d.e("v_and_b32 v15, 1, v15"); d.e("v_lshlrev_b32 v15, 4, v15"); d.e("v_add_u32 v15, v15, v1")
        d.e("s_mul_i32 s3, s24, 160"); d.e("s_add_u32 s3, s3, %d" % HX); d.e("v_add_u32 v5, s3, v15")
    k = 0
    for i in range(5):
        for u in range(4):
            E = 16 + (i * 4 + u) * 4; O = E + 80
            t = 220 + 8 * (k % 4); k += 1
            for j in range(4):
                d.e("v_add_f32 v%d, v%d, v%d" % (t + j, E + j, O + j)); d.e("v_sub_f32 v%d, v%d, v%d" % (t + 4 + j, E + j, O + j))
            d.e("v_cvt_pk_bf16_f32 v%d, v%d, v%d" % (t, t, t + 1)); d.e("v_cvt_pk_bf16_f32 v%d, v%d, v%d" % (t + 1, t + 2, t + 3))
            d.e("v_cvt_pk_bf16_f32 v%d, v%d, v%d" % (t + 4, t + 4, t + 5)); d.e("v_cvt_pk_bf16_f32 v%d, v%d, v%d" % (t + 5, t + 6, t + 7))
            if o['m16']:
                off = (i // 2) * 1024 + u * 10240; ra, rb = (7, 6) if i % 2 == 0 else (4, 3)
                d.e("ds_write_b64 v%d, v[%d:%d] offset:%d" % (ra, t, t + 1, off)); d.e("ds_write_b64 v%d, v[%d:%d] offset:%d" % (rb, t + 4, t + 5, off))
                continue
            off = i * 1024 + (u >> 1) * 20480 + (u & 1) * 256
            d.e("ds_write_b64 v7, v[%d:%d] offset:%d" % (t, t + 1, off)); d.e("ds_write_b64 v6, v[%d:%d] offset:%d" % (t + 4, t + 5, off))
        X = 176 + 4 * i
        d.e("v_cvt_pk_bf16_f32 v%d, v%d, v%d" % (X, X, X + 1)); d.e("v_cvt_pk_bf16_f32 v%d, v%d, v%d" % (X + 1, X + 2, X + 3))
        if o['m16']: d.e("ds_write_b64 v%d, v[%d:%d] offset:%d" % (5 if i % 2 == 0 else 2, X, X + 1, (i // 2) * 64))
        else: d.e("ds_write_b64 v5, v[%d:%d] offset:%d" % (X, X + 1, i * 32))
    d.e("v_and_b32 v13, 31, v0"); d.e("v_lshrrev_b32 v14, 4, v13"); d.e("v_lshlrev_b32 v12, 10, v14")
    d.e("v_bfe_u32 v14, v13, 2, 1"); d.e("v_lshlrev_b32 v14, 9, v14"); d.e("v_add_u32 v12, v12, v14")
    d.e("v_bfe_u32 v14, v13, 3, 1"); d.e("v_lshlrev_b32 v14, 3, v14"); d.e("v_add_u32 v12, v12, v14")
    d.e("s_add_u32 s38, s28, 32"); d.e("s_mul_i32 s38, s38, %d" % T64B); d.e("s_lshl_b32 s3, s26, 12"); d.e("s_add_u32 s38, s38, s3")
    d.e("s_add_u32 s38, s38, %d" % (PART + 15 * SLOTB))
    d.waitmark("dma", 3); d.waitlg(0); d.e("s_barrier")
    stamp(d, 4)
    d.e("s_mul_i32 s3, s25, 40960"); d.e("s_add_u32 s3, s3, %d" % HB); d.e("v_add_u32 v1, s3, v11")
    d.e("v_lshrrev_b32 v13, %d, v0" % (4 if o['m16'] else 5)); d.e("v_lshlrev_b32 v13, 4, v13"); d.e("v_add_u32 v13, %d, v13" % HX)
    n0 = 0
    for n in range(LA[0] if o['m16'] else PF):
        d.e(rd2(n, 0, n0)); d.e(rd2(n, 1, n0))
    for kk, tq in (sorted(((kk, tq) for kk in range(10) for tq in range(5)), key=lambda z: (z[0] // 3, z[1], z[0])) if o['m16'] else []):
        j = kk * 4 + tq
        if tq < 4: d.e("ds_read_b128 a[%d:%d], v1 offset:%d" % (4 * j, 4 * j + 3, (tq * 10 + kk) * 1024))
        else: d.e("ds_read_b128 v[%d:%d], v13 offset:%d" % (112 + 4 * kk, 115 + 4 * kk, kk * 64))
    for kap in ([] if o['m16'] else range(20)):
        for n in range(2):
            j = kap * 2 + n
            d.e("ds_read_b128 a[%d:%d], v1 offset:%d" % (4 * j, 4 * j + 3, (n * 20 + kap) * 1024))
        r = (112 + 4 * kap) if kap < 16 else (192 + 4 * (kap - 16))
        d.e("ds_read_b128 v[%d:%d], v13 offset:%d" % (r, r + 3, kap * 32))
    stamp(d, 5)
    phase2(d, o, n0, 320, True)
    stamp(d, 6)
    if o['prof']: d.waitall()
    stamp(d, 7); prof_store(d, 1, 8, 8, 24, 14, 60)
    if o['cpf']: d.lab("K2_dft3")
    d.e("s_endpgm")
```
